```python
import torch

def _softmax(x, axis=-1):
    return torch.softmax(x, dim=axis)
def _gelu(x):
    return torch.nn.functional.gelu(x, approximate="tanh")
def _silu(x):
    return torch.nn.functional.silu(x)
def _sigmoid(x):
    return torch.sigmoid(x)
def _layernorm(x, axis=-1, eps=1e-5):
    m = x.mean(dim=axis, keepdim=True)
    v = x.var(dim=axis, keepdim=True, unbiased=False)
    return (x - m) / torch.sqrt(v + eps)
def _scatter_add(tgt, idx, src, axis=0):
    return tgt.clone().index_add_(axis, idx, src)
def _segment_sum(src, seg, n):
    out = torch.zeros((n,) + src.shape[1:], dtype=src.dtype)
    return out.index_add_(0, seg, src)
def _pad(x, pw):
    flat = tuple(v for pair in reversed(pw) for v in pair)
    return torch.nn.functional.pad(x, flat)

kernel_name = 'concat_heads__ssm_conv_h3__ssm_conv_h3__prompt'

def setup_inputs():

    _w = (lambda a: (lambda t: t.to(torch.bfloat16) if t.is_floating_point() else t)(torch.as_tensor(a)))
    def _A_setup():
        B, S, D = 1, 2048, 576
        ks = 4
        return {
            "q": _w((lambda *s: torch.randn(*s, dtype=torch.bfloat16) * 0.05)(B, S, D)),
            "k": _w((lambda *s: torch.randn(*s, dtype=torch.bfloat16) * 0.05)(B, S, D)),
            "v": _w((lambda *s: torch.randn(*s, dtype=torch.bfloat16) * 0.05)(B, S, D)),
            "shift_k": _w((lambda *s: torch.randn(*s, dtype=torch.bfloat16) * 0.05)(D, ks) * 0.5),
            "ssm_k": _w((lambda *s: torch.randn(*s, dtype=torch.bfloat16) * 0.05)(D, S) * (1.0 / S ** 0.5)),
            "ssm_D": _w((lambda *s: torch.randn(*s, dtype=torch.bfloat16) * 0.05)(D)),
        }
    _A_in = _A_setup()

    def _B_setup():
        B, S, D = 1, 2048, 576
        ks = 4
        return {
            "q": _w((lambda *s: torch.randn(*s, dtype=torch.bfloat16) * 0.05)(B, S, D)),
            "k": _w((lambda *s: torch.randn(*s, dtype=torch.bfloat16) * 0.05)(B, S, D)),
            "v": _w((lambda *s: torch.randn(*s, dtype=torch.bfloat16) * 0.05)(B, S, D)),
            "shift_k": _w((lambda *s: torch.randn(*s, dtype=torch.bfloat16) * 0.05)(D, ks) * 0.5),
            "ssm_k": _w((lambda *s: torch.randn(*s, dtype=torch.bfloat16) * 0.05)(D, S) * (1.0 / S ** 0.5)),
            "ssm_D": _w((lambda *s: torch.randn(*s, dtype=torch.bfloat16) * 0.05)(D)),
        }
    _B_in = _B_setup()

    return {
        "A_q": _A_in["q"],
        "A_k": _A_in["k"],
        "A_v": _A_in["v"],
        "A_shift_k": _A_in["shift_k"],
        "A_ssm_k": _A_in["ssm_k"],
        "A_ssm_D": _A_in["ssm_D"],
        "B_q": _B_in["q"],
        "B_k": _B_in["k"],
        "B_v": _B_in["v"],
        "B_shift_k": _B_in["shift_k"],
        "B_ssm_k": _B_in["ssm_k"],
        "B_ssm_D": _B_in["ssm_D"],
    }

def reference(A_q, A_k, A_v, A_shift_k, A_ssm_k, A_ssm_D, B_q, B_k, B_v, B_shift_k, B_ssm_k, B_ssm_D):
    def _A_ref(q, k, v, shift_k, ssm_k, ssm_D):
        B, S, D = q.shape
        ks = shift_k.shape[-1]
        k_pad = _pad(k, ((0, 0), (ks - 1, 0), (0, 0)))
        k_shift = torch.zeros_like(k)
        for t in range(ks):
            k_shift = k_shift + k_pad[:, t:t + S, :] * shift_k[:, ks - 1 - t][None, None, :]
        kv = k_shift * v
        L = 2 * S
        kv_pad = _pad(kv, ((0, 0), (0, S), (0, 0)))
        kf_pad = _pad(ssm_k, ((0, 0), (0, S)))
        kv_f = (lambda x, axes=(-2,-1): torch.fft.rfft2(x.float(), dim=axes))(kv_pad[:, None, :, :], axes=(1, 2))
        kf_f = (lambda x, axes=(-2,-1): torch.fft.rfft2(x.float(), dim=axes))(kf_pad[:, None, :], axes=(1, 2))
        kf_f = (lambda x, *d: x.permute(*d))(kf_f, 1, 2, 0)
        y_f = kv_f * kf_f[None, :, :, :]
        y = (lambda x, s, axes=(-2,-1): torch.fft.irfft2(x, s=s, dim=axes).to(torch.bfloat16))(y_f, (1, L), axes=(1, 2))[:, 0, :S, :]
        y = y + kv * ssm_D[None, None, :]
        return q * y

    def _B_ref(q, k, v, shift_k, ssm_k, ssm_D):
        B, S, D = q.shape
        ks = shift_k.shape[-1]
        k_pad = _pad(k, ((0, 0), (ks - 1, 0), (0, 0)))
        k_shift = torch.zeros_like(k)
        for t in range(ks):
            k_shift = k_shift + k_pad[:, t:t + S, :] * shift_k[:, ks - 1 - t][None, None, :]
        kv = k_shift * v
        L = 2 * S
        kv_pad = _pad(kv, ((0, 0), (0, S), (0, 0)))
        kf_pad = _pad(ssm_k, ((0, 0), (0, S)))
        kv_f = (lambda x, axes=(-2,-1): torch.fft.rfft2(x.float(), dim=axes))(kv_pad[:, None, :, :], axes=(1, 2))
        kf_f = (lambda x, axes=(-2,-1): torch.fft.rfft2(x.float(), dim=axes))(kf_pad[:, None, :], axes=(1, 2))
        kf_f = (lambda x, *d: x.permute(*d))(kf_f, 1, 2, 0)
        y_f = kv_f * kf_f[None, :, :, :]
        y = (lambda x, s, axes=(-2,-1): torch.fft.irfft2(x, s=s, dim=axes).to(torch.bfloat16))(y_f, (1, L), axes=(1, 2))[:, 0, :S, :]
        y = y + kv * ssm_D[None, None, :]
        return q * y

    a = _A_ref(A_q, A_k, A_v, A_shift_k, A_ssm_k, A_ssm_D)
    b = _B_ref(B_q, B_k, B_v, B_shift_k, B_ssm_k, B_ssm_D)
    return torch.concatenate([a, b], axis=-1)
```

```python
import sys, argparse

NAME = "concat_heads__ssm_conv_h3__ssm_conv_h3__prompt"

RS_IN = 1152
RS_OUT = 2304
TENS = 2359296
OUTB = 4718592
PLANE = 4640
XA_SZ = 4 * PLANE
U_SZ = 4224
XA0 = 0
U0 = 5 * XA_SZ
SCR0 = U0 + 5 * U_SZ
STG_SZ = 4992
FL0 = SCR0 + 9 * STG_SZ
LDS_SZ = FL0 + 64
F_N, F_M, C_U0, C_U1, C_H, F_X, F_U2, C_P, C_Y1, C_Y2, C_YX = [4 * i for i in range(11)]
CT_OFF = 16 << 20
G_GXU, G_GXY = 256, 512
L_HELLO, L_UX, L_YX, L_U1, L_U2, L_Y1, L_Y2 = 0, 128, 256, 512, 1024, 1536, 2048
TILE_STEP = 256 * RS_OUT
CAP_G = 1 << 15
CAP_L = 1 << 19
HELLO_T = 40

class Opt:
    optB = False
    stamps = False
    force_mode1 = False
    ld_nt = "nt"
    out_flag = ""
    lead = 8
    prefetch_code = True
    prefill = True
    sleep = 1
    cyc = False
    iso = False
    early = False
    twice = False

class Gen:
    def __init__(self, o):
        self.o = o
        self.L = []
        self.uid = 0
        self.cold = []
    def a(self, s):
        for ln in s.split("\n"):
            self.L.append("    " + ln.strip() if not ln.strip().endswith(":") else ln.strip())
    def flush_cold(self):
        c, self.cold = self.cold, []
        for fn in c: fn()
    def lab(self, base):
        self.uid += 1
        return f"L_{base}_{self.uid}"
    def srd(self, d, lo, nrec):
        if lo is not None and lo != d:
            self.a(f"s_mov_b64 s[{d}:{d+1}], s[{lo}:{lo+1}]")
        self.a(f"s_mov_b32 s{d+2}, {nrec}\ns_mov_b32 s{d+3}, 0x00020000")
    def stamp(self, i, late=None):
        if late is not None and self.o.early: i = late
        if self.o.stamps and i >= 0:
            self.a(f"{'s_memtime' if self.o.cyc else 's_memrealtime'} s[{98}:{99}]\ns_waitcnt lgkmcnt(0)\ns_mov_b32 s{88+i}, s98")

sWV, sG, sR, sH, sGQ = 3, 4, 5, 6, 7
sT0, sT1, sT2, sT3 = 8, 9, 10, 11
sM, sEV, sCNT, sSIG, sN = 12, 13, 14, 15, 101
pOUT, pDBG, pWS = 40, 42, 44
sK, sV, sQ, sW, sD, sXU, sXY, sOUT, sDBG, sHH = 48, 52, 56, 60, 64, 68, 72, 76, 80, 84
sROW0, sLC, sCOL, sLR, sCHJ, sX1, sX2, sX3, sX4, sISX, sE = 16, 17, 18, 19, 20, 21, 22, 23, 24, 25, 100
sDG = 60
sDGO = 34
sWMY = 28
sTS = 32
sGB = 33


def poll_line(G, vl4, soff, mask, vt, cnt, n, sleep=None, always=False):
    L, D, C, R = G.lab("pg"), G.lab("pgd"), G.lab("pgc"), G.lab("pgr")
    m = f"{mask:#x}" if isinstance(mask, int) else mask
    G.a(f"s_mov_b32 exec_lo, {m}\ns_mov_b32 exec_hi, 0")
    G.a(f"s_mov_b32 s{sCNT}, 0")
    G.a(f"{L}:")
    G.a(f"buffer_load_dword v{vt}, v{vl4}, s[{sDBG}:{sDBG+3}], s{soff} offen sc1")
    G.a(f"s_add_u32 s{sCNT}, s{sCNT}, 1")
    G.a("s_waitcnt vmcnt(0)")
    G.a(f"v_cmp_ne_u32 vcc, s{sN}, v{vt}")
    G.a(f"s_cbranch_vccz {D}")
    sl = G.o.sleep if sleep is None else sleep
    if sl:
        G.a(f"s_sleep {sl}")
    G.a(f"s_and_b32 s{sT0}, s{sCNT}, 63\ns_cbranch_scc1 {L}")
    G.a(f"s_branch {C}")
    G.a(f"{D}:")
    G.a("s_mov_b64 exec, -1")
    def cold():
        G.a(f"{C}:")
        if always is True:
            pass
        elif always:
            G.a(f"s_or_b32 s{sT0}, s{sM}, {always}\ns_cbranch_scc0 {R}")
        else:
            G.a(f"s_cmp_eq_u32 s{sM}, 0\ns_cbranch_scc1 {R}")
        G.a(f"s_mov_b32 exec_lo, 1\nv_mov_b32 v{vt}, 0")
        G.a(f"buffer_atomic_add v{vt}, off, s[{sDG}:{sDG+3}], {cnt[0]} offset:{cnt[1]} sc0 sc1")
        G.a(f"s_waitcnt vmcnt(0)")
        G.a(f"v_readfirstlane_b32 s{sT0}, v{vt}\ns_mov_b32 exec_lo, {m}")
        G.a(f"s_cmp_ge_u32 s{sT0}, {n}\ns_cbranch_scc1 {D}")
        G.a(f"{R}:")
        G.a(f"s_cmp_lt_u32 s{sCNT}, {CAP_G}\ns_cbranch_scc1 {L}\ns_branch {D}")
    G.cold.append(cold)


def poll_lds(G, vfl, off, expected, vt, sdst=sT0):
    L, D = G.lab("pl"), G.lab("pld")
    G.a(f"s_mov_b32 s{sCNT}, 0")
    G.a(f"{L}:")
    G.a(f"ds_read_b32 v{vt}, v{vfl} offset:{off}")
    G.a("s_waitcnt lgkmcnt(0)")
    G.a(f"v_readfirstlane_b32 s{sdst}, v{vt}")
    G.a(f"s_add_u32 s{sCNT}, s{sCNT}, 1")
    G.a(f"s_cmp_ge_u32 s{sdst}, {expected}")
    G.a(f"s_cbranch_scc1 {D}")
    G.a("s_sleep 1")
    G.a(f"s_cmp_lt_u32 s{sCNT}, {CAP_L}")
    G.a(f"s_cbranch_scc1 {L}")
    G.a(f"{D}:")


def signal(G, vn, v128, line, cnt, n, vt):
    A, B = G.lab("ma"), G.lab("mb")
    G.a(f"s_add_u32 s{sT1}, s{sEV}, {line}")
    G.a(f"s_mov_b64 exec, 15")
    G.a(f"s_cmp_eq_u32 s{sM}, 0\ns_cbranch_scc0 {A}")
    G.a(f"buffer_store_dword v{vn}, v{v128}, s[{sDBG}:{sDBG+3}], s{sT1} offen")
    G.a(f"{B}:")
    G.a("s_mov_b64 exec, -1")
    def cold():
        G.a(f"{A}:")
        G.a(f"s_mov_b64 exec, 1\nv_mov_b32 v{vt}, 1\ns_add_u32 s{sT1}, s{sDGO}, {cnt}")
        G.a(f"buffer_atomic_add v{vt}, off, s[{sDG}:{sDG+3}], s{sT1} sc0 sc1")
        G.a("s_waitcnt vmcnt(0)")
        G.a(f"v_readfirstlane_b32 s{sT0}, v{vt}")
        G.a(f"s_cmp_eq_u32 s{sT0}, {n-1}\ns_cbranch_scc0 {B}")
        G.a(f"s_mov_b32 exec_lo, -1\ns_add_u32 s{sT1}, s{sGB}, {line}")
        G.a(f"v_lshrrev_b32 v{vt+4}, 3, v{v128}")
        for k in range(4): G.a(f"v_mov_b32 v{vt+k}, v{vn}")
        G.a(f"buffer_store_dwordx4 v[{vt}:{vt+3}], v{vt+4}, s[{sDBG}:{sDBG+3}], s{sT1} offen sc1")
        G.a(f"buffer_store_dwordx4 v[{vt}:{vt+3}], v{vt+4}, s[{sDBG}:{sDBG+3}], s{sT1} offen")
        G.a(f"s_branch {B}")
    G.cold.append(cold)


def signal_x(G, vn, v128, line, cnt, vt):
    B = G.lab("sx")
    G.a(f"s_mov_b64 exec, 1\nv_mov_b32 v{vt}, 1\ns_lshl_b32 s{sT1}, s{sH}, 7")
    G.a(f"buffer_atomic_add v{vt}, off, s[{sDG}:{sDG+3}], s{sT1} offset:{cnt} sc0 sc1")
    G.a(f"s_lshl_b32 s{sT1}, s{sH}, 14\ns_add_u32 s{sT1}, s{sT1}, {4096 + line}")
    G.a("s_waitcnt vmcnt(0)")
    G.a(f"v_readfirstlane_b32 s{sT0}, v{vt}")
    G.a(f"s_cmp_eq_u32 s{sT0}, 127\ns_cbranch_scc0 {B}")
    G.a(f"s_mov_b64 exec, 15\nv_lshlrev_b32 v{vt}, 5, v{v128}")
    G.a(f"buffer_store_dword v{vn}, v{vt}, s[{sDBG}:{sDBG+3}], s{sT1} offen sc1")
    G.a(f"buffer_store_dword v{vn}, v{vt}, s[{sDBG}:{sDBG+3}], s{sT1} offen")
    G.a(f"{B}:")
    G.a("s_mov_b64 exec, -1")


def ctl_srd(G):
    G.a(f"s_add_u32 s{sDBG}, s{pWS}, {CT_OFF}\ns_addc_u32 s{sDBG+1}, s{pWS+1}, 0")
    G.srd(sDBG, None, 65536)
    G.a(f"s_lshl_b32 s{sGB}, s{sG}, 12\ns_add_u32 s{sGB}, s{sGB}, 4096\ns_lshl_b32 s{sEV}, s{sR}, 2\ns_add_u32 s{sEV}, s{sEV}, s{sGB}")
    G.srd(sDG, pDBG, 256)
    G.a(f"s_mul_i32 s{sDGO}, s{sGQ}, 20\ns_lshl_b32 s{sT0}, s{sH}, 7\ns_add_u32 s{sDGO}, s{sDGO}, s{sT0}\ns_add_u32 s{sDGO}, s{sDGO}, 8")


def get_mode(G, vfl, vt, vn):
    L, D = G.lab("gm"), G.lab("gmd")
    G.a(f"s_add_u32 s{sT2}, s{pWS}, {OUTB}\ns_addc_u32 s{sT3}, s{pWS+1}, 0")
    G.a(f"s_mov_b32 s{sCNT}, 0")
    G.a(f"{L}:")
    G.a(f"ds_read_b64 v[{vt}:{vt+1}], v{vfl} offset:{F_N}")
    G.a(f"s_add_u32 s{sCNT}, s{sCNT}, 1")
    G.a("s_waitcnt lgkmcnt(0)")
    G.a(f"v_readfirstlane_b32 s{sM}, v{vt+1}")
    G.a(f"v_readfirstlane_b32 s{sN}, v{vt}")
    G.a(f"s_cmp_ge_u32 s{sM}, 1")
    G.a(f"s_cbranch_scc1 {D}")
    G.a("s_sleep 1")
    G.a(f"s_cmp_lt_u32 s{sCNT}, {CAP_L}")
    G.a(f"s_cbranch_scc1 {L}")
    G.a(f"{D}:")
    G.a(f"v_mov_b32 v{vn}, v{vt}")
    G.a(f"s_sub_u32 s{sM}, s{sM}, 1")
    G.a(f"s_cmp_eq_u32 s{sM}, 0")
    G.a(f"s_cselect_b64 s[{sXU}:{sXU+1}], s[{pOUT}:{pOUT+1}], s[{pWS}:{pWS+1}]")
    G.a(f"s_cselect_b64 s[{sXY}:{sXY+1}], s[{pOUT}:{pOUT+1}], s[{sT2}:{sT3}]")
    G.srd(sXU, None, OUTB)
    G.srd(sXY, None, OUTB)


def xa_loads(G, b, va, vb, q):
    nt = G.o.ld_nt
    G.a(f"buffer_load_dwordx4 v[{b+2}:{b+5}], v{va}, s[{sHH}:{sHH+3}], 0 offen offset:{1024*q} {nt}")
    if q == 0:
        G.a(f"buffer_load_dwordx2 v[{b}:{b+1}], v{vb}, s[{sHH}:{sHH+3}], 0 offen {nt}")
    else:
        G.a(f"buffer_load_dwordx2 v[{b}:{b+1}], v{va}, s[{sHH}:{sHH+3}], 0 offen offset:{1024*q-8} {nt}")


def xa_build(G, b, t, vdst, off):
    w = lambda i: b + 2 + i
    for i in range(4):
        G.a(f"v_alignbit_b32 v{t+i}, v{w(i-1)}, v{w(i-2)}, 16")
    G.a(f"ds_write_b128 v{vdst}, v[{b+2}:{b+5}] offset:{off + 3*PLANE}")
    for i in range(4):
        G.a(f"v_alignbit_b32 v{t+4+i}, v{w(i)}, v{w(i-1)}, 16")
    G.a(f"ds_write_b128 v{vdst}, v[{t}:{t+3}] offset:{off}")
    for i in range(4):
        G.a(f"v_mov_b32 v{t+8+i}, v{w(i-1)}")
    G.a(f"ds_write_b128 v{vdst}, v[{t+4}:{t+7}] offset:{off + 2*PLANE}")
    G.a(f"ds_write_b128 v{vdst}, v[{t+8}:{t+11}] offset:{off + PLANE}")


def transpose4(G, regs):
    G.a("s_nop 1")
    for j in (0, 1):
        for d in (0, 1):
            G.a(f"v_permlane32_swap_b32 v{regs[j]+d}, v{regs[j+2]+d}")
    G.a("s_nop 1")
    for j in (0, 2):
        for d in (0, 1):
            G.a(f"v_permlane16_swap_b32 v{regs[j]+d}, v{regs[j+1]+d}")


def u_dma(G, vsrc, srd, ubase_s, qs):
    for q in qs:
        G.a(f"s_add_u32 s{sT0}, s{ubase_s}, {1024*q}\ns_mov_b32 m0, s{sT0}")
        G.a(f"s_mov_b32 s{sT1}, {(3-q)*32*16*RS_OUT}")
        G.a(f"buffer_load_dwordx4 v{vsrc}, s[{srd}:{srd+3}], s{sT1} offen sc1 lds")


def finish(G):
    if G.o.stamps:
        G.stamp(7)
        G.a(f"s_add_u32 s{sT2}, s{pWS}, {64<<20}\ns_addc_u32 s{sT3}, s{pWS+1}, 0")
        G.srd(sK, sT2, 1 << 20)
        G.a(f"s_lshl_b32 s{sT0}, s2, 4\ns_add_u32 s{sT0}, s{sT0}, s{sWV}\ns_lshl_b32 s{sT0}, s{sT0}, 5")
        for i in range(8):
            G.a(f"v_mov_b32 v{8+i}, s{88+i}")
        G.a("s_mov_b64 exec, 1")
        G.a(f"buffer_store_dwordx4 v[8:11], off, s[{sK}:{sK+3}], s{sT0}")
        G.a(f"buffer_store_dwordx4 v[12:15], off, s[{sK}:{sK+3}], s{sT0} offset:16")
    G.a("s_endpgm")
    G.flush_cold()


class Stream:
    def __init__(self, G, slots, lead):
        self.G, self.slots, self.lead = G, slots, lead
        self.mf = []
        self.side = {}
        self.gate = {}
    def mfma(self, acc, A, B, zero):
        self.mf.append((acc, A, B, zero))
    def at(self, pos, fn):
        self.side.setdefault(pos, []).append(fn)
    def emit(self, loadtext):
        G = self.G
        n = len(self.mf)
        first, last, order = {}, {}, []
        for i, (acc, A, B, z) in enumerate(self.mf):
            for k in (A, B):
                if k not in first:
                    first[k] = i; order.append(k)
                last[k] = i
        free = [0] * len(self.slots)
        sched = {}
        cnt = [0] * (n + 1)
        slot_of = {}
        prev = 0
        for k in order:
            s = min(range(len(free)), key=lambda j: free[j])
            ops = loadtext(k, self.slots[s])
            lo = max(self.gate.get(k[0:2] + (k[2] >> 2,), 0), free[s], prev)
            slot_of[k] = self.slots[s]
            for op in ops:
                p = max(lo, first[k] - self.lead)
                while p < first[k] - 3 and cnt[p] >= 1:
                    p += 1
                p = min(p, first[k])
                assert p >= lo, (k, p, lo)
                cnt[p] += 1
                sched.setdefault(p, []).append((k, op))
                prev = lo = p
            free[s] = last[k] + 1
        self.nds = 0
        self.done = 0
        ready = {}
        for i in range(n + 1):
            for fn in self.side.get(i, []):
                fn(self)
            for k, op in sched.get(i, []):
                G.a(op); self.nds += 1; ready[k] = self.nds
            if i == n: break
            acc, A, B, z = self.mf[i]
            self.need(max(ready[A], ready[B]))
            a_, b_ = slot_of[A], slot_of[B]
            c = "0" if z else f"v[{acc}:{acc+3}]"
            G.a(f"v_mfma_f32_16x16x32_bf16 v[{acc}:{acc+3}], v[{a_}:{a_+3}], v[{b_}:{b_+3}], {c}")
        self.stats = (n, sum(cnt), max(cnt), sum(1 for c in cnt if c > 1))
    def ds(self, text):
        self.G.a(text); self.nds += 1
        return self.nds
    def need(self, idx):
        if idx > self.done:
            out = min(self.nds - idx, 15)
            self.G.a(f"s_waitcnt lgkmcnt({out})")
            self.done = self.nds - out


def c_stream(G, ts):
    o = G.o
    vA, vB, vAX, vBX, vY, vYX, vSW, vSR, vFL, vONE, v128, vT, vN = 1, 2, 3, 4, 5, 6, 7, 8, 9, 10, 11, 12, 14
    ACC = 16
    PK = 48
    slots = [56 + 4 * i for i in range(18)]
    S = Stream(G, slots, o.lead)
    acc = lambda t: ACC + 4 * t
    seen = set()
    def add(ph, ch, pairs, ys, accf):
        for y in ys:
            for (x, b) in pairs:
                r = accf(x + b)
                S.mfma(r, (ph, "A", x, y, ch), (ph, "B", b, y, ch), (r, ch) not in seen)
                seen.add((r, ch))
    def loadtext(k, r):
        ph, typ, i, y, ch = k
        if typ == "A":
            return [f"ds_read_b128 v[{r}:{r+3}], v{vAX if ch else vA} offset:{512*i + 64*y}"]
        off = 512 * (7 - i) + 64 * y
        v = vBX if ch else vB
        return [f"ds_read_b64 v[{r}:{r+1}], v{v} offset:{off}", f"ds_read_b64 v[{r+2}:{r+3}], v{v} offset:{off+8}"]
    p1 = [(x, b) for x in range(4) for b in range(4)]
    p1.sort(key=lambda p: (max(p), p[0] + p[1]))
    p2 = [(4, 0), (5, 0), (4, 1), (6, 0), (5, 1), (4, 2), (7, 0), (6, 1), (5, 2), (4, 3)]
    p3 = [(b - 4 if False else x, b) for (b, x) in p2]
    tiles = [0, 3, 4, 7] if ts == 0 else [1, 2, 5, 6]
    px = [(x, b) for x in range(4, 8) for b in range(4) if x + b in tiles] + \
         [(x, b) for x in range(4) for b in range(4) if x + b in tiles] + \
         [(x, b) for x in range(4) for b in range(4, 8) if x + b in tiles]
    assert len(px) == 18
    add(1, 0, p1, range(8), acc)
    e1 = len(S.mf)
    add(2, 1, px, range(2), lambda t: acc(tiles.index(t)))
    ex = len(S.mf)
    add(3, 0, p2, range(8), acc)
    e2 = len(S.mf)
    add(4, 0, p3, range(8), acc)
    e3 = len(S.mf)

    def check(off, expected):
        st = {}
        def rd(S_):
            st["i"] = S_.ds(f"ds_read_b32 v{vT}, v{vFL} offset:{off}")
        def ck(S_):
            S_.need(st["i"])
            if o.iso: return
            D = G.lab("ck")
            G.a(f"v_readfirstlane_b32 s{sT0}, v{vT}")
            G.a(f"s_cmp_ge_u32 s{sT0}, {expected}")
            G.a(f"s_cbranch_scc1 {D}")
            poll_lds(G, vFL, off, expected, vT)
            G.a(f"{D}:")
        return rd, ck
    def count(off):
        def f(S_):
            G.a("s_mov_b64 exec, 1")
            S_.ds(f"ds_add_u32 v{vFL}, v{vONE} offset:{off}")
            G.a("s_mov_b64 exec, -1")
        return f
    def ystore(t0, nopn):
        def f(S_):
            if nopn: G.a(f"s_nop {nopn-1}")
            for i in range(4):
                r = acc(t0 + i)
                G.a(f"v_cvt_pk_bf16_f32 v{PK+2*i}, v{r}, v{r+1}")
                G.a(f"v_cvt_pk_bf16_f32 v{PK+2*i+1}, v{r+2}, v{r+3}")
            A, B = G.lab("ys"), G.lab("yd")
            G.a(f"s_cmp_eq_u32 s{sM}, 0\ns_cbranch_scc0 {A}")
            for fl in ("", "sc1"):
                for i in range(4):
                    G.a(f"s_mov_b32 s{sT1}, {(t0+i)*TILE_STEP}")
                    G.a(f"buffer_store_dwordx2 v[{PK+2*i}:{PK+2*i+1}], v{vY}, s[{sXY}:{sXY+3}], s{sT1} offen {fl}")
                if fl == "":
                    G.a(f"s_branch {B}\n{A}:")
            G.a(f"{B}:")
        return f
    Ld = o.lead + 2
    rd, ck = check(F_X, 1)
    S.at(e1 - Ld - 6, rd); S.at(e1 - Ld, ck)
    for typ in "AB":
        for h in (0, 1):
            S.gate[(2, typ, h)] = e1 - Ld
    rd, ck = check(C_H, 8)
    S.at(ex - Ld - 6, rd); S.at(ex - Ld, ck)
    S.gate[(3, "A", 1)] = ex - Ld
    rd, ck = check(F_U2, 1)
    S.at(e2 - Ld - 6, rd); S.at(e2 - Ld, ck)
    S.gate[(4, "B", 1)] = e2 - Ld
    if o.stamps and not o.early: S.at(e1, lambda S_: (G.stamp(3, -1), setattr(S_, "done", S_.nds)))
    S.at(e1, ystore(0, 8))
    S.at(e1, lambda S_: G.a("s_nop 1"))
    S.at(e1 + 30, lambda S_: G.a("s_waitcnt vmcnt(0)"))
    S.at(e1 + 30, count(C_Y1))
    def pwrite(S_):
        for i in range(4):
            r = acc(i)
            S_.last_pw = S_.ds(f"ds_write_b128 v{vSW}, v[{r}:{r+3}] offset:{4096*i}")
    S.at(ex + 8, pwrite)
    S.at(ex + 14, lambda S_: S_.need(S_.last_pw))
    S.at(ex + 14, count(C_P))
    rd, ck = check(C_P, 4)
    S.at(ex + 34, rd); S.at(ex + 40, ck)
    def pread(S_):
        for i in range(4):
            r = acc(i)
            S_.last_pr = S_.ds(f"ds_read_b128 v[{r}:{r+3}], v{vSR} offset:{1024*i}")
    S.at(ex + 40, pread)
    def psum(S_):
        S_.need(S_.last_pr)
        a0, a1, a2, a3 = [acc(i) for i in range(4)]
        for d in range(4): G.a(f"v_add_f32 v{a0+d}, v{a0+d}, v{a1+d}")
        for d in range(4): G.a(f"v_add_f32 v{a2+d}, v{a2+d}, v{a3+d}")
        for d in range(4): G.a(f"v_add_f32 v{a0+d}, v{a0+d}, v{a2+d}")
        G.a(f"v_cvt_pk_bf16_f32 v{PK}, v{a0}, v{a0+1}")
        G.a(f"v_cvt_pk_bf16_f32 v{PK+1}, v{a0+2}, v{a0+3}")
        G.a(f"buffer_store_dwordx2 v[{PK}:{PK+1}], v{vYX}, s[{sWMY}:{sWMY+3}], s{sX1} offen sc1")
    S.at(ex + 48, psum)
    if o.stamps: S.at(e2, lambda S_: (G.stamp(5), setattr(S_, "done", S_.nds)))
    if o.stamps and not o.early: S.at(ex, lambda S_: (G.stamp(4, -1), setattr(S_, "done", S_.nds)))
    S.at(e2 + 20, lambda S_: G.a("s_waitcnt vmcnt(0)"))
    S.at(e2 + 20, count(C_YX))
    S.at(e3, ystore(4, 8))
    S.emit(loadtext)
    G.stamp(6)
    G.a("s_waitcnt vmcnt(0)")
    G.a("s_mov_b64 exec, 1")
    G.a(f"ds_add_rtn_u32 v{vT}, v{vFL}, v{vONE} offset:{C_Y2}")
    G.a("s_waitcnt lgkmcnt(0)")
    G.a(f"v_readfirstlane_b32 s{sT0}, v{vT}")
    D = G.lab("cy")
    G.a(f"s_cmp_eq_u32 s{sT0}, 3\ns_cbranch_scc0 {D}")
    signal(G, vN, v128, L_Y2, 16, 32, 16)
    G.a(f"{D}:")
    finish(G)
    return S.stats


def gen(o):
    G = Gen(o)
    a = G.a
    nt = o.ld_nt
    K = NAME + "_kernel"
    NU = 16 if o.optB else 32
    MU1 = 0xffff if o.optB else 0xffffffff
    MU2 = 0xffff0000 if o.optB else 0xffffffff
    a(f"{K}:")
    a("s_cmp_ge_u32 s2, 256\ns_cbranch_scc1 L_exit")
    if o.stamps:
        a("s_memtime s[88:89]" if o.cyc else "s_memrealtime s[88:89]")
    a("s_load_dwordx16 s[16:31], s[0:1], 0")
    a("s_load_dwordx8 s[32:39], s[0:1], 64")
    a("s_load_dwordx4 s[40:43], s[0:1], 96")
    a("s_load_dwordx2 s[44:45], s[0:1], 112")
    a("v_lshrrev_b32 v1, 6, v0")
    if o.prefetch_code:
        a(f"s_getpc_b64 s[{sT0}:{sT1}]")
        a("L_pc:")
        a(f"v_lshlrev_b32 v2, 7, v0\nv_min_u32 v2, L_exit-L_pc, v2")
        a(f"global_load_dword v125, v2, s[{sT0}:{sT1}]")
    else:
        a("s_nop 0")
    a(f"v_readfirstlane_b32 s{sWV}, v1")
    a("v_and_b32 v0, 63, v0")
    a(f"s_and_b32 s{sG}, s2, 7\ns_lshr_b32 s{sR}, s2, 3\ns_lshr_b32 s{sH}, s{sG}, 2\ns_and_b32 s{sGQ}, s{sG}, 3")
    a(f"s_cmp_eq_u32 s{sWV}, 13\ns_cbranch_scc1 L_Si")
    a(f"s_cmp_lt_u32 s{sWV}, 4\ns_cbranch_scc1 L_Ci")

    vIN, vK3, vWo, vDo, vG, vL = 1, 2, 3, 4, 5, 6
    vFL, vONE, vX, vO1, vO2, vT, vN, vL4, v128, vRD = 7, 8, 9, 10, 11, 12, 14, 15, 124, 126
    WR, DR, KR, VR, QR = 16, 24, 26, 40, 48
    WF, KF, KS, PKU = 56, 72, 100, 116
    a(f"s_sub_u32 s{sE}, s{sWV}, 4")
    a(f"s_lshl_b32 s{sT0}, s{sGQ}, 1\ns_and_b32 s{sT1}, s{sE}, 1\ns_add_u32 s{sT0}, s{sT0}, s{sT1}")
    if o.optB:
        a(f"s_lshl_b32 s{sT1}, s{sR}, 2\ns_lshr_b32 s{sT2}, s{sE}, 1\ns_add_u32 s{sT1}, s{sT1}, s{sT2}")
    else:
        a(f"s_lshl_b32 s{sT1}, s{sR}, 1\ns_lshr_b32 s{sT2}, s{sE}, 2\ns_lshl_b32 s{sT2}, s{sT2}, 6\ns_add_u32 s{sT1}, s{sT1}, s{sT2}")
        a(f"s_bfe_u32 s{sT2}, s{sE}, {(1<<16)|1}\ns_add_u32 s{sT1}, s{sT1}, s{sT2}")
    a(f"s_lshl_b32 s{sT2}, s{sGQ}, 5\ns_add_u32 s{sT2}, s{sT2}, s{sR}")
    a(f"v_lshrrev_b32 v{vK3}, 3, v0\nv_mul_u32_u24 v{vK3}, {RS_IN}, v{vK3}\nv_and_b32 v{vWo}, 7, v0\nv_lshl_add_u32 v{vK3}, v{vWo}, 4, v{vK3}")
    a(f"s_cmp_eq_u32 s{sE}, 8")
    a(f"s_cselect_b32 s46, 8, s{sT0}\ns_cselect_b32 s47, s{sT2}, s{sT1}")
    a(f"s_mul_i32 s{sT0}, s47, {16*RS_IN}\ns_lshl_b32 s{sT1}, s46, 7\ns_add_u32 s{sSIG}, s{sT0}, s{sT1}")
    a(f"v_add_u32 v{vIN}, s{sSIG}, v{vK3}")
    a(f"s_lshl_b32 s{sT2}, s46, 9")
    a(f"v_lshl_add_u32 v{vWo}, v0, 4, s{sT2}")
    a(f"v_add_u32 v{vK3}, {(-3*RS_IN) & 0xffffffff}, v{vIN}")
    G.srd(sK, None, TENS); G.srd(sV, None, TENS); G.srd(sW, None, 4608)
    a(f"s_mul_i32 s{sN}, s{sE}, {STG_SZ}\ns_add_u32 s{sN}, s{sN}, {SCR0}")
    a(f"s_cmp_eq_u32 s{sH}, 0")
    a("s_waitcnt lgkmcnt(0)")
    if o.early: G.stamp(1)
    a(f"s_cselect_b64 s[{sK}:{sK+1}], s[18:19], s[30:31]")
    a(f"s_cselect_b64 s[{sV}:{sV+1}], s[20:21], s[32:33]")
    a(f"s_cselect_b64 s[{sW}:{sW+1}], s[22:23], s[34:35]")
    a(f"s_cselect_b64 s[{sD}:{sD+1}], s[26:27], s[38:39]")
    a(f"s_cselect_b64 s[{sQ}:{sQ+1}], s[16:17], s[28:29]")
    a(f"s_cselect_b64 s[{sHH}:{sHH+1}], s[24:25], s[36:37]")
    if not o.optB:
        a(f"s_and_b32 s{sT0}, s{sE}, 4\ns_cbranch_scc0 L_Eg\ns_barrier\nL_Eg:")
    a(f"s_mov_b32 m0, s{sN}\ns_add_u32 s{sT0}, s{sN}, 1024\ns_mov_b32 s{sT1}, {5*RS_IN}")
    a(f"buffer_load_dwordx4 v{vK3}, s[{sK}:{sK+3}], 0 offen {nt} lds")
    a(f"s_mov_b32 m0, s{sT0}\ns_add_u32 s{sT0}, s{sN}, 2048")
    a(f"buffer_load_dwordx4 v{vIN}, s[{sK}:{sK+3}], s{sT1} offen {nt} lds")
    a(f"s_mov_b32 m0, s{sT0}\ns_mov_b32 s{sT1}, {13*RS_IN}\ns_mov_b64 exec, 0xffffff\ns_add_u32 s{sT0}, s{sN}, 4480")
    a(f"buffer_load_dwordx4 v{vIN}, s[{sK}:{sK+3}], s{sT1} offen {nt} lds")
    a(f"s_mov_b32 m0, s{sT0}\ns_mov_b32 exec_lo, -1\ns_add_u32 s{sT0}, s{sN}, 2432")
    a(f"buffer_load_dwordx4 v{vWo}, s[{sW}:{sW+3}], 0 offen lds")
    a(f"s_mov_b32 m0, s{sT0}\ns_mov_b64 exec, -1\ns_add_u32 s{sT0}, s{sN}, {2432+1024}")
    a(f"buffer_load_dwordx4 v{vIN}, s[{sV}:{sV+3}], 0 offen {nt} lds")
    a(f"s_mov_b32 m0, s{sT0}\ns_mov_b32 s{sT1}, {8*RS_IN}")
    a(f"buffer_load_dwordx4 v{vIN}, s[{sV}:{sV+3}], s{sT1} offen {nt} lds")
    if o.early: G.stamp(2)
    a("s_branch L_Em")

    cHA, cHB, cHB0, cPF, cZ, cU = 100, 101, 102, 103, 56, 60
    a("L_Ci:")
    a(f"s_and_b32 s{sT0}, s{sR}, 15\ns_lshr_b32 s46, s{sR}, 4\ns_lshl_b32 s{sT1}, s{sGQ}, 1\ns_add_u32 s46, s46, s{sT1}")
    a(f"s_and_b32 s{sT1}, s{sT0}, 12\ns_add_u32 s{sT1}, s{sT1}, s{sWV}\ns_lshl_b32 s{sT1}, s{sT1}, 2\ns_and_b32 s{sT2}, s{sT0}, 3\ns_add_u32 s{sT1}, s{sT1}, s{sT2}")
    a(f"s_lshl_b32 s{sT2}, s46, 6\ns_add_u32 s{sT1}, s{sT1}, s{sT2}")
    a(f"s_lshl_b32 s{sT1}, s{sT1}, 12")
    a(f"v_lshl_add_u32 v{cHA}, v0, 4, s{sT1}\nv_add_u32 v{cHB}, -8, v{cHA}")
    a(f"v_cmp_eq_u32 vcc, 0, v0\nv_mov_b32 v{cHB0}, 0xffffff00")
    a(f"s_mul_i32 s47, s{sH}, 1152\ns_lshl_b32 s{sT2}, s46, 7\ns_add_u32 s47, s47, s{sT2}")
    a(f"v_cndmask_b32 v{cHB0}, v{cHB}, v{cHB0}, vcc")
    a(f"s_mul_i32 s{sT0}, s{sT0}, {RS_OUT}\ns_add_u32 s47, s47, s{sT0}")
    G.srd(sHH, None, TENS)
    if o.prefill:
        G.srd(sOUT, None, OUTB)
        a(f"s_mul_i32 s{sT0}, s{sWV}, {32*16*RS_OUT}\ns_add_u32 s{sT0}, s{sT0}, s47")
        a(f"v_lshrrev_b32 v{cPF}, 1, v0\nv_mul_u32_u24 v{cPF}, {16*RS_OUT}, v{cPF}")
    a(f"s_cmp_eq_u32 s{sH}, 0")
    a("s_waitcnt lgkmcnt(0)")
    if o.early: G.stamp(1)
    a(f"s_cselect_b64 s[{sHH}:{sHH+1}], s[24:25], s[36:37]")
    xa_loads(G, 64, cHA, cHB0, 0)
    xa_loads(G, 72, cHA, cHB, 1)
    if o.prefill:
        a(f"s_mov_b64 s[{sOUT}:{sOUT+1}], s[{pOUT}:{pOUT+1}]")
        a(f"buffer_load_dword v{cPF}, v{cPF}, s[{sOUT}:{sOUT+3}], s{sT0} offen {nt}")
    if o.early: G.stamp(2)
    a("s_branch L_Cm")

    vFL_, vONE_, v128_, vT_, vN_, vL4_, vZ, vHA, vHB, vHB0, vU, vU1 = 1, 2, 3, 4, 6, 7, 8, 12, 13, 14, 15, 16
    a("L_Si:")
    for i in range(4): a(f"v_mov_b32 v{vZ+i}, 0")
    a(f"v_lshlrev_b32 v{vL4_}, 2, v0\nv_min_u32 v{vT_}, 60, v{vL4_}\nv_add_u32 v{vT_}, {FL0}, v{vT_}\nds_write_b32 v{vT_}, v{vZ}")
    a(f"v_lshlrev_b32 v{v128_}, 7, v0")
    a(f"s_lshl_b32 s46, s{sH}, 7")
    a("s_waitcnt lgkmcnt(0)")
    if o.early: G.stamp(1)
    a(f"s_cmp_eq_u32 s{sH}, 0")
    a(f"s_cselect_b64 s[{sHH}:{sHH+1}], s[24:25], s[36:37]")
    ctl_srd(G)
    a(f"s_load_dword s{sN}, s[{sDBG}:{sDBG+1}], s46")
    a("s_barrier")
    if o.iso:
        a(f"v_mov_b32 v{vFL_}, {FL0}\nv_mov_b32 v{vT_}, 2\nv_mov_b32 v{vT_+1}, 2\nds_write_b64 v{vFL_}, v[{vT_}:{vT_+1}] offset:{F_N}\ns_waitcnt lgkmcnt(0)\ns_endpgm")
    a(f"v_min_u32 v{vT_}, {19*128}, v{v128_}")
    a(f"buffer_load_dword v{vT_}, v{vT_}, s[{sDBG}:{sDBG+3}], s{sGB} offen nt")
    a(f"s_getreg_b32 s47, hwreg(HW_REG_XCC_ID, 0, 4)")
    a(f"v_lshlrev_b32 v{vHA}, 4, v0")
    a(f"v_add_u32 v{vHB}, {U0 + 4*U_SZ + U_SZ - 1024}, v{vHA}\nds_write_b128 v{vHB}, v[{vZ}:{vZ+3}]")
    a(f"v_add_u32 v{vU1}, {XA0 + 4*XA_SZ}, v{vHA}")
    for p in range(4):
        a(f"ds_write_b128 v{vU1}, v[{vZ}:{vZ+3}] offset:{p*PLANE}")
    G.srd(sHH, None, TENS)
    a(f"v_mov_b32 v{vFL_}, {FL0}\nv_mov_b32 v{vONE_}, 1")
    a("s_waitcnt lgkmcnt(0)")
    G.stamp(1, 3)
    a(f"s_and_b32 s{sN}, s{sN}, 0xfffffff0\ns_add_u32 s{sN}, s{sN}, 0x9e3779b0")
    a(f"s_add_u32 s47, s47, s{sN}\ns_add_u32 s47, s47, 1\nv_mov_b32 v{vN_}, s47")
    a(f"s_mov_b64 exec, 1")
    a(f"buffer_store_dword v{vN_}, off, s[{sDBG}:{sDBG+3}], s{sEV}")
    a(f"s_mov_b32 exec_lo, -1\ns_mov_b32 s{sCNT}, 0\ns_mov_b32 s{sM}, 0")
    HL, HD, HP = G.lab("hl"), G.lab("hd"), G.lab("hp")
    a(f"{HL}:")
    if not o.force_mode1:
        a(f"buffer_load_dword v{vT_}, v{vL4_}, s[{sDBG}:{sDBG+3}], s{sGB} offen sc1")
        a(f"s_add_u32 s{sCNT}, s{sCNT}, 1")
        a("s_waitcnt vmcnt(0)")
        a(f"v_cmp_ne_u32 vcc, s47, v{vT_}")
        a(f"s_cbranch_vccz {HD}")
        a(f"s_cmp_lt_u32 s{sCNT}, {HELLO_T}\ns_cbranch_scc1 {HL}")
        a(f"s_sub_u32 s{sT2}, s47, s{sN}\ns_sub_u32 s{sT2}, s{sT2}, 1\ns_mul_i32 s{sT3}, s{sT2}, s{sT2}\ns_lshl_b32 s{sT3}, s{sT3}, 16")
        a(f"s_lshl_b32 s{sT2}, s{sT2}, 8\ns_add_u32 s{sT2}, s{sT2}, s{sT3}\ns_add_u32 s{sT2}, s{sT2}, 1\ns_lshl_b32 s{sT3}, s{sT2}, 5")
        a(f"s_cmp_eq_u32 s{sCNT}, {HELLO_T}\ns_cselect_b32 s{sT2}, s{sT2}, 0")
        a(f"s_mov_b32 exec_lo, 1\nv_mov_b32 v{vT_}, s{sT2}")
        a(f"buffer_atomic_add v{vT_}, off, s[{sDG}:{sDG+3}], s{sDGO} sc0 sc1")
        a("s_waitcnt vmcnt(0)")
        a(f"v_readfirstlane_b32 s{sT0}, v{vT_}\ns_mov_b32 exec_lo, -1")
        a(f"s_cmp_eq_u32 s{sT0}, s{sT3}\ns_cbranch_scc1 {HD}")
        a(f"s_and_b32 s{sT0}, s{sT0}, 0xff\ns_cmp_ge_u32 s{sT0}, 32\ns_cselect_b32 s{sM}, 1, 0\ns_cbranch_scc1 {HD}")
        a(f"s_sleep 32")
        a(f"s_cmp_lt_u32 s{sCNT}, {CAP_G}\ns_cbranch_scc1 {HL}")
    else:
        a(f"s_mov_b32 s{sM}, 1\ns_waitcnt vmcnt(0)")
    a(f"{HD}:")
    a("s_mov_b64 exec, -1")
    a(f"s_add_u32 s{sT0}, s{sM}, 1\nv_mov_b32 v{vT_}, s{sN}\nv_mov_b32 v{vT_+1}, s{sT0}")
    a(f"ds_write_b64 v{vFL_}, v[{vT_}:{vT_+1}] offset:{F_N}")
    G.stamp(2, 4)
    a(f"s_lshl_b32 s{sT0}, s{sGQ}, 5\ns_add_u32 s{sT0}, s{sT0}, s{sR}\ns_lshr_b32 s{sX2}, s{sT0}, 1")
    a(f"s_add_u32 s{sT0}, s{sX2}, 512\ns_lshl_b32 s{sT0}, s{sT0}, 12")
    a(f"v_add_u32 v{vHA}, s{sT0}, v{vHA}\nv_add_u32 v{vHB}, -8, v{vHA}")
    a(f"v_cmp_eq_u32 vcc, 0, v0\nv_mov_b32 v{vHB0}, 0xffffff00\ns_nop 0\nv_cndmask_b32 v{vHB0}, v{vHB}, v{vHB0}, vcc")
    for q in range(4):
        xa_loads(G, 32 + 8 * q, vHA, vHB0, q)
    get_mode(G, vFL_, vT_, vN_)
    G.srd(sK, pWS, OUTB)
    a(f"v_lshrrev_b32 v{vU}, 1, v0\nv_sub_u32 v{vU}, 31, v{vU}\nv_mul_u32_u24 v{vU}, {16*RS_OUT}, v{vU}")
    a(f"v_and_b32 v{vT_}, 1, v0\nv_lshl_add_u32 v{vU}, v{vT_}, 4, v{vU}")
    a(f"s_lshr_b32 s{sT1}, s{sX2}, 4\ns_lshl_b32 s{sT1}, s{sT1}, 2\ns_and_b32 s{sT2}, s{sX2}, 3\ns_add_u32 s{sT1}, s{sT1}, s{sT2}\ns_mul_i32 s{sT1}, s{sT1}, {RS_OUT}")
    a(f"s_bfe_u32 s{sT2}, s{sX2}, {(2<<16)|2}\ns_lshl_b32 s{sT2}, s{sT2}, 5\ns_add_u32 s{sT1}, s{sT1}, s{sT2}")
    a(f"s_mul_i32 s{sX3}, s{sH}, 1152\ns_add_u32 s{sT1}, s{sT1}, s{sX3}\ns_add_u32 s{sT1}, s{sT1}, 1024")
    a(f"v_add_u32 v{vHA}, s{sT1}, v{vU}")
    a(f"s_and_b32 s{sT0}, s{sR}, 15\ns_mul_i32 s{sT0}, s{sT0}, {RS_OUT}\ns_add_u32 s{sX3}, s{sX3}, s{sT0}")
    a(f"s_lshr_b32 s{sT0}, s{sR}, 4\ns_lshl_b32 s{sT1}, s{sGQ}, 1\ns_add_u32 s{sT0}, s{sT0}, s{sT1}\ns_lshl_b32 s{sT0}, s{sT0}, 7\ns_add_u32 s{sX3}, s{sX3}, s{sT0}")
    a(f"v_add_u32 v{vU}, s{sX3}, v{vU}")
    for q in range(4):
        a(f"s_waitcnt vmcnt({6-2*q})")
        xa_build(G, 32 + 8 * q, 64 + 12 * (q & 1), vU1, 384 + 1024 * q)
    G.stamp(3, -1)
    a(f"s_add_u32 s{sX2}, s{sGB}, {L_UX}")
    poll_line(G, vL4_, sX2, 1, vT_, ("s46", 0), 128, sleep=2, always=True)
    a(f"s_mov_b32 s{sX4}, {U0 + 4*U_SZ}\ns_waitcnt lgkmcnt(0)")
    u_dma(G, vHA, sK, sX4, (3, 2, 1, 0))
    a("s_waitcnt vmcnt(0)")
    a(f"ds_write_b32 v{vFL_}, v{vONE_} offset:{F_X}")
    G.stamp(4, -1)
    a(f"s_add_u32 s{sX2}, s{sGB}, {L_U2}")
    poll_line(G, vL4_, sX2, MU2, vT_, (f"s{sDGO}", 8), NU, sleep=2)
    for j in range(4):
        a(f"s_mov_b32 s{sX4}, {U0 + j*U_SZ}")
        u_dma(G, vU, sXU, sX4, (1, 0))
        if j < 3: a(f"v_add_u32 v{vU}, 32, v{vU}")
    a("s_waitcnt vmcnt(0)")
    a(f"ds_write_b32 v{vFL_}, v{vONE_} offset:{F_U2}")
    G.stamp(5)
    poll_lds(G, vFL_, C_YX, 4, vT_)
    signal_x(G, vN_, v128_, L_YX, 4, vT_)
    G.stamp(6)
    finish(G)

    a("L_Em:")
    if o.iso: a("s_barrier\ns_endpgm")
    if o.optB:
        a("s_barrier")
    else:
        a(f"s_and_b32 s{sT0}, s{sE}, 4\ns_cbranch_scc1 L_Eh\ns_barrier\ns_setprio 1\nL_Eh:")
    G.stamp(1, 3)
    a(f"v_and_b32 v{vG}, 15, v0\nv_lshrrev_b32 v{vL}, 4, v0")
    a(f"v_mul_u32_u24 v{vIN}, {4*RS_IN}, v{vL}\nv_lshl_add_u32 v{vIN}, v{vG}, 3, v{vIN}\nv_add_u32 v{vIN}, s{sSIG}, v{vIN}")
    a(f"v_lshlrev_b32 v{vRD}, 9, v{vL}\nv_lshl_add_u32 v{vRD}, v{vG}, 3, v{vRD}\nv_add_u32 v{vRD}, s{sN}, v{vRD}")
    a(f"v_lshl_add_u32 v{vWo}, v{vG}, 5, s{sN}")
    G.srd(sD, None, 1152); G.srd(sQ, None, TENS); G.srd(sHH, None, TENS)
    G.srd(sOUT, pOUT, OUTB)
    ctl_srd(G)
    a(f"s_mov_b32 s{sLC}, s46\ns_lshl_b32 s{sROW0}, s47, 4")
    a(f"s_lshl_b32 s{sT1}, s{sLC}, 7\nv_lshl_add_u32 v{vDo}, v{vG}, 3, s{sT1}")
    a(f"s_mul_i32 s{sCOL}, s{sH}, 1152\ns_add_u32 s{sCOL}, s{sCOL}, s{sT1}")
    a(f"s_mul_i32 s{sT0}, s{sROW0}, {RS_OUT}\ns_add_u32 s{sT0}, s{sT0}, s{sCOL}")
    a(f"v_mul_u32_u24 v{vO1}, {4*RS_OUT}, v{vL}\nv_lshl_add_u32 v{vO1}, v{vG}, 3, v{vO1}\nv_add_u32 v{vO1}, s{sT0}, v{vO1}")
    a(f"v_add_u32 v{vO2}, {2*RS_OUT}, v{vO1}")
    a(f"v_and_b32 v{vX}, 12, v{vG}\nv_add_u32 v{vX}, v{vX}, v{vL}\nv_mul_u32_u24 v{vX}, {RS_OUT}, v{vX}")
    a(f"v_and_b32 v{vT}, 3, v{vG}\nv_lshl_add_u32 v{vX}, v{vT}, 5, v{vX}\nv_add_u32 v{vX}, s{sT0}, v{vX}")
    a(f"v_mov_b32 v{vFL}, {FL0}\nv_mov_b32 v{vONE}, 1\nv_lshlrev_b32 v{vL4}, 2, v0\nv_lshlrev_b32 v{v128}, 7, v0")
    a(f"s_lshr_b32 s{sSIG}, s{sROW0}, 10")
    a(f"s_and_b32 s{sLR}, s{sR}, 15\ns_lshr_b32 s{sT0}, s{sR}, 4\ns_lshl_b32 s{sT1}, s{sGQ}, 1\ns_add_u32 s{sT0}, s{sT0}, s{sT1}\ns_lshl_b32 s{sT0}, s{sT0}, 6")
    a(f"s_and_b32 s{sT1}, s{sLR}, 12\ns_lshl_b32 s{sT1}, s{sT1}, 2\ns_add_u32 s{sT0}, s{sT0}, s{sT1}\ns_and_b32 s{sT1}, s{sLR}, 3\ns_add_u32 s{sT0}, s{sT0}, s{sT1}")
    a(f"s_lshr_b32 s{sX1}, s{sE}, 1\ns_lshl_b32 s{sT1}, s{sX1}, 2\ns_add_u32 s{sT0}, s{sT0}, s{sT1}")
    a(f"s_lshl_b32 s{sT0}, s{sT0}, 12\ns_and_b32 s{sX2}, s{sE}, 1\ns_lshl_b32 s{sX2}, s{sX2}, 10\ns_add_u32 s{sT0}, s{sT0}, s{sX2}")
    a(f"v_lshl_add_u32 v{vK3}, v0, 4, s{sT0}")
    a(f"s_mul_i32 s{sT0}, s{sX1}, {XA_SZ}\ns_add_u32 s{sT0}, s{sT0}, s{sX2}")
    a(f"v_lshl_add_u32 v{vG}, v0, 4, s{sT0}")
    a(f"s_lshl_b32 s{sT2}, s{sSIG}, 2\ns_add_u32 s{sT2}, s{sT2}, {FL0 + C_U0}\nv_mov_b32 v{vL}, s{sT2}")
    a(f"s_lshl_b32 s{sX3}, s{sSIG}, 9\ns_add_u32 s{sX3}, s{sX3}, {L_U1}")
    a("s_mov_b32 s47, 0xffff0000")
    a("s_waitcnt vmcnt(2)")
    a(f"ds_read_b128 v[{WR}:{WR+3}], v{vWo} offset:4480\nds_read_b128 v[{WR+4}:{WR+7}], v{vWo} offset:4496")
    for i in range(7):
        a(f"ds_read_b64 v[{KR+2*i}:{KR+2*i+1}], v{vRD} offset:{128*i}")
    a("s_waitcnt lgkmcnt(7)")
    for c in range(4):
        for j in range(4):
            src = WR + 2 * c + (j >> 1)
            a(f"v_lshlrev_b32 v{WF+4*j+c}, 16, v{src}" if j % 2 == 0 else f"v_and_b32 v{WF+4*j+c}, s47, v{src}")
    a("s_waitcnt lgkmcnt(0)")
    for i in range(7):
        for d in range(2):
            a(f"v_lshlrev_b32 v{KF+4*i+2*d}, 16, v{KR+2*i+d}")
            a(f"v_and_b32 v{KF+4*i+2*d+1}, s47, v{KR+2*i+d}")
    for j in (3, 2, 1, 0):
        for r in range(4):
            for d in range(2):
                ks, w, k = KS + 4 * r + 2 * d, WF + 4 * j + 2 * d, KF + 4 * (3 + r - j) + 2 * d
                if j == 3:
                    a(f"v_pk_mul_f32 v[{ks}:{ks+1}], v[{k}:{k+1}], v[{w}:{w+1}]")
                else:
                    a(f"v_pk_fma_f32 v[{ks}:{ks+1}], v[{k}:{k+1}], v[{w}:{w+1}], v[{ks}:{ks+1}]")
    a("s_waitcnt vmcnt(0)")
    for i in range(4):
        a(f"ds_read_b64 v[{VR+2*i}:{VR+2*i+1}], v{vRD} offset:{2432 + 128*i}")
    G.stamp(-1, 4)
    get_mode(G, vFL, vT, vN)
    G.stamp(2, -1)
    for r in range(4):
        for d in range(2):
            a(f"v_lshlrev_b32 v{KF+4*r+2*d}, 16, v{VR+2*r+d}")
            a(f"v_and_b32 v{KF+4*r+2*d+1}, s47, v{VR+2*r+d}")
    for r in range(4):
        for d in range(2):
            ks, k = KS + 4 * r + 2 * d, KF + 4 * r + 2 * d
            a(f"v_pk_mul_f32 v[{ks}:{ks+1}], v[{ks}:{ks+1}], v[{k}:{k+1}]")
    regs = [PKU + 2 * (3 - j) for j in range(4)]
    for c in range(4):
        a(f"v_cvt_pk_bf16_f32 v{regs[c]}, v{KS+12+c}, v{KS+8+c}")
        a(f"v_cvt_pk_bf16_f32 v{regs[c]+1}, v{KS+4+c}, v{KS+c}")
    transpose4(G, regs)
    LX, LM, LJ = G.lab("ex"), G.lab("em"), G.lab("ej")
    a(f"s_cmp_eq_u32 s{sE}, 8\ns_cbranch_scc1 {LX}")
    A, B = G.lab("us"), G.lab("ud")
    a(f"s_cmp_eq_u32 s{sM}, 0\ns_cbranch_scc0 {A}")
    for fl in ("", "sc1"):
        a(f"buffer_store_dwordx4 v[{PKU}:{PKU+3}], v{vX}, s[{sXU}:{sXU+3}], 0 offen {fl}")
        a(f"buffer_store_dwordx4 v[{PKU+4}:{PKU+7}], v{vX}, s[{sXU}:{sXU+3}], 0 offen offset:16 {fl}")
        if fl == "": a(f"s_branch {B}\n{A}:")
    a(f"{B}:")
    a("s_mov_b64 exec, 1")
    a("s_waitcnt vmcnt(0)")
    a(f"ds_add_rtn_u32 v{vT}, v{vL}, v{vONE}")
    a("s_waitcnt lgkmcnt(0)")
    a(f"v_readfirstlane_b32 s{sT0}, v{vT}")
    D = G.lab("eu")
    a(f"s_cmp_eq_u32 s{sT0}, {7 if o.optB else 3}\ns_cbranch_scc0 {D}")
    a(f"s_lshl_b32 s{sT2}, s{sSIG}, 2\ns_add_u32 s{sT2}, s{sT2}, 4")
    signal(G, vN, v128, f"s{sX3}", f"s{sT2}", 16 if o.optB else 32, WF)
    a(f"{D}:")
    a("s_mov_b64 exec, -1")
    G.stamp(3, -1)
    xa_loads(G, KR, vK3, None, 2)
    a(f"buffer_load_dwordx2 v[{DR}:{DR+1}], v{vDo}, s[{sD}:{sD+3}], 0 offen")
    for i in range(4):
        a(f"buffer_load_dwordx2 v[{QR+2*i}:{QR+2*i+1}], v{vIN}, s[{sQ}:{sQ+3}], 0 offen offset:{i*RS_IN} {nt}")
    a("s_waitcnt vmcnt(5)")
    xa_build(G, KR, WF, vG, XA0 + 384 + 2048)
    a("s_waitcnt lgkmcnt(0)")
    a(f"s_mov_b64 exec, 1\nds_add_u32 v{vFL}, v{vONE} offset:{C_H}\ns_mov_b64 exec, -1")
    a(f"s_and_b32 s{sT0}, s{sE}, 3\ns_lshl_b32 s{sT0}, s{sT0}, 7\ns_add_u32 s{sX2}, s{sX3}, s{sT0}\ns_add_u32 s{sX2}, s{sX2}, s{sGB}\ns_add_u32 s{sX2}, s{sX2}, {L_Y1 - L_U1}")
    a(f"s_mov_b32 s{sX4}, -1\ns_mov_b32 s{sISX}, 0\ns_setprio 0")
    a(f"s_lshl_b32 s{sLR}, s{sSIG}, 2\ns_add_u32 s{sLR}, s{sLR}, s{sDGO}\ns_add_u32 s{sLR}, s{sLR}, 12\ns_mov_b32 s{sCHJ}, 32")
    a(f"s_branch {LJ}")
    a(f"{LX}:")
    a(f"s_add_u32 s{sXY}, s{pWS}, {OUTB}\ns_addc_u32 s{sXY+1}, s{pWS+1}, 0\ns_mov_b64 s[{sXU}:{sXU+1}], s[{pWS}:{pWS+1}]")
    a(f"buffer_store_dwordx4 v[{PKU}:{PKU+3}], v{vX}, s[{sXU}:{sXU+3}], 0 offen sc1")
    a(f"buffer_store_dwordx4 v[{PKU+4}:{PKU+7}], v{vX}, s[{sXU}:{sXU+3}], 0 offen offset:16 sc1")
    a(f"s_lshl_b32 s{sX1}, s{sH}, 7\ns_add_u32 s{sX2}, s{sGB}, {L_YX}\ns_mov_b32 s{sX4}, 1\ns_mov_b32 s{sISX}, 1")
    a(f"s_add_u32 s{sLR}, s{sX1}, 4\ns_mov_b32 s{sCHJ}, 128")
    a("s_waitcnt vmcnt(0)")
    signal_x(G, vN, v128, L_UX, 0, vT)
    a("s_setprio 0")
    G.stamp(3, -1)
    a(f"buffer_load_dwordx2 v[{DR}:{DR+1}], v{vDo}, s[{sD}:{sD+3}], 0 offen")
    for i in range(4):
        a(f"buffer_load_dwordx2 v[{QR+2*i}:{QR+2*i+1}], v{vIN}, s[{sQ}:{sQ+3}], 0 offen offset:{i*RS_IN} {nt}")
    a(f"{LJ}:")
    QF, DF = KF, WF
    a("s_waitcnt vmcnt(0)")
    for d in range(2):
        a(f"v_lshlrev_b32 v{DF+2*d}, 16, v{DR+d}\nv_and_b32 v{DF+2*d+1}, s47, v{DR+d}")
    for r in range(4):
        for d in range(2):
            a(f"v_lshlrev_b32 v{QF+4*r+2*d}, 16, v{QR+2*r+d}\nv_and_b32 v{QF+4*r+2*d+1}, s47, v{QR+2*r+d}")
    for r in range(4):
        for d in range(2):
            ks = KS + 4 * r + 2 * d
            a(f"v_pk_mul_f32 v[{ks}:{ks+1}], v[{ks}:{ks+1}], v[{DF+2*d}:{DF+2*d+1}]")
    for r in range(4):
        for d in range(2):
            ks, q = KS + 4 * r + 2 * d, QF + 4 * r + 2 * d
            a(f"v_pk_mul_f32 v[{ks}:{ks+1}], v[{ks}:{ks+1}], v[{q}:{q+1}]")
    G.stamp(4, -1)
    D, D2 = G.lab("ey1"), G.lab("ey2")
    a(f"s_cmp_eq_u32 s{sE}, 0\ns_cbranch_scc0 {D}")
    poll_lds(G, vFL, C_Y1, 4, vT)
    signal(G, vN, v128, L_Y1, 12, 32, 16)
    a(f"{D}:")
    poll_line(G, vL4, sX2, f"s{sX4}", vT, (f"s{sLR}", 0), f"s{sCHJ}", always=f"s{sISX}")
    G.stamp(5)
    YR, YF = 16, 24
    a(f"buffer_load_dwordx4 v[{YR}:{YR+3}], v{vX}, s[{sXY}:{sXY+3}], 0 offen sc1")
    a(f"buffer_load_dwordx4 v[{YR+4}:{YR+7}], v{vX}, s[{sXY}:{sXY+3}], 0 offen offset:16 sc1")
    D = G.lab("ep")
    a(f"s_lshl_b32 s{sT0}, s{sGQ}, 5\ns_add_u32 s{sT0}, s{sT0}, s{sR}\ns_lshl_b32 s{sT0}, s{sT0}, 4\ns_add_u32 s{sT0}, s{sT0}, s{sE}")
    a(f"s_cmp_eq_u32 s{sT0}, 8\ns_cbranch_scc0 {D}")
    a(f"s_mov_b64 exec, 1\nbuffer_store_dword v{vN}, off, s[{sDBG}:{sDBG+3}], s{sX1} sc1\ns_mov_b64 exec, -1")
    a(f"{D}:")
    a("s_waitcnt vmcnt(0)")
    G.stamp(6)
    transpose4(G, [YR + 2 * j for j in range(4)])
    for c in range(4):
        for d in range(2):
            a(f"v_lshlrev_b32 v{YF+8*d+c}, 16, v{YR+2*c+d}\nv_and_b32 v{YF+8*d+4+c}, s47, v{YR+2*c+d}")
    for r in range(4):
        for d in range(2):
            ks, q, y = KS + 4 * r + 2 * d, QF + 4 * r + 2 * d, YF + 4 * r + 2 * d
            a(f"v_pk_fma_f32 v[{ks}:{ks+1}], v[{q}:{q+1}], v[{y}:{y+1}], v[{ks}:{ks+1}]")
        for d in range(2):
            ks = KS + 4 * r + 2 * d
            a(f"v_cvt_pk_bf16_f32 v{PKU+2*r+d}, v{ks}, v{ks+1}")
        a(f"buffer_store_dwordx2 v[{PKU+2*r}:{PKU+2*r+1}], v{vO1 if r < 2 else vO2}, s[{sOUT}:{sOUT+3}], 0 offen offset:{(r&1)*RS_OUT} {o.out_flag}")
    if o.stamps: a("s_waitcnt vmcnt(0)")
    finish(G)

    vA, vB, vAX, vBX, vY, vYX, vSW, vSR, vFL, vONE, v128, vT, vN, vL4 = 1, 2, 3, 4, 5, 6, 7, 8, 9, 10, 11, 12, 14, 15
    a("L_Cm:")
    a("s_barrier")
    a("s_setprio 2")
    G.stamp(1, 3)
    ctl_srd(G)
    a(f"s_mov_b32 s{sCOL}, s47")
    a(f"s_mul_i32 s{sX2}, s{sWV}, {XA_SZ}\ns_mul_i32 s{sX3}, s{sWV}, {U_SZ}\ns_add_u32 s{sX3}, s{sX3}, {U0}")
    for i in range(4): a(f"v_mov_b32 v{cZ+i}, 0")
    a(f"v_lshl_add_u32 v{cHA}, v0, 4, s{sX2}")
    for p in range(4):
        a(f"ds_write_b128 v{cHA}, v[{cZ}:{cZ+3}] offset:{XA0 + p*PLANE}")
    a(f"v_lshl_add_u32 v{cHB}, v0, 4, s{sX3}")
    a(f"ds_write_b128 v{cHB}, v[{cZ}:{cZ+3}] offset:{U_SZ-1024}")
    a(f"v_and_b32 v{vT}, 3, v0\nv_mul_u32_u24 v{vA}, {PLANE}, v{vT}")
    a(f"v_bfe_u32 v{vB}, v0, 2, 2\nv_lshl_add_u32 v{vA}, v{vB}, 7, v{vA}")
    a(f"v_lshrrev_b32 v{vB}, 4, v0\nv_lshl_add_u32 v{vA}, v{vB}, 4, v{vA}")
    a(f"s_lshl_b32 s{sT0}, s{sWV}, 7")
    a(f"s_add_u32 s{sT1}, s{sT0}, {XA0 + 4*XA_SZ}\nv_add_u32 v{vAX}, s{sT1}, v{vA}\nv_add_u32 v{vA}, s{sX2}, v{vA}")
    a(f"v_lshlrev_b32 v{vB}, 4, v{vB}\nv_and_b32 v{vBX}, 15, v0\nv_lshlrev_b32 v{vBX}, 3, v{vBX}\nv_sub_u32 v{vB}, v{vB}, v{vBX}\nv_add_u32 v{vB}, 120, v{vB}")
    a(f"s_add_u32 s{sT1}, s{sT0}, {U0 + 4*U_SZ}\nv_add_u32 v{vBX}, s{sT1}, v{vB}\nv_add_u32 v{vB}, s{sX3}, v{vB}")
    a(f"v_lshrrev_b32 v{vY}, 2, v0\nv_mul_u32_u24 v{vY}, {16*RS_OUT}, v{vY}\nv_lshl_add_u32 v{vY}, v{vT}, 3, v{vY}")
    a(f"s_lshl_b32 s{sT0}, s{sGQ}, 5\ns_add_u32 s{sT0}, s{sT0}, s{sR}\ns_and_b32 s{sTS}, s{sT0}, 1\ns_lshr_b32 s{sT0}, s{sT0}, 1")
    a(f"s_lshr_b32 s{sT1}, s{sT0}, 4\ns_lshl_b32 s{sT1}, s{sT1}, 2\ns_and_b32 s{sT2}, s{sT0}, 3\ns_add_u32 s{sT1}, s{sT1}, s{sT2}\ns_mul_i32 s{sT1}, s{sT1}, {RS_OUT}")
    a(f"s_bfe_u32 s{sT2}, s{sT0}, {(2<<16)|2}\ns_lshl_b32 s{sT2}, s{sT2}, 5\ns_add_u32 s{sT1}, s{sT1}, s{sT2}")
    a(f"s_mul_i32 s{sT2}, s{sH}, 1152\ns_add_u32 s{sT1}, s{sT1}, s{sT2}\ns_add_u32 s{sT1}, s{sT1}, 1024")
    a(f"v_add_u32 v{vYX}, s{sT1}, v{vY}")
    a(f"s_lshl_b32 s{sT2}, s{sWV}, 5\ns_add_u32 s{sCOL}, s{sCOL}, s{sT2}\nv_add_u32 v{vY}, s{sCOL}, v{vY}")
    a(f"s_mov_b32 s{sT0}, 0x7430\ns_mov_b32 s{sT1}, 0x6521\ns_cmp_eq_u32 s{sTS}, 0\ns_cselect_b32 s{sT0}, s{sT0}, s{sT1}")
    a(f"s_lshl_b32 s{sT1}, s{sWV}, 2\ns_lshr_b32 s{sT0}, s{sT0}, s{sT1}\ns_and_b32 s{sT0}, s{sT0}, 7\ns_mul_i32 s{sX1}, s{sT0}, {TILE_STEP}")
    a(f"s_lshl_b32 s{sT0}, s{sWV}, 10\ns_add_u32 s{sT0}, s{sT0}, {SCR0}\nv_lshl_add_u32 v{vSW}, v0, 4, s{sT0}")
    a(f"s_lshl_b32 s{sT0}, s{sWV}, 12\ns_add_u32 s{sT0}, s{sT0}, {SCR0}\nv_lshl_add_u32 v{vSR}, v0, 4, s{sT0}")
    a(f"v_mov_b32 v{vFL}, {FL0}\nv_mov_b32 v{vONE}, 1\nv_lshlrev_b32 v{vL4}, 2, v0\nv_lshlrev_b32 v{v128}, 7, v0")
    a(f"s_add_u32 s{sWMY}, s{pWS}, {OUTB}\ns_addc_u32 s{sWMY+1}, s{pWS+1}, 0")
    G.srd(sWMY, None, OUTB)
    a(f"v_lshrrev_b32 v{cU}, 1, v0\nv_sub_u32 v{cU}, 31, v{cU}\nv_mul_u32_u24 v{cU}, {16*RS_OUT}, v{cU}")
    a(f"v_and_b32 v{vT}, 1, v0\nv_lshl_add_u32 v{cU}, v{vT}, 4, v{cU}\nv_add_u32 v{cU}, s{sCOL}, v{cU}")
    a(f"s_lshl_b32 s{sX4}, s{sWV}, 7\ns_add_u32 s{sX4}, s{sX4}, s{sGB}\ns_add_u32 s{sX4}, s{sX4}, {L_U1}")
    npf = 1 if o.prefill else 0
    a(f"s_waitcnt vmcnt({2+npf})")
    xa_build(G, 64, 80, cHA, XA0 + 384)
    a(f"s_waitcnt vmcnt({npf})")
    xa_build(G, 72, 104, cHA, XA0 + 384 + 1024)
    G.stamp(-1, 4)
    get_mode(G, vFL, vT, vN)
    G.stamp(2, -1)
    if not o.iso:
        poll_line(G, vL4, sX4, MU1, vT, (f"s{sDGO}", 4), NU, sleep=0)
    u_dma(G, cU, sXU, sX3, (3, 2))
    a(f"s_cmp_eq_u32 s{sTS}, 0")
    a("s_waitcnt vmcnt(0)")
    if o.iso: G.stamp(2)
    a("s_cbranch_scc0 L_C1")
    st0 = c_stream(G, 0)
    a("L_C1:")
    st1 = c_stream(G, 1)
    a("L_exit:")
    a("s_endpgm")

    head = open("cdna_kernels/" + NAME + ".s.ref").read().split("\n")
    hdr = [l for l in head if l.startswith(";") and "@launch" not in l and not l.startswith("; Override") and not l.startswith("; grid=")]
    hdr = [l for l in hdr if l.startswith("; Kernarg") or l.startswith(";   offset")]
    out = hdr + [f"; @launch grid=(256,1,1) block=(896,1,1) lds={LDS_SZ}",
                 '.amdgcn_target "amdgcn-amd-amdhsa--gfx950"', ".text", f".globl {K}", ".p2align 8", f".type {K},@function"]
    out += G.L
    out += ['.section .rodata,"a"', ".p2align 6", f".amdhsa_kernel {K}",
            "  .amdhsa_next_free_vgpr 128", "  .amdhsa_next_free_sgpr 102", "  .amdhsa_accum_offset 128",
            "  .amdhsa_group_segment_fixed_size 0", "  .amdhsa_kernarg_size 120", "  .amdhsa_user_sgpr_count 2",
            "  .amdhsa_user_sgpr_kernarg_segment_ptr 1", "  .amdhsa_system_sgpr_workgroup_id_x 1",
            "  .amdhsa_float_denorm_mode_32 3", ".end_amdhsa_kernel", ""]
    print("stream stats (mfma, ds, max/gap, gaps>1):", st0, st1, file=sys.stderr)
    return "\n".join(out)


if __name__ == "__main__":
    ap = argparse.ArgumentParser()
    ap.add_argument("-o", default="cdna_kernels/" + NAME + ".s")
    ap.add_argument("opts", nargs="*")
    args = ap.parse_args()
    o = Opt()
    for kv in args.opts:
        k, v = kv.split("=", 1)
        cur = getattr(o, k)
        setattr(o, k, (v not in ("0", "False", "")) if isinstance(cur, bool) else type(cur)(v))
    open(args.o, "w").write(gen(o))
```

```python
import sys, argparse

NAME = "concat_heads__ssm_conv_h3__ssm_conv_h3__prompt"

RS_IN = 1152
RS_OUT = 2304
TENS = 2359296
OUTB = 4718592
PLANE = 4640
XA_SZ = 4 * PLANE
U_SZ = 4224
XA0 = 0
U0 = 5 * XA_SZ
SCR0 = U0 + 5 * U_SZ
STG_SZ = 4992
FL0 = SCR0 + 9 * STG_SZ
LDS_SZ = FL0 + 64
F_N, F_M, C_U0, C_U1, C_H, F_X, F_U2, C_P, C_Y1, C_Y2, C_YX = [4 * i for i in range(11)]
CT_OFF = 16 << 20
G_GXU, G_GXY = 256, 512
L_HELLO, L_UX, L_YX, L_U1, L_U2, L_Y1, L_Y2 = 0, 128, 256, 512, 1024, 1536, 2048
TILE_STEP = 256 * RS_OUT
CAP_G = 1 << 15
CAP_L = 1 << 19
HELLO_T = 40

class Opt:
    optB = False
    stamps = False
    force_mode1 = False
    ld_nt = "nt"
    out_flag = ""
    lead = 8
    prefetch_code = True
    prefill = True
    sleep = 1
    cyc = False
    iso = False
    dspan = False
    early = False
    twice = False

class Gen:
    def __init__(self, o):
        self.o = o
        self.L = []
        self.uid = 0
        self.cold = []
    def a(self, s):
        for ln in s.split("\n"):
            self.L.append("    " + ln.strip() if not ln.strip().endswith(":") else ln.strip())
    def flush_cold(self):
        c, self.cold = self.cold, []
        for fn in c: fn()
    def lab(self, base):
        self.uid += 1
        return f"L_{base}_{self.uid}"
    def srd(self, d, lo, nrec):
        if lo is not None and lo != d:
            self.a(f"s_mov_b64 s[{d}:{d+1}], s[{lo}:{lo+1}]")
        self.a(f"s_mov_b32 s{d+2}, {nrec}\ns_mov_b32 s{d+3}, 0x00020000")
    def stamp(self, i, late=None):
        if late is not None and self.o.early: i = late
        if self.o.stamps and i >= 0:
            self.a(f"{'s_memtime' if self.o.cyc else 's_memrealtime'} s[{98}:{99}]\ns_waitcnt lgkmcnt(0)\ns_mov_b32 s{88+i}, s98")

sWV, sG, sR, sH, sGQ = 3, 4, 5, 6, 7
sT0, sT1, sT2, sT3 = 8, 9, 10, 11
sM, sEV, sCNT, sSIG, sN = 12, 13, 14, 15, 101
pOUT, pDBG, pWS = 40, 42, 44
sK, sV, sQ, sW, sD, sXU, sXY, sOUT, sDBG, sHH = 48, 52, 56, 60, 64, 68, 72, 76, 80, 84
sROW0, sLC, sCOL, sLR, sCHJ, sX1, sX2, sX3, sX4, sISX, sE = 16, 17, 18, 19, 20, 21, 22, 23, 24, 25, 100
sDG = 60
sDGO = 34
sWMY = 28
sTS = 32
sGB = 33


def poll_line(G, vl4, soff, mask, vt, cnt, n, sleep=None, always=False):
    L, D, C, R = G.lab("pg"), G.lab("pgd"), G.lab("pgc"), G.lab("pgr")
    m = f"{mask:#x}" if isinstance(mask, int) else mask
    G.a(f"s_mov_b32 exec_lo, {m}\ns_mov_b32 exec_hi, 0")
    G.a(f"s_mov_b32 s{sCNT}, 0")
    G.a(f"{L}:")
    G.a(f"buffer_load_dword v{vt}, v{vl4}, s[{sDBG}:{sDBG+3}], s{soff} offen sc1")
    G.a(f"s_add_u32 s{sCNT}, s{sCNT}, 1")
    G.a("s_waitcnt vmcnt(0)")
    G.a(f"v_cmp_ne_u32 vcc, s{sN}, v{vt}")
    G.a(f"s_cbranch_vccz {D}")
    sl = G.o.sleep if sleep is None else sleep
    if sl:
        G.a(f"s_sleep {sl}")
    G.a(f"s_and_b32 s{sT0}, s{sCNT}, 63\ns_cbranch_scc1 {L}")
    G.a(f"s_branch {C}")
    G.a(f"{D}:")
    G.a("s_mov_b64 exec, -1")
    def cold():
        G.a(f"{C}:")
        if always is True:
            pass
        elif always:
            G.a(f"s_or_b32 s{sT0}, s{sM}, {always}\ns_cbranch_scc0 {R}")
        else:
            G.a(f"s_cmp_eq_u32 s{sM}, 0\ns_cbranch_scc1 {R}")
        G.a(f"s_mov_b32 exec_lo, 1\nv_mov_b32 v{vt}, 0")
        G.a(f"buffer_atomic_add v{vt}, off, s[{sDG}:{sDG+3}], {cnt[0]} offset:{cnt[1]} sc0 sc1")
        G.a(f"s_waitcnt vmcnt(0)")
        G.a(f"v_readfirstlane_b32 s{sT0}, v{vt}\ns_mov_b32 exec_lo, {m}")
        G.a(f"s_cmp_ge_u32 s{sT0}, {n}\ns_cbranch_scc1 {D}")
        G.a(f"{R}:")
        G.a(f"s_cmp_lt_u32 s{sCNT}, {CAP_G}\ns_cbranch_scc1 {L}\ns_branch {D}")
    G.cold.append(cold)


def poll_lds(G, vfl, off, expected, vt, sdst=sT0):
    L, D = G.lab("pl"), G.lab("pld")
    G.a(f"s_mov_b32 s{sCNT}, 0")
    G.a(f"{L}:")
    G.a(f"ds_read_b32 v{vt}, v{vfl} offset:{off}")
    G.a("s_waitcnt lgkmcnt(0)")
    G.a(f"v_readfirstlane_b32 s{sdst}, v{vt}")
    G.a(f"s_add_u32 s{sCNT}, s{sCNT}, 1")
    G.a(f"s_cmp_ge_u32 s{sdst}, {expected}")
    G.a(f"s_cbranch_scc1 {D}")
    G.a("s_sleep 1")
    G.a(f"s_cmp_lt_u32 s{sCNT}, {CAP_L}")
    G.a(f"s_cbranch_scc1 {L}")
    G.a(f"{D}:")


def signal(G, vn, v128, line, cnt, n, vt):
    A, B = G.lab("ma"), G.lab("mb")
    G.a(f"s_add_u32 s{sT1}, s{sEV}, {line}")
    G.a(f"s_mov_b64 exec, 15")
    G.a(f"s_cmp_eq_u32 s{sM}, 0\ns_cbranch_scc0 {A}")
    G.a(f"buffer_store_dword v{vn}, v{v128}, s[{sDBG}:{sDBG+3}], s{sT1} offen")
    G.a(f"{B}:")
    G.a("s_mov_b64 exec, -1")
    def cold():
        G.a(f"{A}:")
        G.a(f"s_mov_b64 exec, 1\nv_mov_b32 v{vt}, 1\ns_add_u32 s{sT1}, s{sDGO}, {cnt}")
        G.a(f"buffer_atomic_add v{vt}, off, s[{sDG}:{sDG+3}], s{sT1} sc0 sc1")
        G.a("s_waitcnt vmcnt(0)")
        G.a(f"v_readfirstlane_b32 s{sT0}, v{vt}")
        G.a(f"s_cmp_eq_u32 s{sT0}, {n-1}\ns_cbranch_scc0 {B}")
        G.a(f"s_mov_b32 exec_lo, -1\ns_add_u32 s{sT1}, s{sGB}, {line}")
        G.a(f"v_lshrrev_b32 v{vt+4}, 3, v{v128}")
        for k in range(4): G.a(f"v_mov_b32 v{vt+k}, v{vn}")
        G.a(f"buffer_store_dwordx4 v[{vt}:{vt+3}], v{vt+4}, s[{sDBG}:{sDBG+3}], s{sT1} offen sc1")
        G.a(f"buffer_store_dwordx4 v[{vt}:{vt+3}], v{vt+4}, s[{sDBG}:{sDBG+3}], s{sT1} offen")
        G.a(f"s_branch {B}")
    G.cold.append(cold)


def signal_x(G, vn, v128, line, cnt, vt):
    B = G.lab("sx")
    G.a(f"s_mov_b64 exec, 1\nv_mov_b32 v{vt}, 1\ns_lshl_b32 s{sT1}, s{sH}, 7")
    G.a(f"buffer_atomic_add v{vt}, off, s[{sDG}:{sDG+3}], s{sT1} offset:{cnt} sc0 sc1")
    G.a(f"s_lshl_b32 s{sT1}, s{sH}, 14\ns_add_u32 s{sT1}, s{sT1}, {4096 + line}")
    G.a("s_waitcnt vmcnt(0)")
    G.a(f"v_readfirstlane_b32 s{sT0}, v{vt}")
    G.a(f"s_cmp_eq_u32 s{sT0}, 127\ns_cbranch_scc0 {B}")
    G.a(f"s_mov_b64 exec, 15\nv_lshlrev_b32 v{vt}, 5, v{v128}")
    G.a(f"buffer_store_dword v{vn}, v{vt}, s[{sDBG}:{sDBG+3}], s{sT1} offen sc1")
    G.a(f"buffer_store_dword v{vn}, v{vt}, s[{sDBG}:{sDBG+3}], s{sT1} offen")
    G.a(f"{B}:")
    G.a("s_mov_b64 exec, -1")


def ctl_srd(G):
    G.a(f"s_add_u32 s{sDBG}, s{pWS}, {CT_OFF}\ns_addc_u32 s{sDBG+1}, s{pWS+1}, 0")
    G.srd(sDBG, None, 65536)
    G.a(f"s_lshl_b32 s{sGB}, s{sG}, 12\ns_add_u32 s{sGB}, s{sGB}, 4096\ns_lshl_b32 s{sEV}, s{sR}, 2\ns_add_u32 s{sEV}, s{sEV}, s{sGB}")
    G.srd(sDG, pDBG, 256)
    G.a(f"s_mul_i32 s{sDGO}, s{sGQ}, 20\ns_lshl_b32 s{sT0}, s{sH}, 7\ns_add_u32 s{sDGO}, s{sDGO}, s{sT0}\ns_add_u32 s{sDGO}, s{sDGO}, 8")


def get_mode(G, vfl, vt, vn):
    L, D = G.lab("gm"), G.lab("gmd")
    G.a(f"s_add_u32 s{sT2}, s{pWS}, {OUTB}\ns_addc_u32 s{sT3}, s{pWS+1}, 0")
    G.a(f"s_mov_b32 s{sCNT}, 0")
    G.a(f"{L}:")
    G.a(f"ds_read_b64 v[{vt}:{vt+1}], v{vfl} offset:{F_N}")
    G.a(f"s_add_u32 s{sCNT}, s{sCNT}, 1")
    G.a("s_waitcnt lgkmcnt(0)")
    G.a(f"v_readfirstlane_b32 s{sM}, v{vt+1}")
    G.a(f"v_readfirstlane_b32 s{sN}, v{vt}")
    G.a(f"s_cmp_ge_u32 s{sM}, 1")
    G.a(f"s_cbranch_scc1 {D}")
    G.a("s_sleep 1")
    G.a(f"s_cmp_lt_u32 s{sCNT}, {CAP_L}")
    G.a(f"s_cbranch_scc1 {L}")
    G.a(f"{D}:")
    G.a(f"v_mov_b32 v{vn}, v{vt}")
    G.a(f"s_sub_u32 s{sM}, s{sM}, 1")
    G.a(f"s_cmp_eq_u32 s{sM}, 0")
    G.a(f"s_cselect_b64 s[{sXU}:{sXU+1}], s[{pOUT}:{pOUT+1}], s[{pWS}:{pWS+1}]")
    G.a(f"s_cselect_b64 s[{sXY}:{sXY+1}], s[{pOUT}:{pOUT+1}], s[{sT2}:{sT3}]")
    G.srd(sXU, None, OUTB)
    G.srd(sXY, None, OUTB)


def xa_loads(G, b, va, vb, q):
    nt = G.o.ld_nt
    G.a(f"buffer_load_dwordx4 v[{b+2}:{b+5}], v{va}, s[{sHH}:{sHH+3}], 0 offen offset:{1024*q} {nt}")
    if q == 0:
        G.a(f"buffer_load_dwordx2 v[{b}:{b+1}], v{vb}, s[{sHH}:{sHH+3}], 0 offen {nt}")
    else:
        G.a(f"buffer_load_dwordx2 v[{b}:{b+1}], v{va}, s[{sHH}:{sHH+3}], 0 offen offset:{1024*q-8} {nt}")


def xa_build(G, b, t, vdst, off):
    w = lambda i: b + 2 + i
    for i in range(4):
        G.a(f"v_alignbit_b32 v{t+i}, v{w(i-1)}, v{w(i-2)}, 16")
    G.a(f"ds_write_b128 v{vdst}, v[{b+2}:{b+5}] offset:{off + 3*PLANE}")
    for i in range(4):
        G.a(f"v_alignbit_b32 v{t+4+i}, v{w(i)}, v{w(i-1)}, 16")
    G.a(f"ds_write_b128 v{vdst}, v[{t}:{t+3}] offset:{off}")
    for i in range(4):
        G.a(f"v_mov_b32 v{t+8+i}, v{w(i-1)}")
    G.a(f"ds_write_b128 v{vdst}, v[{t+4}:{t+7}] offset:{off + 2*PLANE}")
    G.a(f"ds_write_b128 v{vdst}, v[{t+8}:{t+11}] offset:{off + PLANE}")


def transpose4(G, regs):
    G.a("s_nop 1")
    for j in (0, 1):
        for d in (0, 1):
            G.a(f"v_permlane32_swap_b32 v{regs[j]+d}, v{regs[j+2]+d}")
    G.a("s_nop 1")
    for j in (0, 2):
        for d in (0, 1):
            G.a(f"v_permlane16_swap_b32 v{regs[j]+d}, v{regs[j+1]+d}")


def u_dma(G, vsrc, srd, ubase_s, qs):
    for q in qs:
        G.a(f"s_add_u32 s{sT0}, s{ubase_s}, {1024*q}\ns_mov_b32 m0, s{sT0}")
        G.a(f"s_mov_b32 s{sT1}, {(3-q)*32*16*RS_OUT}")
        G.a(f"buffer_load_dwordx4 v{vsrc}, s[{srd}:{srd+3}], s{sT1} offen sc1 lds")


def finish(G):
    if G.o.dspan:
        G.a("s_waitcnt vmcnt(0)\ns_memrealtime s[98:99]")
        G.srd(sK, pDBG, 256)
        G.a("s_waitcnt lgkmcnt(0)\ns_not_b32 s88, s88\nv_mov_b32 v8, s98\nv_mov_b32 v9, s88\ns_mov_b64 exec, 1")
        D = G.lab("ds")
        G.a(f"s_and_b32 s{sT0}, s2, 0xf8\ns_and_b32 s{sT0}, s{sT0}, 0x78\ns_cbranch_scc1 {D}")
        G.a(f"buffer_atomic_umax v8, off, s[{sK}:{sK+3}], 0 offset:56 sc1")
        G.a(f"buffer_atomic_umax v9, off, s[{sK}:{sK+3}], 0 offset:60 sc1")
        G.a(f"{D}:")
    if G.o.stamps:
        G.stamp(7)
        G.a(f"s_add_u32 s{sT2}, s{pWS}, {64<<20}\ns_addc_u32 s{sT3}, s{pWS+1}, 0")
        G.srd(sK, sT2, 1 << 20)
        G.a(f"s_lshl_b32 s{sT0}, s2, 4\ns_add_u32 s{sT0}, s{sT0}, s{sWV}\ns_lshl_b32 s{sT0}, s{sT0}, 5")
        for i in range(8):
            G.a(f"v_mov_b32 v{8+i}, s{88+i}")
        G.a("s_mov_b64 exec, 1")
        G.a(f"buffer_store_dwordx4 v[8:11], off, s[{sK}:{sK+3}], s{sT0}")
        G.a(f"buffer_store_dwordx4 v[12:15], off, s[{sK}:{sK+3}], s{sT0} offset:16")
    G.a("s_endpgm")
    G.flush_cold()


class Stream:
    def __init__(self, G, slots, lead):
        self.G, self.slots, self.lead = G, slots, lead
        self.mf = []
        self.side = {}
        self.gate = {}
    def mfma(self, acc, A, B, zero):
        self.mf.append((acc, A, B, zero))
    def at(self, pos, fn):
        self.side.setdefault(pos, []).append(fn)
    def emit(self, loadtext):
        G = self.G
        n = len(self.mf)
        first, last, order = {}, {}, []
        for i, (acc, A, B, z) in enumerate(self.mf):
            for k in (A, B):
                if k not in first:
                    first[k] = i; order.append(k)
                last[k] = i
        free = [0] * len(self.slots)
        sched = {}
        cnt = [0] * (n + 1)
        slot_of = {}
        prev = 0
        for k in order:
            s = min(range(len(free)), key=lambda j: free[j])
            ops = loadtext(k, self.slots[s])
            lo = max(self.gate.get(k[0:2] + (k[2] >> 2,), 0), free[s], prev)
            slot_of[k] = self.slots[s]
            for op in ops:
                p = max(lo, first[k] - self.lead)
                while p < first[k] - 3 and cnt[p] >= 1:
                    p += 1
                p = min(p, first[k])
                assert p >= lo, (k, p, lo)
                cnt[p] += 1
                sched.setdefault(p, []).append((k, op))
                prev = lo = p
            free[s] = last[k] + 1
        self.nds = 0
        self.done = 0
        ready = {}
        for i in range(n + 1):
            for fn in self.side.get(i, []):
                fn(self)
            for k, op in sched.get(i, []):
                G.a(op); self.nds += 1; ready[k] = self.nds
            if i == n: break
            acc, A, B, z = self.mf[i]
            self.need(max(ready[A], ready[B]))
            a_, b_ = slot_of[A], slot_of[B]
            c = "0" if z else f"v[{acc}:{acc+3}]"
            G.a(f"v_mfma_f32_16x16x32_bf16 v[{acc}:{acc+3}], v[{a_}:{a_+3}], v[{b_}:{b_+3}], {c}")
        self.stats = (n, sum(cnt), max(cnt), sum(1 for c in cnt if c > 1))
    def ds(self, text):
        self.G.a(text); self.nds += 1
        return self.nds
    def need(self, idx):
        if idx > self.done:
            out = min(self.nds - idx, 15)
            self.G.a(f"s_waitcnt lgkmcnt({out})")
            self.done = self.nds - out


def c_stream(G, ts):
    o = G.o
    vA, vB, vAX, vBX, vY, vYX, vSW, vSR, vFL, vONE, v128, vT, vN = 1, 2, 3, 4, 5, 6, 7, 8, 9, 10, 11, 12, 14
    ACC = 16
    PK = 48
    slots = [56 + 4 * i for i in range(18)]
    S = Stream(G, slots, o.lead)
    acc = lambda t: ACC + 4 * t
    seen = set()
    def add(ph, ch, pairs, ys, accf):
        for y in ys:
            for (x, b) in pairs:
                r = accf(x + b)
                S.mfma(r, (ph, "A", x, y, ch), (ph, "B", b, y, ch), (r, ch) not in seen)
                seen.add((r, ch))
    def loadtext(k, r):
        ph, typ, i, y, ch = k
        if typ == "A":
            return [f"ds_read_b128 v[{r}:{r+3}], v{vAX if ch else vA} offset:{512*i + 64*y}"]
        off = 512 * (7 - i) + 64 * y
        v = vBX if ch else vB
        return [f"ds_read_b64 v[{r}:{r+1}], v{v} offset:{off}", f"ds_read_b64 v[{r+2}:{r+3}], v{v} offset:{off+8}"]
    p1 = [(x, b) for x in range(4) for b in range(4)]
    p1.sort(key=lambda p: (max(p), p[0] + p[1]))
    p2 = [(4, 0), (5, 0), (4, 1), (6, 0), (5, 1), (4, 2), (7, 0), (6, 1), (5, 2), (4, 3)]
    p3 = [(b - 4 if False else x, b) for (b, x) in p2]
    tiles = [0, 3, 4, 7] if ts == 0 else [1, 2, 5, 6]
    px = [(x, b) for x in range(4, 8) for b in range(4) if x + b in tiles] + \
         [(x, b) for x in range(4) for b in range(4) if x + b in tiles] + \
         [(x, b) for x in range(4) for b in range(4, 8) if x + b in tiles]
    assert len(px) == 18
    add(1, 0, p1, range(8), acc)
    e1 = len(S.mf)
    add(2, 1, px, range(2), lambda t: acc(tiles.index(t)))
    ex = len(S.mf)
    add(3, 0, p2, range(8), acc)
    e2 = len(S.mf)
    add(4, 0, p3, range(8), acc)
    e3 = len(S.mf)

    def check(off, expected):
        st = {}
        def rd(S_):
            st["i"] = S_.ds(f"ds_read_b32 v{vT}, v{vFL} offset:{off}")
        def ck(S_):
            S_.need(st["i"])
            if o.iso: return
            D = G.lab("ck")
            G.a(f"v_readfirstlane_b32 s{sT0}, v{vT}")
            G.a(f"s_cmp_ge_u32 s{sT0}, {expected}")
            G.a(f"s_cbranch_scc1 {D}")
            poll_lds(G, vFL, off, expected, vT)
            G.a(f"{D}:")
        return rd, ck
    def count(off):
        def f(S_):
            G.a("s_mov_b64 exec, 1")
            S_.ds(f"ds_add_u32 v{vFL}, v{vONE} offset:{off}")
            G.a("s_mov_b64 exec, -1")
        return f
    def ystore(t0, nopn):
        def f(S_):
            if nopn: G.a(f"s_nop {nopn-1}")
            for i in range(4):
                r = acc(t0 + i)
                G.a(f"v_cvt_pk_bf16_f32 v{PK+2*i}, v{r}, v{r+1}")
                G.a(f"v_cvt_pk_bf16_f32 v{PK+2*i+1}, v{r+2}, v{r+3}")
            A, B = G.lab("ys"), G.lab("yd")
            G.a(f"s_cmp_eq_u32 s{sM}, 0\ns_cbranch_scc0 {A}")
            for fl in ("", "sc1"):
                for i in range(4):
                    G.a(f"s_mov_b32 s{sT1}, {(t0+i)*TILE_STEP}")
                    G.a(f"buffer_store_dwordx2 v[{PK+2*i}:{PK+2*i+1}], v{vY}, s[{sXY}:{sXY+3}], s{sT1} offen {fl}")
                if fl == "":
                    G.a(f"s_branch {B}\n{A}:")
            G.a(f"{B}:")
        return f
    Ld = o.lead + 2
    rd, ck = check(F_X, 1)
    S.at(e1 - Ld - 6, rd); S.at(e1 - Ld, ck)
    for typ in "AB":
        for h in (0, 1):
            S.gate[(2, typ, h)] = e1 - Ld
    rd, ck = check(C_H, 8)
    S.at(ex - Ld - 6, rd); S.at(ex - Ld, ck)
    S.gate[(3, "A", 1)] = ex - Ld
    rd, ck = check(F_U2, 1)
    S.at(e2 - Ld - 6, rd); S.at(e2 - Ld, ck)
    S.gate[(4, "B", 1)] = e2 - Ld
    if o.stamps and not o.early: S.at(e1, lambda S_: (G.stamp(3, -1), setattr(S_, "done", S_.nds)))
    S.at(e1, ystore(0, 8))
    S.at(e1, lambda S_: G.a("s_nop 1"))
    S.at(e1 + 30, lambda S_: G.a("s_waitcnt vmcnt(0)"))
    S.at(e1 + 30, count(C_Y1))
    def pwrite(S_):
        for i in range(4):
            r = acc(i)
            S_.last_pw = S_.ds(f"ds_write_b128 v{vSW}, v[{r}:{r+3}] offset:{4096*i}")
    S.at(ex + 8, pwrite)
    S.at(ex + 14, lambda S_: S_.need(S_.last_pw))
    S.at(ex + 14, count(C_P))
    rd, ck = check(C_P, 4)
    S.at(ex + 34, rd); S.at(ex + 40, ck)
    def pread(S_):
        for i in range(4):
            r = acc(i)
            S_.last_pr = S_.ds(f"ds_read_b128 v[{r}:{r+3}], v{vSR} offset:{1024*i}")
    S.at(ex + 40, pread)
    def psum(S_):
        S_.need(S_.last_pr)
        a0, a1, a2, a3 = [acc(i) for i in range(4)]
        for d in range(4): G.a(f"v_add_f32 v{a0+d}, v{a0+d}, v{a1+d}")
        for d in range(4): G.a(f"v_add_f32 v{a2+d}, v{a2+d}, v{a3+d}")
        for d in range(4): G.a(f"v_add_f32 v{a0+d}, v{a0+d}, v{a2+d}")
        G.a(f"v_cvt_pk_bf16_f32 v{PK}, v{a0}, v{a0+1}")
        G.a(f"v_cvt_pk_bf16_f32 v{PK+1}, v{a0+2}, v{a0+3}")
        G.a(f"buffer_store_dwordx2 v[{PK}:{PK+1}], v{vYX}, s[{sWMY}:{sWMY+3}], s{sX1} offen sc1")
    S.at(ex + 48, psum)
    if o.stamps: S.at(e2, lambda S_: (G.stamp(5), setattr(S_, "done", S_.nds)))
    if o.stamps and not o.early: S.at(ex, lambda S_: (G.stamp(4, -1), setattr(S_, "done", S_.nds)))
    S.at(e2 + 20, lambda S_: G.a("s_waitcnt vmcnt(0)"))
    S.at(e2 + 20, count(C_YX))
    S.at(e3, ystore(4, 8))
    S.emit(loadtext)
    G.stamp(6)
    G.a("s_waitcnt vmcnt(0)")
    G.a("s_mov_b64 exec, 1")
    G.a(f"ds_add_rtn_u32 v{vT}, v{vFL}, v{vONE} offset:{C_Y2}")
    G.a("s_waitcnt lgkmcnt(0)")
    G.a(f"v_readfirstlane_b32 s{sT0}, v{vT}")
    D = G.lab("cy")
    G.a(f"s_cmp_eq_u32 s{sT0}, 3\ns_cbranch_scc0 {D}")
    signal(G, vN, v128, L_Y2, 16, 32, 16)
    G.a(f"{D}:")
    finish(G)
    return S.stats


def gen(o):
    G = Gen(o)
    a = G.a
    nt = o.ld_nt
    K = NAME + "_kernel"
    NU = 16 if o.optB else 32
    MU1 = 0xffff if o.optB else 0xffffffff
    MU2 = 0xffff0000 if o.optB else 0xffffffff
    a(f"{K}:")
    a("s_cmp_ge_u32 s2, 256\ns_cbranch_scc1 L_exit")
    if o.stamps or o.dspan:
        a("s_memtime s[88:89]" if o.cyc else "s_memrealtime s[88:89]")
    a("s_load_dwordx16 s[16:31], s[0:1], 0")
    a("s_load_dwordx8 s[32:39], s[0:1], 64")
    a("s_load_dwordx4 s[40:43], s[0:1], 96")
    a("s_load_dwordx2 s[44:45], s[0:1], 112")
    a("v_lshrrev_b32 v1, 6, v0")
    if o.prefetch_code:
        a(f"s_getpc_b64 s[{sT0}:{sT1}]")
        a("L_pc:")
        a(f"v_lshlrev_b32 v2, 7, v0\nv_min_u32 v2, L_exit-L_pc, v2")
        a(f"global_load_dword v125, v2, s[{sT0}:{sT1}]")
    else:
        a("s_nop 0")
    a(f"v_readfirstlane_b32 s{sWV}, v1")
    a("v_and_b32 v0, 63, v0")
    a(f"s_and_b32 s{sG}, s2, 7\ns_lshr_b32 s{sR}, s2, 3\ns_lshr_b32 s{sH}, s{sG}, 2\ns_and_b32 s{sGQ}, s{sG}, 3")
    a(f"s_cmp_eq_u32 s{sWV}, 13\ns_cbranch_scc1 L_Si")
    a(f"s_cmp_lt_u32 s{sWV}, 4\ns_cbranch_scc1 L_Ci")

    vIN, vK3, vWo, vDo, vG, vL = 1, 2, 3, 4, 5, 6
    vFL, vONE, vX, vO1, vO2, vT, vN, vL4, v128, vRD = 7, 8, 9, 10, 11, 12, 14, 15, 124, 126
    WR, DR, KR, VR, QR = 16, 24, 26, 40, 48
    WF, KF, KS, PKU = 56, 72, 100, 116
    a(f"s_sub_u32 s{sE}, s{sWV}, 4")
    a(f"s_lshl_b32 s{sT0}, s{sGQ}, 1\ns_and_b32 s{sT1}, s{sE}, 1\ns_add_u32 s{sT0}, s{sT0}, s{sT1}")
    if o.optB:
        a(f"s_lshl_b32 s{sT1}, s{sR}, 2\ns_lshr_b32 s{sT2}, s{sE}, 1\ns_add_u32 s{sT1}, s{sT1}, s{sT2}")
    else:
        a(f"s_lshl_b32 s{sT1}, s{sR}, 1\ns_lshr_b32 s{sT2}, s{sE}, 2\ns_lshl_b32 s{sT2}, s{sT2}, 6\ns_add_u32 s{sT1}, s{sT1}, s{sT2}")
        a(f"s_bfe_u32 s{sT2}, s{sE}, {(1<<16)|1}\ns_add_u32 s{sT1}, s{sT1}, s{sT2}")
    a(f"s_lshl_b32 s{sT2}, s{sGQ}, 5\ns_add_u32 s{sT2}, s{sT2}, s{sR}")
    a(f"v_lshrrev_b32 v{vK3}, 3, v0\nv_mul_u32_u24 v{vK3}, {RS_IN}, v{vK3}\nv_and_b32 v{vWo}, 7, v0\nv_lshl_add_u32 v{vK3}, v{vWo}, 4, v{vK3}")
    a(f"s_cmp_eq_u32 s{sE}, 8")
    a(f"s_cselect_b32 s46, 8, s{sT0}\ns_cselect_b32 s47, s{sT2}, s{sT1}")
    a(f"s_mul_i32 s{sT0}, s47, {16*RS_IN}\ns_lshl_b32 s{sT1}, s46, 7\ns_add_u32 s{sSIG}, s{sT0}, s{sT1}")
    a(f"v_add_u32 v{vIN}, s{sSIG}, v{vK3}")
    a(f"s_lshl_b32 s{sT2}, s46, 9")
    a(f"v_lshl_add_u32 v{vWo}, v0, 4, s{sT2}")
    a(f"v_add_u32 v{vK3}, {(-3*RS_IN) & 0xffffffff}, v{vIN}")
    G.srd(sK, None, TENS); G.srd(sV, None, TENS); G.srd(sW, None, 4608)
    a(f"s_mul_i32 s{sN}, s{sE}, {STG_SZ}\ns_add_u32 s{sN}, s{sN}, {SCR0}")
    a(f"s_cmp_eq_u32 s{sH}, 0")
    a("s_waitcnt lgkmcnt(0)")
    if o.early: G.stamp(1)
    a(f"s_cselect_b64 s[{sK}:{sK+1}], s[18:19], s[30:31]")
    a(f"s_cselect_b64 s[{sV}:{sV+1}], s[20:21], s[32:33]")
    a(f"s_cselect_b64 s[{sW}:{sW+1}], s[22:23], s[34:35]")
    a(f"s_cselect_b64 s[{sD}:{sD+1}], s[26:27], s[38:39]")
    a(f"s_cselect_b64 s[{sQ}:{sQ+1}], s[16:17], s[28:29]")
    a(f"s_cselect_b64 s[{sHH}:{sHH+1}], s[24:25], s[36:37]")
    if not o.optB:
        a(f"s_and_b32 s{sT0}, s{sE}, 4\ns_cbranch_scc0 L_Eg\ns_barrier\nL_Eg:")
    a(f"s_mov_b32 m0, s{sN}\ns_add_u32 s{sT0}, s{sN}, 1024\ns_mov_b32 s{sT1}, {5*RS_IN}")
    a(f"buffer_load_dwordx4 v{vK3}, s[{sK}:{sK+3}], 0 offen {nt} lds")
    a(f"s_mov_b32 m0, s{sT0}\ns_add_u32 s{sT0}, s{sN}, 2048")
    a(f"buffer_load_dwordx4 v{vIN}, s[{sK}:{sK+3}], s{sT1} offen {nt} lds")
    a(f"s_mov_b32 m0, s{sT0}\ns_mov_b32 s{sT1}, {13*RS_IN}\ns_mov_b64 exec, 0xffffff\ns_add_u32 s{sT0}, s{sN}, 4480")
    a(f"buffer_load_dwordx4 v{vIN}, s[{sK}:{sK+3}], s{sT1} offen {nt} lds")
    a(f"s_mov_b32 m0, s{sT0}\ns_mov_b32 exec_lo, -1\ns_add_u32 s{sT0}, s{sN}, 2432")
    a(f"buffer_load_dwordx4 v{vWo}, s[{sW}:{sW+3}], 0 offen lds")
    a(f"s_mov_b32 m0, s{sT0}\ns_mov_b64 exec, -1\ns_add_u32 s{sT0}, s{sN}, {2432+1024}")
    a(f"buffer_load_dwordx4 v{vIN}, s[{sV}:{sV+3}], 0 offen {nt} lds")
    a(f"s_mov_b32 m0, s{sT0}\ns_mov_b32 s{sT1}, {8*RS_IN}")
    a(f"buffer_load_dwordx4 v{vIN}, s[{sV}:{sV+3}], s{sT1} offen {nt} lds")
    if o.early: G.stamp(2)
    a("s_branch L_Em")

    cHA, cHB, cHB0, cPF, cZ, cU = 100, 101, 102, 103, 56, 60
    a("L_Ci:")
    a(f"s_and_b32 s{sT0}, s{sR}, 15\ns_lshr_b32 s46, s{sR}, 4\ns_lshl_b32 s{sT1}, s{sGQ}, 1\ns_add_u32 s46, s46, s{sT1}")
    a(f"s_and_b32 s{sT1}, s{sT0}, 12\ns_add_u32 s{sT1}, s{sT1}, s{sWV}\ns_lshl_b32 s{sT1}, s{sT1}, 2\ns_and_b32 s{sT2}, s{sT0}, 3\ns_add_u32 s{sT1}, s{sT1}, s{sT2}")
    a(f"s_lshl_b32 s{sT2}, s46, 6\ns_add_u32 s{sT1}, s{sT1}, s{sT2}")
    a(f"s_lshl_b32 s{sT1}, s{sT1}, 12")
    a(f"v_lshl_add_u32 v{cHA}, v0, 4, s{sT1}\nv_add_u32 v{cHB}, -8, v{cHA}")
    a(f"v_cmp_eq_u32 vcc, 0, v0\nv_mov_b32 v{cHB0}, 0xffffff00")
    a(f"s_mul_i32 s47, s{sH}, 1152\ns_lshl_b32 s{sT2}, s46, 7\ns_add_u32 s47, s47, s{sT2}")
    a(f"v_cndmask_b32 v{cHB0}, v{cHB}, v{cHB0}, vcc")
    a(f"s_mul_i32 s{sT0}, s{sT0}, {RS_OUT}\ns_add_u32 s47, s47, s{sT0}")
    G.srd(sHH, None, TENS)
    if o.prefill:
        G.srd(sOUT, None, OUTB)
        a(f"s_mul_i32 s{sT0}, s{sWV}, {32*16*RS_OUT}\ns_add_u32 s{sT0}, s{sT0}, s47")
        a(f"v_lshrrev_b32 v{cPF}, 1, v0\nv_mul_u32_u24 v{cPF}, {16*RS_OUT}, v{cPF}")
    a(f"s_cmp_eq_u32 s{sH}, 0")
    a("s_waitcnt lgkmcnt(0)")
    if o.early: G.stamp(1)
    a(f"s_cselect_b64 s[{sHH}:{sHH+1}], s[24:25], s[36:37]")
    xa_loads(G, 64, cHA, cHB0, 0)
    xa_loads(G, 72, cHA, cHB, 1)
    if o.prefill:
        a(f"s_mov_b64 s[{sOUT}:{sOUT+1}], s[{pOUT}:{pOUT+1}]")
        a(f"buffer_load_dword v{cPF}, v{cPF}, s[{sOUT}:{sOUT+3}], s{sT0} offen {nt}")
    if o.early: G.stamp(2)
    a("s_branch L_Cm")

    vFL_, vONE_, v128_, vT_, vN_, vL4_, vZ, vHA, vHB, vHB0, vU, vU1 = 1, 2, 3, 4, 6, 7, 8, 12, 13, 14, 15, 16
    a("L_Si:")
    for i in range(4): a(f"v_mov_b32 v{vZ+i}, 0")
    a(f"v_lshlrev_b32 v{vL4_}, 2, v0\nv_min_u32 v{vT_}, 60, v{vL4_}\nv_add_u32 v{vT_}, {FL0}, v{vT_}\nds_write_b32 v{vT_}, v{vZ}")
    a(f"v_lshlrev_b32 v{v128_}, 7, v0")
    a(f"s_lshl_b32 s46, s{sH}, 7")
    a("s_waitcnt lgkmcnt(0)")
    if o.early: G.stamp(1)
    a(f"s_cmp_eq_u32 s{sH}, 0")
    a(f"s_cselect_b64 s[{sHH}:{sHH+1}], s[24:25], s[36:37]")
    ctl_srd(G)
    a(f"s_load_dword s{sN}, s[{sDBG}:{sDBG+1}], s46")
    a("s_barrier")
    if o.iso:
        a(f"v_mov_b32 v{vFL_}, {FL0}\nv_mov_b32 v{vT_}, 2\nv_mov_b32 v{vT_+1}, 2\nds_write_b64 v{vFL_}, v[{vT_}:{vT_+1}] offset:{F_N}\ns_waitcnt lgkmcnt(0)\ns_endpgm")
    a(f"v_min_u32 v{vT_}, {19*128}, v{v128_}")
    a(f"buffer_load_dword v{vT_}, v{vT_}, s[{sDBG}:{sDBG+3}], s{sGB} offen nt")
    a(f"s_getreg_b32 s47, hwreg(HW_REG_XCC_ID, 0, 4)")
    a(f"v_lshlrev_b32 v{vHA}, 4, v0")
    a(f"v_add_u32 v{vHB}, {U0 + 4*U_SZ + U_SZ - 1024}, v{vHA}\nds_write_b128 v{vHB}, v[{vZ}:{vZ+3}]")
    a(f"v_add_u32 v{vU1}, {XA0 + 4*XA_SZ}, v{vHA}")
    for p in range(4):
        a(f"ds_write_b128 v{vU1}, v[{vZ}:{vZ+3}] offset:{p*PLANE}")
    G.srd(sHH, None, TENS)
    a(f"v_mov_b32 v{vFL_}, {FL0}\nv_mov_b32 v{vONE_}, 1")
    a("s_waitcnt lgkmcnt(0)")
    G.stamp(1, 3)
    a(f"s_and_b32 s{sN}, s{sN}, 0xfffffff0\ns_add_u32 s{sN}, s{sN}, 0x9e3779b0")
    a(f"s_add_u32 s47, s47, s{sN}\ns_add_u32 s47, s47, 1\nv_mov_b32 v{vN_}, s47")
    a(f"s_mov_b64 exec, 1")
    a(f"buffer_store_dword v{vN_}, off, s[{sDBG}:{sDBG+3}], s{sEV}")
    a(f"s_mov_b32 exec_lo, -1\ns_mov_b32 s{sCNT}, 0\ns_mov_b32 s{sM}, 0")
    HL, HD, HP = G.lab("hl"), G.lab("hd"), G.lab("hp")
    a(f"{HL}:")
    if not o.force_mode1:
        a(f"buffer_load_dword v{vT_}, v{vL4_}, s[{sDBG}:{sDBG+3}], s{sGB} offen sc1")
        a(f"s_add_u32 s{sCNT}, s{sCNT}, 1")
        a("s_waitcnt vmcnt(0)")
        a(f"v_cmp_ne_u32 vcc, s47, v{vT_}")
        a(f"s_cbranch_vccz {HD}")
        a(f"s_cmp_lt_u32 s{sCNT}, {HELLO_T}\ns_cbranch_scc1 {HL}")
        a(f"s_sub_u32 s{sT2}, s47, s{sN}\ns_sub_u32 s{sT2}, s{sT2}, 1\ns_mul_i32 s{sT3}, s{sT2}, s{sT2}\ns_lshl_b32 s{sT3}, s{sT3}, 16")
        a(f"s_lshl_b32 s{sT2}, s{sT2}, 8\ns_add_u32 s{sT2}, s{sT2}, s{sT3}\ns_add_u32 s{sT2}, s{sT2}, 1\ns_lshl_b32 s{sT3}, s{sT2}, 5")
        a(f"s_cmp_eq_u32 s{sCNT}, {HELLO_T}\ns_cselect_b32 s{sT2}, s{sT2}, 0")
        a(f"s_mov_b32 exec_lo, 1\nv_mov_b32 v{vT_}, s{sT2}")
        a(f"buffer_atomic_add v{vT_}, off, s[{sDG}:{sDG+3}], s{sDGO} sc0 sc1")
        a("s_waitcnt vmcnt(0)")
        a(f"v_readfirstlane_b32 s{sT0}, v{vT_}\ns_mov_b32 exec_lo, -1")
        a(f"s_cmp_eq_u32 s{sT0}, s{sT3}\ns_cbranch_scc1 {HD}")
        a(f"s_and_b32 s{sT0}, s{sT0}, 0xff\ns_cmp_ge_u32 s{sT0}, 32\ns_cselect_b32 s{sM}, 1, 0\ns_cbranch_scc1 {HD}")
        a(f"s_sleep 32")
        a(f"s_cmp_lt_u32 s{sCNT}, {CAP_G}\ns_cbranch_scc1 {HL}")
    else:
        a(f"s_mov_b32 s{sM}, 1\ns_waitcnt vmcnt(0)")
    a(f"{HD}:")
    a("s_mov_b64 exec, -1")
    a(f"s_add_u32 s{sT0}, s{sM}, 1\nv_mov_b32 v{vT_}, s{sN}\nv_mov_b32 v{vT_+1}, s{sT0}")
    a(f"ds_write_b64 v{vFL_}, v[{vT_}:{vT_+1}] offset:{F_N}")
    G.stamp(2, 4)
    a(f"s_lshl_b32 s{sT0}, s{sGQ}, 5\ns_add_u32 s{sT0}, s{sT0}, s{sR}\ns_lshr_b32 s{sX2}, s{sT0}, 1")
    a(f"s_add_u32 s{sT0}, s{sX2}, 512\ns_lshl_b32 s{sT0}, s{sT0}, 12")
    a(f"v_add_u32 v{vHA}, s{sT0}, v{vHA}\nv_add_u32 v{vHB}, -8, v{vHA}")
    a(f"v_cmp_eq_u32 vcc, 0, v0\nv_mov_b32 v{vHB0}, 0xffffff00\ns_nop 0\nv_cndmask_b32 v{vHB0}, v{vHB}, v{vHB0}, vcc")
    for q in range(4):
        xa_loads(G, 32 + 8 * q, vHA, vHB0, q)
    get_mode(G, vFL_, vT_, vN_)
    G.srd(sK, pWS, OUTB)
    a(f"v_lshrrev_b32 v{vU}, 1, v0\nv_sub_u32 v{vU}, 31, v{vU}\nv_mul_u32_u24 v{vU}, {16*RS_OUT}, v{vU}")
    a(f"v_and_b32 v{vT_}, 1, v0\nv_lshl_add_u32 v{vU}, v{vT_}, 4, v{vU}")
    a(f"s_lshr_b32 s{sT1}, s{sX2}, 4\ns_lshl_b32 s{sT1}, s{sT1}, 2\ns_and_b32 s{sT2}, s{sX2}, 3\ns_add_u32 s{sT1}, s{sT1}, s{sT2}\ns_mul_i32 s{sT1}, s{sT1}, {RS_OUT}")
    a(f"s_bfe_u32 s{sT2}, s{sX2}, {(2<<16)|2}\ns_lshl_b32 s{sT2}, s{sT2}, 5\ns_add_u32 s{sT1}, s{sT1}, s{sT2}")
    a(f"s_mul_i32 s{sX3}, s{sH}, 1152\ns_add_u32 s{sT1}, s{sT1}, s{sX3}\ns_add_u32 s{sT1}, s{sT1}, 1024")
    a(f"v_add_u32 v{vHA}, s{sT1}, v{vU}")
    a(f"s_and_b32 s{sT0}, s{sR}, 15\ns_mul_i32 s{sT0}, s{sT0}, {RS_OUT}\ns_add_u32 s{sX3}, s{sX3}, s{sT0}")
    a(f"s_lshr_b32 s{sT0}, s{sR}, 4\ns_lshl_b32 s{sT1}, s{sGQ}, 1\ns_add_u32 s{sT0}, s{sT0}, s{sT1}\ns_lshl_b32 s{sT0}, s{sT0}, 7\ns_add_u32 s{sX3}, s{sX3}, s{sT0}")
    a(f"v_add_u32 v{vU}, s{sX3}, v{vU}")
    for q in range(4):
        a(f"s_waitcnt vmcnt({6-2*q})")
        xa_build(G, 32 + 8 * q, 64 + 12 * (q & 1), vU1, 384 + 1024 * q)
    G.stamp(3, -1)
    a(f"s_add_u32 s{sX2}, s{sGB}, {L_UX}")
    poll_line(G, vL4_, sX2, 1, vT_, ("s46", 0), 128, sleep=2, always=True)
    a(f"s_mov_b32 s{sX4}, {U0 + 4*U_SZ}\ns_waitcnt lgkmcnt(0)")
    u_dma(G, vHA, sK, sX4, (3, 2, 1, 0))
    a("s_waitcnt vmcnt(0)")
    a(f"ds_write_b32 v{vFL_}, v{vONE_} offset:{F_X}")
    G.stamp(4, -1)
    a(f"s_add_u32 s{sX2}, s{sGB}, {L_U2}")
    poll_line(G, vL4_, sX2, MU2, vT_, (f"s{sDGO}", 8), NU, sleep=2)
    for j in range(4):
        a(f"s_mov_b32 s{sX4}, {U0 + j*U_SZ}")
        u_dma(G, vU, sXU, sX4, (1, 0))
        if j < 3: a(f"v_add_u32 v{vU}, 32, v{vU}")
    a("s_waitcnt vmcnt(0)")
    a(f"ds_write_b32 v{vFL_}, v{vONE_} offset:{F_U2}")
    G.stamp(5)
    poll_lds(G, vFL_, C_YX, 4, vT_)
    signal_x(G, vN_, v128_, L_YX, 4, vT_)
    G.stamp(6)
    finish(G)

    a("L_Em:")
    if o.iso: a("s_barrier\ns_endpgm")
    if o.optB:
        a("s_barrier")
    else:
        a(f"s_and_b32 s{sT0}, s{sE}, 4\ns_cbranch_scc1 L_Eh\ns_barrier\ns_setprio 1\nL_Eh:")
    G.stamp(1, 3)
    a(f"v_and_b32 v{vG}, 15, v0\nv_lshrrev_b32 v{vL}, 4, v0")
    a(f"v_mul_u32_u24 v{vIN}, {4*RS_IN}, v{vL}\nv_lshl_add_u32 v{vIN}, v{vG}, 3, v{vIN}\nv_add_u32 v{vIN}, s{sSIG}, v{vIN}")
    a(f"v_lshlrev_b32 v{vRD}, 9, v{vL}\nv_lshl_add_u32 v{vRD}, v{vG}, 3, v{vRD}\nv_add_u32 v{vRD}, s{sN}, v{vRD}")
    a(f"v_lshl_add_u32 v{vWo}, v{vG}, 5, s{sN}")
    G.srd(sD, None, 1152); G.srd(sQ, None, TENS); G.srd(sHH, None, TENS)
    G.srd(sOUT, pOUT, OUTB)
    ctl_srd(G)
    a(f"s_mov_b32 s{sLC}, s46\ns_lshl_b32 s{sROW0}, s47, 4")
    a(f"s_lshl_b32 s{sT1}, s{sLC}, 7\nv_lshl_add_u32 v{vDo}, v{vG}, 3, s{sT1}")
    a(f"s_mul_i32 s{sCOL}, s{sH}, 1152\ns_add_u32 s{sCOL}, s{sCOL}, s{sT1}")
    a(f"s_mul_i32 s{sT0}, s{sROW0}, {RS_OUT}\ns_add_u32 s{sT0}, s{sT0}, s{sCOL}")
    a(f"v_mul_u32_u24 v{vO1}, {4*RS_OUT}, v{vL}\nv_lshl_add_u32 v{vO1}, v{vG}, 3, v{vO1}\nv_add_u32 v{vO1}, s{sT0}, v{vO1}")
    a(f"v_add_u32 v{vO2}, {2*RS_OUT}, v{vO1}")
    a(f"v_and_b32 v{vX}, 12, v{vG}\nv_add_u32 v{vX}, v{vX}, v{vL}\nv_mul_u32_u24 v{vX}, {RS_OUT}, v{vX}")
    a(f"v_and_b32 v{vT}, 3, v{vG}\nv_lshl_add_u32 v{vX}, v{vT}, 5, v{vX}\nv_add_u32 v{vX}, s{sT0}, v{vX}")
    a(f"v_mov_b32 v{vFL}, {FL0}\nv_mov_b32 v{vONE}, 1\nv_lshlrev_b32 v{vL4}, 2, v0\nv_lshlrev_b32 v{v128}, 7, v0")
    a(f"s_lshr_b32 s{sSIG}, s{sROW0}, 10")
    a(f"s_and_b32 s{sLR}, s{sR}, 15\ns_lshr_b32 s{sT0}, s{sR}, 4\ns_lshl_b32 s{sT1}, s{sGQ}, 1\ns_add_u32 s{sT0}, s{sT0}, s{sT1}\ns_lshl_b32 s{sT0}, s{sT0}, 6")
    a(f"s_and_b32 s{sT1}, s{sLR}, 12\ns_lshl_b32 s{sT1}, s{sT1}, 2\ns_add_u32 s{sT0}, s{sT0}, s{sT1}\ns_and_b32 s{sT1}, s{sLR}, 3\ns_add_u32 s{sT0}, s{sT0}, s{sT1}")
    a(f"s_lshr_b32 s{sX1}, s{sE}, 1\ns_lshl_b32 s{sT1}, s{sX1}, 2\ns_add_u32 s{sT0}, s{sT0}, s{sT1}")
    a(f"s_lshl_b32 s{sT0}, s{sT0}, 12\ns_and_b32 s{sX2}, s{sE}, 1\ns_lshl_b32 s{sX2}, s{sX2}, 10\ns_add_u32 s{sT0}, s{sT0}, s{sX2}")
    a(f"v_lshl_add_u32 v{vK3}, v0, 4, s{sT0}")
    a(f"s_mul_i32 s{sT0}, s{sX1}, {XA_SZ}\ns_add_u32 s{sT0}, s{sT0}, s{sX2}")
    a(f"v_lshl_add_u32 v{vG}, v0, 4, s{sT0}")
    a(f"s_lshl_b32 s{sT2}, s{sSIG}, 2\ns_add_u32 s{sT2}, s{sT2}, {FL0 + C_U0}\nv_mov_b32 v{vL}, s{sT2}")
    a(f"s_lshl_b32 s{sX3}, s{sSIG}, 9\ns_add_u32 s{sX3}, s{sX3}, {L_U1}")
    a("s_mov_b32 s47, 0xffff0000")
    a("s_waitcnt vmcnt(2)")
    a(f"ds_read_b128 v[{WR}:{WR+3}], v{vWo} offset:4480\nds_read_b128 v[{WR+4}:{WR+7}], v{vWo} offset:4496")
    for i in range(7):
        a(f"ds_read_b64 v[{KR+2*i}:{KR+2*i+1}], v{vRD} offset:{128*i}")
    a("s_waitcnt lgkmcnt(7)")
    for c in range(4):
        for j in range(4):
            src = WR + 2 * c + (j >> 1)
            a(f"v_lshlrev_b32 v{WF+4*j+c}, 16, v{src}" if j % 2 == 0 else f"v_and_b32 v{WF+4*j+c}, s47, v{src}")
    a("s_waitcnt lgkmcnt(0)")
    for i in range(7):
        for d in range(2):
            a(f"v_lshlrev_b32 v{KF+4*i+2*d}, 16, v{KR+2*i+d}")
            a(f"v_and_b32 v{KF+4*i+2*d+1}, s47, v{KR+2*i+d}")
    for j in (3, 2, 1, 0):
        for r in range(4):
            for d in range(2):
                ks, w, k = KS + 4 * r + 2 * d, WF + 4 * j + 2 * d, KF + 4 * (3 + r - j) + 2 * d
                if j == 3:
                    a(f"v_pk_mul_f32 v[{ks}:{ks+1}], v[{k}:{k+1}], v[{w}:{w+1}]")
                else:
                    a(f"v_pk_fma_f32 v[{ks}:{ks+1}], v[{k}:{k+1}], v[{w}:{w+1}], v[{ks}:{ks+1}]")
    a("s_waitcnt vmcnt(0)")
    for i in range(4):
        a(f"ds_read_b64 v[{VR+2*i}:{VR+2*i+1}], v{vRD} offset:{2432 + 128*i}")
    G.stamp(-1, 4)
    get_mode(G, vFL, vT, vN)
    G.stamp(2, -1)
    for r in range(4):
        for d in range(2):
            a(f"v_lshlrev_b32 v{KF+4*r+2*d}, 16, v{VR+2*r+d}")
            a(f"v_and_b32 v{KF+4*r+2*d+1}, s47, v{VR+2*r+d}")
    for r in range(4):
        for d in range(2):
            ks, k = KS + 4 * r + 2 * d, KF + 4 * r + 2 * d
            a(f"v_pk_mul_f32 v[{ks}:{ks+1}], v[{ks}:{ks+1}], v[{k}:{k+1}]")
    regs = [PKU + 2 * (3 - j) for j in range(4)]
    for c in range(4):
        a(f"v_cvt_pk_bf16_f32 v{regs[c]}, v{KS+12+c}, v{KS+8+c}")
        a(f"v_cvt_pk_bf16_f32 v{regs[c]+1}, v{KS+4+c}, v{KS+c}")
    transpose4(G, regs)
    LX, LM, LJ = G.lab("ex"), G.lab("em"), G.lab("ej")
    a(f"s_cmp_eq_u32 s{sE}, 8\ns_cbranch_scc1 {LX}")
    A, B = G.lab("us"), G.lab("ud")
    a(f"s_cmp_eq_u32 s{sM}, 0\ns_cbranch_scc0 {A}")
    for fl in ("", "sc1"):
        a(f"buffer_store_dwordx4 v[{PKU}:{PKU+3}], v{vX}, s[{sXU}:{sXU+3}], 0 offen {fl}")
        a(f"buffer_store_dwordx4 v[{PKU+4}:{PKU+7}], v{vX}, s[{sXU}:{sXU+3}], 0 offen offset:16 {fl}")
        if fl == "": a(f"s_branch {B}\n{A}:")
    a(f"{B}:")
    a("s_mov_b64 exec, 1")
    a("s_waitcnt vmcnt(0)")
    a(f"ds_add_rtn_u32 v{vT}, v{vL}, v{vONE}")
    a("s_waitcnt lgkmcnt(0)")
    a(f"v_readfirstlane_b32 s{sT0}, v{vT}")
    D = G.lab("eu")
    a(f"s_cmp_eq_u32 s{sT0}, {7 if o.optB else 3}\ns_cbranch_scc0 {D}")
    a(f"s_lshl_b32 s{sT2}, s{sSIG}, 2\ns_add_u32 s{sT2}, s{sT2}, 4")
    signal(G, vN, v128, f"s{sX3}", f"s{sT2}", 16 if o.optB else 32, WF)
    a(f"{D}:")
    a("s_mov_b64 exec, -1")
    G.stamp(3, -1)
    xa_loads(G, KR, vK3, None, 2)
    a(f"buffer_load_dwordx2 v[{DR}:{DR+1}], v{vDo}, s[{sD}:{sD+3}], 0 offen")
    for i in range(4):
        a(f"buffer_load_dwordx2 v[{QR+2*i}:{QR+2*i+1}], v{vIN}, s[{sQ}:{sQ+3}], 0 offen offset:{i*RS_IN} {nt}")
    a("s_waitcnt vmcnt(5)")
    xa_build(G, KR, WF, vG, XA0 + 384 + 2048)
    a("s_waitcnt lgkmcnt(0)")
    a(f"s_mov_b64 exec, 1\nds_add_u32 v{vFL}, v{vONE} offset:{C_H}\ns_mov_b64 exec, -1")
    a(f"s_and_b32 s{sT0}, s{sE}, 3\ns_lshl_b32 s{sT0}, s{sT0}, 7\ns_add_u32 s{sX2}, s{sX3}, s{sT0}\ns_add_u32 s{sX2}, s{sX2}, s{sGB}\ns_add_u32 s{sX2}, s{sX2}, {L_Y1 - L_U1}")
    a(f"s_mov_b32 s{sX4}, -1\ns_mov_b32 s{sISX}, 0\ns_setprio 0")
    a(f"s_lshl_b32 s{sLR}, s{sSIG}, 2\ns_add_u32 s{sLR}, s{sLR}, s{sDGO}\ns_add_u32 s{sLR}, s{sLR}, 12\ns_mov_b32 s{sCHJ}, 32")
    a(f"s_branch {LJ}")
    a(f"{LX}:")
    a(f"s_add_u32 s{sXY}, s{pWS}, {OUTB}\ns_addc_u32 s{sXY+1}, s{pWS+1}, 0\ns_mov_b64 s[{sXU}:{sXU+1}], s[{pWS}:{pWS+1}]")
    a(f"buffer_store_dwordx4 v[{PKU}:{PKU+3}], v{vX}, s[{sXU}:{sXU+3}], 0 offen sc1")
    a(f"buffer_store_dwordx4 v[{PKU+4}:{PKU+7}], v{vX}, s[{sXU}:{sXU+3}], 0 offen offset:16 sc1")
    a(f"s_lshl_b32 s{sX1}, s{sH}, 7\ns_add_u32 s{sX2}, s{sGB}, {L_YX}\ns_mov_b32 s{sX4}, 1\ns_mov_b32 s{sISX}, 1")
    a(f"s_add_u32 s{sLR}, s{sX1}, 4\ns_mov_b32 s{sCHJ}, 128")
    a("s_waitcnt vmcnt(0)")
    signal_x(G, vN, v128, L_UX, 0, vT)
    a("s_setprio 0")
    G.stamp(3, -1)
    a(f"buffer_load_dwordx2 v[{DR}:{DR+1}], v{vDo}, s[{sD}:{sD+3}], 0 offen")
    for i in range(4):
        a(f"buffer_load_dwordx2 v[{QR+2*i}:{QR+2*i+1}], v{vIN}, s[{sQ}:{sQ+3}], 0 offen offset:{i*RS_IN} {nt}")
    a(f"{LJ}:")
    QF, DF = KF, WF
    a("s_waitcnt vmcnt(0)")
    for d in range(2):
        a(f"v_lshlrev_b32 v{DF+2*d}, 16, v{DR+d}\nv_and_b32 v{DF+2*d+1}, s47, v{DR+d}")
    for r in range(4):
        for d in range(2):
            a(f"v_lshlrev_b32 v{QF+4*r+2*d}, 16, v{QR+2*r+d}\nv_and_b32 v{QF+4*r+2*d+1}, s47, v{QR+2*r+d}")
    for r in range(4):
        for d in range(2):
            ks = KS + 4 * r + 2 * d
            a(f"v_pk_mul_f32 v[{ks}:{ks+1}], v[{ks}:{ks+1}], v[{DF+2*d}:{DF+2*d+1}]")
    for r in range(4):
        for d in range(2):
            ks, q = KS + 4 * r + 2 * d, QF + 4 * r + 2 * d
            a(f"v_pk_mul_f32 v[{ks}:{ks+1}], v[{ks}:{ks+1}], v[{q}:{q+1}]")
    G.stamp(4, -1)
    D, D2 = G.lab("ey1"), G.lab("ey2")
    a(f"s_cmp_eq_u32 s{sE}, 0\ns_cbranch_scc0 {D}")
    poll_lds(G, vFL, C_Y1, 4, vT)
    signal(G, vN, v128, L_Y1, 12, 32, 16)
    a(f"{D}:")
    poll_line(G, vL4, sX2, f"s{sX4}", vT, (f"s{sLR}", 0), f"s{sCHJ}", always=f"s{sISX}")
    G.stamp(5)
    YR, YF = 16, 24
    a(f"buffer_load_dwordx4 v[{YR}:{YR+3}], v{vX}, s[{sXY}:{sXY+3}], 0 offen sc1")
    a(f"buffer_load_dwordx4 v[{YR+4}:{YR+7}], v{vX}, s[{sXY}:{sXY+3}], 0 offen offset:16 sc1")
    D = G.lab("ep")
    a(f"s_lshl_b32 s{sT0}, s{sGQ}, 5\ns_add_u32 s{sT0}, s{sT0}, s{sR}\ns_lshl_b32 s{sT0}, s{sT0}, 4\ns_add_u32 s{sT0}, s{sT0}, s{sE}")
    a(f"s_cmp_eq_u32 s{sT0}, 8\ns_cbranch_scc0 {D}")
    a(f"s_mov_b64 exec, 1\nbuffer_store_dword v{vN}, off, s[{sDBG}:{sDBG+3}], s{sX1} sc1\ns_mov_b64 exec, -1")
    a(f"{D}:")
    a("s_waitcnt vmcnt(0)")
    G.stamp(6)
    transpose4(G, [YR + 2 * j for j in range(4)])
    for c in range(4):
        for d in range(2):
            a(f"v_lshlrev_b32 v{YF+8*d+c}, 16, v{YR+2*c+d}\nv_and_b32 v{YF+8*d+4+c}, s47, v{YR+2*c+d}")
    for r in range(4):
        for d in range(2):
            ks, q, y = KS + 4 * r + 2 * d, QF + 4 * r + 2 * d, YF + 4 * r + 2 * d
            a(f"v_pk_fma_f32 v[{ks}:{ks+1}], v[{q}:{q+1}], v[{y}:{y+1}], v[{ks}:{ks+1}]")
        for d in range(2):
            ks = KS + 4 * r + 2 * d
            a(f"v_cvt_pk_bf16_f32 v{PKU+2*r+d}, v{ks}, v{ks+1}")
        a(f"buffer_store_dwordx2 v[{PKU+2*r}:{PKU+2*r+1}], v{vO1 if r < 2 else vO2}, s[{sOUT}:{sOUT+3}], 0 offen offset:{(r&1)*RS_OUT} {o.out_flag}")
    if o.stamps: a("s_waitcnt vmcnt(0)")
    finish(G)

    vA, vB, vAX, vBX, vY, vYX, vSW, vSR, vFL, vONE, v128, vT, vN, vL4 = 1, 2, 3, 4, 5, 6, 7, 8, 9, 10, 11, 12, 14, 15
    a("L_Cm:")
    a("s_barrier")
    a("s_setprio 2")
    G.stamp(1, 3)
    ctl_srd(G)
    a(f"s_mov_b32 s{sCOL}, s47")
    a(f"s_mul_i32 s{sX2}, s{sWV}, {XA_SZ}\ns_mul_i32 s{sX3}, s{sWV}, {U_SZ}\ns_add_u32 s{sX3}, s{sX3}, {U0}")
    for i in range(4): a(f"v_mov_b32 v{cZ+i}, 0")
    a(f"v_lshl_add_u32 v{cHA}, v0, 4, s{sX2}")
    for p in range(4):
        a(f"ds_write_b128 v{cHA}, v[{cZ}:{cZ+3}] offset:{XA0 + p*PLANE}")
    a(f"v_lshl_add_u32 v{cHB}, v0, 4, s{sX3}")
    a(f"ds_write_b128 v{cHB}, v[{cZ}:{cZ+3}] offset:{U_SZ-1024}")
    a(f"v_and_b32 v{vT}, 3, v0\nv_mul_u32_u24 v{vA}, {PLANE}, v{vT}")
    a(f"v_bfe_u32 v{vB}, v0, 2, 2\nv_lshl_add_u32 v{vA}, v{vB}, 7, v{vA}")
    a(f"v_lshrrev_b32 v{vB}, 4, v0\nv_lshl_add_u32 v{vA}, v{vB}, 4, v{vA}")
    a(f"s_lshl_b32 s{sT0}, s{sWV}, 7")
    a(f"s_add_u32 s{sT1}, s{sT0}, {XA0 + 4*XA_SZ}\nv_add_u32 v{vAX}, s{sT1}, v{vA}\nv_add_u32 v{vA}, s{sX2}, v{vA}")
    a(f"v_lshlrev_b32 v{vB}, 4, v{vB}\nv_and_b32 v{vBX}, 15, v0\nv_lshlrev_b32 v{vBX}, 3, v{vBX}\nv_sub_u32 v{vB}, v{vB}, v{vBX}\nv_add_u32 v{vB}, 120, v{vB}")
    a(f"s_add_u32 s{sT1}, s{sT0}, {U0 + 4*U_SZ}\nv_add_u32 v{vBX}, s{sT1}, v{vB}\nv_add_u32 v{vB}, s{sX3}, v{vB}")
    a(f"v_lshrrev_b32 v{vY}, 2, v0\nv_mul_u32_u24 v{vY}, {16*RS_OUT}, v{vY}\nv_lshl_add_u32 v{vY}, v{vT}, 3, v{vY}")
    a(f"s_lshl_b32 s{sT0}, s{sGQ}, 5\ns_add_u32 s{sT0}, s{sT0}, s{sR}\ns_and_b32 s{sTS}, s{sT0}, 1\ns_lshr_b32 s{sT0}, s{sT0}, 1")
    a(f"s_lshr_b32 s{sT1}, s{sT0}, 4\ns_lshl_b32 s{sT1}, s{sT1}, 2\ns_and_b32 s{sT2}, s{sT0}, 3\ns_add_u32 s{sT1}, s{sT1}, s{sT2}\ns_mul_i32 s{sT1}, s{sT1}, {RS_OUT}")
    a(f"s_bfe_u32 s{sT2}, s{sT0}, {(2<<16)|2}\ns_lshl_b32 s{sT2}, s{sT2}, 5\ns_add_u32 s{sT1}, s{sT1}, s{sT2}")
    a(f"s_mul_i32 s{sT2}, s{sH}, 1152\ns_add_u32 s{sT1}, s{sT1}, s{sT2}\ns_add_u32 s{sT1}, s{sT1}, 1024")
    a(f"v_add_u32 v{vYX}, s{sT1}, v{vY}")
    a(f"s_lshl_b32 s{sT2}, s{sWV}, 5\ns_add_u32 s{sCOL}, s{sCOL}, s{sT2}\nv_add_u32 v{vY}, s{sCOL}, v{vY}")
    a(f"s_mov_b32 s{sT0}, 0x7430\ns_mov_b32 s{sT1}, 0x6521\ns_cmp_eq_u32 s{sTS}, 0\ns_cselect_b32 s{sT0}, s{sT0}, s{sT1}")
    a(f"s_lshl_b32 s{sT1}, s{sWV}, 2\ns_lshr_b32 s{sT0}, s{sT0}, s{sT1}\ns_and_b32 s{sT0}, s{sT0}, 7\ns_mul_i32 s{sX1}, s{sT0}, {TILE_STEP}")
    a(f"s_lshl_b32 s{sT0}, s{sWV}, 10\ns_add_u32 s{sT0}, s{sT0}, {SCR0}\nv_lshl_add_u32 v{vSW}, v0, 4, s{sT0}")
    a(f"s_lshl_b32 s{sT0}, s{sWV}, 12\ns_add_u32 s{sT0}, s{sT0}, {SCR0}\nv_lshl_add_u32 v{vSR}, v0, 4, s{sT0}")
    a(f"v_mov_b32 v{vFL}, {FL0}\nv_mov_b32 v{vONE}, 1\nv_lshlrev_b32 v{vL4}, 2, v0\nv_lshlrev_b32 v{v128}, 7, v0")
    a(f"s_add_u32 s{sWMY}, s{pWS}, {OUTB}\ns_addc_u32 s{sWMY+1}, s{pWS+1}, 0")
    G.srd(sWMY, None, OUTB)
    a(f"v_lshrrev_b32 v{cU}, 1, v0\nv_sub_u32 v{cU}, 31, v{cU}\nv_mul_u32_u24 v{cU}, {16*RS_OUT}, v{cU}")
    a(f"v_and_b32 v{vT}, 1, v0\nv_lshl_add_u32 v{cU}, v{vT}, 4, v{cU}\nv_add_u32 v{cU}, s{sCOL}, v{cU}")
    a(f"s_lshl_b32 s{sX4}, s{sWV}, 7\ns_add_u32 s{sX4}, s{sX4}, s{sGB}\ns_add_u32 s{sX4}, s{sX4}, {L_U1}")
    npf = 1 if o.prefill else 0
    a(f"s_waitcnt vmcnt({2+npf})")
    xa_build(G, 64, 80, cHA, XA0 + 384)
    a(f"s_waitcnt vmcnt({npf})")
    xa_build(G, 72, 104, cHA, XA0 + 384 + 1024)
    G.stamp(-1, 4)
    get_mode(G, vFL, vT, vN)
    G.stamp(2, -1)
    if not o.iso:
        poll_line(G, vL4, sX4, MU1, vT, (f"s{sDGO}", 4), NU, sleep=0)
    u_dma(G, cU, sXU, sX3, (3, 2))
    a(f"s_cmp_eq_u32 s{sTS}, 0")
    a("s_waitcnt vmcnt(0)")
    if o.iso: G.stamp(2)
    a("s_cbranch_scc0 L_C1")
    st0 = c_stream(G, 0)
    a("L_C1:")
    st1 = c_stream(G, 1)
    a("L_exit:")
    a("s_endpgm")

    head = open("cdna_kernels/" + NAME + ".s.ref").read().split("\n")
    hdr = [l for l in head if l.startswith(";") and "@launch" not in l and not l.startswith("; Override") and not l.startswith("; grid=")]
    hdr = [l for l in hdr if l.startswith("; Kernarg") or l.startswith(";   offset")]
    out = hdr + [f"; @launch grid=(256,1,1) block=(896,1,1) lds={LDS_SZ}",
                 '.amdgcn_target "amdgcn-amd-amdhsa--gfx950"', ".text", f".globl {K}", ".p2align 8", f".type {K},@function"]
    out += G.L
    out += ['.section .rodata,"a"', ".p2align 6", f".amdhsa_kernel {K}",
            "  .amdhsa_next_free_vgpr 128", "  .amdhsa_next_free_sgpr 102", "  .amdhsa_accum_offset 128",
            "  .amdhsa_group_segment_fixed_size 0", "  .amdhsa_kernarg_size 120", "  .amdhsa_user_sgpr_count 2",
            "  .amdhsa_user_sgpr_kernarg_segment_ptr 1", "  .amdhsa_system_sgpr_workgroup_id_x 1",
            "  .amdhsa_float_denorm_mode_32 3", ".end_amdhsa_kernel", ""]
    print("stream stats (mfma, ds, max/gap, gaps>1):", st0, st1, file=sys.stderr)
    return "\n".join(out)


if __name__ == "__main__":
    ap = argparse.ArgumentParser()
    ap.add_argument("-o", default="cdna_kernels/" + NAME + ".s")
    ap.add_argument("opts", nargs="*")
    args = ap.parse_args()
    o = Opt()
    for kv in args.opts:
        k, v = kv.split("=", 1)
        cur = getattr(o, k)
        setattr(o, k, (v not in ("0", "False", "")) if isinstance(cur, bool) else type(cur)(v))
    open(args.o, "w").write(gen(o))
```

```python
import sys, argparse

NAME = "concat_heads__ssm_conv_h3__ssm_conv_h3__prompt"

RS_IN = 1152
RS_OUT = 2304
TENS = 2359296
OUTB = 4718592
PLANE = 4640
XA_SZ = 4 * PLANE
U_SZ = 4224
XA0 = 0
U0 = 5 * XA_SZ
SCR0 = U0 + 5 * U_SZ
STG_SZ = 4992
FL0 = SCR0 + 9 * STG_SZ
LDS_SZ = FL0 + 64
F_N, F_V, C_GO, F_M, C_U0, C_U1, C_R, C_H, F_X, F_U2, F_YX, C_P, C_Y1, C_Y2, C_YX = [4 * i for i in range(15)]
CT_OFF = 16 << 20
L_U1, L_Y1, L_Y2, L_YX = 0, 512, 1024, 1536
XU_OFF, XY_OFF = 10 << 20, 12 << 20
UOFF = 4096
GSTRIDE = 8192
TILE_STEP = 256 * RS_OUT
CAP_G = 1 << 15
CAP_L = 1 << 19
W_S, W_C = 0, 10


class Opt:
    stamps = False
    force_mode1 = False
    ld_nt = "nt"
    out_flag = ""
    lead = 8
    prefetch_code = True
    prefill = True
    sleep = 1
    cyc = False
    iso = False
    dspan = False
    early = False
    order = "1x32"
    golate = False
    y1wait = 0
    tl_fl = "sc1"
    noq = False
    pf_nt = ""
    dma_fl = "sc1"
    win = True


STAMP_REGS = [88, 90, 92, 94, 96, 98, 36, 38]


class Gen:
    def __init__(self, o):
        self.o = o
        self.L = []
        self.uid = 0
        self.cold = []
    def a(self, s):
        for ln in s.split("\n"):
            self.L.append("    " + ln.strip() if not ln.strip().endswith(":") else ln.strip())
    def flush_cold(self):
        while self.cold:
            c, self.cold = self.cold, []
            for fn in c: fn()
    def lab(self, base):
        self.uid += 1
        return f"L_{base}_{self.uid}"
    def srd(self, d, lo, nrec):
        if lo is not None and lo != d:
            self.a(f"s_mov_b64 s[{d}:{d+1}], s[{lo}:{lo+1}]")
        self.a(f"s_mov_b32 s{d+2}, {nrec}\ns_mov_b32 s{d+3}, 0x00020000")
    def stamp(self, i, early=None):
        if self.o.early: i = -1 if early is None else early
        if self.o.stamps and i >= 0:
            r = STAMP_REGS[i]
            self.a(f"{'s_memtime' if self.o.cyc else 's_memrealtime'} s[{r}:{r+1}]")


sWV, sG, sR, sH, sGQ = 3, 4, 5, 6, 7
sT0, sT1, sT2, sT3 = 8, 9, 10, 11
sM, sEV, sCNT, sSIG = 12, 13, 14, 15
pOUT, pDBG, pWS = 40, 42, 44
sK, sV, sQ, sW, sD, sXU, sXY, sOUT, sCT, sHH = 48, 52, 56, 60, 64, 68, 72, 76, 80, 84
sDG = 60
sROW0, sLC, sCOL, sLR, sCHJ, sX1, sX2, sX3, sX4, sF, sN = 16, 17, 18, 19, 20, 21, 22, 23, 24, 26, 27
sWMY, sTS, sGB, sDGO, sJ = 28, 32, 33, 34, 35
sTAG = 25
sE, sSTG = 100, 101


def poll_line(G, vl4, soff, mask, vt, cnt, n, sleep=None, always=False, scmp=sF, detect=None):
    L, D, C, R = G.lab("pg"), G.lab("pgd"), G.lab("pgc"), G.lab("pgr")
    m = f"{mask:#x}" if isinstance(mask, int) else mask
    G.a(f"s_mov_b32 exec_lo, {m}\ns_mov_b32 exec_hi, 0")
    G.a(f"s_mov_b32 s{sCNT}, 0")
    G.a(f"{L}:")
    G.a(f"buffer_load_dword v{vt}, v{vl4}, s[{sCT}:{sCT+3}], s{soff} offen sc1")
    G.a(f"s_add_u32 s{sCNT}, s{sCNT}, 1")
    G.a("s_waitcnt vmcnt(0)")
    G.a(f"v_cmp_ne_u32 vcc, s{scmp}, v{vt}")
    G.a(f"s_cbranch_vccz {D}")
    sl = G.o.sleep if sleep is None else sleep
    if sl:
        G.a(f"s_sleep {sl}")
    G.a(f"s_and_b32 s{sT0}, s{sCNT}, 63\ns_cbranch_scc1 {L}")
    G.a(f"s_branch {C}")
    G.a(f"{D}:")
    G.a("s_mov_b64 exec, -1")
    def cold():
        G.a(f"{C}:")
        R0 = G.lab("pgx") if detect else R
        if always is True:
            pass
        elif always:
            G.a(f"s_or_b32 s{sT0}, s{sM}, {always}\ns_cbranch_scc0 {R0}")
        else:
            G.a(f"s_cmp_eq_u32 s{sM}, 0\ns_cbranch_scc1 {R0}")
        G.a(f"s_mov_b32 exec_lo, 1\nv_mov_b32 v{vt}, 0")
        G.a(f"buffer_atomic_add v{vt}, off, s[{sDG}:{sDG+3}], {cnt[0]} offset:{cnt[1]} sc0 sc1")
        G.a(f"s_waitcnt vmcnt(0)")
        G.a(f"v_readfirstlane_b32 s{sT0}, v{vt}\ns_mov_b32 exec_lo, {m}")
        G.a(f"s_cmp_ge_u32 s{sT0}, {n}\ns_cbranch_scc1 {D}")
        G.a(f"{R}:")
        G.a(f"s_cmp_lt_u32 s{sCNT}, {CAP_G}\ns_cbranch_scc1 {L}\ns_branch {D}")
        if detect:
            G.a(f"{R0}:")
            detect(R)
            G.a(f"s_mov_b32 exec_lo, {m}\ns_mov_b32 exec_hi, 0\ns_branch {R}")
    G.cold.append(cold)


def poll_lds(G, vfl, off, expected, vt, sleep=1, pair=None, hook=None):
    L, D = G.lab("pl"), G.lab("pld")
    G.a(f"s_mov_b32 s{sCNT}, 0")
    G.a(f"{L}:")
    if pair is None:
        G.a(f"ds_read_b32 v{vt}, v{vfl} offset:{off}")
    else:
        G.a(f"ds_read_b64 v[{vt}:{vt+1}], v{vfl} offset:{off}")
    G.a(f"s_add_u32 s{sCNT}, s{sCNT}, 1")
    G.a("s_waitcnt lgkmcnt(0)")
    G.a(f"v_readfirstlane_b32 s{sT0}, v{vt}")
    if pair is not None:
        G.a(f"v_readfirstlane_b32 s{pair}, v{vt+1}")
    if hook: hook(L)
    G.a(f"s_cmp_ge_u32 s{sT0}, {expected}")
    G.a(f"s_cbranch_scc1 {D}")
    G.a(f"s_sleep {sleep}")
    G.a(f"s_cmp_lt_u32 s{sCNT}, {CAP_L}")
    G.a(f"s_cbranch_scc1 {L}")
    G.a(f"{D}:")


def get_nonce(G, vfl, vt, vf):
    L, D = G.lab("gn"), G.lab("gnd")
    G.a(f"s_getreg_b32 s{sF}, hwreg(HW_REG_XCC_ID, 0, 4)\ns_mov_b32 s{sCNT}, 0")
    G.a(f"{L}:")
    G.a(f"ds_read_b64 v[{vt}:{vt+1}], v{vfl} offset:{F_N}")
    G.a(f"s_add_u32 s{sCNT}, s{sCNT}, 1")
    G.a("s_waitcnt lgkmcnt(0)")
    G.a(f"v_readfirstlane_b32 s{sTAG}, v{vt+1}")
    G.a(f"v_readfirstlane_b32 s{sN}, v{vt}")
    G.a(f"s_cmp_ge_u32 s{sTAG}, 1")
    G.a(f"s_cbranch_scc1 {D}")
    G.a("s_sleep 1")
    G.a(f"s_cmp_lt_u32 s{sCNT}, {CAP_L}")
    G.a(f"s_cbranch_scc1 {L}")
    G.a(f"{D}:")
    G.a(f"s_add_u32 s{sF}, s{sF}, s{sN}\ns_add_u32 s{sF}, s{sF}, 1\nv_mov_b32 v{vf}, s{sF}\ns_and_b32 s{sTAG}, s{sTAG}, 0xffff")


def to_mode1(G, vf):
    G.a(f"s_mov_b32 s{sM}, 1\ns_mov_b32 s{sF}, s{sN}\nv_mov_b32 v{vf}, s{sN}")
    G.a(f"s_add_u32 s{sGB}, s{sGB}, {UOFF}")
    G.a(f"s_mov_b64 s[{sXU}:{sXU+1}], s[{pWS}:{pWS+1}]")
    G.a(f"s_add_u32 s{sXY}, s{pWS}, {OUTB}\ns_addc_u32 s{sXY+1}, s{pWS+1}, 0")


def adopt_mode(G, sm, vf):
    A, B = G.lab("am"), G.lab("amb")
    G.a(f"s_cmp_gt_u32 s{sm}, s{sM}\ns_cbranch_scc1 {A}")
    G.a(f"{B}:")
    def cold():
        G.a(f"{A}:")
        to_mode1(G, vf)
        G.a(f"s_branch {B}")
    G.cold.append(cold)


def signal(G, vf, v128, line, cnt, vt):
    A, B = G.lab("ma"), G.lab("mb")
    G.a(f"s_add_u32 s{sT1}, s{sEV}, {line}")
    G.a(f"s_mov_b64 exec, 15")
    G.a(f"s_cmp_eq_u32 s{sM}, 0\ns_cbranch_scc0 {A}")
    G.a(f"buffer_store_dword v{vf}, v{v128}, s[{sCT}:{sCT+3}], s{sT1} offen")
    G.a(f"{B}:")
    G.a("s_mov_b64 exec, -1")
    def cold():
        G.a(f"{A}:")
        G.a(f"s_mov_b64 exec, 1\nv_mov_b32 v{vt}, 1\ns_add_u32 s{sT1}, s{sDGO}, {cnt}")
        G.a(f"buffer_atomic_add v{vt}, off, s[{sDG}:{sDG+3}], s{sT1} sc0 sc1")
        G.a("s_waitcnt vmcnt(0)")
        G.a(f"v_readfirstlane_b32 s{sT0}, v{vt}")
        G.a(f"s_cmp_eq_u32 s{sT0}, 31\ns_cbranch_scc0 {B}")
        G.a(f"s_mov_b32 exec_lo, -1\ns_add_u32 s{sT1}, s{sGB}, {line}")
        G.a(f"v_lshrrev_b32 v{vt+4}, 3, v{v128}")
        for k in range(4): G.a(f"v_mov_b32 v{vt+k}, v{vf}")
        G.a(f"buffer_store_dwordx4 v[{vt}:{vt+3}], v{vt+4}, s[{sCT}:{sCT+3}], s{sT1} offen sc1")
        G.a(f"buffer_store_dwordx4 v[{vt}:{vt+3}], v{vt+4}, s[{sCT}:{sCT+3}], s{sT1} offen")
        G.a(f"s_branch {B}")
    G.cold.append(cold)


def tagged_loads(G, n, r0, vaddr, srd, offs, vt, after=None):
    L, D, C = G.lab("tl"), G.lab("tld"), G.lab("tlc")
    def loads():
        for k in range(n):
            so, io = offs(k)
            if so: G.a(f"s_mov_b32 s{sT1}, {so}")
            G.a(f"buffer_load_dwordx4 v[{r0+4*k}:{r0+4*k+3}], v{vaddr}, s[{srd}:{srd+3}], {'s%d' % sT1 if so else 0} offen offset:{io} {G.o.tl_fl}")
    G.a(f"s_mov_b32 s{sCNT}, 0")
    loads()
    nyoung = after() if after else 0
    G.a(f"s_waitcnt vmcnt({nyoung})")
    if after: G.stamp(-1, 5)
    G.a(f"{L}:")
    G.a(f"v_xor_b32 v{vt}, s{sTAG}, v{r0}")
    for k in range(1, 4 * n):
        G.a(f"v_bitop3_b32 v{vt}, v{vt}, v{r0+k}, s{sTAG} bitop3:0xf6")
    G.a(f"v_and_b32 v{vt}, 0xffff, v{vt}")
    G.a(f"v_cmp_ne_u32 vcc, 0, v{vt}")
    G.a(f"s_cbranch_vccnz {C}")
    G.a(f"{D}:")
    def cold():
        G.a(f"{C}:")
        G.a(f"s_add_u32 s{sCNT}, s{sCNT}, 1\ns_cmp_lt_u32 s{sCNT}, {CAP_G}\ns_cbranch_scc0 {D}")
        R = G.lab("tlr")
        G.a(f"s_and_b32 s{sT0}, s{sCNT}, 63\ns_cbranch_scc1 {R}\nbuffer_inv sc1\n{R}:")
        G.a("s_sleep 2")
        loads()
        G.a(f"s_waitcnt vmcnt(0)\ns_branch {L}")
    G.cold.append(cold)


def ctl_srd(G):
    G.a(f"s_add_u32 s{sCT}, s{pWS}, {CT_OFF}\ns_addc_u32 s{sCT+1}, s{pWS+1}, 0")
    G.srd(sCT, None, 9 * GSTRIDE)
    G.a(f"s_add_u32 s{sGB}, s{sG}, 1\ns_lshl_b32 s{sGB}, s{sGB}, 13\ns_lshl_b32 s{sEV}, s{sR}, 2\ns_add_u32 s{sEV}, s{sEV}, s{sGB}")


def misc_srd(G):
    G.srd(sDG, pDBG, 256)
    G.a(f"s_mul_i32 s{sDGO}, s{sGQ}, 20\ns_lshl_b32 s{sT0}, s{sH}, 7\ns_add_u32 s{sDGO}, s{sDGO}, s{sT0}\ns_add_u32 s{sDGO}, s{sDGO}, 8")
    G.srd(sXU, pOUT, OUTB)
    G.srd(sXY, pOUT, OUTB)
    G.a(f"s_mov_b32 s{sM}, 0")


def chan_of(G, sj, dst):
    G.a(f"s_and_b32 s{sT1}, s{sR}, 12\ns_add_u32 s{sT1}, s{sT1}, s{sj}\ns_lshl_b32 s{sT1}, s{sT1}, 2\ns_and_b32 s{sT2}, s{sR}, 3\ns_add_u32 s{sT1}, s{sT1}, s{sT2}")
    G.a(f"s_lshr_b32 s{sT2}, s{sR}, 4\ns_lshl_b32 s{sT3}, s{sGQ}, 1\ns_add_u32 s{sT2}, s{sT2}, s{sT3}\ns_lshl_b32 s{sT2}, s{sT2}, 6\ns_add_u32 s{dst}, s{sT1}, s{sT2}")


def inbox_of(G, dst, slr):
    G.a(f"s_lshr_b32 s{sT2}, s{sR}, 4\ns_lshl_b32 s{sT3}, s{sGQ}, 1\ns_add_u32 s{sT2}, s{sT2}, s{sT3}\ns_lshl_b32 s{sT2}, s{sT2}, 7")
    G.a(f"s_mul_i32 s{dst}, s{sH}, 1152\ns_add_u32 s{dst}, s{dst}, s{sT2}\ns_and_b32 s{slr}, s{sR}, 15")


def xbox_of(G, dst, se, slr):
    G.a(f"s_lshl_b32 s{se}, s{sGQ}, 5\ns_add_u32 s{se}, s{se}, s{sR}\ns_lshr_b32 s{se}, s{se}, 1")
    G.a(f"s_lshr_b32 s{sT1}, s{se}, 4\ns_lshl_b32 s{sT1}, s{sT1}, 2\ns_and_b32 s{sT2}, s{se}, 3\ns_add_u32 s{slr}, s{sT1}, s{sT2}")
    G.a(f"s_bfe_u32 s{sT1}, s{se}, {(2<<16)|2}\ns_lshl_b32 s{sT1}, s{sT1}, 6")
    G.a(f"s_lshl_b32 s{sT2}, s{sH}, 19\ns_add_u32 s{dst}, s{sT1}, s{sT2}")


def blk_addr(G, vd, vt, slr, rowb, scol):
    G.a(f"v_add_u32 v{vt}, s{slr}, v{vd}\nv_and_b32 v{vt}, 15, v{vt}\nv_lshl_add_u32 v{vd}, v{vd}, 4, v{vt}")
    G.a(f"v_mul_u32_u24 v{vd}, {rowb}, v{vd}\nv_add_u32 v{vd}, s{scol}, v{vd}")


def xa_loads(G, b, va, q):
    nt = G.o.ld_nt
    G.a(f"buffer_load_dwordx4 v[{b+2}:{b+5}], v{va}, s[{sHH}:{sHH+3}], 0 offen offset:{1024*q} {nt}")
    if q:
        G.a(f"s_mov_b64 exec, 1\nbuffer_load_dwordx2 v[{b}:{b+1}], v{va}, s[{sHH}:{sHH+3}], 0 offen offset:{1024*q-8} {nt}\ns_mov_b64 exec, -1")


def xa_build(G, b, t, vdst, off, q):
    w = lambda i: b + 2 + i
    bc = "" if q else " bound_ctrl:0"
    G.a(f"v_mov_b32_dpp v{b}, v{w(2)} wave_shr:1 row_mask:0xf bank_mask:0xf{bc}")
    G.a(f"v_mov_b32_dpp v{b+1}, v{w(3)} wave_shr:1 row_mask:0xf bank_mask:0xf{bc}")
    G.a(f"ds_write_b128 v{vdst}, v[{b+2}:{b+5}] offset:{off + 3*PLANE}")
    for i in range(4):
        G.a(f"v_alignbit_b32 v{t+i}, v{w(i-1)}, v{w(i-2)}, 16")
    G.a(f"ds_write_b128 v{vdst}, v[{t}:{t+3}] offset:{off}")
    for i in range(4):
        G.a(f"v_alignbit_b32 v{t+4+i}, v{w(i)}, v{w(i-1)}, 16")
    G.a(f"ds_write_b128 v{vdst}, v[{t+4}:{t+7}] offset:{off + 2*PLANE}")
    G.a(f"v_pk_mov_b32 v[{t+8}:{t+9}], v[{b}:{b+1}], v[{b+2}:{b+3}] op_sel:[1,0]")
    G.a(f"v_pk_mov_b32 v[{t+10}:{t+11}], v[{b+2}:{b+3}], v[{b+4}:{b+5}] op_sel:[1,0]")
    G.a(f"ds_write_b128 v{vdst}, v[{t+8}:{t+11}] offset:{off + PLANE}")


def transpose4(G, regs):
    G.a("s_nop 1")
    for j in (0, 1):
        for d in (0, 1):
            G.a(f"v_permlane32_swap_b32 v{regs[j]+d}, v{regs[j+2]+d}")
    G.a("s_nop 1")
    for j in (0, 2):
        for d in (0, 1):
            G.a(f"v_permlane16_swap_b32 v{regs[j]+d}, v{regs[j+1]+d}")


def u_dma(G, vsrc, srd, ubase_s, qs):
    for q in qs:
        G.a(f"s_add_u32 s{sT0}, s{ubase_s}, {1024*q}\ns_mov_b32 m0, s{sT0}")
        G.a(f"s_mov_b32 s{sT1}, {(3-q)*32*16*RS_OUT}")
        G.a(f"buffer_load_dwordx4 v{vsrc}, s[{srd}:{srd+3}], s{sT1} offen {G.o.dma_fl} lds")


def lds_count(G, vfl, vone, off):
    G.a(f"s_mov_b64 exec, 1\nds_add_u32 v{vfl}, v{vone} offset:{off}\ns_mov_b64 exec, -1")


def finish(G):
    if G.o.dspan:
        G.a("s_waitcnt vmcnt(0)\ns_memrealtime s[98:99]")
        G.srd(sK, pDBG, 256)
        G.a("s_waitcnt lgkmcnt(0)\ns_not_b32 s88, s88\nv_mov_b32 v8, s98\nv_mov_b32 v9, s88\ns_mov_b64 exec, 1")
        D = G.lab("ds")
        G.a(f"s_and_b32 s{sT0}, s2, 0x7f\ns_cbranch_scc1 {D}")
        G.a(f"buffer_atomic_umax v8, off, s[{sK}:{sK+3}], 0 offset:56 sc1")
        G.a(f"buffer_atomic_umax v9, off, s[{sK}:{sK+3}], 0 offset:60 sc1")
        G.a(f"{D}:")
    if G.o.stamps:
        G.a("s_waitcnt vmcnt(0)")
        G.stamp(7, 7)
        G.a(f"s_add_u32 s{sT2}, s{pWS}, {64<<20}\ns_addc_u32 s{sT3}, s{pWS+1}, 0")
        G.srd(sK, sT2, 1 << 20)
        G.a(f"s_lshl_b32 s{sT0}, s2, 4\ns_add_u32 s{sT0}, s{sT0}, s{sWV}\ns_lshl_b32 s{sT0}, s{sT0}, 5")
        G.a("s_waitcnt lgkmcnt(0)")
        for i in range(8):
            G.a(f"v_mov_b32 v{8+i}, s{STAMP_REGS[i]}")
        G.a("s_mov_b64 exec, 1")
        G.a(f"buffer_store_dwordx4 v[8:11], off, s[{sK}:{sK+3}], s{sT0}")
        G.a(f"buffer_store_dwordx4 v[12:15], off, s[{sK}:{sK+3}], s{sT0} offset:16")
    G.a("s_endpgm")
    G.flush_cold()


class Stream:
    def __init__(self, G, slots, lead):
        self.G, self.slots, self.lead = G, slots, lead
        self.mf = []
        self.side = {}
        self.busy = {}
        self.gate = {}
    def mfma(self, acc, A, B, zero):
        self.mf.append((acc, A, B, zero))
    def at(self, pos, fn, ds=0):
        self.side.setdefault(pos, []).append(fn)
        self.busy[pos] = self.busy.get(pos, 0) + ds
    def spread(self, pos, lines, step=1):
        for ln in lines:
            self.at(pos, lambda S_, ln=ln: S_.G.a(ln))
            pos += step
        return pos
    def emit(self, loadtext):
        G = self.G
        n = len(self.mf)
        first, last, order = {}, {}, []
        for i, (acc, A, B, z) in enumerate(self.mf):
            for k in (A, B):
                if k not in first:
                    first[k] = i; order.append(k)
                last[k] = i
        free = [0] * len(self.slots)
        sched = {}
        cnt = [self.busy.get(i, 0) for i in range(n + 1)]
        slot_of = {}
        prev = 0
        for k in order:
            s = min(range(len(free)), key=lambda j: free[j])
            ops = loadtext(k, self.slots[s])
            lo = max(self.gate.get(k[0:2] + (k[2] >> 2,), 0), free[s], prev)
            slot_of[k] = self.slots[s]
            for op in ops:
                p = max(lo, first[k] - self.lead)
                hi = max(p, first[k] - 4)
                q = min(range(p, hi + 1), key=lambda x: (cnt[x], x))
                p = min(q, first[k])
                assert p >= lo, (k, p, lo)
                cnt[p] += 1
                sched.setdefault(p, []).append((k, op))
                prev = lo = p
            free[s] = last[k] + 1
        self.nds = 0
        self.done = 0
        ready = {}
        for i in range(n + 1):
            for fn in self.side.get(i, []):
                fn(self)
            for k, op in sched.get(i, []):
                G.a(op); self.nds += 1; ready[k] = self.nds
            if i == n: break
            acc, A, B, z = self.mf[i]
            self.need(max(ready[A], ready[B]))
            a_, b_ = slot_of[A], slot_of[B]
            c = "0" if z else f"v[{acc}:{acc+3}]"
            G.a(f"v_mfma_f32_16x16x32_bf16 v[{acc}:{acc+3}], v[{a_}:{a_+3}], v[{b_}:{b_+3}], {c}")
        self.stats = (n, sum(cnt), max(cnt), sum(1 for c in cnt if c > 1))
    def ds(self, text):
        self.G.a(text); self.nds += 1
        return self.nds
    def need(self, idx):
        if idx > self.done:
            out = min(self.nds - idx, 15)
            self.G.a(f"s_waitcnt lgkmcnt({out})")
            self.done = self.nds - out


cA, cB, cAX, cBX, cY, cYX, cSW, cSR, cFL, cONE, c128, cT, cF, cL4 = 1, 2, 3, 4, 5, 6, 7, 8, 9, 10, 11, 12, 14, 15


def c_stream(G, ts):
    o = G.o
    ACC = 16
    PK = 48
    slots = [56 + 4 * i for i in range(18)]
    S = Stream(G, slots, o.lead)
    acc = lambda t: ACC + 4 * t
    S.nst = 0
    seen = set()
    def add(ph, ch, pairs, ys, accf):
        for y in ys:
            for (x, b) in pairs:
                r = accf(x + b)
                S.mfma(r, (ph, "A", x, y, ch), (ph, "B", b, y, ch), (r, ch) not in seen)
                seen.add((r, ch))
    def loadtext(k, r):
        ph, typ, i, y, ch = k
        if typ == "A":
            return [f"ds_read_b128 v[{r}:{r+3}], v{cAX if ch else cA} offset:{512*i + 64*y}"]
        off = 512 * (7 - i) + 64 * y
        v = cBX if ch else cB
        return [f"ds_read_b64 v[{r}:{r+1}], v{v} offset:{off}", f"ds_read_b64 v[{r+2}:{r+3}], v{v} offset:{off+8}"]
    p1 = [(x, b) for x in range(4) for b in range(4)]
    p1.sort(key=lambda p: (max(p), p[0] + p[1]))
    p2 = [(4, 0), (5, 0), (4, 1), (6, 0), (5, 1), (4, 2), (7, 0), (6, 1), (5, 2), (4, 3)]
    p3 = [(x, b) for (b, x) in p2]
    tiles = [0, 3, 4, 7] if ts == 0 else [1, 2, 5, 6]
    px = [(x, b) for x in range(4, 8) for b in range(4) if x + b in tiles] + \
         [(x, b) for x in range(4) for b in range(4) if x + b in tiles] + \
         [(x, b) for x in range(4) for b in range(4, 8) if x + b in tiles]
    assert len(px) == 18
    use = []
    for (x, b) in px:
        if x + b not in use: use.append(x + b)
    accx = lambda t: acc(use.index(t))
    beg, end = {}, {}
    for ph in o.order:
        beg[ph] = len(S.mf)
        if ph == "1": add(1, 0, p1, range(8), acc)
        if ph == "x": add(2, 1, px, range(2), accx)
        if ph == "2": add(3, 0, p2, range(8), acc)
        if ph == "3": add(4, 0, p3, range(8), acc)
        end[ph] = len(S.mf)
    e1, ex, e3 = end["1"], end["x"], len(S.mf)
    S.mf[e1 - 16:e1] = sorted(S.mf[e1 - 16:e1], key=lambda m: m[0])

    def check(pos, off, expected):
        st = {}
        def rd(S_):
            st["i"] = S_.ds(f"ds_read_b32 v{cT}, v{cFL} offset:{off}")
        def ck(S_):
            S_.need(st["i"])
            if o.iso: return
            D, C = G.lab("ck"), G.lab("ckc")
            G.a(f"v_readfirstlane_b32 s{sT0}, v{cT}")
            G.a(f"s_cmp_ge_u32 s{sT0}, {expected}")
            G.a(f"s_cbranch_scc0 {C}")
            G.a(f"{D}:")
            def cold():
                G.a(f"{C}:")
                poll_lds(G, cFL, off, expected, cT)
                G.a(f"s_branch {D}")
            G.cold.append(cold)
        S.at(pos - 5, rd, ds=1); S.at(pos, ck)
    def count(pos, off):
        def f(S_):
            G.a("s_mov_b64 exec, 1")
            S_.ds(f"ds_add_u32 v{cFL}, v{cONE} offset:{off}")
            G.a("s_mov_b64 exec, -1")
        S.at(pos, f, ds=1)
    def ystore1(t, pk):
        A, B = G.lab("ys"), G.lab("yd")
        S.nst += 1
        G.a(f"s_mov_b32 s{sT1}, {t*TILE_STEP}")
        G.a(f"s_cbranch_vccnz {A}")
        G.a(f"buffer_store_dwordx2 v[{pk}:{pk+1}], v{cY}, s[{sXY}:{sXY+3}], s{sT1} offen")
        G.a(f"{B}:")
        def cold():
            G.a(f"{A}:")
            G.a(f"buffer_store_dwordx2 v[{pk}:{pk+1}], v{cY}, s[{sXY}:{sXY+3}], s{sT1} offen sc1")
            G.a(f"s_branch {B}")
        G.cold.append(cold)
    Ld = o.lead + 1
    check(beg["x"] - Ld, F_X, 1)
    for typ in "AB":
        for h in (0, 1):
            S.gate[(2, typ, h)] = beg["x"] - Ld
    check(beg["2"] - Ld, C_H, 4)
    S.gate[(3, "A", 1)] = beg["2"] - Ld
    S.at(beg["3"] - Ld, lambda S_: G.a(f"s_waitcnt vmcnt({S_.nst})"))
    S.gate[(4, "B", 1)] = beg["3"] - Ld
    lastw = {t: max(i for i in range(e1) if S.mf[i][0] == acc(t)) for t in range(4)}
    reuse = beg["x"]
    p = 0
    for t in range(4):
        p = max(p, lastw[t] + 9)
        r = acc(t)
        p = S.spread(p, [f"v_cvt_pk_bf16_f32 v{PK+2*t}, v{r}, v{r+1}", f"v_cvt_pk_bf16_f32 v{PK+2*t+1}, v{r+2}, v{r+3}"])
        firstw = min(i for i in range(reuse, ex) if S.mf[i][0] == r)
        assert p <= firstw, (t, p, firstw)
        S.at(p, lambda S_, t=t: ystore1(t, PK + 2 * t))
        p += 1
    S.at(e1, lambda S_: G.stamp(3))
    py = beg["2"] + o.y1wait
    S.at(py, lambda S_: G.a("s_waitcnt vmcnt(0)"))
    count(py, C_Y1)
    p = ex + 8
    for i in range(4):
        def pw(S_, i=i):
            S_.last_pw = S_.ds(f"ds_write_b128 v{cSW}, v[{accx(tiles[i])}:{accx(tiles[i])+3}] offset:{4096*i}")
        S.at(p + i, pw, ds=1)
    S.at(p + 8, lambda S_: S_.need(S_.last_pw))
    count(p + 8, C_P)
    S.at(end["3"], lambda S_: G.stamp(4))
    S.at(ex, lambda S_: G.stamp(5))
    n = e3
    def cvt(t):
        r = acc(t)
        return [f"v_cvt_pk_bf16_f32 v{PK+2*(t-4)}, v{r}, v{r+1}", f"v_cvt_pk_bf16_f32 v{PK+2*(t-4)+1}, v{r+2}, v{r+3}"]
    def tail(S_):
        G.stamp(6)
        for t in (4, 5, 6, 7):
            G.a("\n".join(cvt(t))); ystore1(t, PK + 2 * (t - 4))
    S.mf[n - 10:] = sorted(S.mf[n - 10:], key=lambda m: m[0])
    S.at(n, tail)
    S.emit(loadtext)
    G.a("s_mov_b64 exec, 1")
    G.a("s_waitcnt vmcnt(0)")
    G.a(f"ds_add_rtn_u32 v{cT}, v{cFL}, v{cONE} offset:{C_Y2}")
    G.a("s_waitcnt lgkmcnt(0)")
    G.a(f"v_readfirstlane_b32 s{sT0}, v{cT}")
    D = G.lab("cy")
    G.a(f"s_cmp_eq_u32 s{sT0}, 3\ns_cbranch_scc0 {D}")
    signal(G, cF, c128, L_Y2, 12, 16)
    G.a(f"{D}:")
    finish(G)
    return S.stats


def gen(o):
    G = Gen(o)
    a = G.a
    nt = o.ld_nt
    K = NAME + "_kernel"
    a(f"{K}:")
    a("s_cmp_ge_u32 s2, 256\ns_cbranch_scc1 L_exit")
    if o.stamps or o.dspan:
        a("s_memtime s[88:89]" if o.cyc else "s_memrealtime s[88:89]")
    a("s_load_dwordx16 s[16:31], s[0:1], 0")
    a("s_load_dwordx8 s[32:39], s[0:1], 64")
    a("s_load_dwordx4 s[40:43], s[0:1], 96")
    a("s_load_dwordx2 s[44:45], s[0:1], 112")
    a("v_lshrrev_b32 v1, 6, v0")
    a(f"s_and_b32 s{sG}, s2, 7")
    a(f"v_readfirstlane_b32 s{sWV}, v1")
    a("v_and_b32 v0, 63, v0")
    a(f"s_lshr_b32 s{sR}, s2, 3\ns_lshr_b32 s{sH}, s{sG}, 2\ns_and_b32 s{sGQ}, s{sG}, 3")
    a(f"s_cmp_eq_u32 s{sWV}, {W_S}\ns_cbranch_scc1 L_Si")
    a(f"s_cmp_ge_u32 s{sWV}, {W_C}\ns_cbranch_scc1 L_Ci")

    vIN, vK3, vWo, vDo, vG, vL = 1, 2, 3, 4, 5, 6
    vFL, vONE, vX, vO1, vO2, vT, vF, vL4, v128, vRD = 7, 8, 9, 10, 11, 12, 14, 15, 124, 126
    WR, DR, KR, VR, QR = 16, 24, 26, 40, 48
    WF, KF, KS, PKU = 56, 72, 100, 116
    a(f"s_sub_u32 s{sE}, s{sWV}, 2\ns_cselect_b32 s{sE}, 8, s{sE}")
    a(f"s_lshl_b32 s{sT1}, s{sR}, 1\ns_and_b32 s{sT2}, s{sE}, 4\ns_lshl_b32 s{sT2}, s{sT2}, 4\ns_add_u32 s{sT1}, s{sT1}, s{sT2}")
    a(f"s_bfe_u32 s{sT2}, s{sE}, {(1<<16)|1}\ns_add_u32 s{sT1}, s{sT1}, s{sT2}")
    a(f"s_lshl_b32 s{sT0}, s{sGQ}, 1\ns_and_b32 s{sT3}, s{sE}, 1\ns_add_u32 s{sT0}, s{sT0}, s{sT3}")
    a(f"s_lshl_b32 s{sT2}, s{sGQ}, 5\ns_add_u32 s{sT2}, s{sT2}, s{sR}")
    a(f"v_lshrrev_b32 v{vK3}, 3, v0\nv_mul_u32_u24 v{vK3}, {RS_IN}, v{vK3}\nv_and_b32 v{vWo}, 7, v0\nv_lshl_add_u32 v{vK3}, v{vWo}, 4, v{vK3}")
    a(f"s_cmp_eq_u32 s{sE}, 8")
    a(f"s_cselect_b32 s46, 8, s{sT0}\ns_cselect_b32 s47, s{sT2}, s{sT1}")
    a(f"s_mul_i32 s{sT0}, s47, {16*RS_IN}\ns_lshl_b32 s{sT1}, s46, 7\ns_add_u32 s{sSIG}, s{sT0}, s{sT1}")
    a(f"v_add_u32 v{vIN}, s{sSIG}, v{vK3}")
    a(f"s_lshl_b32 s{sT2}, s46, 9")
    a(f"v_lshl_add_u32 v{vWo}, v0, 4, s{sT2}")
    a(f"v_add_u32 v{vK3}, {(-3*RS_IN) & 0xffffffff}, v{vIN}")
    G.srd(sK, None, TENS); G.srd(sV, None, TENS); G.srd(sW, None, 4608)
    a(f"s_mul_i32 s{sSTG}, s{sE}, {STG_SZ}\ns_add_u32 s{sSTG}, s{sSTG}, {SCR0}")
    a(f"s_cmp_eq_u32 s{sH}, 0")
    a("s_waitcnt lgkmcnt(0)\ns_barrier")
    G.stamp(-1, 1)
    a(f"s_cselect_b64 s[{sK}:{sK+1}], s[18:19], s[30:31]")
    a(f"s_cselect_b64 s[{sV}:{sV+1}], s[20:21], s[32:33]")
    a(f"s_cselect_b64 s[{sW}:{sW+1}], s[22:23], s[34:35]")
    a(f"s_cselect_b64 s[{sD}:{sD+1}], s[26:27], s[38:39]")
    a(f"s_cselect_b64 s[{sQ}:{sQ+1}], s[16:17], s[28:29]")
    a(f"s_cselect_b64 s[{sHH}:{sHH+1}], s[24:25], s[36:37]")
    a(f"s_mov_b32 m0, s{sSTG}\ns_add_u32 s{sT0}, s{sSTG}, 1024\ns_mov_b32 s{sT1}, {5*RS_IN}")
    a(f"buffer_load_dwordx4 v{vK3}, s[{sK}:{sK+3}], 0 offen {nt} lds")
    a(f"s_mov_b32 m0, s{sT0}\ns_add_u32 s{sT0}, s{sSTG}, 2048")
    a(f"buffer_load_dwordx4 v{vIN}, s[{sK}:{sK+3}], s{sT1} offen {nt} lds")
    a(f"s_mov_b32 m0, s{sT0}\ns_mov_b32 s{sT1}, {13*RS_IN}\ns_mov_b64 exec, 0xffffff\ns_add_u32 s{sT0}, s{sSTG}, 4480")
    a(f"buffer_load_dwordx4 v{vIN}, s[{sK}:{sK+3}], s{sT1} offen {nt} lds")
    a(f"s_mov_b32 m0, s{sT0}\ns_mov_b32 exec_lo, -1\ns_add_u32 s{sT0}, s{sSTG}, 2432")
    a(f"buffer_load_dwordx4 v{vWo}, s[{sW}:{sW+3}], 0 offen lds")
    a(f"s_mov_b32 m0, s{sT0}\ns_mov_b64 exec, -1\ns_add_u32 s{sT0}, s{sSTG}, {2432+1024}")
    a(f"buffer_load_dwordx4 v{vIN}, s[{sV}:{sV+3}], 0 offen {nt} lds")
    a(f"s_mov_b32 m0, s{sT0}\ns_mov_b32 s{sT1}, {8*RS_IN}")
    a(f"buffer_load_dwordx4 v{vIN}, s[{sV}:{sV+3}], s{sT1} offen {nt} lds")
    G.stamp(-1, 2)
    a("s_branch L_Em")

    cHA, cHB, cHB0, cPF, cZ, cU = 100, 101, 102, 103, 56, 60
    a("L_Ci:")
    a(f"s_sub_u32 s46, s{sWV}, {W_C}")
    chan_of(G, 46, sT0)
    a(f"s_lshl_b32 s{sT0}, s{sT0}, 12")
    a(f"v_lshl_add_u32 v{cHA}, v0, 4, s{sT0}")
    inbox_of(G, 47, sSIG)
    G.srd(sHH, None, TENS)
    if o.prefill:
        G.srd(sOUT, None, OUTB)
        a(f"s_lshl_b32 s{sT0}, s46, 4\nv_lshrrev_b32 v{cPF}, 2, v0\nv_add_u32 v{cPF}, s{sT0}, v{cPF}")
        blk_addr(G, cPF, cHB, sSIG, RS_OUT, 47)
    a(f"s_cmp_eq_u32 s{sH}, 0")
    a("s_waitcnt lgkmcnt(0)\ns_barrier")
    G.stamp(-1, 1)
    a(f"s_cselect_b64 s[{sHH}:{sHH+1}], s[24:25], s[36:37]")
    xa_loads(G, 64, cHA, 0)
    xa_loads(G, 72, cHA, 1)
    if o.prefill:
        a(f"s_mov_b64 s[{sOUT}:{sOUT+1}], s[{pOUT}:{pOUT+1}]")
        a(f"buffer_load_dword v{cPF}, v{cPF}, s[{sOUT}:{sOUT+3}], 0 offen {o.pf_nt}")
    G.stamp(-1, 2)
    a("s_branch L_Cm")

    sFL, sONE, s128, sT_, sF_, sL4, sZ, sHA, sHB, sHB0, sU, sU1, sP = 1, 2, 3, 4, 6, 7, 8, 12, 13, 14, 15, 16, 17
    a("L_Si:")
    if o.prefetch_code:
        a(f"s_getpc_b64 s[{sT0}:{sT1}]")
        a("L_pc:")
        a(f"s_and_b32 s{sT2}, s{sR}, 7\ns_mul_i32 s{sT2}, s{sT2}, 3072\nv_min_u32 v{sP}, 23, v0\nv_lshl_add_u32 v{sP}, v{sP}, 7, s{sT2}\nv_min_u32 v{sP}, L_exit-L_pc, v{sP}")
        a(f"global_load_dword v{sP}, v{sP}, s[{sT0}:{sT1}]")
    for i in range(4): a(f"v_mov_b32 v{sZ+i}, 0")
    a(f"v_lshlrev_b32 v{sL4}, 2, v0\nv_min_u32 v{sT_}, 60, v{sL4}\nv_add_u32 v{sT_}, {FL0}, v{sT_}\nds_write_b32 v{sT_}, v{sZ}")
    a(f"v_lshlrev_b32 v{s128}, 7, v0")
    a(f"s_lshl_b32 s46, s{sH}, 7")
    a("s_waitcnt lgkmcnt(0)\ns_barrier")
    G.stamp(-1, 1)
    a(f"s_cmp_eq_u32 s{sH}, 0")
    a(f"s_cselect_b64 s[{sHH}:{sHH+1}], s[24:25], s[36:37]")
    ctl_srd(G)
    a(f"s_load_dwordx2 s[{sX1+1}:{sX1+2}], s[{sCT}:{sCT+1}], s46")
    a(f"v_min_u32 v{sHB}, {15*128}, v{s128}")
    a(f"buffer_load_dword v{sHB0}, v{sHB}, s[{sCT}:{sCT+3}], s{sGB} offen")
    G.stamp(-1, 2)
    if o.iso:
        a(f"v_mov_b32 v{sFL}, {FL0}\nv_mov_b32 v{sT_}, 2\nv_mov_b32 v{sT_+1}, 2\nds_write_b64 v{sFL}, v[{sT_}:{sT_+1}] offset:{F_N}\ns_waitcnt lgkmcnt(0)\ns_endpgm")
    a(f"v_mov_b32 v{sFL}, {FL0}\nv_mov_b32 v{sONE}, 1")
    a("s_waitcnt lgkmcnt(0)")
    a(f"s_and_b32 s{sN}, s{sX2}, 0xfffffff0\ns_add_u32 s{sN}, s{sN}, 0x9e3779b0\nv_mov_b32 v{sT_}, s{sN}")
    a(f"s_add_u32 s{sTAG}, s{sX3}, 1\ns_and_b32 s{sTAG}, s{sTAG}, 0xffff\ns_add_u32 s{sT0}, s{sTAG}, 0x10000\nv_mov_b32 v{sT_+1}, s{sT0}")
    a(f"ds_write_b64 v{sFL}, v[{sT_}:{sT_+1}] offset:{F_N}")
    G.stamp(1, -1)
    a(f"v_lshlrev_b32 v{sHA}, 4, v0")
    a(f"v_add_u32 v{sHB}, {U0 + 4*U_SZ + U_SZ - 1024}, v{sHA}\nds_write_b128 v{sHB}, v[{sZ}:{sZ+3}]")
    a(f"v_add_u32 v{sU1}, {XA0 + 4*XA_SZ}, v{sHA}")
    for p in range(4):
        a(f"ds_write_b128 v{sU1}, v[{sZ}:{sZ+3}] offset:{p*PLANE}")
    G.srd(sHH, None, TENS)
    misc_srd(G)
    a(f"s_add_u32 s{sK}, s{pWS}, {XU_OFF}\ns_addc_u32 s{sK+1}, s{pWS+1}, 0")
    G.srd(sK, None, 1 << 20)
    G.srd(sOUT, pOUT, OUTB)
    a(f"s_getreg_b32 s{sF}, hwreg(HW_REG_XCC_ID, 0, 4)\ns_add_u32 s{sF}, s{sF}, s{sN}\ns_add_u32 s{sF}, s{sF}, 1\nv_mov_b32 v{sF_}, s{sF}")
    xbox_of(G, sX3, sX2, sLR)
    a(f"s_add_u32 s{sT0}, s{sX2}, 512\ns_lshl_b32 s{sT0}, s{sT0}, 12")
    a(f"v_add_u32 v{sHA}, s{sT0}, v{sHA}")
    for q in range(4):
        xa_loads(G, 32 + 8 * q, sHA, q)
    a(f"v_lshrrev_b32 v{sHB}, 2, v0\nv_sub_u32 v{sHB}, 15, v{sHB}")
    blk_addr(G, sHB, sT_, sLR, 256, sX3)
    a(f"v_and_b32 v{sT_}, 3, v0\nv_lshl_add_u32 v{sHB}, v{sT_}, 4, v{sHB}")
    a(f"v_lshlrev_b32 v18, 3, v0\nv_add_u32 v18, {U0 + 4*U_SZ}, v18\ns_mov_b32 s47, 0x07060302\ns_setprio 2")
    for q in range(4):
        a(f"s_waitcnt vmcnt({6-2*q})")
        xa_build(G, 32 + 8 * q, 96 + 12 * (q & 1), sU1, 384 + 1024 * q, q)
    G.stamp(-1, 3)
    poll_lds(G, sFL, C_GO, 4, sT_, pair=sX4)
    adopt_mode(G, sX4, sF_)
    G.stamp(2, 4)
    def after():
        lds_count(G, sFL, sONE, C_GO)
        return 0
    tagged_loads(G, 8, 96, sHB, sK, lambda k: ((7 - k) * 16 * 4096, 0), sT_, after)
    for k in range(8):
        a(f"v_perm_b32 v{64+2*k}, v{97+4*k}, v{96+4*k}, s47\nv_perm_b32 v{65+2*k}, v{99+4*k}, v{98+4*k}, s47")
        a(f"ds_write_b64 v18, v[{64+2*k}:{65+2*k}] offset:{512*k}")
    a("s_waitcnt lgkmcnt(0)")
    a(f"ds_write_b32 v{sFL}, v{sONE} offset:{F_X}")
    G.stamp(3, 6)
    D = G.lab("epo")
    a(f"s_or_b32 s{sT0}, s{sGQ}, s{sR}\ns_cbranch_scc1 {D}")
    a(f"s_mov_b64 exec, 1\nv_mov_b32 v{sT_}, s{sN}\nv_mov_b32 v{sT_+1}, s{sTAG}\nbuffer_store_dwordx2 v[{sT_}:{sT_+1}], off, s[{sCT}:{sCT+3}], s46\ns_mov_b64 exec, -1")
    a(f"{D}:")
    a(f"s_add_u32 s{sWMY}, s{pWS}, {XY_OFF}\ns_addc_u32 s{sWMY+1}, s{pWS+1}, 0")
    G.srd(sWMY, None, 1 << 20)
    xbox_of(G, sX1, sT0, sLR)
    a(f"v_lshrrev_b32 v{sHA}, 2, v0")
    blk_addr(G, sHA, sT_, sLR, 256, sX1)
    a(f"v_and_b32 v{sT_}, 3, v0\nv_lshl_add_u32 v{sHA}, v{sT_}, 4, v{sHA}")
    a(f"v_lshlrev_b32 v{sHB}, 4, v0\nv_add_u32 v{sHB}, {SCR0}, v{sHB}\nv_mov_b32 v19, s{sTAG}\ns_mov_b32 s47, 0xffff0000")
    a(f"s_and_b32 s{sT0}, s{sR}, 1\ns_lshl_b32 s{sX1}, s{sT0}, 16\ns_sub_u32 s{sX2}, {3<<16}, s{sX1}\ns_add_u32 s{sX3}, s{sX1}, {4<<16}\ns_add_u32 s{sX4}, s{sX2}, {4<<16}")
    poll_lds(G, sFL, C_P, 4, sT_, sleep=1)
    for i in range(12):
        a(f"ds_read_b128 v[{32+4*i}:{35+4*i}], v{sHB} offset:{1024*i}")
    for i in range(4):
        if i == 1:
            for k in range(12, 16):
                a(f"ds_read_b128 v[{32+4*k}:{35+4*k}], v{sHB} offset:{1024*k}")
        a(f"s_waitcnt lgkmcnt({[8, 8, 4, 0][i]})")
        r = 32 + 16 * i
        for d in (0, 2): a(f"v_pk_add_f32 v[{r+d}:{r+d+1}], v[{r+d}:{r+d+1}], v[{r+4+d}:{r+5+d}]")
        for d in (0, 2): a(f"v_pk_add_f32 v[{r+8+d}:{r+9+d}], v[{r+8+d}:{r+9+d}], v[{r+12+d}:{r+13+d}]")
        for d in (0, 2): a(f"v_pk_add_f32 v[{r+d}:{r+d+1}], v[{r+d}:{r+d+1}], v[{r+8+d}:{r+9+d}]")
        a(f"v_cvt_pk_bf16_f32 v{r+4}, v{r}, v{r+1}\nv_cvt_pk_bf16_f32 v{r+5}, v{r+2}, v{r+3}")
        for d in (0, 1):
            a(f"v_lshl_or_b32 v{r+2*d}, v{r+4+d}, 16, v19\nv_and_or_b32 v{r+2*d+1}, v{r+4+d}, s47, v19")
        a(f"buffer_store_dwordx4 v[{r}:{r+3}], v{sHA}, s[{sWMY}:{sWMY+3}], s{[sX1, sX2, sX3, sX4][i]} offen sc1")
    G.stamp(4)
    a("s_waitcnt vmcnt(0)")
    signal(G, sF_, s128, L_YX, 16, 32)
    G.stamp(5)
    poll_lds(G, sFL, C_Y1, 4, sT_, sleep=2)
    signal(G, sF_, s128, L_Y1, 8, 32)
    G.stamp(6)
    finish(G)

    a("L_Em:")
    a(f"s_setprio 1\ns_cmp_eq_u32 s{sE}, 8\ns_cbranch_scc0 L_Eh\ns_setprio 3")
    if o.iso: a("s_endpgm")
    a("L_Eh:")
    G.stamp(1, 3)
    a(f"v_and_b32 v{vG}, 15, v0\nv_lshrrev_b32 v{vL}, 4, v0")
    a(f"v_mul_u32_u24 v{vIN}, {4*RS_IN}, v{vL}\nv_lshl_add_u32 v{vIN}, v{vG}, 3, v{vIN}\nv_add_u32 v{vIN}, s{sSIG}, v{vIN}")
    a(f"v_lshlrev_b32 v{vRD}, 9, v{vL}\nv_lshl_add_u32 v{vRD}, v{vG}, 3, v{vRD}\nv_add_u32 v{vRD}, s{sSTG}, v{vRD}")
    a(f"v_lshl_add_u32 v{vWo}, v{vG}, 5, s{sSTG}")
    G.srd(sD, None, 1152); G.srd(sQ, None, TENS); G.srd(sHH, None, TENS)
    G.srd(sOUT, pOUT, OUTB)
    ctl_srd(G)
    misc_srd(G)
    a(f"s_mov_b32 s{sLC}, s46\ns_lshl_b32 s{sROW0}, s47, 4")
    a(f"s_lshl_b32 s{sT1}, s{sLC}, 7\nv_lshl_add_u32 v{vDo}, v{vG}, 3, s{sT1}")
    a(f"s_mul_i32 s{sCOL}, s{sH}, 1152\ns_add_u32 s{sCOL}, s{sCOL}, s{sT1}")
    a(f"s_mul_i32 s{sT0}, s{sROW0}, {RS_OUT}\ns_add_u32 s{sT0}, s{sT0}, s{sCOL}")
    a(f"v_mul_u32_u24 v{vO1}, {4*RS_OUT}, v{vL}\nv_lshl_add_u32 v{vO1}, v{vG}, 3, v{vO1}\nv_add_u32 v{vO1}, s{sT0}, v{vO1}")
    a(f"v_add_u32 v{vO2}, {2*RS_OUT}, v{vO1}")
    a(f"s_lshl_b32 s{sT1}, s47, 12\ns_lshl_b32 s{sT2}, s{sH}, 19\ns_add_u32 s{sT1}, s{sT1}, s{sT2}\ns_mov_b32 s{sT2}, {RS_OUT}")
    a(f"s_cmp_eq_u32 s{sE}, 8\ns_cselect_b32 s{sT0}, s{sT1}, s{sT0}\ns_cselect_b32 s{sT1}, 256, s{sT2}\ns_cselect_b32 s{sT2}, 6, 5")
    a(f"v_and_b32 v{vX}, 12, v{vG}\nv_add3_u32 v{vX}, v{vX}, v{vL}, s47\nv_and_b32 v{vX}, 15, v{vX}\nv_mul_u32_u24 v{vX}, s{sT1}, v{vX}")
    a(f"v_and_b32 v{vT}, 3, v{vG}\nv_lshlrev_b32 v{vT}, s{sT2}, v{vT}\nv_add3_u32 v{vX}, v{vX}, v{vT}, s{sT0}")
    a(f"v_mov_b32 v{vFL}, {FL0}\nv_mov_b32 v{vONE}, 1\nv_lshlrev_b32 v{vL4}, 2, v0\nv_lshlrev_b32 v{v128}, 7, v0")
    a(f"s_lshr_b32 s{sSIG}, s{sE}, 2")
    chan_of(G, sE, sT0)
    a(f"s_lshl_b32 s{sT0}, s{sT0}, 12\nv_lshl_add_u32 v{vK3}, v0, 4, s{sT0}")
    a(f"s_mul_i32 s{sT0}, s{sE}, {XA_SZ}\nv_lshl_add_u32 v{vG}, v0, 4, s{sT0}")
    a(f"v_mov_b32 v{vL}, {FL0 + C_U0}")
    a("s_mov_b32 s47, 0xffff0000")
    get_nonce(G, vFL, vT, vF)
    a("s_waitcnt vmcnt(2)")
    G.stamp(-1, 4)
    a(f"ds_read_b128 v[{WR}:{WR+3}], v{vWo} offset:4480\nds_read_b128 v[{WR+4}:{WR+7}], v{vWo} offset:4496")
    for i in range(7):
        a(f"ds_read_b64 v[{KR+2*i}:{KR+2*i+1}], v{vRD} offset:{128*i}")
    a("s_waitcnt lgkmcnt(7)")
    for c in range(4):
        for j in range(4):
            src = WR + 2 * c + (j >> 1)
            a(f"v_lshlrev_b32 v{WF+4*j+c}, 16, v{src}" if j % 2 == 0 else f"v_and_b32 v{WF+4*j+c}, s47, v{src}")
    a("s_waitcnt lgkmcnt(0)")
    for i in range(7):
        for d in range(2):
            a(f"v_lshlrev_b32 v{KF+4*i+2*d}, 16, v{KR+2*i+d}")
            a(f"v_and_b32 v{KF+4*i+2*d+1}, s47, v{KR+2*i+d}")
    a("s_waitcnt vmcnt(0)")
    G.stamp(2, 5)
    for i in range(4):
        a(f"ds_read_b64 v[{VR+2*i}:{VR+2*i+1}], v{vRD} offset:{2432 + 128*i}")
    for j in (3, 2, 1, 0):
        for r in range(4):
            for d in range(2):
                ks, w, k = KS + 4 * r + 2 * d, WF + 4 * j + 2 * d, KF + 4 * (3 + r - j) + 2 * d
                if j == 3:
                    a(f"v_pk_mul_f32 v[{ks}:{ks+1}], v[{k}:{k+1}], v[{w}:{w+1}]")
                else:
                    a(f"v_pk_fma_f32 v[{ks}:{ks+1}], v[{k}:{k+1}], v[{w}:{w+1}], v[{ks}:{ks+1}]")
    a("s_waitcnt lgkmcnt(0)")
    for r in range(4):
        for d in range(2):
            a(f"v_lshlrev_b32 v{KF+4*r+2*d}, 16, v{VR+2*r+d}")
            a(f"v_and_b32 v{KF+4*r+2*d+1}, s47, v{VR+2*r+d}")
    for r in range(4):
        for d in range(2):
            ks, k = KS + 4 * r + 2 * d, KF + 4 * r + 2 * d
            a(f"v_pk_mul_f32 v[{ks}:{ks+1}], v[{ks}:{ks+1}], v[{k}:{k+1}]")
    regs = [PKU + 2 * (3 - j) for j in range(4)]
    for c in range(4):
        a(f"v_cvt_pk_bf16_f32 v{regs[c]}, v{KS+12+c}, v{KS+8+c}")
        a(f"v_cvt_pk_bf16_f32 v{regs[c]+1}, v{KS+4+c}, v{KS+c}")
    transpose4(G, regs)
    LX, LJ, LP = G.lab("ex"), G.lab("ej"), G.lab("ep")
    def qloads():
        a(f"buffer_load_dwordx2 v[{DR}:{DR+1}], v{vDo}, s[{sD}:{sD+3}], 0 offen")
        for i in range(4):
            a(f"buffer_load_dwordx2 v[{QR+2*i}:{QR+2*i+1}], v{vIN}, s[{sQ}:{sQ+3}], 0 offen offset:{i*RS_IN} {nt}")
    a(f"s_cmp_eq_u32 s{sE}, 8\ns_cbranch_scc1 {LX}")
    a(f"{LP}:")
    A, B = G.lab("us"), G.lab("ud")
    a(f"s_cmp_eq_u32 s{sM}, 0\ns_cbranch_scc0 {A}")
    a(f"buffer_store_dwordx4 v[{PKU}:{PKU+3}], v{vX}, s[{sXU}:{sXU+3}], 0 offen")
    a(f"buffer_store_dwordx4 v[{PKU+4}:{PKU+7}], v{vX}, s[{sXU}:{sXU+3}], 0 offen offset:16")
    a(f"{B}:")
    def cold_us():
        a(f"{A}:")
        a(f"buffer_store_dwordx4 v[{PKU}:{PKU+3}], v{vX}, s[{sXU}:{sXU+3}], 0 offen sc1")
        a(f"buffer_store_dwordx4 v[{PKU+4}:{PKU+7}], v{vX}, s[{sXU}:{sXU+3}], 0 offen offset:16 sc1")
        a(f"s_branch {B}")
    G.cold.append(cold_us)
    a("s_mov_b64 exec, 1")
    a("s_waitcnt vmcnt(0)")
    a(f"ds_add_rtn_u32 v{vT}, v{vL}, v{vONE}")
    a("s_waitcnt lgkmcnt(0)")
    a(f"v_readfirstlane_b32 s{sT0}, v{vT}")
    D = G.lab("eu")
    a(f"s_cmp_eq_u32 s{sT0}, 7\ns_cbranch_scc0 {D}")
    signal(G, vF, v128, L_U1, 4, WF)
    a(f"{D}:")
    a("s_mov_b64 exec, -1")
    G.stamp(3, 6)
    LQ = G.lab("eq")
    def hook(L):
        R = G.lab("rp")
        a(f"s_cmp_gt_u32 s{sX2}, s{sM}\ns_cbranch_scc1 {R}")
        def cold():
            a(f"{R}:")
            to_mode1(G, vF)
            a(f"v_mov_b32 v{vL}, {FL0 + C_R}\ns_branch {LP}")
        G.cold.append(cold)
    poll_lds(G, vFL, C_GO, 5, vT, pair=sX2, hook=hook)
    a(f"s_cmp_gt_u32 s{sE}, 3\ns_cbranch_scc1 {LQ}")
    xa_loads(G, KR, vK3, 2)
    xa_loads(G, KR + 8, vK3, 3)
    qloads()
    a("s_waitcnt vmcnt(5)")
    xa_build(G, KR, WF, vG, XA0 + 384 + 2048, 2)
    xa_build(G, KR + 8, KF, vG, XA0 + 384 + 3072, 3)
    a("s_waitcnt lgkmcnt(0)")
    lds_count(G, vFL, vONE, C_H)
    a(f"s_branch {LJ}")
    a(f"{LX}:")
    a(f"s_add_u32 s{sXU}, s{pWS}, {XU_OFF}\ns_addc_u32 s{sXU+1}, s{pWS+1}, 0\ns_add_u32 s{sXY}, s{pWS}, {XY_OFF}\ns_addc_u32 s{sXY+1}, s{pWS+1}, 0")
    a(f"v_lshl_add_u32 v{vT}, v0, 5, s{sSTG}")
    a(f"ds_write_b128 v{vT}, v[{PKU}:{PKU+3}]\nds_write_b128 v{vT}, v[{PKU+4}:{PKU+7}] offset:16")
    a(f"v_and_b32 v{vT+1}, 3, v0\nv_mul_u32_u24 v{vG}, 24, v{vT+1}\nv_sub_u32 v{vT}, v{vT}, v{vG}")
    for k in range(4):
        a(f"ds_read_b64 v[{KF+2*k}:{KF+2*k+1}], v{vT} offset:{32*k}")
    a(f"v_mul_u32_u24 v{vG}, 48, v{vT+1}\nv_sub_u32 v{vG}, v{vX}, v{vG}\nv_mov_b32 v{vK3}, s{sTAG}")
    for k in range(4):
        a(f"s_waitcnt lgkmcnt({3-k})")
        for d in (0, 1):
            a(f"v_lshl_or_b32 v{WF+4*k+2*d}, v{KF+2*k+d}, 16, v{vK3}\nv_and_or_b32 v{WF+4*k+2*d+1}, v{KF+2*k+d}, s47, v{vK3}")
        a(f"buffer_store_dwordx4 v[{WF+4*k}:{WF+4*k+3}], v{vG}, s[{sXU}:{sXU+3}], 0 offen offset:{64*k} sc1")
    G.stamp(3, 6)
    poll_lds(G, vFL, C_GO, 5, vT, sleep=2, pair=sX2)
    a(f"s_cmp_gt_u32 s{sX2}, 0\ns_cselect_b32 s{sM}, 1, 0\ns_cselect_b32 s{sF}, s{sN}, s{sF}\ns_cselect_b32 s{sT0}, {UOFF}, 0\ns_add_u32 s{sGB}, s{sGB}, s{sT0}")
    a(f"{LQ}:")
    E2 = G.lab("e2q")
    qloads()
    a(f"{LJ}:")
    a("s_setprio 0")
    QF, DF = KF, WF
    a("s_waitcnt vmcnt(4)")
    for d in range(2):
        a(f"v_lshlrev_b32 v{DF+2*d}, 16, v{DR+d}\nv_and_b32 v{DF+2*d+1}, s47, v{DR+d}")
    for r in range(4):
        for d in range(2):
            ks = KS + 4 * r + 2 * d
            a(f"v_pk_mul_f32 v[{ks}:{ks+1}], v[{ks}:{ks+1}], v[{DF+2*d}:{DF+2*d+1}]")
    a("s_waitcnt vmcnt(0)")
    for r in range(4):
        for d in range(2):
            a(f"v_lshlrev_b32 v{QF+4*r+2*d}, 16, v{QR+2*r+d}\nv_and_b32 v{QF+4*r+2*d+1}, s47, v{QR+2*r+d}")
    for r in range(4):
        for d in range(2):
            ks, q = KS + 4 * r + 2 * d, QF + 4 * r + 2 * d
            a(f"v_pk_mul_f32 v[{ks}:{ks+1}], v[{ks}:{ks+1}], v[{q}:{q+1}]")
    G.stamp(4)
    YR, YF = 16, 24
    LY, LZ = G.lab("ey"), G.lab("ez")
    a(f"s_lshl_b32 s{sT0}, s{sE}, 7\ns_add_u32 s{sX2}, s{sT0}, s{sGB}\ns_add_u32 s{sX2}, s{sX2}, {L_Y1}")
    a(f"s_lshl_b32 s{sLR}, s{sSIG}, 2\ns_add_u32 s{sLR}, s{sLR}, s{sDGO}")
    poll_line(G, vL4, sX2, 0xffffffff, vT, (f"s{sLR}", 8), 32)
    G.stamp(5)
    a(f"s_cmp_eq_u32 s{sE}, 8\ns_cbranch_scc1 {LY}")
    a(f"buffer_load_dwordx4 v[{YR}:{YR+3}], v{vX}, s[{sXY}:{sXY+3}], 0 offen sc1")
    a(f"buffer_load_dwordx4 v[{YR+4}:{YR+7}], v{vX}, s[{sXY}:{sXY+3}], 0 offen offset:16 sc1")
    a("s_waitcnt vmcnt(0)")
    a(f"{LZ}:")
    def cold_y():
        a(f"{LY}:")
        tagged_loads(G, 4, 24, vX, sXY, lambda k: (0, 16 * k), vT)
        a(f"s_mov_b32 s{sT0}, 0x07060302")
        for m in range(8):
            a(f"v_perm_b32 v{YR+m}, v{25+2*m}, v{24+2*m}, s{sT0}")
        a(f"s_branch {LZ}")
    G.cold.append(cold_y)
    G.stamp(6)
    transpose4(G, [YR + 2 * j for j in range(4)])
    for c in range(4):
        for d in range(2):
            a(f"v_lshlrev_b32 v{YF+8*d+c}, 16, v{YR+2*c+d}\nv_and_b32 v{YF+8*d+4+c}, s47, v{YR+2*c+d}")
    for r in range(4):
        for d in range(2):
            ks, q, y = KS + 4 * r + 2 * d, QF + 4 * r + 2 * d, YF + 4 * r + 2 * d
            a(f"v_pk_fma_f32 v[{ks}:{ks+1}], v[{q}:{q+1}], v[{y}:{y+1}], v[{ks}:{ks+1}]")
        for d in range(2):
            ks = KS + 4 * r + 2 * d
            a(f"v_cvt_pk_bf16_f32 v{PKU+2*r+d}, v{ks}, v{ks+1}")
        a(f"buffer_store_dwordx2 v[{PKU+2*r}:{PKU+2*r+1}], v{vO1 if r < 2 else vO2}, s[{sOUT}:{sOUT+3}], 0 offen offset:{(r&1)*RS_OUT} {o.out_flag}")
    finish(G)

    a("L_Cm:")
    a("s_setprio 2")
    G.stamp(1, 3)
    ctl_srd(G)
    misc_srd(G)
    a(f"s_mov_b32 s{sJ}, s46\ns_mov_b32 s{sCOL}, s47")
    a(f"s_mul_i32 s{sX2}, s{sJ}, {XA_SZ}\ns_mul_i32 s{sX3}, s{sJ}, {U_SZ}\ns_add_u32 s{sX3}, s{sX3}, {U0}")
    for i in range(4): a(f"v_mov_b32 v{cZ+i}, 0")
    a(f"v_lshl_add_u32 v{cHA}, v0, 4, s{sX2}")
    for p in range(4):
        a(f"ds_write_b128 v{cHA}, v[{cZ}:{cZ+3}] offset:{XA0 + p*PLANE}")
    a(f"v_lshl_add_u32 v{cHB}, v0, 4, s{sX3}")
    a(f"ds_write_b128 v{cHB}, v[{cZ}:{cZ+3}] offset:{U_SZ-1024}")
    a(f"v_and_b32 v{cT}, 3, v0\nv_mul_u32_u24 v{cA}, {PLANE}, v{cT}")
    a(f"v_bfe_u32 v{cB}, v0, 2, 2\nv_lshl_add_u32 v{cA}, v{cB}, 7, v{cA}")
    a(f"v_lshrrev_b32 v{cB}, 4, v0\nv_lshl_add_u32 v{cA}, v{cB}, 4, v{cA}")
    a(f"s_lshl_b32 s{sT0}, s{sJ}, 7")
    a(f"s_add_u32 s{sT1}, s{sT0}, {XA0 + 4*XA_SZ}\nv_add_u32 v{cAX}, s{sT1}, v{cA}\nv_add_u32 v{cA}, s{sX2}, v{cA}")
    a(f"v_lshlrev_b32 v{cB}, 4, v{cB}\nv_and_b32 v{cBX}, 15, v0\nv_lshlrev_b32 v{cBX}, 3, v{cBX}\nv_sub_u32 v{cB}, v{cB}, v{cBX}\nv_add_u32 v{cB}, 120, v{cB}")
    a(f"s_add_u32 s{sT1}, s{sT0}, {U0 + 4*U_SZ}\nv_add_u32 v{cBX}, s{sT1}, v{cB}\nv_add_u32 v{cB}, s{sX3}, v{cB}")
    a(f"s_and_b32 s{sTS}, s{sR}, 1\ns_lshl_b32 s{sT2}, s{sJ}, 5\ns_add_u32 s{sCOL}, s{sCOL}, s{sT2}")
    a(f"v_lshrrev_b32 v{cY}, 2, v0")
    blk_addr(G, cY, cU, sSIG, RS_OUT, sCOL)
    a(f"v_lshl_add_u32 v{cY}, v{cT}, 3, v{cY}")
    a(f"s_lshl_b32 s{sT0}, s{sJ}, 10\ns_add_u32 s{sT0}, s{sT0}, {SCR0}\nv_lshl_add_u32 v{cSW}, v0, 4, s{sT0}")
    a(f"v_mov_b32 v{cFL}, {FL0}\nv_mov_b32 v{cONE}, 1\nv_lshlrev_b32 v{cL4}, 2, v0\nv_lshlrev_b32 v{c128}, 7, v0")
    a(f"v_lshrrev_b32 v{cU}, 1, v0\nv_sub_u32 v{cU}, 31, v{cU}")
    blk_addr(G, cU, cT, sSIG, RS_OUT, sCOL)
    a(f"v_and_b32 v{cT}, 1, v0\nv_lshl_add_u32 v{cU}, v{cT}, 4, v{cU}")
    a(f"s_lshl_b32 s{sX4}, s{sJ}, 7\ns_add_u32 s{sX4}, s{sX4}, s{sGB}\ns_add_u32 s{sX4}, s{sX4}, {L_U1}")
    npf = 1 if o.prefill else 0
    a(f"s_waitcnt vmcnt({2+npf})")
    G.stamp(-1, 4)
    xa_build(G, 64, 80, cHA, XA0 + 384, 0)
    a(f"s_waitcnt vmcnt({npf})")
    xa_build(G, 72, 104, cHA, XA0 + 384 + 1024, 1)
    get_nonce(G, cFL, cT, cF)
    G.stamp(-1, -1)
    def detect(R):
        SW, NX = G.lab("dsw"), G.lab("dnx")
        a("s_mov_b64 exec, -1")
        a(f"ds_read_b32 v{cT}, v{cFL} offset:{F_M}\ns_waitcnt lgkmcnt(0)\nv_readfirstlane_b32 s{sT0}, v{cT}")
        a(f"s_cmp_eq_u32 s{sT0}, 0\ns_cbranch_scc0 {SW}")
        a(f"s_cmp_eq_u32 s{sJ}, 0\ns_cbranch_scc0 {NX}")
        a(f"s_sub_u32 s{sT2}, s{sF}, s{sN}\ns_sub_u32 s{sT2}, s{sT2}, 1\ns_mul_i32 s{sT3}, s{sT2}, s{sT2}\ns_lshl_b32 s{sT3}, s{sT3}, 16")
        a(f"s_lshl_b32 s{sT2}, s{sT2}, 8\ns_add_u32 s{sT2}, s{sT2}, s{sT3}\ns_add_u32 s{sT2}, s{sT2}, 1\ns_lshl_b32 s{sT3}, s{sT2}, 5")
        a(f"s_cmp_eq_u32 s{sCNT}, 64\ns_cselect_b32 s{sT2}, s{sT2}, 0")
        a(f"s_mov_b64 exec, 1\nv_mov_b32 v{cT}, s{sT2}")
        a(f"buffer_atomic_add v{cT}, off, s[{sDG}:{sDG+3}], s{sDGO} sc0 sc1")
        a("s_waitcnt vmcnt(0)")
        a(f"v_readfirstlane_b32 s{sT0}, v{cT}\ns_mov_b64 exec, -1\ns_add_u32 s{sT0}, s{sT0}, s{sT2}")
        if not o.force_mode1:
            a(f"s_cmp_eq_u32 s{sT0}, s{sT3}\ns_cbranch_scc1 {NX}")
        a(f"s_and_b32 s{sT0}, s{sT0}, 0xff\ns_cmp_ge_u32 s{sT0}, 32\ns_cbranch_scc0 {NX}")
        a(f"ds_write_b32 v{cFL}, v{cONE} offset:{F_M}")
        a(f"{SW}:")
        to_mode1(G, cF)
        a(f"s_add_u32 s{sX4}, s{sX4}, {UOFF}\ns_mov_b32 s{sLR}, s{sN}")
        a(f"{NX}:")
    if o.force_mode1:
        a(f"s_add_u32 s{sF}, s{sF}, 0")
    if not o.iso:
        if o.force_mode1:
            a(f"s_xor_b32 s{sLR}, s{sF}, 0x40000000")
        poll_line(G, cL4, sX4, 0xffffffff, cT, (f"s{sDGO}", 4), 32, sleep=0, detect=detect, scmp=(sLR if o.force_mode1 else sF))
    G.stamp(-1, 5)
    u_dma(G, cU, sXU, sX3, (3, 2, 1, 0))
    if o.golate: a("s_waitcnt vmcnt(0)")
    lds_count(G, cFL, cONE, C_GO)
    a(f"s_cmp_lg_u32 s{sM}, 0\ns_cselect_b64 vcc, -1, 0")
    a(f"s_cmp_eq_u32 s{sTS}, 0")
    a("s_waitcnt vmcnt(2) lgkmcnt(0)")
    G.stamp(2, 6)
    a("s_cbranch_scc0 L_C1")
    st0 = c_stream(G, 0)
    a("L_C1:")
    st1 = c_stream(G, 1)
    a("L_exit:")
    a("s_endpgm")

    head = open("cdna_kernels/" + NAME + ".s.ref").read().split("\n")
    hdr = [l for l in head if l.startswith("; Kernarg") or l.startswith(";   offset")]
    out = hdr + [f"; @launch grid=(256,1,1) block=(896,1,1) lds={LDS_SZ}",
                 '.amdgcn_target "amdgcn-amd-amdhsa--gfx950"', ".text", f".globl {K}", ".p2align 8", f".type {K},@function"]
    out += G.L
    out += ['.section .rodata,"a"', ".p2align 6", f".amdhsa_kernel {K}",
            "  .amdhsa_next_free_vgpr 128", "  .amdhsa_next_free_sgpr 102", "  .amdhsa_accum_offset 128",
            "  .amdhsa_group_segment_fixed_size 0", "  .amdhsa_kernarg_size 120", "  .amdhsa_user_sgpr_count 2",
            "  .amdhsa_user_sgpr_kernarg_segment_ptr 1", "  .amdhsa_system_sgpr_workgroup_id_x 1",
            "  .amdhsa_float_denorm_mode_32 3", ".end_amdhsa_kernel", ""]
    print("stream stats (mfma, ds, max/gap, gaps>1):", st0, st1, file=sys.stderr)
    return "\n".join(out)


if __name__ == "__main__":
    ap = argparse.ArgumentParser()
    ap.add_argument("-o", default="cdna_kernels/" + NAME + ".s")
    ap.add_argument("opts", nargs="*")
    args = ap.parse_args()
    o = Opt()
    for kv in args.opts:
        k, v = kv.split("=", 1)
        cur = getattr(o, k)
        setattr(o, k, (v not in ("0", "False", "")) if isinstance(cur, bool) else type(cur)(v))
    open(args.o, "w").write(gen(o))
```

```python
import sys, argparse

NAME = "concat_heads__ssm_conv_h3__ssm_conv_h3__prompt"

RS_IN = 1152
RS_OUT = 2304
TENS = 2359296
OUTB = 4718592
PLANE = 4640
XA_SZ = 4 * PLANE
U_SZ = 4224
XA0 = 0
U0 = 5 * XA_SZ
SCR0 = U0 + 5 * U_SZ
STG_SZ = 4992
FL0 = SCR0 + 9 * STG_SZ
LDS_SZ = FL0 + 64
F_N, F_V, C_GO, F_M, C_U0, C_U1, C_R, C_H, F_X, F_U2, F_YX, C_P, C_Y1, C_Y2, C_YX = [4 * i for i in range(15)]
CT_OFF = 16 << 20
L_U1, L_Y1, L_Y2, L_YX = 0, 512, 1024, 1536
XU_OFF, XY_OFF = 10 << 20, 12 << 20
UOFF = 4096
GSTRIDE = 8192
TILE_STEP = 256 * RS_OUT
CAP_G = 1 << 15
CAP_L = 1 << 19
W_S, W_C = 0, 10


class Opt:
    stamps = False
    force_mode1 = False
    ld_nt = "nt"
    out_flag = ""
    lead = 8
    prefetch_code = True
    prefill = True
    sleep = 1
    cyc = False
    iso = False
    dspan = False
    early = False
    order = "1x32"
    golate = False
    y1wait = 0
    tl_fl = "sc1"
    noq = False
    pf_nt = ""
    dma_fl = "sc1"
    win = True


STAMP_REGS = [88, 90, 92, 94, 96, 98, 36, 38]


class Gen:
    def __init__(self, o):
        self.o = o
        self.L = []
        self.uid = 0
        self.cold = []
    def a(self, s):
        for ln in s.split("\n"):
            self.L.append("    " + ln.strip() if not ln.strip().endswith(":") else ln.strip())
    def flush_cold(self):
        while self.cold:
            c, self.cold = self.cold, []
            for fn in c: fn()
    def lab(self, base):
        self.uid += 1
        return f"L_{base}_{self.uid}"
    def srd(self, d, lo, nrec):
        if lo is not None and lo != d:
            self.a(f"s_mov_b64 s[{d}:{d+1}], s[{lo}:{lo+1}]")
        self.a(f"s_mov_b32 s{d+2}, {nrec}\ns_mov_b32 s{d+3}, 0x00020000")
    def stamp(self, i, early=None):
        if self.o.early: i = -1 if early is None else early
        if (self.o.stamps or self.o.dspan) and i >= 0:
            r = STAMP_REGS[i]
            self.a(f"{'s_memtime' if self.o.cyc else 's_memrealtime'} s[{r}:{r+1}]")


sWV, sG, sR, sH, sGQ = 3, 4, 5, 6, 7
sT0, sT1, sT2, sT3 = 8, 9, 10, 11
sM, sEV, sCNT, sSIG = 12, 13, 14, 15
pOUT, pDBG, pWS = 40, 42, 44
sK, sV, sQ, sW, sD, sXU, sXY, sOUT, sCT, sHH = 48, 52, 56, 60, 64, 68, 72, 76, 80, 84
sDG = 60
sROW0, sLC, sCOL, sLR, sCHJ, sX1, sX2, sX3, sX4, sF, sN = 16, 17, 18, 19, 20, 21, 22, 23, 24, 26, 27
sWMY, sTS, sGB, sDGO, sJ = 28, 32, 33, 34, 35
sTAG = 25
sE, sSTG = 100, 101


def poll_line(G, vl4, soff, mask, vt, cnt, n, sleep=None, always=False, scmp=sF, detect=None):
    L, D, C, R = G.lab("pg"), G.lab("pgd"), G.lab("pgc"), G.lab("pgr")
    m = f"{mask:#x}" if isinstance(mask, int) else mask
    G.a(f"s_mov_b32 exec_lo, {m}\ns_mov_b32 exec_hi, 0")
    G.a(f"s_mov_b32 s{sCNT}, 0")
    G.a(f"{L}:")
    G.a(f"buffer_load_dword v{vt}, v{vl4}, s[{sCT}:{sCT+3}], s{soff} offen sc1")
    G.a(f"s_add_u32 s{sCNT}, s{sCNT}, 1")
    G.a("s_waitcnt vmcnt(0)")
    G.a(f"v_cmp_ne_u32 vcc, s{scmp}, v{vt}")
    G.a(f"s_cbranch_vccz {D}")
    sl = G.o.sleep if sleep is None else sleep
    if sl:
        G.a(f"s_sleep {sl}")
    G.a(f"s_and_b32 s{sT0}, s{sCNT}, 63\ns_cbranch_scc1 {L}")
    G.a(f"s_branch {C}")
    G.a(f"{D}:")
    G.a("s_mov_b64 exec, -1")
    def cold():
        G.a(f"{C}:")
        R0 = G.lab("pgx") if detect else R
        if always is True:
            pass
        elif always:
            G.a(f"s_or_b32 s{sT0}, s{sM}, {always}\ns_cbranch_scc0 {R0}")
        else:
            G.a(f"s_cmp_eq_u32 s{sM}, 0\ns_cbranch_scc1 {R0}")
        G.a(f"s_mov_b32 exec_lo, 1\nv_mov_b32 v{vt}, 0")
        G.a(f"buffer_atomic_add v{vt}, off, s[{sDG}:{sDG+3}], {cnt[0]} offset:{cnt[1]} sc0 sc1")
        G.a(f"s_waitcnt vmcnt(0)")
        G.a(f"v_readfirstlane_b32 s{sT0}, v{vt}\ns_mov_b32 exec_lo, {m}")
        G.a(f"s_cmp_ge_u32 s{sT0}, {n}\ns_cbranch_scc1 {D}")
        G.a(f"{R}:")
        G.a(f"s_cmp_lt_u32 s{sCNT}, {CAP_G}\ns_cbranch_scc1 {L}\ns_branch {D}")
        if detect:
            G.a(f"{R0}:")
            detect(R)
            G.a(f"s_mov_b32 exec_lo, {m}\ns_mov_b32 exec_hi, 0\ns_branch {R}")
    G.cold.append(cold)


def poll_lds(G, vfl, off, expected, vt, sleep=1, pair=None, hook=None):
    L, D = G.lab("pl"), G.lab("pld")
    G.a(f"s_mov_b32 s{sCNT}, 0")
    G.a(f"{L}:")
    if pair is None:
        G.a(f"ds_read_b32 v{vt}, v{vfl} offset:{off}")
    else:
        G.a(f"ds_read_b64 v[{vt}:{vt+1}], v{vfl} offset:{off}")
    G.a(f"s_add_u32 s{sCNT}, s{sCNT}, 1")
    G.a("s_waitcnt lgkmcnt(0)")
    G.a(f"v_readfirstlane_b32 s{sT0}, v{vt}")
    if pair is not None:
        G.a(f"v_readfirstlane_b32 s{pair}, v{vt+1}")
    if hook: hook(L)
    G.a(f"s_cmp_ge_u32 s{sT0}, {expected}")
    G.a(f"s_cbranch_scc1 {D}")
    G.a(f"s_sleep {sleep}")
    G.a(f"s_cmp_lt_u32 s{sCNT}, {CAP_L}")
    G.a(f"s_cbranch_scc1 {L}")
    G.a(f"{D}:")


def get_nonce(G, vfl, vt, vf):
    L, D = G.lab("gn"), G.lab("gnd")
    G.a(f"s_getreg_b32 s{sF}, hwreg(HW_REG_XCC_ID, 0, 4)\ns_mov_b32 s{sCNT}, 0")
    G.a(f"{L}:")
    G.a(f"ds_read_b64 v[{vt}:{vt+1}], v{vfl} offset:{F_N}")
    G.a(f"s_add_u32 s{sCNT}, s{sCNT}, 1")
    G.a("s_waitcnt lgkmcnt(0)")
    G.a(f"v_readfirstlane_b32 s{sTAG}, v{vt+1}")
    G.a(f"v_readfirstlane_b32 s{sN}, v{vt}")
    G.a(f"s_cmp_ge_u32 s{sTAG}, 1")
    G.a(f"s_cbranch_scc1 {D}")
    G.a("s_sleep 1")
    G.a(f"s_cmp_lt_u32 s{sCNT}, {CAP_L}")
    G.a(f"s_cbranch_scc1 {L}")
    G.a(f"{D}:")
    G.a(f"s_add_u32 s{sF}, s{sF}, s{sN}\ns_add_u32 s{sF}, s{sF}, 1\nv_mov_b32 v{vf}, s{sF}\ns_and_b32 s{sTAG}, s{sTAG}, 0xffff")


def to_mode1(G, vf):
    G.a(f"s_mov_b32 s{sM}, 1\ns_mov_b32 s{sF}, s{sN}\nv_mov_b32 v{vf}, s{sN}")
    G.a(f"s_add_u32 s{sGB}, s{sGB}, {UOFF}")
    G.a(f"s_mov_b64 s[{sXU}:{sXU+1}], s[{pWS}:{pWS+1}]")
    G.a(f"s_add_u32 s{sXY}, s{pWS}, {OUTB}\ns_addc_u32 s{sXY+1}, s{pWS+1}, 0")


def adopt_mode(G, sm, vf):
    A, B = G.lab("am"), G.lab("amb")
    G.a(f"s_cmp_gt_u32 s{sm}, s{sM}\ns_cbranch_scc1 {A}")
    G.a(f"{B}:")
    def cold():
        G.a(f"{A}:")
        to_mode1(G, vf)
        G.a(f"s_branch {B}")
    G.cold.append(cold)


def signal(G, vf, v128, line, cnt, vt):
    A, B = G.lab("ma"), G.lab("mb")
    G.a(f"s_add_u32 s{sT1}, s{sEV}, {line}")
    G.a(f"s_mov_b64 exec, 15")
    G.a(f"s_cmp_eq_u32 s{sM}, 0\ns_cbranch_scc0 {A}")
    G.a(f"buffer_store_dword v{vf}, v{v128}, s[{sCT}:{sCT+3}], s{sT1} offen")
    G.a(f"{B}:")
    G.a("s_mov_b64 exec, -1")
    def cold():
        G.a(f"{A}:")
        G.a(f"s_mov_b64 exec, 1\nv_mov_b32 v{vt}, 1\ns_add_u32 s{sT1}, s{sDGO}, {cnt}")
        G.a(f"buffer_atomic_add v{vt}, off, s[{sDG}:{sDG+3}], s{sT1} sc0 sc1")
        G.a("s_waitcnt vmcnt(0)")
        G.a(f"v_readfirstlane_b32 s{sT0}, v{vt}")
        G.a(f"s_cmp_eq_u32 s{sT0}, 31\ns_cbranch_scc0 {B}")
        G.a(f"s_mov_b32 exec_lo, -1\ns_add_u32 s{sT1}, s{sGB}, {line}")
        G.a(f"v_lshrrev_b32 v{vt+4}, 3, v{v128}")
        for k in range(4): G.a(f"v_mov_b32 v{vt+k}, v{vf}")
        G.a(f"buffer_store_dwordx4 v[{vt}:{vt+3}], v{vt+4}, s[{sCT}:{sCT+3}], s{sT1} offen sc1")
        G.a(f"buffer_store_dwordx4 v[{vt}:{vt+3}], v{vt+4}, s[{sCT}:{sCT+3}], s{sT1} offen")
        G.a(f"s_branch {B}")
    G.cold.append(cold)


def tagged_loads(G, n, r0, vaddr, srd, offs, vt, after=None):
    L, D, C = G.lab("tl"), G.lab("tld"), G.lab("tlc")
    def loads():
        for k in range(n):
            so, io = offs(k)
            if so: G.a(f"s_mov_b32 s{sT1}, {so}")
            G.a(f"buffer_load_dwordx4 v[{r0+4*k}:{r0+4*k+3}], v{vaddr}, s[{srd}:{srd+3}], {'s%d' % sT1 if so else 0} offen offset:{io} {G.o.tl_fl}")
    G.a(f"s_mov_b32 s{sCNT}, 0")
    loads()
    nyoung = after() if after else 0
    G.a(f"s_waitcnt vmcnt({nyoung})")
    if after: G.stamp(-1, 5)
    G.a(f"{L}:")
    G.a(f"v_xor_b32 v{vt}, s{sTAG}, v{r0}")
    for k in range(1, 4 * n):
        G.a(f"v_bitop3_b32 v{vt}, v{vt}, v{r0+k}, s{sTAG} bitop3:0xf6")
    G.a(f"v_and_b32 v{vt}, 0xffff, v{vt}")
    G.a(f"v_cmp_ne_u32 vcc, 0, v{vt}")
    G.a(f"s_cbranch_vccnz {C}")
    G.a(f"{D}:")
    def cold():
        G.a(f"{C}:")
        G.a(f"s_add_u32 s{sCNT}, s{sCNT}, 1\ns_cmp_lt_u32 s{sCNT}, {CAP_G}\ns_cbranch_scc0 {D}")
        R = G.lab("tlr")
        G.a(f"s_and_b32 s{sT0}, s{sCNT}, 63\ns_cbranch_scc1 {R}\nbuffer_inv sc1\n{R}:")
        G.a("s_sleep 2")
        loads()
        G.a(f"s_waitcnt vmcnt(0)\ns_branch {L}")
    G.cold.append(cold)


def ctl_srd(G):
    G.a(f"s_add_u32 s{sCT}, s{pWS}, {CT_OFF}\ns_addc_u32 s{sCT+1}, s{pWS+1}, 0")
    G.srd(sCT, None, 9 * GSTRIDE)
    G.a(f"s_add_u32 s{sGB}, s{sG}, 1\ns_lshl_b32 s{sGB}, s{sGB}, 13\ns_lshl_b32 s{sEV}, s{sR}, 2\ns_add_u32 s{sEV}, s{sEV}, s{sGB}")


def misc_srd(G):
    G.srd(sDG, pDBG, 256)
    G.a(f"s_mul_i32 s{sDGO}, s{sGQ}, 20\ns_lshl_b32 s{sT0}, s{sH}, 7\ns_add_u32 s{sDGO}, s{sDGO}, s{sT0}\ns_add_u32 s{sDGO}, s{sDGO}, 8")
    G.srd(sXU, pOUT, OUTB)
    G.srd(sXY, pOUT, OUTB)
    G.a(f"s_mov_b32 s{sM}, 0")


def chan_of(G, sj, dst):
    G.a(f"s_and_b32 s{sT1}, s{sR}, 12\ns_add_u32 s{sT1}, s{sT1}, s{sj}\ns_lshl_b32 s{sT1}, s{sT1}, 2\ns_and_b32 s{sT2}, s{sR}, 3\ns_add_u32 s{sT1}, s{sT1}, s{sT2}")
    G.a(f"s_lshr_b32 s{sT2}, s{sR}, 4\ns_lshl_b32 s{sT3}, s{sGQ}, 1\ns_add_u32 s{sT2}, s{sT2}, s{sT3}\ns_lshl_b32 s{sT2}, s{sT2}, 6\ns_add_u32 s{dst}, s{sT1}, s{sT2}")


def inbox_of(G, dst, slr):
    G.a(f"s_lshr_b32 s{sT2}, s{sR}, 4\ns_lshl_b32 s{sT3}, s{sGQ}, 1\ns_add_u32 s{sT2}, s{sT2}, s{sT3}\ns_lshl_b32 s{sT2}, s{sT2}, 7")
    G.a(f"s_mul_i32 s{dst}, s{sH}, 1152\ns_add_u32 s{dst}, s{dst}, s{sT2}\ns_and_b32 s{slr}, s{sR}, 15")


def xbox_of(G, dst, se, slr):
    G.a(f"s_lshl_b32 s{se}, s{sGQ}, 5\ns_add_u32 s{se}, s{se}, s{sR}\ns_lshr_b32 s{se}, s{se}, 1")
    G.a(f"s_lshr_b32 s{sT1}, s{se}, 4\ns_lshl_b32 s{sT1}, s{sT1}, 2\ns_and_b32 s{sT2}, s{se}, 3\ns_add_u32 s{slr}, s{sT1}, s{sT2}")
    G.a(f"s_bfe_u32 s{sT1}, s{se}, {(2<<16)|2}\ns_lshl_b32 s{sT1}, s{sT1}, 6")
    G.a(f"s_lshl_b32 s{sT2}, s{sH}, 19\ns_add_u32 s{dst}, s{sT1}, s{sT2}")


def blk_addr(G, vd, vt, slr, rowb, scol):
    G.a(f"v_add_u32 v{vt}, s{slr}, v{vd}\nv_and_b32 v{vt}, 15, v{vt}\nv_lshl_add_u32 v{vd}, v{vd}, 4, v{vt}")
    G.a(f"v_mul_u32_u24 v{vd}, {rowb}, v{vd}\nv_add_u32 v{vd}, s{scol}, v{vd}")


def xa_loads(G, b, va, q):
    nt = G.o.ld_nt
    G.a(f"buffer_load_dwordx4 v[{b+2}:{b+5}], v{va}, s[{sHH}:{sHH+3}], 0 offen offset:{1024*q} {nt}")
    if q:
        G.a(f"s_mov_b64 exec, 1\nbuffer_load_dwordx2 v[{b}:{b+1}], v{va}, s[{sHH}:{sHH+3}], 0 offen offset:{1024*q-8} {nt}\ns_mov_b64 exec, -1")


def xa_build(G, b, t, vdst, off, q):
    w = lambda i: b + 2 + i
    bc = "" if q else " bound_ctrl:0"
    G.a(f"v_mov_b32_dpp v{b}, v{w(2)} wave_shr:1 row_mask:0xf bank_mask:0xf{bc}")
    G.a(f"v_mov_b32_dpp v{b+1}, v{w(3)} wave_shr:1 row_mask:0xf bank_mask:0xf{bc}")
    G.a(f"ds_write_b128 v{vdst}, v[{b+2}:{b+5}] offset:{off + 3*PLANE}")
    for i in range(4):
        G.a(f"v_alignbit_b32 v{t+i}, v{w(i-1)}, v{w(i-2)}, 16")
    G.a(f"ds_write_b128 v{vdst}, v[{t}:{t+3}] offset:{off}")
    for i in range(4):
        G.a(f"v_alignbit_b32 v{t+4+i}, v{w(i)}, v{w(i-1)}, 16")
    G.a(f"ds_write_b128 v{vdst}, v[{t+4}:{t+7}] offset:{off + 2*PLANE}")
    G.a(f"v_pk_mov_b32 v[{t+8}:{t+9}], v[{b}:{b+1}], v[{b+2}:{b+3}] op_sel:[1,0]")
    G.a(f"v_pk_mov_b32 v[{t+10}:{t+11}], v[{b+2}:{b+3}], v[{b+4}:{b+5}] op_sel:[1,0]")
    G.a(f"ds_write_b128 v{vdst}, v[{t+8}:{t+11}] offset:{off + PLANE}")


def transpose4(G, regs):
    G.a("s_nop 1")
    for j in (0, 1):
        for d in (0, 1):
            G.a(f"v_permlane32_swap_b32 v{regs[j]+d}, v{regs[j+2]+d}")
    G.a("s_nop 1")
    for j in (0, 2):
        for d in (0, 1):
            G.a(f"v_permlane16_swap_b32 v{regs[j]+d}, v{regs[j+1]+d}")


def u_dma(G, vsrc, srd, ubase_s, qs):
    for q in qs:
        G.a(f"s_add_u32 s{sT0}, s{ubase_s}, {1024*q}\ns_mov_b32 m0, s{sT0}")
        G.a(f"s_mov_b32 s{sT1}, {(3-q)*32*16*RS_OUT}")
        G.a(f"buffer_load_dwordx4 v{vsrc}, s[{srd}:{srd+3}], s{sT1} offen {G.o.dma_fl} lds")


def lds_count(G, vfl, vone, off):
    G.a(f"s_mov_b64 exec, 1\nds_add_u32 v{vfl}, v{vone} offset:{off}\ns_mov_b64 exec, -1")


def finish(G):
    if G.o.dspan:
        G.a("s_waitcnt vmcnt(0)")
        G.stamp(7, 7)
        G.srd(sK, pDBG, 256)
        D = G.lab("ds")
        G.a(f"s_waitcnt lgkmcnt(0)\ns_and_b32 s{sT0}, s2, 0x78\ns_cbranch_scc1 {D}")
        G.a(f"s_cmp_eq_u32 s{sWV}, 10\ns_cselect_b32 s{sT1}, 0, 32\ns_cselect_b32 s{sT0}, 1, 0\ns_cmp_eq_u32 s{sWV}, 9\ns_cselect_b32 s{sT0}, 1, s{sT0}\ns_cmp_eq_u32 s{sT0}, 1\ns_cbranch_scc0 {D}")
        G.a("s_not_b32 s90, s88")
        G.a("s_mov_b64 exec, 1")
        for i in range(8):
            G.a(f"v_mov_b32 v8, s{STAMP_REGS[i]}\nbuffer_atomic_umax v8, off, s[{sK}:{sK+3}], s{sT1} offset:{4*i} sc1")
        G.a(f"{D}:")
        G.a("s_endpgm")
        G.flush_cold()
        return
    if G.o.stamps:
        G.a("s_waitcnt vmcnt(0)")
        G.stamp(7, 7)
        G.a(f"s_add_u32 s{sT2}, s{pWS}, {64<<20}\ns_addc_u32 s{sT3}, s{pWS+1}, 0")
        G.srd(sK, sT2, 1 << 20)
        G.a(f"s_lshl_b32 s{sT0}, s2, 4\ns_add_u32 s{sT0}, s{sT0}, s{sWV}\ns_lshl_b32 s{sT0}, s{sT0}, 5")
        G.a("s_waitcnt lgkmcnt(0)")
        for i in range(8):
            G.a(f"v_mov_b32 v{8+i}, s{STAMP_REGS[i]}")
        G.a("s_mov_b64 exec, 1")
        G.a(f"buffer_store_dwordx4 v[8:11], off, s[{sK}:{sK+3}], s{sT0}")
        G.a(f"buffer_store_dwordx4 v[12:15], off, s[{sK}:{sK+3}], s{sT0} offset:16")
    G.a("s_endpgm")
    G.flush_cold()


class Stream:
    def __init__(self, G, slots, lead):
        self.G, self.slots, self.lead = G, slots, lead
        self.mf = []
        self.side = {}
        self.busy = {}
        self.gate = {}
    def mfma(self, acc, A, B, zero):
        self.mf.append((acc, A, B, zero))
    def at(self, pos, fn, ds=0):
        self.side.setdefault(pos, []).append(fn)
        self.busy[pos] = self.busy.get(pos, 0) + ds
    def spread(self, pos, lines, step=1):
        for ln in lines:
            self.at(pos, lambda S_, ln=ln: S_.G.a(ln))
            pos += step
        return pos
    def emit(self, loadtext):
        G = self.G
        n = len(self.mf)
        first, last, order = {}, {}, []
        for i, (acc, A, B, z) in enumerate(self.mf):
            for k in (A, B):
                if k not in first:
                    first[k] = i; order.append(k)
                last[k] = i
        free = [0] * len(self.slots)
        sched = {}
        cnt = [self.busy.get(i, 0) for i in range(n + 1)]
        slot_of = {}
        prev = 0
        for k in order:
            s = min(range(len(free)), key=lambda j: free[j])
            ops = loadtext(k, self.slots[s])
            lo = max(self.gate.get(k[0:2] + (k[2] >> 2,), 0), free[s], prev)
            slot_of[k] = self.slots[s]
            for op in ops:
                p = max(lo, first[k] - self.lead)
                hi = max(p, first[k] - 4)
                q = min(range(p, hi + 1), key=lambda x: (cnt[x], x))
                p = min(q, first[k])
                assert p >= lo, (k, p, lo)
                cnt[p] += 1
                sched.setdefault(p, []).append((k, op))
                prev = lo = p
            free[s] = last[k] + 1
        self.nds = 0
        self.done = 0
        ready = {}
        for i in range(n + 1):
            for fn in self.side.get(i, []):
                fn(self)
            for k, op in sched.get(i, []):
                G.a(op); self.nds += 1; ready[k] = self.nds
            if i == n: break
            acc, A, B, z = self.mf[i]
            self.need(max(ready[A], ready[B]))
            a_, b_ = slot_of[A], slot_of[B]
            c = "0" if z else f"v[{acc}:{acc+3}]"
            G.a(f"v_mfma_f32_16x16x32_bf16 v[{acc}:{acc+3}], v[{a_}:{a_+3}], v[{b_}:{b_+3}], {c}")
        self.stats = (n, sum(cnt), max(cnt), sum(1 for c in cnt if c > 1))
    def ds(self, text):
        self.G.a(text); self.nds += 1
        return self.nds
    def need(self, idx):
        if idx > self.done:
            out = min(self.nds - idx, 15)
            self.G.a(f"s_waitcnt lgkmcnt({out})")
            self.done = self.nds - out


cA, cB, cAX, cBX, cY, cYX, cSW, cSR, cFL, cONE, c128, cT, cF, cL4 = 1, 2, 3, 4, 5, 6, 7, 8, 9, 10, 11, 12, 14, 15


def c_stream(G, ts):
    o = G.o
    ACC = 16
    PK = 48
    slots = [56 + 4 * i for i in range(18)]
    S = Stream(G, slots, o.lead)
    acc = lambda t: ACC + 4 * t
    S.nst = 0
    seen = set()
    def add(ph, ch, pairs, ys, accf):
        for y in ys:
            for (x, b) in pairs:
                r = accf(x + b)
                S.mfma(r, (ph, "A", x, y, ch), (ph, "B", b, y, ch), (r, ch) not in seen)
                seen.add((r, ch))
    def loadtext(k, r):
        ph, typ, i, y, ch = k
        if typ == "A":
            return [f"ds_read_b128 v[{r}:{r+3}], v{cAX if ch else cA} offset:{512*i + 64*y}"]
        off = 512 * (7 - i) + 64 * y
        v = cBX if ch else cB
        return [f"ds_read_b64 v[{r}:{r+1}], v{v} offset:{off}", f"ds_read_b64 v[{r+2}:{r+3}], v{v} offset:{off+8}"]
    p1 = [(x, b) for x in range(4) for b in range(4)]
    p1.sort(key=lambda p: (max(p), p[0] + p[1]))
    p2 = [(4, 0), (5, 0), (4, 1), (6, 0), (5, 1), (4, 2), (7, 0), (6, 1), (5, 2), (4, 3)]
    p3 = [(x, b) for (b, x) in p2]
    tiles = [0, 3, 4, 7] if ts == 0 else [1, 2, 5, 6]
    px = [(x, b) for x in range(4, 8) for b in range(4) if x + b in tiles] + \
         [(x, b) for x in range(4) for b in range(4) if x + b in tiles] + \
         [(x, b) for x in range(4) for b in range(4, 8) if x + b in tiles]
    assert len(px) == 18
    use = []
    for (x, b) in px:
        if x + b not in use: use.append(x + b)
    accx = lambda t: acc(use.index(t))
    beg, end = {}, {}
    for ph in o.order:
        beg[ph] = len(S.mf)
        if ph == "1": add(1, 0, p1, range(8), acc)
        if ph == "x": add(2, 1, px, range(2), accx)
        if ph == "2": add(3, 0, p2, range(8), acc)
        if ph == "3": add(4, 0, p3, range(8), acc)
        end[ph] = len(S.mf)
    e1, ex, e3 = end["1"], end["x"], len(S.mf)
    S.mf[e1 - 16:e1] = sorted(S.mf[e1 - 16:e1], key=lambda m: m[0])

    def check(pos, off, expected):
        st = {}
        def rd(S_):
            st["i"] = S_.ds(f"ds_read_b32 v{cT}, v{cFL} offset:{off}")
        def ck(S_):
            S_.need(st["i"])
            if o.iso: return
            D, C = G.lab("ck"), G.lab("ckc")
            G.a(f"v_readfirstlane_b32 s{sT0}, v{cT}")
            G.a(f"s_cmp_ge_u32 s{sT0}, {expected}")
            G.a(f"s_cbranch_scc0 {C}")
            G.a(f"{D}:")
            def cold():
                G.a(f"{C}:")
                poll_lds(G, cFL, off, expected, cT)
                G.a(f"s_branch {D}")
            G.cold.append(cold)
        S.at(pos - 5, rd, ds=1); S.at(pos, ck)
    def count(pos, off):
        def f(S_):
            G.a("s_mov_b64 exec, 1")
            S_.ds(f"ds_add_u32 v{cFL}, v{cONE} offset:{off}")
            G.a("s_mov_b64 exec, -1")
        S.at(pos, f, ds=1)
    def ystore1(t, pk):
        A, B = G.lab("ys"), G.lab("yd")
        S.nst += 1
        G.a(f"s_mov_b32 s{sT1}, {t*TILE_STEP}")
        G.a(f"s_cbranch_vccnz {A}")
        G.a(f"buffer_store_dwordx2 v[{pk}:{pk+1}], v{cY}, s[{sXY}:{sXY+3}], s{sT1} offen")
        G.a(f"{B}:")
        def cold():
            G.a(f"{A}:")
            G.a(f"buffer_store_dwordx2 v[{pk}:{pk+1}], v{cY}, s[{sXY}:{sXY+3}], s{sT1} offen sc1")
            G.a(f"s_branch {B}")
        G.cold.append(cold)
    Ld = o.lead + 1
    check(beg["x"] - Ld, F_X, 1)
    for typ in "AB":
        for h in (0, 1):
            S.gate[(2, typ, h)] = beg["x"] - Ld
    check(beg["2"] - Ld, C_H, 4)
    S.gate[(3, "A", 1)] = beg["2"] - Ld
    S.at(beg["3"] - Ld, lambda S_: G.a(f"s_waitcnt vmcnt({S_.nst})"))
    S.gate[(4, "B", 1)] = beg["3"] - Ld
    lastw = {t: max(i for i in range(e1) if S.mf[i][0] == acc(t)) for t in range(4)}
    reuse = beg["x"]
    p = 0
    for t in range(4):
        p = max(p, lastw[t] + 9)
        r = acc(t)
        p = S.spread(p, [f"v_cvt_pk_bf16_f32 v{PK+2*t}, v{r}, v{r+1}", f"v_cvt_pk_bf16_f32 v{PK+2*t+1}, v{r+2}, v{r+3}"])
        firstw = min(i for i in range(reuse, ex) if S.mf[i][0] == r)
        assert p <= firstw, (t, p, firstw)
        S.at(p, lambda S_, t=t: ystore1(t, PK + 2 * t))
        p += 1
    S.at(e1, lambda S_: G.stamp(3))
    py = beg["2"] + o.y1wait
    S.at(py, lambda S_: G.a("s_waitcnt vmcnt(0)"))
    count(py, C_Y1)
    p = ex + 8
    for i in range(4):
        def pw(S_, i=i):
            S_.last_pw = S_.ds(f"ds_write_b128 v{cSW}, v[{accx(tiles[i])}:{accx(tiles[i])+3}] offset:{4096*i}")
        S.at(p + i, pw, ds=1)
    S.at(p + 8, lambda S_: S_.need(S_.last_pw))
    count(p + 8, C_P)
    S.at(end["3"], lambda S_: G.stamp(4))
    S.at(ex, lambda S_: G.stamp(5))
    n = e3
    def cvt(t):
        r = acc(t)
        return [f"v_cvt_pk_bf16_f32 v{PK+2*(t-4)}, v{r}, v{r+1}", f"v_cvt_pk_bf16_f32 v{PK+2*(t-4)+1}, v{r+2}, v{r+3}"]
    def tail(S_):
        G.stamp(6)
        for t in (4, 5, 6, 7):
            G.a("\n".join(cvt(t))); ystore1(t, PK + 2 * (t - 4))
    S.mf[n - 10:] = sorted(S.mf[n - 10:], key=lambda m: m[0])
    S.at(n, tail)
    S.emit(loadtext)
    G.a("s_mov_b64 exec, 1")
    G.a("s_waitcnt vmcnt(0)")
    G.a(f"ds_add_rtn_u32 v{cT}, v{cFL}, v{cONE} offset:{C_Y2}")
    G.a("s_waitcnt lgkmcnt(0)")
    G.a(f"v_readfirstlane_b32 s{sT0}, v{cT}")
    D = G.lab("cy")
    G.a(f"s_cmp_eq_u32 s{sT0}, 3\ns_cbranch_scc0 {D}")
    signal(G, cF, c128, L_Y2, 12, 16)
    G.a(f"{D}:")
    finish(G)
    return S.stats


def gen(o):
    G = Gen(o)
    a = G.a
    nt = o.ld_nt
    K = NAME + "_kernel"
    a(f"{K}:")
    a("s_cmp_ge_u32 s2, 256\ns_cbranch_scc1 L_exit")
    if o.stamps or o.dspan:
        a("s_memtime s[88:89]" if o.cyc else "s_memrealtime s[88:89]")
    a("s_load_dwordx16 s[16:31], s[0:1], 0")
    a("s_load_dwordx8 s[32:39], s[0:1], 64")
    a("s_load_dwordx4 s[40:43], s[0:1], 96")
    a("s_load_dwordx2 s[44:45], s[0:1], 112")
    a("v_lshrrev_b32 v1, 6, v0")
    a(f"s_and_b32 s{sG}, s2, 7")
    a(f"v_readfirstlane_b32 s{sWV}, v1")
    a("v_and_b32 v0, 63, v0")
    a(f"s_lshr_b32 s{sR}, s2, 3\ns_lshr_b32 s{sH}, s{sG}, 2\ns_and_b32 s{sGQ}, s{sG}, 3")
    a(f"s_cmp_eq_u32 s{sWV}, {W_S}\ns_cbranch_scc1 L_Si")
    a(f"s_cmp_ge_u32 s{sWV}, {W_C}\ns_cbranch_scc1 L_Ci")

    vIN, vK3, vWo, vDo, vG, vL = 1, 2, 3, 4, 5, 6
    vFL, vONE, vX, vO1, vO2, vT, vF, vL4, v128, vRD = 7, 8, 9, 10, 11, 12, 14, 15, 124, 126
    WR, DR, KR, VR, QR = 16, 24, 26, 40, 48
    WF, KF, KS, PKU = 56, 72, 100, 116
    a(f"s_sub_u32 s{sE}, s{sWV}, 2\ns_cselect_b32 s{sE}, 8, s{sE}")
    a(f"s_lshl_b32 s{sT1}, s{sR}, 1\ns_and_b32 s{sT2}, s{sE}, 4\ns_lshl_b32 s{sT2}, s{sT2}, 4\ns_add_u32 s{sT1}, s{sT1}, s{sT2}")
    a(f"s_bfe_u32 s{sT2}, s{sE}, {(1<<16)|1}\ns_add_u32 s{sT1}, s{sT1}, s{sT2}")
    a(f"s_lshl_b32 s{sT0}, s{sGQ}, 1\ns_and_b32 s{sT3}, s{sE}, 1\ns_add_u32 s{sT0}, s{sT0}, s{sT3}")
    a(f"s_lshl_b32 s{sT2}, s{sGQ}, 5\ns_add_u32 s{sT2}, s{sT2}, s{sR}")
    a(f"v_lshrrev_b32 v{vK3}, 3, v0\nv_mul_u32_u24 v{vK3}, {RS_IN}, v{vK3}\nv_and_b32 v{vWo}, 7, v0\nv_lshl_add_u32 v{vK3}, v{vWo}, 4, v{vK3}")
    a(f"s_cmp_eq_u32 s{sE}, 8")
    a(f"s_cselect_b32 s46, 8, s{sT0}\ns_cselect_b32 s47, s{sT2}, s{sT1}")
    a(f"s_mul_i32 s{sT0}, s47, {16*RS_IN}\ns_lshl_b32 s{sT1}, s46, 7\ns_add_u32 s{sSIG}, s{sT0}, s{sT1}")
    a(f"v_add_u32 v{vIN}, s{sSIG}, v{vK3}")
    a(f"s_lshl_b32 s{sT2}, s46, 9")
    a(f"v_lshl_add_u32 v{vWo}, v0, 4, s{sT2}")
    a(f"v_add_u32 v{vK3}, {(-3*RS_IN) & 0xffffffff}, v{vIN}")
    G.srd(sK, None, TENS); G.srd(sV, None, TENS); G.srd(sW, None, 4608)
    a(f"s_mul_i32 s{sSTG}, s{sE}, {STG_SZ}\ns_add_u32 s{sSTG}, s{sSTG}, {SCR0}")
    a(f"s_cmp_eq_u32 s{sH}, 0")
    a("s_waitcnt lgkmcnt(0)\ns_barrier")
    G.stamp(-1, 1)
    a(f"s_cselect_b64 s[{sK}:{sK+1}], s[18:19], s[30:31]")
    a(f"s_cselect_b64 s[{sV}:{sV+1}], s[20:21], s[32:33]")
    a(f"s_cselect_b64 s[{sW}:{sW+1}], s[22:23], s[34:35]")
    a(f"s_cselect_b64 s[{sD}:{sD+1}], s[26:27], s[38:39]")
    a(f"s_cselect_b64 s[{sQ}:{sQ+1}], s[16:17], s[28:29]")
    a(f"s_cselect_b64 s[{sHH}:{sHH+1}], s[24:25], s[36:37]")
    a(f"s_mov_b32 m0, s{sSTG}\ns_add_u32 s{sT0}, s{sSTG}, 1024\ns_mov_b32 s{sT1}, {5*RS_IN}")
    a(f"buffer_load_dwordx4 v{vK3}, s[{sK}:{sK+3}], 0 offen {nt} lds")
    a(f"s_mov_b32 m0, s{sT0}\ns_add_u32 s{sT0}, s{sSTG}, 2048")
    a(f"buffer_load_dwordx4 v{vIN}, s[{sK}:{sK+3}], s{sT1} offen {nt} lds")
    a(f"s_mov_b32 m0, s{sT0}\ns_mov_b32 s{sT1}, {13*RS_IN}\ns_mov_b64 exec, 0xffffff\ns_add_u32 s{sT0}, s{sSTG}, 4480")
    a(f"buffer_load_dwordx4 v{vIN}, s[{sK}:{sK+3}], s{sT1} offen {nt} lds")
    a(f"s_mov_b32 m0, s{sT0}\ns_mov_b32 exec_lo, -1\ns_add_u32 s{sT0}, s{sSTG}, 2432")
    a(f"buffer_load_dwordx4 v{vWo}, s[{sW}:{sW+3}], 0 offen lds")
    a(f"s_mov_b32 m0, s{sT0}\ns_mov_b64 exec, -1\ns_add_u32 s{sT0}, s{sSTG}, {2432+1024}")
    a(f"buffer_load_dwordx4 v{vIN}, s[{sV}:{sV+3}], 0 offen {nt} lds")
    a(f"s_mov_b32 m0, s{sT0}\ns_mov_b32 s{sT1}, {8*RS_IN}")
    a(f"buffer_load_dwordx4 v{vIN}, s[{sV}:{sV+3}], s{sT1} offen {nt} lds")
    G.stamp(-1, 2)
    a("s_branch L_Em")

    cHA, cHB, cHB0, cPF, cZ, cU = 100, 101, 102, 103, 56, 60
    a("L_Ci:")
    a(f"s_sub_u32 s46, s{sWV}, {W_C}")
    chan_of(G, 46, sT0)
    a(f"s_lshl_b32 s{sT0}, s{sT0}, 12")
    a(f"v_lshl_add_u32 v{cHA}, v0, 4, s{sT0}")
    inbox_of(G, 47, sSIG)
    G.srd(sHH, None, TENS)
    if o.prefill:
        G.srd(sOUT, None, OUTB)
        a(f"s_lshl_b32 s{sT0}, s46, 4\nv_lshrrev_b32 v{cPF}, 2, v0\nv_add_u32 v{cPF}, s{sT0}, v{cPF}")
        blk_addr(G, cPF, cHB, sSIG, RS_OUT, 47)
    a(f"s_cmp_eq_u32 s{sH}, 0")
    a("s_waitcnt lgkmcnt(0)\ns_barrier")
    G.stamp(-1, 1)
    a(f"s_cselect_b64 s[{sHH}:{sHH+1}], s[24:25], s[36:37]")
    xa_loads(G, 64, cHA, 0)
    xa_loads(G, 72, cHA, 1)
    if o.prefill:
        a(f"s_mov_b64 s[{sOUT}:{sOUT+1}], s[{pOUT}:{pOUT+1}]")
        a(f"buffer_load_dword v{cPF}, v{cPF}, s[{sOUT}:{sOUT+3}], 0 offen {o.pf_nt}")
    G.stamp(-1, 2)
    a("s_branch L_Cm")

    sFL, sONE, s128, sT_, sF_, sL4, sZ, sHA, sHB, sHB0, sU, sU1, sP = 1, 2, 3, 4, 6, 7, 8, 12, 13, 14, 15, 16, 17
    a("L_Si:")
    if o.prefetch_code:
        a(f"s_getpc_b64 s[{sT0}:{sT1}]")
        a("L_pc:")
        a(f"s_and_b32 s{sT2}, s{sR}, 7\ns_mul_i32 s{sT2}, s{sT2}, 3072\nv_min_u32 v{sP}, 23, v0\nv_lshl_add_u32 v{sP}, v{sP}, 7, s{sT2}\nv_min_u32 v{sP}, L_exit-L_pc, v{sP}")
        a(f"global_load_dword v{sP}, v{sP}, s[{sT0}:{sT1}]")
    for i in range(4): a(f"v_mov_b32 v{sZ+i}, 0")
    a(f"v_lshlrev_b32 v{sL4}, 2, v0\nv_min_u32 v{sT_}, 60, v{sL4}\nv_add_u32 v{sT_}, {FL0}, v{sT_}\nds_write_b32 v{sT_}, v{sZ}")
    a(f"v_lshlrev_b32 v{s128}, 7, v0")
    a(f"s_lshl_b32 s46, s{sH}, 7")
    a("s_waitcnt lgkmcnt(0)\ns_barrier")
    G.stamp(-1, 1)
    a(f"s_cmp_eq_u32 s{sH}, 0")
    a(f"s_cselect_b64 s[{sHH}:{sHH+1}], s[24:25], s[36:37]")
    ctl_srd(G)
    a(f"s_load_dwordx2 s[{sX1+1}:{sX1+2}], s[{sCT}:{sCT+1}], s46")
    a(f"v_min_u32 v{sHB}, {15*128}, v{s128}")
    a(f"buffer_load_dword v{sHB0}, v{sHB}, s[{sCT}:{sCT+3}], s{sGB} offen")
    G.stamp(-1, 2)
    if o.iso:
        a(f"v_mov_b32 v{sFL}, {FL0}\nv_mov_b32 v{sT_}, 2\nv_mov_b32 v{sT_+1}, 2\nds_write_b64 v{sFL}, v[{sT_}:{sT_+1}] offset:{F_N}\ns_waitcnt lgkmcnt(0)\ns_endpgm")
    a(f"v_mov_b32 v{sFL}, {FL0}\nv_mov_b32 v{sONE}, 1")
    a("s_waitcnt lgkmcnt(0)")
    a(f"s_and_b32 s{sN}, s{sX2}, 0xfffffff0\ns_add_u32 s{sN}, s{sN}, 0x9e3779b0\nv_mov_b32 v{sT_}, s{sN}")
    a(f"s_add_u32 s{sTAG}, s{sX3}, 1\ns_and_b32 s{sTAG}, s{sTAG}, 0xffff\ns_add_u32 s{sT0}, s{sTAG}, 0x10000\nv_mov_b32 v{sT_+1}, s{sT0}")
    a(f"ds_write_b64 v{sFL}, v[{sT_}:{sT_+1}] offset:{F_N}")
    G.stamp(1, -1)
    a(f"v_lshlrev_b32 v{sHA}, 4, v0")
    a(f"v_add_u32 v{sHB}, {U0 + 4*U_SZ + U_SZ - 1024}, v{sHA}\nds_write_b128 v{sHB}, v[{sZ}:{sZ+3}]")
    a(f"v_add_u32 v{sU1}, {XA0 + 4*XA_SZ}, v{sHA}")
    for p in range(4):
        a(f"ds_write_b128 v{sU1}, v[{sZ}:{sZ+3}] offset:{p*PLANE}")
    G.srd(sHH, None, TENS)
    misc_srd(G)
    a(f"s_add_u32 s{sK}, s{pWS}, {XU_OFF}\ns_addc_u32 s{sK+1}, s{pWS+1}, 0")
    G.srd(sK, None, 1 << 20)
    G.srd(sOUT, pOUT, OUTB)
    a(f"s_getreg_b32 s{sF}, hwreg(HW_REG_XCC_ID, 0, 4)\ns_add_u32 s{sF}, s{sF}, s{sN}\ns_add_u32 s{sF}, s{sF}, 1\nv_mov_b32 v{sF_}, s{sF}")
    xbox_of(G, sX3, sX2, sLR)
    a(f"s_add_u32 s{sT0}, s{sX2}, 512\ns_lshl_b32 s{sT0}, s{sT0}, 12")
    a(f"v_add_u32 v{sHA}, s{sT0}, v{sHA}")
    for q in range(4):
        xa_loads(G, 32 + 8 * q, sHA, q)
    a(f"v_lshrrev_b32 v{sHB}, 2, v0\nv_sub_u32 v{sHB}, 15, v{sHB}")
    blk_addr(G, sHB, sT_, sLR, 256, sX3)
    a(f"v_and_b32 v{sT_}, 3, v0\nv_lshl_add_u32 v{sHB}, v{sT_}, 4, v{sHB}")
    a(f"v_lshlrev_b32 v18, 3, v0\nv_add_u32 v18, {U0 + 4*U_SZ}, v18\ns_mov_b32 s47, 0x07060302\ns_setprio 2")
    for q in range(4):
        a(f"s_waitcnt vmcnt({6-2*q})")
        xa_build(G, 32 + 8 * q, 96 + 12 * (q & 1), sU1, 384 + 1024 * q, q)
    G.stamp(-1, 3)
    poll_lds(G, sFL, C_GO, 4, sT_, pair=sX4)
    adopt_mode(G, sX4, sF_)
    G.stamp(2, 4)
    def after():
        lds_count(G, sFL, sONE, C_GO)
        return 0
    tagged_loads(G, 8, 96, sHB, sK, lambda k: ((7 - k) * 16 * 4096, 0), sT_, after)
    for k in range(8):
        a(f"v_perm_b32 v{64+2*k}, v{97+4*k}, v{96+4*k}, s47\nv_perm_b32 v{65+2*k}, v{99+4*k}, v{98+4*k}, s47")
        a(f"ds_write_b64 v18, v[{64+2*k}:{65+2*k}] offset:{512*k}")
    a("s_waitcnt lgkmcnt(0)")
    a(f"ds_write_b32 v{sFL}, v{sONE} offset:{F_X}")
    G.stamp(3, 6)
    D = G.lab("epo")
    a(f"s_or_b32 s{sT0}, s{sGQ}, s{sR}\ns_cbranch_scc1 {D}")
    a(f"s_mov_b64 exec, 1\nv_mov_b32 v{sT_}, s{sN}\nv_mov_b32 v{sT_+1}, s{sTAG}\nbuffer_store_dwordx2 v[{sT_}:{sT_+1}], off, s[{sCT}:{sCT+3}], s46\ns_mov_b64 exec, -1")
    a(f"{D}:")
    a(f"s_add_u32 s{sWMY}, s{pWS}, {XY_OFF}\ns_addc_u32 s{sWMY+1}, s{pWS+1}, 0")
    G.srd(sWMY, None, 1 << 20)
    xbox_of(G, sX1, sT0, sLR)
    a(f"v_lshrrev_b32 v{sHA}, 2, v0")
    blk_addr(G, sHA, sT_, sLR, 256, sX1)
    a(f"v_and_b32 v{sT_}, 3, v0\nv_lshl_add_u32 v{sHA}, v{sT_}, 4, v{sHA}")
    a(f"v_lshlrev_b32 v{sHB}, 4, v0\nv_add_u32 v{sHB}, {SCR0}, v{sHB}\nv_mov_b32 v19, s{sTAG}\ns_mov_b32 s47, 0xffff0000")
    a(f"s_and_b32 s{sT0}, s{sR}, 1\ns_lshl_b32 s{sX1}, s{sT0}, 16\ns_sub_u32 s{sX2}, {3<<16}, s{sX1}\ns_add_u32 s{sX3}, s{sX1}, {4<<16}\ns_add_u32 s{sX4}, s{sX2}, {4<<16}")
    poll_lds(G, sFL, C_P, 4, sT_, sleep=1)
    for i in range(12):
        a(f"ds_read_b128 v[{32+4*i}:{35+4*i}], v{sHB} offset:{1024*i}")
    for i in range(4):
        if i == 1:
            for k in range(12, 16):
                a(f"ds_read_b128 v[{32+4*k}:{35+4*k}], v{sHB} offset:{1024*k}")
        a(f"s_waitcnt lgkmcnt({[8, 8, 4, 0][i]})")
        r = 32 + 16 * i
        for d in (0, 2): a(f"v_pk_add_f32 v[{r+d}:{r+d+1}], v[{r+d}:{r+d+1}], v[{r+4+d}:{r+5+d}]")
        for d in (0, 2): a(f"v_pk_add_f32 v[{r+8+d}:{r+9+d}], v[{r+8+d}:{r+9+d}], v[{r+12+d}:{r+13+d}]")
        for d in (0, 2): a(f"v_pk_add_f32 v[{r+d}:{r+d+1}], v[{r+d}:{r+d+1}], v[{r+8+d}:{r+9+d}]")
        a(f"v_cvt_pk_bf16_f32 v{r+4}, v{r}, v{r+1}\nv_cvt_pk_bf16_f32 v{r+5}, v{r+2}, v{r+3}")
        for d in (0, 1):
            a(f"v_lshl_or_b32 v{r+2*d}, v{r+4+d}, 16, v19\nv_and_or_b32 v{r+2*d+1}, v{r+4+d}, s47, v19")
        a(f"buffer_store_dwordx4 v[{r}:{r+3}], v{sHA}, s[{sWMY}:{sWMY+3}], s{[sX1, sX2, sX3, sX4][i]} offen sc1")
    G.stamp(4)
    a("s_waitcnt vmcnt(0)")
    signal(G, sF_, s128, L_YX, 16, 32)
    G.stamp(5)
    poll_lds(G, sFL, C_Y1, 4, sT_, sleep=2)
    signal(G, sF_, s128, L_Y1, 8, 32)
    G.stamp(6)
    finish(G)

    a("L_Em:")
    a(f"s_setprio 1\ns_cmp_eq_u32 s{sE}, 8\ns_cbranch_scc0 L_Eh\ns_setprio 3")
    if o.iso: a("s_endpgm")
    a("L_Eh:")
    G.stamp(1, 3)
    a(f"v_and_b32 v{vG}, 15, v0\nv_lshrrev_b32 v{vL}, 4, v0")
    a(f"v_mul_u32_u24 v{vIN}, {4*RS_IN}, v{vL}\nv_lshl_add_u32 v{vIN}, v{vG}, 3, v{vIN}\nv_add_u32 v{vIN}, s{sSIG}, v{vIN}")
    a(f"v_lshlrev_b32 v{vRD}, 9, v{vL}\nv_lshl_add_u32 v{vRD}, v{vG}, 3, v{vRD}\nv_add_u32 v{vRD}, s{sSTG}, v{vRD}")
    a(f"v_lshl_add_u32 v{vWo}, v{vG}, 5, s{sSTG}")
    G.srd(sD, None, 1152); G.srd(sQ, None, TENS); G.srd(sHH, None, TENS)
    G.srd(sOUT, pOUT, OUTB)
    ctl_srd(G)
    misc_srd(G)
    a(f"s_mov_b32 s{sLC}, s46\ns_lshl_b32 s{sROW0}, s47, 4")
    a(f"s_lshl_b32 s{sT1}, s{sLC}, 7\nv_lshl_add_u32 v{vDo}, v{vG}, 3, s{sT1}")
    a(f"s_mul_i32 s{sCOL}, s{sH}, 1152\ns_add_u32 s{sCOL}, s{sCOL}, s{sT1}")
    a(f"s_mul_i32 s{sT0}, s{sROW0}, {RS_OUT}\ns_add_u32 s{sT0}, s{sT0}, s{sCOL}")
    a(f"v_mul_u32_u24 v{vO1}, {4*RS_OUT}, v{vL}\nv_lshl_add_u32 v{vO1}, v{vG}, 3, v{vO1}\nv_add_u32 v{vO1}, s{sT0}, v{vO1}")
    a(f"v_add_u32 v{vO2}, {2*RS_OUT}, v{vO1}")
    a(f"s_lshl_b32 s{sT1}, s47, 12\ns_lshl_b32 s{sT2}, s{sH}, 19\ns_add_u32 s{sT1}, s{sT1}, s{sT2}\ns_mov_b32 s{sT2}, {RS_OUT}")
    a(f"s_cmp_eq_u32 s{sE}, 8\ns_cselect_b32 s{sT0}, s{sT1}, s{sT0}\ns_cselect_b32 s{sT1}, 256, s{sT2}\ns_cselect_b32 s{sT2}, 6, 5")
    a(f"v_and_b32 v{vX}, 12, v{vG}\nv_add3_u32 v{vX}, v{vX}, v{vL}, s47\nv_and_b32 v{vX}, 15, v{vX}\nv_mul_u32_u24 v{vX}, s{sT1}, v{vX}")
    a(f"v_and_b32 v{vT}, 3, v{vG}\nv_lshlrev_b32 v{vT}, s{sT2}, v{vT}\nv_add3_u32 v{vX}, v{vX}, v{vT}, s{sT0}")
    a(f"v_mov_b32 v{vFL}, {FL0}\nv_mov_b32 v{vONE}, 1\nv_lshlrev_b32 v{vL4}, 2, v0\nv_lshlrev_b32 v{v128}, 7, v0")
    a(f"s_lshr_b32 s{sSIG}, s{sE}, 2")
    chan_of(G, sE, sT0)
    a(f"s_lshl_b32 s{sT0}, s{sT0}, 12\nv_lshl_add_u32 v{vK3}, v0, 4, s{sT0}")
    a(f"s_mul_i32 s{sT0}, s{sE}, {XA_SZ}\nv_lshl_add_u32 v{vG}, v0, 4, s{sT0}")
    a(f"v_mov_b32 v{vL}, {FL0 + C_U0}")
    a("s_mov_b32 s47, 0xffff0000")
    get_nonce(G, vFL, vT, vF)
    a("s_waitcnt vmcnt(2)")
    G.stamp(-1, 4)
    a(f"ds_read_b128 v[{WR}:{WR+3}], v{vWo} offset:4480\nds_read_b128 v[{WR+4}:{WR+7}], v{vWo} offset:4496")
    for i in range(7):
        a(f"ds_read_b64 v[{KR+2*i}:{KR+2*i+1}], v{vRD} offset:{128*i}")
    a("s_waitcnt lgkmcnt(7)")
    for c in range(4):
        for j in range(4):
            src = WR + 2 * c + (j >> 1)
            a(f"v_lshlrev_b32 v{WF+4*j+c}, 16, v{src}" if j % 2 == 0 else f"v_and_b32 v{WF+4*j+c}, s47, v{src}")
    a("s_waitcnt lgkmcnt(0)")
    for i in range(7):
        for d in range(2):
            a(f"v_lshlrev_b32 v{KF+4*i+2*d}, 16, v{KR+2*i+d}")
            a(f"v_and_b32 v{KF+4*i+2*d+1}, s47, v{KR+2*i+d}")
    a("s_waitcnt vmcnt(0)")
    G.stamp(2, 5)
    for i in range(4):
        a(f"ds_read_b64 v[{VR+2*i}:{VR+2*i+1}], v{vRD} offset:{2432 + 128*i}")
    for j in (3, 2, 1, 0):
        for r in range(4):
            for d in range(2):
                ks, w, k = KS + 4 * r + 2 * d, WF + 4 * j + 2 * d, KF + 4 * (3 + r - j) + 2 * d
                if j == 3:
                    a(f"v_pk_mul_f32 v[{ks}:{ks+1}], v[{k}:{k+1}], v[{w}:{w+1}]")
                else:
                    a(f"v_pk_fma_f32 v[{ks}:{ks+1}], v[{k}:{k+1}], v[{w}:{w+1}], v[{ks}:{ks+1}]")
    a("s_waitcnt lgkmcnt(0)")
    for r in range(4):
        for d in range(2):
            a(f"v_lshlrev_b32 v{KF+4*r+2*d}, 16, v{VR+2*r+d}")
            a(f"v_and_b32 v{KF+4*r+2*d+1}, s47, v{VR+2*r+d}")
    for r in range(4):
        for d in range(2):
            ks, k = KS + 4 * r + 2 * d, KF + 4 * r + 2 * d
            a(f"v_pk_mul_f32 v[{ks}:{ks+1}], v[{ks}:{ks+1}], v[{k}:{k+1}]")
    regs = [PKU + 2 * (3 - j) for j in range(4)]
    for c in range(4):
        a(f"v_cvt_pk_bf16_f32 v{regs[c]}, v{KS+12+c}, v{KS+8+c}")
        a(f"v_cvt_pk_bf16_f32 v{regs[c]+1}, v{KS+4+c}, v{KS+c}")
    transpose4(G, regs)
    LX, LJ, LP = G.lab("ex"), G.lab("ej"), G.lab("ep")
    def qloads():
        a(f"buffer_load_dwordx2 v[{DR}:{DR+1}], v{vDo}, s[{sD}:{sD+3}], 0 offen")
        for i in range(4):
            a(f"buffer_load_dwordx2 v[{QR+2*i}:{QR+2*i+1}], v{vIN}, s[{sQ}:{sQ+3}], 0 offen offset:{i*RS_IN} {nt}")
    a(f"s_cmp_eq_u32 s{sE}, 8\ns_cbranch_scc1 {LX}")
    a(f"{LP}:")
    A, B = G.lab("us"), G.lab("ud")
    a(f"s_cmp_eq_u32 s{sM}, 0\ns_cbranch_scc0 {A}")
    a(f"buffer_store_dwordx4 v[{PKU}:{PKU+3}], v{vX}, s[{sXU}:{sXU+3}], 0 offen")
    a(f"buffer_store_dwordx4 v[{PKU+4}:{PKU+7}], v{vX}, s[{sXU}:{sXU+3}], 0 offen offset:16")
    a(f"{B}:")
    def cold_us():
        a(f"{A}:")
        a(f"buffer_store_dwordx4 v[{PKU}:{PKU+3}], v{vX}, s[{sXU}:{sXU+3}], 0 offen sc1")
        a(f"buffer_store_dwordx4 v[{PKU+4}:{PKU+7}], v{vX}, s[{sXU}:{sXU+3}], 0 offen offset:16 sc1")
        a(f"s_branch {B}")
    G.cold.append(cold_us)
    a("s_mov_b64 exec, 1")
    a("s_waitcnt vmcnt(0)")
    a(f"ds_add_rtn_u32 v{vT}, v{vL}, v{vONE}")
    a("s_waitcnt lgkmcnt(0)")
    a(f"v_readfirstlane_b32 s{sT0}, v{vT}")
    D = G.lab("eu")
    a(f"s_cmp_eq_u32 s{sT0}, 7\ns_cbranch_scc0 {D}")
    signal(G, vF, v128, L_U1, 4, WF)
    a(f"{D}:")
    a("s_mov_b64 exec, -1")
    G.stamp(3, 6)
    LQ = G.lab("eq")
    def hook(L):
        R = G.lab("rp")
        a(f"s_cmp_gt_u32 s{sX2}, s{sM}\ns_cbranch_scc1 {R}")
        def cold():
            a(f"{R}:")
            to_mode1(G, vF)
            a(f"v_mov_b32 v{vL}, {FL0 + C_R}\ns_branch {LP}")
        G.cold.append(cold)
    poll_lds(G, vFL, C_GO, 5, vT, pair=sX2, hook=hook)
    a(f"s_cmp_gt_u32 s{sE}, 3\ns_cbranch_scc1 {LQ}")
    xa_loads(G, KR, vK3, 2)
    xa_loads(G, KR + 8, vK3, 3)
    qloads()
    a("s_waitcnt vmcnt(5)")
    xa_build(G, KR, WF, vG, XA0 + 384 + 2048, 2)
    xa_build(G, KR + 8, KF, vG, XA0 + 384 + 3072, 3)
    a("s_waitcnt lgkmcnt(0)")
    lds_count(G, vFL, vONE, C_H)
    a(f"s_branch {LJ}")
    a(f"{LX}:")
    a(f"s_add_u32 s{sXU}, s{pWS}, {XU_OFF}\ns_addc_u32 s{sXU+1}, s{pWS+1}, 0\ns_add_u32 s{sXY}, s{pWS}, {XY_OFF}\ns_addc_u32 s{sXY+1}, s{pWS+1}, 0")
    a(f"v_lshl_add_u32 v{vT}, v0, 5, s{sSTG}")
    a(f"ds_write_b128 v{vT}, v[{PKU}:{PKU+3}]\nds_write_b128 v{vT}, v[{PKU+4}:{PKU+7}] offset:16")
    a(f"v_and_b32 v{vT+1}, 3, v0\nv_mul_u32_u24 v{vG}, 24, v{vT+1}\nv_sub_u32 v{vT}, v{vT}, v{vG}")
    for k in range(4):
        a(f"ds_read_b64 v[{KF+2*k}:{KF+2*k+1}], v{vT} offset:{32*k}")
    a(f"v_mul_u32_u24 v{vG}, 48, v{vT+1}\nv_sub_u32 v{vG}, v{vX}, v{vG}\nv_mov_b32 v{vK3}, s{sTAG}")
    for k in range(4):
        a(f"s_waitcnt lgkmcnt({3-k})")
        for d in (0, 1):
            a(f"v_lshl_or_b32 v{WF+4*k+2*d}, v{KF+2*k+d}, 16, v{vK3}\nv_and_or_b32 v{WF+4*k+2*d+1}, v{KF+2*k+d}, s47, v{vK3}")
        a(f"buffer_store_dwordx4 v[{WF+4*k}:{WF+4*k+3}], v{vG}, s[{sXU}:{sXU+3}], 0 offen offset:{64*k} sc1")
    G.stamp(3, 6)
    poll_lds(G, vFL, C_GO, 5, vT, sleep=2, pair=sX2)
    a(f"s_cmp_gt_u32 s{sX2}, 0\ns_cselect_b32 s{sM}, 1, 0\ns_cselect_b32 s{sF}, s{sN}, s{sF}\ns_cselect_b32 s{sT0}, {UOFF}, 0\ns_add_u32 s{sGB}, s{sGB}, s{sT0}")
    a(f"{LQ}:")
    E2 = G.lab("e2q")
    qloads()
    a(f"{LJ}:")
    a("s_setprio 0")
    QF, DF = KF, WF
    a("s_waitcnt vmcnt(4)")
    for d in range(2):
        a(f"v_lshlrev_b32 v{DF+2*d}, 16, v{DR+d}\nv_and_b32 v{DF+2*d+1}, s47, v{DR+d}")
    for r in range(4):
        for d in range(2):
            ks = KS + 4 * r + 2 * d
            a(f"v_pk_mul_f32 v[{ks}:{ks+1}], v[{ks}:{ks+1}], v[{DF+2*d}:{DF+2*d+1}]")
    a("s_waitcnt vmcnt(0)")
    for r in range(4):
        for d in range(2):
            a(f"v_lshlrev_b32 v{QF+4*r+2*d}, 16, v{QR+2*r+d}\nv_and_b32 v{QF+4*r+2*d+1}, s47, v{QR+2*r+d}")
    for r in range(4):
        for d in range(2):
            ks, q = KS + 4 * r + 2 * d, QF + 4 * r + 2 * d
            a(f"v_pk_mul_f32 v[{ks}:{ks+1}], v[{ks}:{ks+1}], v[{q}:{q+1}]")
    G.stamp(4)
    YR, YF = 16, 24
    LY, LZ = G.lab("ey"), G.lab("ez")
    a(f"s_lshl_b32 s{sT0}, s{sE}, 7\ns_add_u32 s{sX2}, s{sT0}, s{sGB}\ns_add_u32 s{sX2}, s{sX2}, {L_Y1}")
    a(f"s_lshl_b32 s{sLR}, s{sSIG}, 2\ns_add_u32 s{sLR}, s{sLR}, s{sDGO}")
    poll_line(G, vL4, sX2, 0xffffffff, vT, (f"s{sLR}", 8), 32)
    G.stamp(5)
    a(f"s_cmp_eq_u32 s{sE}, 8\ns_cbranch_scc1 {LY}")
    a(f"buffer_load_dwordx4 v[{YR}:{YR+3}], v{vX}, s[{sXY}:{sXY+3}], 0 offen sc1")
    a(f"buffer_load_dwordx4 v[{YR+4}:{YR+7}], v{vX}, s[{sXY}:{sXY+3}], 0 offen offset:16 sc1")
    a("s_waitcnt vmcnt(0)")
    a(f"{LZ}:")
    def cold_y():
        a(f"{LY}:")
        tagged_loads(G, 4, 24, vX, sXY, lambda k: (0, 16 * k), vT)
        a(f"s_mov_b32 s{sT0}, 0x07060302")
        for m in range(8):
            a(f"v_perm_b32 v{YR+m}, v{25+2*m}, v{24+2*m}, s{sT0}")
        a(f"s_branch {LZ}")
    G.cold.append(cold_y)
    G.stamp(6)
    transpose4(G, [YR + 2 * j for j in range(4)])
    for c in range(4):
        for d in range(2):
            a(f"v_lshlrev_b32 v{YF+8*d+c}, 16, v{YR+2*c+d}\nv_and_b32 v{YF+8*d+4+c}, s47, v{YR+2*c+d}")
    for r in range(4):
        for d in range(2):
            ks, q, y = KS + 4 * r + 2 * d, QF + 4 * r + 2 * d, YF + 4 * r + 2 * d
            a(f"v_pk_fma_f32 v[{ks}:{ks+1}], v[{q}:{q+1}], v[{y}:{y+1}], v[{ks}:{ks+1}]")
        for d in range(2):
            ks = KS + 4 * r + 2 * d
            a(f"v_cvt_pk_bf16_f32 v{PKU+2*r+d}, v{ks}, v{ks+1}")
        a(f"buffer_store_dwordx2 v[{PKU+2*r}:{PKU+2*r+1}], v{vO1 if r < 2 else vO2}, s[{sOUT}:{sOUT+3}], 0 offen offset:{(r&1)*RS_OUT} {o.out_flag}")
    finish(G)

    a("L_Cm:")
    a("s_setprio 2")
    G.stamp(1, 3)
    ctl_srd(G)
    misc_srd(G)
    a(f"s_mov_b32 s{sJ}, s46\ns_mov_b32 s{sCOL}, s47")
    a(f"s_mul_i32 s{sX2}, s{sJ}, {XA_SZ}\ns_mul_i32 s{sX3}, s{sJ}, {U_SZ}\ns_add_u32 s{sX3}, s{sX3}, {U0}")
    for i in range(4): a(f"v_mov_b32 v{cZ+i}, 0")
    a(f"v_lshl_add_u32 v{cHA}, v0, 4, s{sX2}")
    for p in range(4):
        a(f"ds_write_b128 v{cHA}, v[{cZ}:{cZ+3}] offset:{XA0 + p*PLANE}")
    a(f"v_lshl_add_u32 v{cHB}, v0, 4, s{sX3}")
    a(f"ds_write_b128 v{cHB}, v[{cZ}:{cZ+3}] offset:{U_SZ-1024}")
    a(f"v_and_b32 v{cT}, 3, v0\nv_mul_u32_u24 v{cA}, {PLANE}, v{cT}")
    a(f"v_bfe_u32 v{cB}, v0, 2, 2\nv_lshl_add_u32 v{cA}, v{cB}, 7, v{cA}")
    a(f"v_lshrrev_b32 v{cB}, 4, v0\nv_lshl_add_u32 v{cA}, v{cB}, 4, v{cA}")
    a(f"s_lshl_b32 s{sT0}, s{sJ}, 7")
    a(f"s_add_u32 s{sT1}, s{sT0}, {XA0 + 4*XA_SZ}\nv_add_u32 v{cAX}, s{sT1}, v{cA}\nv_add_u32 v{cA}, s{sX2}, v{cA}")
    a(f"v_lshlrev_b32 v{cB}, 4, v{cB}\nv_and_b32 v{cBX}, 15, v0\nv_lshlrev_b32 v{cBX}, 3, v{cBX}\nv_sub_u32 v{cB}, v{cB}, v{cBX}\nv_add_u32 v{cB}, 120, v{cB}")
    a(f"s_add_u32 s{sT1}, s{sT0}, {U0 + 4*U_SZ}\nv_add_u32 v{cBX}, s{sT1}, v{cB}\nv_add_u32 v{cB}, s{sX3}, v{cB}")
    a(f"s_and_b32 s{sTS}, s{sR}, 1\ns_lshl_b32 s{sT2}, s{sJ}, 5\ns_add_u32 s{sCOL}, s{sCOL}, s{sT2}")
    a(f"v_lshrrev_b32 v{cY}, 2, v0")
    blk_addr(G, cY, cU, sSIG, RS_OUT, sCOL)
    a(f"v_lshl_add_u32 v{cY}, v{cT}, 3, v{cY}")
    a(f"s_lshl_b32 s{sT0}, s{sJ}, 10\ns_add_u32 s{sT0}, s{sT0}, {SCR0}\nv_lshl_add_u32 v{cSW}, v0, 4, s{sT0}")
    a(f"v_mov_b32 v{cFL}, {FL0}\nv_mov_b32 v{cONE}, 1\nv_lshlrev_b32 v{cL4}, 2, v0\nv_lshlrev_b32 v{c128}, 7, v0")
    a(f"v_lshrrev_b32 v{cU}, 1, v0\nv_sub_u32 v{cU}, 31, v{cU}")
    blk_addr(G, cU, cT, sSIG, RS_OUT, sCOL)
    a(f"v_and_b32 v{cT}, 1, v0\nv_lshl_add_u32 v{cU}, v{cT}, 4, v{cU}")
    a(f"s_lshl_b32 s{sX4}, s{sJ}, 7\ns_add_u32 s{sX4}, s{sX4}, s{sGB}\ns_add_u32 s{sX4}, s{sX4}, {L_U1}")
    npf = 1 if o.prefill else 0
    a(f"s_waitcnt vmcnt({2+npf})")
    G.stamp(-1, 4)
    xa_build(G, 64, 80, cHA, XA0 + 384, 0)
    a(f"s_waitcnt vmcnt({npf})")
    xa_build(G, 72, 104, cHA, XA0 + 384 + 1024, 1)
    get_nonce(G, cFL, cT, cF)
    G.stamp(-1, -1)
    def detect(R):
        SW, NX = G.lab("dsw"), G.lab("dnx")
        a("s_mov_b64 exec, -1")
        a(f"ds_read_b32 v{cT}, v{cFL} offset:{F_M}\ns_waitcnt lgkmcnt(0)\nv_readfirstlane_b32 s{sT0}, v{cT}")
        a(f"s_cmp_eq_u32 s{sT0}, 0\ns_cbranch_scc0 {SW}")
        a(f"s_cmp_eq_u32 s{sJ}, 0\ns_cbranch_scc0 {NX}")
        a(f"s_sub_u32 s{sT2}, s{sF}, s{sN}\ns_sub_u32 s{sT2}, s{sT2}, 1\ns_mul_i32 s{sT3}, s{sT2}, s{sT2}\ns_lshl_b32 s{sT3}, s{sT3}, 16")
        a(f"s_lshl_b32 s{sT2}, s{sT2}, 8\ns_add_u32 s{sT2}, s{sT2}, s{sT3}\ns_add_u32 s{sT2}, s{sT2}, 1\ns_lshl_b32 s{sT3}, s{sT2}, 5")
        a(f"s_cmp_eq_u32 s{sCNT}, 64\ns_cselect_b32 s{sT2}, s{sT2}, 0")
        a(f"s_mov_b64 exec, 1\nv_mov_b32 v{cT}, s{sT2}")
        a(f"buffer_atomic_add v{cT}, off, s[{sDG}:{sDG+3}], s{sDGO} sc0 sc1")
        a("s_waitcnt vmcnt(0)")
        a(f"v_readfirstlane_b32 s{sT0}, v{cT}\ns_mov_b64 exec, -1\ns_add_u32 s{sT0}, s{sT0}, s{sT2}")
        if not o.force_mode1:
            a(f"s_cmp_eq_u32 s{sT0}, s{sT3}\ns_cbranch_scc1 {NX}")
        a(f"s_and_b32 s{sT0}, s{sT0}, 0xff\ns_cmp_ge_u32 s{sT0}, 32\ns_cbranch_scc0 {NX}")
        a(f"ds_write_b32 v{cFL}, v{cONE} offset:{F_M}")
        a(f"{SW}:")
        to_mode1(G, cF)
        a(f"s_add_u32 s{sX4}, s{sX4}, {UOFF}\ns_mov_b32 s{sLR}, s{sN}")
        a(f"{NX}:")
    if o.force_mode1:
        a(f"s_add_u32 s{sF}, s{sF}, 0")
    if not o.iso:
        if o.force_mode1:
            a(f"s_xor_b32 s{sLR}, s{sF}, 0x40000000")
        poll_line(G, cL4, sX4, 0xffffffff, cT, (f"s{sDGO}", 4), 32, sleep=0, detect=detect, scmp=(sLR if o.force_mode1 else sF))
    G.stamp(-1, 5)
    u_dma(G, cU, sXU, sX3, (3, 2, 1, 0))
    if o.golate: a("s_waitcnt vmcnt(0)")
    lds_count(G, cFL, cONE, C_GO)
    a(f"s_cmp_lg_u32 s{sM}, 0\ns_cselect_b64 vcc, -1, 0")
    a(f"s_cmp_eq_u32 s{sTS}, 0")
    a("s_waitcnt vmcnt(2) lgkmcnt(0)")
    G.stamp(2, 6)
    a("s_cbranch_scc0 L_C1")
    st0 = c_stream(G, 0)
    a("L_C1:")
    st1 = c_stream(G, 1)
    a("L_exit:")
    a("s_endpgm")

    head = open("cdna_kernels/" + NAME + ".s.ref").read().split("\n")
    hdr = [l for l in head if l.startswith("; Kernarg") or l.startswith(";   offset")]
    out = hdr + [f"; @launch grid=(256,1,1) block=(896,1,1) lds={LDS_SZ}",
                 '.amdgcn_target "amdgcn-amd-amdhsa--gfx950"', ".text", f".globl {K}", ".p2align 8", f".type {K},@function"]
    out += G.L
    out += ['.section .rodata,"a"', ".p2align 6", f".amdhsa_kernel {K}",
            "  .amdhsa_next_free_vgpr 128", "  .amdhsa_next_free_sgpr 102", "  .amdhsa_accum_offset 128",
            "  .amdhsa_group_segment_fixed_size 0", "  .amdhsa_kernarg_size 120", "  .amdhsa_user_sgpr_count 2",
            "  .amdhsa_user_sgpr_kernarg_segment_ptr 1", "  .amdhsa_system_sgpr_workgroup_id_x 1",
            "  .amdhsa_float_denorm_mode_32 3", ".end_amdhsa_kernel", ""]
    print("stream stats (mfma, ds, max/gap, gaps>1):", st0, st1, file=sys.stderr)
    return "\n".join(out)


if __name__ == "__main__":
    ap = argparse.ArgumentParser()
    ap.add_argument("-o", default="cdna_kernels/" + NAME + ".s")
    ap.add_argument("opts", nargs="*")
    args = ap.parse_args()
    o = Opt()
    for kv in args.opts:
        k, v = kv.split("=", 1)
        cur = getattr(o, k)
        setattr(o, k, (v not in ("0", "False", "")) if isinstance(cur, bool) else type(cur)(v))
    open(args.o, "w").write(gen(o))
```

```python
import sys, argparse

NAME = "concat_heads__ssm_conv_h3__ssm_conv_h3__prompt"

RS_IN = 1152
RS_OUT = 2304
TENS = 2359296
OUTB = 4718592
PLANE = 4640
XA_SZ = 4 * PLANE
UP1 = 4224
U_SZ = 2 * UP1
XA0 = 0
U0 = 5 * XA_SZ
STG_SZ = 5120
STGX = U0 + 5 * U_SZ
YB0 = STGX
SCR0 = YB0 + 8192
XT0 = SCR0 + 16384
FL0 = XT0 + 2048
LDS_SZ = FL0 + 64
F_N, F_V, C_GO, F_M, C_U0, C_U1, C_R, C_H, F_X, F_U2, F_YX, C_P, C_Y1, C_Y2, C_YX = [4 * i for i in range(15)]
CT_OFF = 16 << 20
L_U1, L_U2, L_Y1, L_Y2 = 0, 2048, 4096, 6144
XU_OFF, XY_OFF = 10 << 20, 12 << 20
UOFF = 8192
GSTRIDE = 16384
TILE_STEP = 256 * RS_OUT
CAP_G = 1 << 15
CAP_L = 1 << 19
W_S, W_C = 0, 10


class Opt:
    stamps = False
    force_mode1 = False
    ld_nt = "nt"
    out_flag = ""
    lead = 12
    prefetch_code = True
    prefill = True
    sleep = 0
    cyc = False
    iso = False
    dspan = False
    early = False
    order = "ax123"
    ya = 5
    uxearly = True
    pfx = False
    kvfirst = True
    u2first = True
    x_noaux = 0
    split3 = False
    defer = True
    golate = False
    y1wait = 25
    y1pos = 90
    w3 = False
    w1only = False
    noh = False
    nohalo = False
    h2early = False
    u2early = False
    mid = False
    hiprio = 3
    x_noh2 = False
    x_nogate = False
    x_nou2 = False
    x_nock = False
    x_noq = False
    k_nt = "nt"
    h_nt = "nt"
    yxack = True
    cprio = 2
    eprio = 0
    sprio = 3
    nopk = True
    tl_fl = "sc1"
    noq = False
    pf_nt = ""
    dma_fl = "sc1"
    win = True


STAMP_REGS = [88, 90, 92, 94, 96, 98, 36, 38]


class Gen:
    def __init__(self, o):
        self.o = o
        self.L = []
        self.uid = 0
        self.cold = []
    def a(self, s):
        for ln in s.split("\n"):
            self.L.append("    " + ln.strip() if not ln.strip().endswith(":") else ln.strip())
    def flush_cold(self):
        while self.cold:
            c, self.cold = self.cold, []
            for fn in c: fn()
    def lab(self, base):
        self.uid += 1
        return f"L_{base}_{self.uid}"
    def srd(self, d, lo, nrec):
        if lo is not None and lo != d:
            self.a(f"s_mov_b64 s[{d}:{d+1}], s[{lo}:{lo+1}]")
        self.a(f"s_mov_b32 s{d+2}, {nrec}\ns_mov_b32 s{d+3}, 0x00020000")
    def stamp(self, i, early=None, mid=None):
        if self.o.early: i = -1 if early is None else early
        if self.o.mid and i != 7: i = -1 if mid is None else mid
        if (self.o.stamps or self.o.dspan) and i >= 0:
            r = STAMP_REGS[i]
            self.a(f"{'s_memtime' if self.o.cyc else 's_memrealtime'} s[{r}:{r+1}]")


sWV, sG, sR, sH, sGQ = 3, 4, 5, 6, 7
sT0, sT1, sT2, sT3 = 8, 9, 10, 11
sM, sEV, sCNT, sSIG = 12, 13, 14, 15
pOUT, pDBG, pWS = 40, 42, 44
sK, sV, sQ, sW, sD, sXU, sXY, sOUT, sCT, sHH = 48, 52, 56, 60, 64, 68, 72, 76, 80, 84
sDG = 60
sROW0, sLC, sCOL, sLR, sCHJ, sX1, sX2, sX3, sX4, sF, sN = 16, 17, 18, 19, 20, 21, 22, 23, 24, 26, 27
sWMY, sTS, sGB, sDGO, sJ = 28, 32, 33, 34, 35
sTAG = 25
sE, sSTG = 100, 101


def poll_line(G, vl, soff, w, vt, cnt, n, sleep=None, scmp=sF, detect=None):
    L, D, C, R = G.lab("pg"), G.lab("pgd"), G.lab("pgc"), G.lab("pgr")
    G.a(f"s_mov_b32 s{sCNT}, 0")
    G.a(f"{L}:")
    G.a(f"buffer_load_dwordx{w} v[{vt}:{vt+w-1}], v{vl}, s[{sCT}:{sCT+3}], s{soff} offen sc1")
    G.a(f"s_add_u32 s{sCNT}, s{sCNT}, 1")
    G.a("s_waitcnt vmcnt(0)")
    G.a(f"v_xor_b32 v{vt}, s{scmp}, v{vt}")
    for k in range(1, w):
        G.a(f"v_bitop3_b32 v{vt}, v{vt}, v{vt+k}, s{scmp} bitop3:0xf6")
    G.a(f"v_cmp_ne_u32 vcc, 0, v{vt}")
    G.a(f"s_cbranch_vccz {D}")
    sl = G.o.sleep if sleep is None else sleep
    if sl:
        G.a(f"s_sleep {sl}")
    G.a(f"s_and_b32 s{sT0}, s{sCNT}, 63\ns_cbranch_scc1 {L}")
    G.a(f"s_branch {C}")
    G.a(f"{D}:")
    def cold():
        G.a(f"{C}:")
        R0 = G.lab("pgx") if detect else R
        G.a(f"s_cmp_eq_u32 s{sM}, 0\ns_cbranch_scc1 {R0}")
        G.a(f"s_mov_b64 exec, 1\nv_mov_b32 v{vt}, 0")
        G.a(f"buffer_atomic_add v{vt}, off, s[{sDG}:{sDG+3}], {cnt[0]} offset:{cnt[1]} sc0 sc1")
        G.a(f"s_waitcnt vmcnt(0)")
        G.a(f"v_readfirstlane_b32 s{sT0}, v{vt}\ns_mov_b64 exec, -1")
        G.a(f"s_cmp_ge_u32 s{sT0}, {n}\ns_cbranch_scc1 {D}")
        G.a(f"{R}:")
        G.a(f"s_cmp_lt_u32 s{sCNT}, {CAP_G}\ns_cbranch_scc1 {L}\ns_branch {D}")
        if detect:
            G.a(f"{R0}:")
            detect(R)
            G.a(f"s_branch {R}")
    G.cold.append(cold)


def poll_lds(G, vfl, off, expected, vt, sleep=1, pair=None, hook=None):
    L, D = G.lab("pl"), G.lab("pld")
    G.a(f"s_mov_b32 s{sCNT}, 0")
    G.a(f"{L}:")
    if pair is None:
        G.a(f"ds_read_b32 v{vt}, v{vfl} offset:{off}")
    else:
        G.a(f"ds_read_b64 v[{vt}:{vt+1}], v{vfl} offset:{off}")
    G.a(f"s_add_u32 s{sCNT}, s{sCNT}, 1")
    G.a("s_waitcnt lgkmcnt(0)")
    G.a(f"v_readfirstlane_b32 s{sT0}, v{vt}")
    if pair is not None:
        G.a(f"v_readfirstlane_b32 s{pair}, v{vt+1}")
    if hook: hook(L)
    G.a(f"s_cmp_ge_u32 s{sT0}, {expected}")
    G.a(f"s_cbranch_scc1 {D}")
    G.a(f"s_sleep {sleep}")
    G.a(f"s_cmp_lt_u32 s{sCNT}, {CAP_L}")
    G.a(f"s_cbranch_scc1 {L}")
    G.a(f"{D}:")


def get_nonce(G, vfl, vt, vf):
    L, D = G.lab("gn"), G.lab("gnd")
    G.a(f"s_getreg_b32 s{sF}, hwreg(HW_REG_XCC_ID, 0, 4)\ns_mov_b32 s{sCNT}, 0")
    G.a(f"{L}:")
    G.a(f"ds_read_b64 v[{vt}:{vt+1}], v{vfl} offset:{F_N}")
    G.a(f"s_add_u32 s{sCNT}, s{sCNT}, 1")
    G.a("s_waitcnt lgkmcnt(0)")
    G.a(f"v_readfirstlane_b32 s{sTAG}, v{vt+1}")
    G.a(f"v_readfirstlane_b32 s{sN}, v{vt}")
    G.a(f"s_cmp_ge_u32 s{sTAG}, 1")
    G.a(f"s_cbranch_scc1 {D}")
    G.a("s_sleep 1")
    G.a(f"s_cmp_lt_u32 s{sCNT}, {CAP_L}")
    G.a(f"s_cbranch_scc1 {L}")
    G.a(f"{D}:")
    G.a(f"s_add_u32 s{sF}, s{sF}, s{sN}\ns_add_u32 s{sF}, s{sF}, 1\nv_mov_b32 v{vf}, s{sF}\ns_and_b32 s{sTAG}, s{sTAG}, 0xffff")


def to_mode1(G, vf):
    G.a(f"s_mov_b32 s{sM}, 1\ns_mov_b32 s{sF}, s{sN}\nv_mov_b32 v{vf}, s{sN}")
    G.a(f"s_add_u32 s{sGB}, s{sGB}, {UOFF}")
    G.a(f"s_mov_b64 s[{sXU}:{sXU+1}], s[{pWS}:{pWS+1}]")
    G.a(f"s_add_u32 s{sXY}, s{pWS}, {OUTB}\ns_addc_u32 s{sXY+1}, s{pWS+1}, 0")


def adopt_mode(G, sm, vf):
    A, B = G.lab("am"), G.lab("amb")
    G.a(f"s_cmp_gt_u32 s{sm}, s{sM}\ns_cbranch_scc1 {A}")
    G.a(f"{B}:")
    def cold():
        G.a(f"{A}:")
        to_mode1(G, vf)
        G.a(f"s_branch {B}")
    G.cold.append(cold)


def signal(G, vf, vrep, sslot, line, w, cnt, vt):
    A, B = G.lab("ma"), G.lab("mb")
    G.a(f"s_mov_b64 exec, 15")
    G.a(f"s_cmp_eq_u32 s{sM}, 0\ns_cbranch_scc0 {A}")
    G.a(f"buffer_store_dword v{vf}, v{vrep}, s[{sCT}:{sCT+3}], s{sslot} offen")
    G.a(f"{B}:")
    G.a("s_mov_b64 exec, -1")
    def cold():
        G.a(f"{A}:")
        G.a(f"s_mov_b64 exec, 1\nv_mov_b32 v{vt}, 1")
        G.a(f"buffer_atomic_add v{vt}, off, s[{sDG}:{sDG+3}], s{sDGO} offset:{cnt} sc0 sc1")
        G.a("s_waitcnt vmcnt(0)")
        G.a(f"v_readfirstlane_b32 s{sT0}, v{vt}")
        G.a(f"s_cmp_eq_u32 s{sT0}, {64*w-1}\ns_cbranch_scc0 {B}")
        G.a(f"s_mov_b64 exec, -1\ns_add_u32 s{sT1}, s{sGB}, {line}")
        G.a(f"v_lshlrev_b32 v{vt+4}, 4, v0")
        for k in range(4): G.a(f"v_mov_b32 v{vt+k}, v{vf}")
        for fl in (" sc1", ""):
            for k in range(w):
                G.a(f"buffer_store_dwordx4 v[{vt}:{vt+3}], v{vt+4}, s[{sCT}:{sCT+3}], s{sT1} offen offset:{1024*k}{fl}")
        G.a(f"s_branch {B}")
    G.cold.append(cold)


def tagged_loads(G, n, r0, vaddr, srd, offs, vt, after=None):
    L, D, C = G.lab("tl"), G.lab("tld"), G.lab("tlc")
    def loads():
        for k in range(n):
            so, io = offs(k)
            if so: G.a(f"s_mov_b32 s{sT1}, {so}")
            G.a(f"buffer_load_dwordx4 v[{r0+4*k}:{r0+4*k+3}], v{vaddr}, s[{srd}:{srd+3}], {'s%d' % sT1 if so else 0} offen offset:{io} {G.o.tl_fl}")
    G.a(f"s_mov_b32 s{sCNT}, 0")
    loads()
    nyoung = after() if after else 0
    G.a(f"s_waitcnt vmcnt({nyoung})")
    if after: G.stamp(-1, 5, 2)
    G.a(f"{L}:")
    G.a(f"v_xor_b32 v{vt}, s{sTAG}, v{r0}")
    for k in range(1, 4 * n):
        G.a(f"v_bitop3_b32 v{vt}, v{vt}, v{r0+k}, s{sTAG} bitop3:0xf6")
    G.a(f"v_and_b32 v{vt}, 0xffff, v{vt}")
    G.a(f"v_cmp_ne_u32 vcc, 0, v{vt}")
    G.a(f"s_cbranch_vccnz {C}")
    G.a(f"{D}:")
    def cold():
        G.a(f"{C}:")
        G.a(f"s_add_u32 s{sCNT}, s{sCNT}, 1\ns_cmp_lt_u32 s{sCNT}, {CAP_G}\ns_cbranch_scc0 {D}")
        R = G.lab("tlr")
        G.a(f"s_and_b32 s{sT0}, s{sCNT}, 63\ns_cbranch_scc1 {R}\nbuffer_inv sc1\n{R}:")
        G.a("s_sleep 2")
        loads()
        G.a(f"s_waitcnt vmcnt(0)\ns_branch {L}")
    G.cold.append(cold)


def ctl_srd(G):
    G.a(f"s_add_u32 s{sCT}, s{pWS}, {CT_OFF}\ns_addc_u32 s{sCT+1}, s{pWS+1}, 0")
    G.srd(sCT, None, 9 * GSTRIDE)
    G.a(f"s_add_u32 s{sGB}, s{sG}, 1\ns_lshl_b32 s{sGB}, s{sGB}, 14")


def misc_srd(G):
    G.srd(sDG, pDBG, 256)
    G.a(f"s_mul_i32 s{sDGO}, s{sGQ}, 20\ns_lshl_b32 s{sT0}, s{sH}, 7\ns_add_u32 s{sDGO}, s{sDGO}, s{sT0}\ns_add_u32 s{sDGO}, s{sDGO}, 8")
    G.srd(sXU, pOUT, OUTB)
    G.srd(sXY, pOUT, OUTB)
    G.a(f"s_mov_b32 s{sM}, 0")


def chan_of(G, sj, dst):
    G.a(f"s_and_b32 s{sT1}, s{sR}, 12\ns_add_u32 s{sT1}, s{sT1}, s{sj}\ns_lshl_b32 s{sT1}, s{sT1}, 2\ns_and_b32 s{sT2}, s{sR}, 3\ns_add_u32 s{sT1}, s{sT1}, s{sT2}")
    G.a(f"s_lshr_b32 s{sT2}, s{sR}, 4\ns_lshl_b32 s{sT3}, s{sGQ}, 1\ns_add_u32 s{sT2}, s{sT2}, s{sT3}\ns_lshl_b32 s{sT2}, s{sT2}, 6\ns_add_u32 s{dst}, s{sT1}, s{sT2}")


def inbox_of(G, dst, slr):
    G.a(f"s_lshr_b32 s{sT2}, s{sR}, 4\ns_lshl_b32 s{sT3}, s{sGQ}, 1\ns_add_u32 s{sT2}, s{sT2}, s{sT3}\ns_lshl_b32 s{sT2}, s{sT2}, 7")
    G.a(f"s_mul_i32 s{dst}, s{sH}, 1152\ns_add_u32 s{dst}, s{dst}, s{sT2}\ns_and_b32 s{slr}, s{sR}, 15")


def xbox_of(G, dst, se, slr):
    G.a(f"s_lshl_b32 s{se}, s{sGQ}, 5\ns_add_u32 s{se}, s{se}, s{sR}\ns_lshr_b32 s{se}, s{se}, 1")
    G.a(f"s_lshr_b32 s{sT1}, s{se}, 4\ns_lshl_b32 s{sT1}, s{sT1}, 2\ns_and_b32 s{sT2}, s{se}, 3\ns_add_u32 s{slr}, s{sT1}, s{sT2}")
    G.a(f"s_bfe_u32 s{sT1}, s{se}, {(2<<16)|2}\ns_lshl_b32 s{sT1}, s{sT1}, 6")
    G.a(f"s_lshl_b32 s{sT2}, s{sH}, 19\ns_add_u32 s{dst}, s{sT1}, s{sT2}")


def blk_addr(G, vd, vt, slr, rowb, scol):
    G.a(f"v_add_u32 v{vt}, s{slr}, v{vd}\nv_and_b32 v{vt}, 15, v{vt}\nv_lshl_add_u32 v{vd}, v{vd}, 4, v{vt}")
    G.a(f"v_mul_u32_u24 v{vd}, {rowb}, v{vd}\nv_add_u32 v{vd}, s{scol}, v{vd}")


def xa_loads(G, b, va, q):
    nt = G.o.h_nt
    if G.o.noh: return
    G.a(f"buffer_load_dwordx4 v[{b+2}:{b+5}], v{va}, s[{sHH}:{sHH+3}], 0 offen offset:{1024*q} {nt}")
    if q:
        G.a(f"s_mov_b64 exec, 1\nbuffer_load_dwordx2 v[{b}:{b+1}], v{va}, s[{sHH}:{sHH+3}], 0 offen offset:{1024*q-8} {nt}\ns_mov_b64 exec, -1")


def xa_build(G, b, t, vdst, off, q, plain=False):
    w = lambda i: b + 2 + i
    bc = "" if q else " bound_ctrl:0"
    G.a(f"v_mov_b32_dpp v{b}, v{w(2)} wave_shr:1 row_mask:0xf bank_mask:0xf{bc}")
    G.a(f"v_mov_b32_dpp v{b+1}, v{w(3)} wave_shr:1 row_mask:0xf bank_mask:0xf{bc}")
    G.a(f"ds_write_b128 v{vdst}, v[{b+2}:{b+5}] offset:{off + 3*PLANE}")
    for i in range(4):
        G.a(f"v_alignbit_b32 v{t+i}, v{w(i-1)}, v{w(i-2)}, 16")
    G.a(f"ds_write_b128 v{vdst}, v[{t}:{t+3}] offset:{off}")
    for i in range(4):
        G.a(f"v_alignbit_b32 v{t+4+i}, v{w(i)}, v{w(i-1)}, 16")
    G.a(f"ds_write_b128 v{vdst}, v[{t+4}:{t+7}] offset:{off + 2*PLANE}")
    if plain:
        for i in range(4): G.a(f"v_mov_b32 v{t+8+i}, v{w(i-1)}")
    else:
        G.a(f"v_pk_mov_b32 v[{t+8}:{t+9}], v[{b}:{b+1}], v[{b+2}:{b+3}] op_sel:[1,0]")
        G.a(f"v_pk_mov_b32 v[{t+10}:{t+11}], v[{b+2}:{b+3}], v[{b+4}:{b+5}] op_sel:[1,0]")
    G.a(f"ds_write_b128 v{vdst}, v[{t+8}:{t+11}] offset:{off + PLANE}")


def transpose4(G, regs):
    G.a("s_nop 1")
    for j in (0, 1):
        for d in (0, 1):
            G.a(f"v_permlane32_swap_b32 v{regs[j]+d}, v{regs[j+2]+d}")
    G.a("s_nop 1")
    for j in (0, 2):
        for d in (0, 1):
            G.a(f"v_permlane16_swap_b32 v{regs[j]+d}, v{regs[j+1]+d}")


def u_src(G, vd, vt, slr, scol):
    G.a(f"v_lshrrev_b32 v{vd}, 1, v0\nv_sub_u32 v{vd}, 31, v{vd}")
    blk_addr(G, vd, vt, slr, RS_OUT, scol)
    G.a(f"v_and_b32 v{vt}, 1, v0\nv_lshl_add_u32 v{vd}, v{vt}, 4, v{vd}")


def u_loads(G, r, vsrc, qs):
    for k, q in enumerate(qs):
        G.a(f"s_mov_b32 s{sT1}, {(3-q)*32*16*RS_OUT}")
        G.a(f"buffer_load_dwordx4 v[{r+4*k}:{r+4*k+3}], v{vsrc}, s[{sXU}:{sXU+3}], s{sT1} offen {G.o.dma_fl}")


def u_write(G, r, vdst, vdst1, q):
    G.a(f"ds_write_b128 v{vdst}, v[{r}:{r+3}] offset:{1024*q}")
    G.a(f"ds_write2_b64 v{vdst1}, v[{r}:{r+1}], v[{r+2}:{r+3}] offset0:{128*q if q < 2 else 128*(q-2)} offset1:{(128*q if q < 2 else 128*(q-2))+1}")


def u_pad(G, vt, vz, subase):
    G.a(f"v_lshlrev_b32 v{vt}, 3, v0\nv_cmp_lt_u32 vcc, 14, v0\nv_add_u32 v{vt}, {subase}, v{vt}\nv_add_u32 v{vt+1}, 4096, v{vt}")
    G.a(f"v_cndmask_b32 v{vt}, v{vt}, v{vt+1}, vcc")


def u_pad_write(G, vt, vz):
    G.a(f"s_mov_b32 exec_hi, 0\nds_write_b64 v{vt}, v[{vz}:{vz+1}] offset:4096\ns_mov_b32 exec_hi, -1")


def pk(G, op, d, x, y, z=None, force=False):
    if G.o.nopk and not force:
        for i in (0, 1):
            G.a(f"v_{op}_f32 v{d+i}, v{x+i}, v{y+i}" + (f", v{z+i}" if z is not None else ""))
    else:
        G.a(f"v_pk_{op}_f32 v[{d}:{d+1}], v[{x}:{x+1}], v[{y}:{y+1}]" + (f", v[{z}:{z+1}]" if z is not None else ""))


def lds_count(G, vfl, vone, off):
    G.a(f"s_mov_b64 exec, 1\nds_add_u32 v{vfl}, v{vone} offset:{off}\ns_mov_b64 exec, -1")


def finish(G):
    if G.o.dspan:
        G.a("s_waitcnt vmcnt(0)")
        G.stamp(7, 7)
        G.srd(sK, pDBG, 256)
        D = G.lab("ds")
        G.a(f"s_waitcnt lgkmcnt(0)\ns_and_b32 s{sT0}, s2, 0x78\ns_cbranch_scc1 {D}")
        G.a(f"s_cmp_eq_u32 s{sWV}, 10\ns_cselect_b32 s{sT1}, 0, 32\ns_cselect_b32 s{sT0}, 1, 0\ns_cmp_eq_u32 s{sWV}, 9\ns_cselect_b32 s{sT0}, 1, s{sT0}\ns_cmp_eq_u32 s{sT0}, 1\ns_cbranch_scc0 {D}")
        G.a("s_not_b32 s90, s88")
        G.a("s_mov_b64 exec, 1")
        for i in range(8):
            G.a(f"v_mov_b32 v8, s{STAMP_REGS[i]}\nbuffer_atomic_umax v8, off, s[{sK}:{sK+3}], s{sT1} offset:{4*i} sc1")
        G.a(f"{D}:")
        G.a("s_endpgm")
        G.flush_cold()
        return
    if G.o.stamps:
        G.a("s_waitcnt vmcnt(0)")
        G.stamp(7, 7)
        G.a(f"s_add_u32 s{sT2}, s{pWS}, {64<<20}\ns_addc_u32 s{sT3}, s{pWS+1}, 0")
        G.srd(sK, sT2, 1 << 20)
        G.a(f"s_lshl_b32 s{sT0}, s2, 4\ns_add_u32 s{sT0}, s{sT0}, s{sWV}\ns_lshl_b32 s{sT0}, s{sT0}, 5")
        G.a("s_waitcnt lgkmcnt(0)")
        for i in range(8):
            G.a(f"v_mov_b32 v{8+i}, s{STAMP_REGS[i]}")
        G.a("s_mov_b64 exec, 1")
        G.a(f"buffer_store_dwordx4 v[8:11], off, s[{sK}:{sK+3}], s{sT0}")
        G.a(f"buffer_store_dwordx4 v[12:15], off, s[{sK}:{sK+3}], s{sT0} offset:16")
    G.a("s_endpgm")
    G.flush_cold()


class Stream:
    def __init__(self, G, slots, lead):
        self.G, self.slots, self.lead = G, slots, lead
        self.mf = []
        self.side = {}
        self.busy = {}
        self.gate = {}
    def mfma(self, acc, A, B, zero):
        self.mf.append((acc, A, B, zero))
    def at(self, pos, fn, ds=0):
        self.side.setdefault(pos, []).append(fn)
        self.busy[pos] = self.busy.get(pos, 0) + ds
    def spread(self, pos, lines, step=1):
        for ln in lines:
            self.at(pos, lambda S_, ln=ln: S_.G.a(ln))
            pos += step
        return pos
    def emit(self, loadtext):
        G = self.G
        n = len(self.mf)
        first, last, order = {}, {}, []
        for i, (acc, A, B, z) in enumerate(self.mf):
            for k in (A, B):
                if k not in first:
                    first[k] = i; order.append(k)
                last[k] = i
        free = [0] * len(self.slots)
        sched = {}
        cnt = [self.busy.get(i, 0) for i in range(n + 1)]
        slot_of = {}
        prev = 0
        for k in order:
            s = min(range(len(free)), key=lambda j: free[j])
            ops = loadtext(k, self.slots[s])
            lo = max(self.gate.get(k[0:2] + (k[2] >> 2,), 0), free[s], prev)
            slot_of[k] = self.slots[s]
            for op in ops:
                p = max(lo, first[k] - self.lead)
                hi = max(p, first[k] - 4)
                q = min(range(p, hi + 1), key=lambda x: (cnt[x], x))
                p = min(q, first[k])
                assert p >= lo, (k, p, lo)
                cnt[p] += 1
                sched.setdefault(p, []).append((k, op))
                prev = lo = p
            free[s] = last[k] + 1
        self.nds = 0
        self.done = 0
        ready = {}
        for i in range(n + 1):
            for fn in self.side.get(i, []):
                fn(self)
            for k, op in sched.get(i, []):
                G.a(op); self.nds += 1; ready[k] = self.nds
            if i == n: break
            acc, A, B, z = self.mf[i]
            self.need(max(ready[A], ready[B]))
            a_, b_ = slot_of[A], slot_of[B]
            c = "0" if z else f"v[{acc}:{acc+3}]"
            G.a(f"v_mfma_f32_16x16x32_bf16 v[{acc}:{acc+3}], v[{a_}:{a_+3}], v[{b_}:{b_+3}], {c}")
        self.stats = (n, sum(cnt), max(cnt), sum(1 for c in cnt if c > 1))
    def ds(self, text):
        self.G.a(text); self.nds += 1
        return self.nds
    def need(self, idx):
        if idx > self.done:
            out = min(self.nds - idx, 15)
            self.G.a(f"s_waitcnt lgkmcnt({out})")
            self.done = self.nds - out


cA, cB, cAX, cBX, cY, cYX, cSW, cSR, cFL, cONE, c128, cT, cF, cL4 = 1, 2, 3, 4, 5, 6, 7, 8, 9, 10, 11, 12, 14, 15


def c_stream(G, ts):
    o = G.o
    ACC = 16
    PK = 48
    ACX = 56
    slots = [72 + 4 * i for i in range(14)]
    S = Stream(G, slots, o.lead)
    acc = lambda t: ACC + 4 * t
    S.nst = 0
    seen = set()
    def add(ph, ch, pairs, ys, accf):
        for y in ys:
            for (x, b) in pairs:
                r = accf(x + b)
                S.mfma(r, (ph, "A", x, y, ch), (ph, "B", b, y, ch), (r, ch) not in seen)
                seen.add((r, ch))
    def loadtext(k, r):
        ph, typ, i, y, ch = k
        if typ == "A":
            return [f"ds_read_b128 v[{r}:{r+3}], v{cAX if ch else cA} offset:{512*i + 64*y}"]
        off = 512 * (7 - i) + 64 * y
        v = cBX if ch else cB
        return [f"ds_read_b128 v[{r}:{r+3}], v{v} offset:{off}"]
    p1 = [(x, b) for x in range(4) for b in range(4)]
    p1.sort(key=lambda p: (max(p), p[0] + p[1]))
    p2 = [(4, 0), (5, 0), (4, 1), (6, 0), (5, 1), (4, 2), (7, 0), (6, 1), (5, 2), (4, 3)]
    p3 = [(x, b) for (b, x) in p2]
    tiles = [0, 3, 4, 7] if ts == 0 else [1, 2, 5, 6]
    px = [(x, b) for x in range(4, 8) for b in range(4) if x + b in tiles] + \
         [(x, b) for x in range(4) for b in range(4) if x + b in tiles] + \
         [(x, b) for x in range(4) for b in range(4, 8) if x + b in tiles]
    assert len(px) == 18
    use = []
    for (x, b) in px:
        if x + b not in use: use.append(x + b)
    accx = lambda t: ACX + 4 * use.index(t)
    beg, end = {}, {}
    for ph in o.order:
        beg[ph] = len(S.mf)
        if ph == "a": add(1, 0, p1, range(o.ya), acc)
        if ph == "1": add(1, 0, p1, range(o.ya if "a" in o.order else 0, 8), acc)
        if ph == "x": add(2, 1, px, range(2), accx)
        if ph == "2": add(3, 0, p2, range(8), acc)
        if ph == "3" and not o.split3: add(4, 0, p3, range(8), acc)
        if ph == "3" and o.split3:
            add(4, 0, [p for p in p3 if sum(p) < 6], range(8), acc)
            e3a = len(S.mf)
            add(6, 0, [p for p in p3 if sum(p) >= 6], range(8), acc)
        if ph == "5": add(5, 0, p2 + p3, range(8), acc)
        end[ph] = len(S.mf)
    e1, ex, e3 = end["1"], end["x"], len(S.mf)
    S.mf[e1 - 16:e1] = sorted(S.mf[e1 - 16:e1], key=lambda m: m[0])

    def check(pos, off, expected):
        st = {}
        def rd(S_):
            st["i"] = S_.ds(f"ds_read_b32 v{cT}, v{cFL} offset:{off}")
        def ck(S_):
            S_.need(st["i"])
            if o.iso or o.x_nock: return
            D, C = G.lab("ck"), G.lab("ckc")
            G.a(f"v_readfirstlane_b32 s{sT0}, v{cT}")
            G.a(f"s_cmp_ge_u32 s{sT0}, {expected}")
            G.a(f"s_cbranch_scc0 {C}")
            G.a(f"{D}:")
            def cold():
                G.a(f"{C}:")
                poll_lds(G, cFL, off, expected, cT)
                G.a(f"s_branch {D}")
            G.cold.append(cold)
        S.at(max(pos - 5, 0), rd, ds=1); S.at(max(pos, 0), ck)
    def count(pos, off):
        def f(S_):
            G.a("s_mov_b64 exec, 1")
            S_.ds(f"ds_add_u32 v{cFL}, v{cONE} offset:{off}")
            G.a("s_mov_b64 exec, -1")
        S.at(pos, f, ds=1)
    def ystore1(t, pk):
        A, B = G.lab("ys"), G.lab("yd")
        S.nst += 1
        G.a(f"s_mov_b32 s{sT1}, {t*TILE_STEP}")
        G.a(f"s_cbranch_vccnz {A}")
        G.a(f"buffer_store_dwordx2 v[{pk}:{pk+1}], v{cY}, s[{sXY}:{sXY+3}], s{sT1} offen")
        G.a(f"{B}:")
        def cold():
            G.a(f"{A}:")
            G.a(f"buffer_store_dwordx2 v[{pk}:{pk+1}], v{cY}, s[{sXY}:{sXY+3}], s{sT1} offen sc1")
            G.a(f"s_branch {B}")
        G.cold.append(cold)
    Ld = o.lead + 1
    check(beg["x"] - Ld, F_X, 1)
    for typ in "AB":
        for h in (0, 1):
            S.gate[(2, typ, h)] = beg["x"] - Ld
    if not o.h2early:
        check(beg["2"] - Ld, C_H, 4)
        S.gate[(3, "A", 1)] = beg["2"] - Ld
    if not o.u2early:
        check(beg["3"] - Ld, F_U2, 4)
        S.gate[(4, "B", 1)] = beg["3"] - Ld
    lastw = {t: max(i for i in range(e1) if S.mf[i][0] == acc(t)) for t in range(4)}
    reuse = beg["x"]
    p = 0
    for t in range(4):
        p = max(p, lastw[t] + 9)
        r = acc(t)
        p = S.spread(p, [f"v_cvt_pk_bf16_f32 v{PK+2*t}, v{r}, v{r+1}", f"v_cvt_pk_bf16_f32 v{PK+2*t+1}, v{r+2}, v{r+3}"])
    for t in range(4):
        def yw(S_, t=t):
            S_.last_yw = S_.ds(f"ds_write_b64 v{cYX}, v[{PK+2*t}:{PK+2*t+1}] offset:{2048*t}")
        S.at(p, yw, ds=1)
        p += 2
    S.at(p + 4, lambda S_: S_.need(S_.last_yw))
    count(p + 4, C_Y1)
    S.at(e1, lambda S_: G.stamp(3, mid=3))
    p = ex + 8
    for i in range(4):
        def pw(S_, i=i):
            S_.last_pw = S_.ds(f"ds_write_b128 v{cSW}, v[{accx(tiles[i])}:{accx(tiles[i])+3}] offset:{4096*i}")
        S.at(p + i, pw, ds=1)
    S.at(p + 8, lambda S_: S_.need(S_.last_pw))
    count(p + 8, C_P)
    S.at(end.get("3", ex + 80), lambda S_: G.stamp(4, mid=4))
    S.at(ex, lambda S_: G.stamp(5, mid=5))
    n = e3
    def cvt(t):
        r = acc(t)
        return [f"v_cvt_pk_bf16_f32 v{PK+2*(t-4)}, v{r}, v{r+1}", f"v_cvt_pk_bf16_f32 v{PK+2*(t-4)+1}, v{r+2}, v{r+3}"]
    def tail(S_):
        G.stamp(6, mid=6)
        if o.split3: G.a("s_nop 3")
        for t in ((6, 7) if o.split3 else (4, 5, 6, 7)):
            G.a("\n".join(cvt(t))); ystore1(t, PK + 2 * (t - 4))
            if o.split3 and t == 6: G.a("s_nop 0")
    if o.split3:
        p = e3a + 8
        for t in (4, 5):
            p = S.spread(p, cvt(t))
            S.at(p, lambda S_, t=t: ystore1(t, PK + 2 * (t - 4)))
            p += 2
    nl = 20 if o.order[-1] == "5" else (7 if o.split3 else 10)
    S.mf[n - nl:] = sorted(S.mf[n - nl:], key=lambda m: m[0])
    S.at(n, tail)
    S.emit(loadtext)
    G.a("s_waitcnt vmcnt(0)")
    signal(G, cF, c128, sEV, L_Y2, 2, 12, 16)
    finish(G)
    return S.stats


def gen(o):
    G = Gen(o)
    a = G.a
    nt = o.ld_nt
    K = NAME + "_kernel"
    GO2 = 8 if o.uxearly else 9
    GO3 = GO2 + (0 if o.h2early else 4)
    a(f"{K}:")
    a("s_cmp_ge_u32 s2, 256\ns_cbranch_scc1 L_exit")
    if o.stamps or o.dspan:
        a("s_memtime s[88:89]" if o.cyc else "s_memrealtime s[88:89]")
    a("s_load_dwordx16 s[16:31], s[0:1], 0")
    a("s_load_dwordx8 s[32:39], s[0:1], 64")
    a("s_load_dwordx4 s[40:43], s[0:1], 96")
    a("s_load_dwordx2 s[44:45], s[0:1], 112")
    a("v_lshrrev_b32 v1, 6, v0")
    a(f"s_and_b32 s{sG}, s2, 7")
    a(f"v_readfirstlane_b32 s{sWV}, v1")
    a("v_and_b32 v0, 63, v0")
    a(f"s_lshr_b32 s{sR}, s2, 3\ns_lshr_b32 s{sH}, s{sG}, 2\ns_and_b32 s{sGQ}, s{sG}, 3")
    a(f"s_cmp_eq_u32 s{sWV}, {W_S}\ns_cbranch_scc1 L_Si")
    a(f"s_cmp_ge_u32 s{sWV}, {W_C}\ns_cbranch_scc1 L_Ci")

    vIN, vK3, vWo, vDo, vG, vL = 1, 2, 3, 4, 5, 6
    vFL, vONE, vX, vO1, vO2, vT, vF, vL4, v128, vRD = 7, 8, 9, 10, 11, 12, 14, 15, 124, 126
    WR, DR, KR, VR, QR = 16, 24, 26, 40, 48
    WF, KF, KS, PKU = 56, 72, 100, 116
    a(f"s_sub_u32 s{sE}, s{sWV}, 2\ns_cselect_b32 s{sE}, 8, s{sE}\ns_and_b32 s{sT0}, s{sE}, 4\ns_cselect_b64 vcc, -1, 0")
    a(f"s_lshl_b32 s{sT1}, s{sR}, 1\ns_and_b32 s{sT2}, s{sE}, 4\ns_lshl_b32 s{sT2}, s{sT2}, 4\ns_add_u32 s{sT1}, s{sT1}, s{sT2}")
    a(f"s_bfe_u32 s{sT2}, s{sE}, {(1<<16)|1}\ns_add_u32 s{sT1}, s{sT1}, s{sT2}")
    a(f"s_lshl_b32 s{sT0}, s{sGQ}, 1\ns_and_b32 s{sT3}, s{sE}, 1\ns_add_u32 s{sT0}, s{sT0}, s{sT3}")
    a(f"s_lshl_b32 s{sT2}, s{sGQ}, 5\ns_add_u32 s{sT2}, s{sT2}, s{sR}")
    a(f"v_lshrrev_b32 v{vK3}, 3, v0\nv_mul_u32_u24 v{vK3}, {RS_IN}, v{vK3}\nv_and_b32 v{vWo}, 7, v0\nv_lshl_add_u32 v{vK3}, v{vWo}, 4, v{vK3}")
    a(f"s_cmp_eq_u32 s{sE}, 8")
    a(f"s_cselect_b32 s46, 8, s{sT0}\ns_cselect_b32 s47, s{sT2}, s{sT1}")
    a(f"s_mul_i32 s{sT0}, s47, {16*RS_IN}\ns_lshl_b32 s{sT1}, s46, 7\ns_add_u32 s{sSIG}, s{sT0}, s{sT1}")
    a(f"v_add_u32 v{vIN}, s{sSIG}, v{vK3}")
    a(f"s_lshl_b32 s{sT2}, s46, 9")
    a(f"v_lshl_add_u32 v{vWo}, v0, 4, s{sT2}\nv_lshl_add_u32 v{vDo}, v0, 4, s{sT1}")
    a(f"v_add_u32 v{vK3}, {(-3*RS_IN) & 0xffffffff}, v{vIN}")
    G.srd(sK, None, TENS); G.srd(sV, None, TENS); G.srd(sW, None, 4608)
    a(f"s_mul_i32 s{sSTG}, s{sE}, {STG_SZ}\ns_add_u32 s{sSTG}, s{sSTG}, {U0}\ns_cmp_eq_u32 s{sE}, 8\ns_cselect_b32 s{sSTG}, {STGX}, s{sSTG}\ns_add_u32 s{sT0}, s{sSTG}, 1024")
    a(f"s_cmp_eq_u32 s{sH}, 0")
    a("s_waitcnt lgkmcnt(0)")
    G.stamp(-1, 1)
    a(f"s_cselect_b64 s[{sK}:{sK+1}], s[18:19], s[30:31]")
    a(f"s_cbranch_vccnz L_E2i")
    a(f"s_mov_b32 m0, s{sSTG}\ns_mov_b32 s{sT1}, {5*RS_IN}")
    a(f"buffer_load_dwordx4 v{vK3}, s[{sK}:{sK+3}], 0 offen {o.k_nt} lds")
    a(f"s_mov_b32 m0, s{sT0}\ns_cselect_b64 s[{sV}:{sV+1}], s[20:21], s[32:33]")
    a(f"buffer_load_dwordx4 v{vIN}, s[{sK}:{sK+3}], s{sT1} offen {o.k_nt} lds")
    a(f"s_cselect_b64 s[{sW}:{sW+1}], s[22:23], s[34:35]")
    a(f"s_cselect_b64 s[{sD}:{sD+1}], s[26:27], s[38:39]")
    a(f"s_cselect_b64 s[{sQ}:{sQ+1}], s[16:17], s[28:29]")
    a(f"s_cselect_b64 s[{sHH}:{sHH+1}], s[24:25], s[36:37]")
    a("s_barrier")
    a(f"s_add_u32 s{sT0}, s{sSTG}, 2048\ns_mov_b32 m0, s{sT0}\ns_mov_b32 s{sT1}, {13*RS_IN}\ns_mov_b64 exec, 0xffffff\ns_add_u32 s{sT0}, s{sSTG}, 4480")
    a(f"buffer_load_dwordx4 v{vIN}, s[{sK}:{sK+3}], s{sT1} offen {o.k_nt} lds")
    a(f"s_mov_b32 m0, s{sT0}\ns_mov_b32 exec_lo, -1\ns_add_u32 s{sT0}, s{sSTG}, 4992")
    a(f"buffer_load_dwordx4 v{vWo}, s[{sW}:{sW+3}], 0 offen lds")
    G.srd(sD, None, 1152)
    a(f"s_mov_b32 m0, s{sT0}\ns_mov_b32 exec_lo, 0xff\ns_add_u32 s{sT0}, s{sSTG}, 2432")
    a(f"buffer_load_dwordx4 v{vDo}, s[{sD}:{sD+3}], 0 offen lds")
    a(f"s_mov_b32 m0, s{sT0}\ns_mov_b64 exec, -1\ns_add_u32 s{sT0}, s{sSTG}, {2432+1024}")
    a(f"buffer_load_dwordx4 v{vIN}, s[{sV}:{sV+3}], 0 offen {nt} lds")
    a(f"s_mov_b32 m0, s{sT0}\ns_mov_b32 s{sT1}, {8*RS_IN}")
    a(f"buffer_load_dwordx4 v{vIN}, s[{sV}:{sV+3}], s{sT1} offen {nt} lds")
    G.stamp(-1, 2)
    a("s_branch L_Em")
    a("L_E2i:")
    a(f"s_cselect_b64 s[{sV}:{sV+1}], s[20:21], s[32:33]")
    a(f"s_cselect_b64 s[{sW}:{sW+1}], s[22:23], s[34:35]")
    a(f"s_cselect_b64 s[{sD}:{sD+1}], s[26:27], s[38:39]")
    a(f"s_cselect_b64 s[{sQ}:{sQ+1}], s[16:17], s[28:29]")
    a(f"s_cselect_b64 s[{sHH}:{sHH+1}], s[24:25], s[36:37]")
    a("s_barrier\ns_branch L_Em")

    cHA, cHB, cHB0, cPF, cZ, cU = 100, 101, 102, 103, 56, 60
    a("L_Ci:")
    a(f"s_sub_u32 s46, s{sWV}, {W_C}")
    chan_of(G, 46, sT0)
    a(f"s_lshl_b32 s{sT0}, s{sT0}, 12")
    a(f"v_lshl_add_u32 v{cHA}, v0, 4, s{sT0}")
    inbox_of(G, 47, sSIG)
    G.srd(sHH, None, TENS)
    if o.prefill:
        G.srd(sOUT, None, OUTB)
        a(f"s_lshl_b32 s{sT0}, s46, {5 if o.u2early else 4}\nv_lshrrev_b32 v{cPF}, {1 if o.u2early else 2}, v0\nv_add_u32 v{cPF}, s{sT0}, v{cPF}")
        blk_addr(G, cPF, cHB, sSIG, RS_OUT, 47)
    a(f"s_cmp_eq_u32 s{sH}, 0")
    a("s_waitcnt lgkmcnt(0)\ns_barrier")
    G.stamp(-1, 1)
    a(f"s_cselect_b64 s[{sHH}:{sHH+1}], s[24:25], s[36:37]")
    xa_loads(G, 64, cHA, 0)
    xa_loads(G, 72, cHA, 1)
    if o.h2early:
        xa_loads(G, 112, cHA, 2)
        xa_loads(G, 120, cHA, 3)
    if o.prefill:
        a(f"s_mov_b64 s[{sOUT}:{sOUT+1}], s[{pOUT}:{pOUT+1}]")
        a(f"buffer_load_dword v{cPF}, v{cPF}, s[{sOUT}:{sOUT+3}], 0 offen {o.pf_nt}")
    G.stamp(-1, 2)
    a("s_branch L_Cm")

    sFL, sONE, s128, sT_, sF_, sL4, sZ, sHA, sHB, sHB0, sU, sU1, sP = 1, 2, 3, 4, 6, 7, 8, 12, 13, 14, 15, 16, 17
    a("L_Si:")
    if o.prefetch_code:
        a(f"s_getpc_b64 s[{sT0}:{sT1}]")
        a("L_pc:")
        a(f"s_and_b32 s{sT2}, s{sR}, 7\ns_mul_i32 s{sT2}, s{sT2}, 3072\nv_min_u32 v{sP}, 23, v0\nv_lshl_add_u32 v{sP}, v{sP}, 7, s{sT2}\nv_min_u32 v{sP}, L_exit-L_pc, v{sP}")
        a(f"global_load_dword v{sP}, v{sP}, s[{sT0}:{sT1}]")
    for i in range(4): a(f"v_mov_b32 v{sZ+i}, 0")
    a(f"v_lshlrev_b32 v{sL4}, 2, v0\nv_min_u32 v{sT_}, 60, v{sL4}\nv_add_u32 v{sT_}, {FL0}, v{sT_}\nds_write_b32 v{sT_}, v{sZ}")
    a(f"v_lshlrev_b32 v{s128}, 7, v0")
    a(f"s_lshl_b32 s46, s{sH}, 7")
    a("s_waitcnt lgkmcnt(0)\ns_barrier")
    G.stamp(-1, 1)
    a(f"s_cmp_eq_u32 s{sH}, 0")
    a(f"s_cselect_b64 s[{sHH}:{sHH+1}], s[24:25], s[36:37]")
    ctl_srd(G)
    a(f"s_load_dwordx2 s[{sX1+1}:{sX1+2}], s[{sCT}:{sCT+1}], s46")
    a(f"buffer_load_dword v{sHB0}, v{s128}, s[{sCT}:{sCT+3}], s{sGB} offen")
    G.stamp(-1, 2)
    if o.iso:
        a(f"v_mov_b32 v{sFL}, {FL0}\nv_mov_b32 v{sT_}, 2\nv_mov_b32 v{sT_+1}, 2\nds_write_b64 v{sFL}, v[{sT_}:{sT_+1}] offset:{F_N}\ns_waitcnt lgkmcnt(0)\ns_endpgm")
    a(f"v_mov_b32 v{sFL}, {FL0}\nv_mov_b32 v{sONE}, 1")
    a("s_waitcnt lgkmcnt(0)")
    a(f"s_and_b32 s{sN}, s{sX2}, 0xfffffff0\ns_add_u32 s{sN}, s{sN}, 0x9e3779b0\nv_mov_b32 v{sT_}, s{sN}")
    a(f"s_add_u32 s{sTAG}, s{sX3}, 1\ns_and_b32 s{sTAG}, s{sTAG}, 0xffff\ns_add_u32 s{sT0}, s{sTAG}, 0x10000\nv_mov_b32 v{sT_+1}, s{sT0}")
    a(f"ds_write_b64 v{sFL}, v[{sT_}:{sT_+1}] offset:{F_N}")
    G.stamp(1, -1)
    a(f"v_lshlrev_b32 v{sHA}, 4, v0")
    u_pad(G, 20, sZ, U0 + 4 * U_SZ)
    a(f"v_add_u32 v{sU1}, {XA0 + 4*XA_SZ}, v{sHA}")
    for p in range(4):
        a(f"ds_write_b128 v{sU1}, v[{sZ}:{sZ+3}] offset:{p*PLANE}")
    G.srd(sHH, None, TENS)
    misc_srd(G)
    a(f"s_add_u32 s{sK}, s{pWS}, {XU_OFF}\ns_addc_u32 s{sK+1}, s{pWS+1}, 0")
    G.srd(sK, None, 1 << 20)
    G.srd(sOUT, pOUT, OUTB)
    a(f"s_getreg_b32 s{sF}, hwreg(HW_REG_XCC_ID, 0, 4)\ns_add_u32 s{sF}, s{sF}, s{sN}\ns_add_u32 s{sF}, s{sF}, 1\nv_mov_b32 v{sF_}, s{sF}")
    xbox_of(G, sX3, sX2, sLR)
    a(f"s_add_u32 s{sT0}, s{sX2}, 512\ns_lshl_b32 s{sT0}, s{sT0}, 12")
    a(f"v_add_u32 v{sHA}, s{sT0}, v{sHA}")
    for q in range(4):
        xa_loads(G, 32 + 8 * q, sHA, q)
    if o.w1only: finish(G)
    a(f"v_lshrrev_b32 v{sHB}, 2, v0\nv_sub_u32 v{sHB}, 15, v{sHB}")
    blk_addr(G, sHB, sT_, sLR, 256, sX3)
    a(f"v_and_b32 v{sT_}, 3, v0\nv_lshl_add_u32 v{sHB}, v{sT_}, 4, v{sHB}")
    a(f"v_lshlrev_b32 v18, 3, v0\nv_add_u32 v18, {U0 + 4*U_SZ}, v18\ns_mov_b32 s47, 0x07060302\ns_setprio {o.sprio}")
    for q in range(4):
        a(f"s_waitcnt vmcnt({6-2*q})")
        xa_build(G, 32 + 8 * q, 96 + 12 * (q & 1), sU1, 384 + 1024 * q, q)
    G.stamp(-1, 3)
    poll_lds(G, sFL, C_GO, 4, sT_)
    G.stamp(2, 4, 1)
    def after():
        lds_count(G, sFL, sONE, C_GO)
        u_pad_write(G, 20, sZ)
        return 0
    tagged_loads(G, 8, 96, sHB, sK, lambda k: ((7 - k) * 16 * 4096, 0), sT_, after)
    for k in range(8):
        a(f"v_perm_b32 v{64+2*k}, v{97+4*k}, v{96+4*k}, s47\nv_perm_b32 v{65+2*k}, v{99+4*k}, v{98+4*k}, s47")
        a(f"ds_write_b64 v18, v[{64+2*k}:{65+2*k}] offset:{512*k}\nds_write_b64 v18, v[{64+2*k}:{65+2*k}] offset:{512*k + UP1 - 8}")
    a("s_waitcnt lgkmcnt(0)")
    a(f"ds_write_b32 v{sFL}, v{sONE} offset:{F_X}")
    G.stamp(3, 6, 3)
    D = G.lab("epo")
    a(f"s_or_b32 s{sT0}, s{sGQ}, s{sR}\ns_cbranch_scc1 {D}")
    a(f"s_mov_b64 exec, 1\nv_mov_b32 v{sT_}, s{sN}\nv_mov_b32 v{sT_+1}, s{sTAG}\nbuffer_store_dwordx2 v[{sT_}:{sT_+1}], off, s[{sCT}:{sCT+3}], s46\ns_mov_b64 exec, -1")
    a(f"{D}:")
    finish(G)

    a("L_Em:")
    if o.w1only:
        a("s_waitcnt vmcnt(2)"); G.stamp(1, 4); a("s_waitcnt vmcnt(0)"); finish(G)
    if o.iso: a("s_waitcnt vmcnt(0)\ns_endpgm")
    a(f"s_setprio 1\ns_cmp_eq_u32 s{sE}, 8\ns_cbranch_scc0 L_Eh\ns_setprio 3")
    a("L_Eh:")
    G.stamp(-1, 3)
    vB1, vB2, vB3 = 42, 43, 44
    vA1, vA2, vA3, vA4, vA5 = vK3, vWo, vDo, 125, 127
    QF, DF, YR, YF = KF, WF, 16, 24
    LX, LP, L2, LW, LZ = G.lab("ex"), G.lab("ep"), G.lab("e2"), G.lab("ew"), G.lab("ez")
    a(f"v_and_b32 v{vG}, 15, v0\nv_lshrrev_b32 v{vL}, 4, v0")
    a(f"v_mul_u32_u24 v{vIN}, {4*RS_IN}, v{vL}\nv_lshl_add_u32 v{vIN}, v{vG}, 3, v{vIN}\nv_add_u32 v{vIN}, s{sSIG}, v{vIN}")
    E2a = G.lab("e2a")
    a(f"s_cbranch_vccz {E2a}")
    G.srd(sD, None, 1152)
    a(f"s_lshl_b32 s{sT0}, s46, 9\nv_lshl_add_u32 v{vWo}, v{vG}, 5, s{sT0}\ns_lshl_b32 s{sT0}, s46, 7\nv_lshl_add_u32 v{vDo}, v{vG}, 3, s{sT0}")
    a(f"buffer_load_dwordx4 v[{WR}:{WR+3}], v{vWo}, s[{sW}:{sW+3}], 0 offen\nbuffer_load_dwordx4 v[{WR+4}:{WR+7}], v{vWo}, s[{sW}:{sW+3}], 0 offen offset:16")
    a(f"buffer_load_dwordx2 v[{DR}:{DR+1}], v{vDo}, s[{sD}:{sD+3}], 0 offen")
    a(f"{E2a}:")
    a(f"v_lshlrev_b32 v{vRD}, 9, v{vL}\nv_lshl_add_u32 v{vRD}, v{vG}, 3, v{vRD}\nv_add_u32 v{vRD}, s{sSTG}, v{vRD}")
    a(f"v_lshl_add_u32 v{vWo}, v{vG}, 5, s{sSTG}\nv_lshl_add_u32 v{vDo}, v{vG}, 3, s{sSTG}")
    G.srd(sQ, None, TENS); G.srd(sHH, None, TENS)
    G.srd(sOUT, pOUT, OUTB)
    ctl_srd(G)
    misc_srd(G)
    a(f"s_mov_b32 s{sLC}, s46\ns_lshl_b32 s{sROW0}, s47, 4")
    a(f"s_lshl_b32 s{sT1}, s{sLC}, 7\ns_mul_i32 s{sCOL}, s{sH}, 1152\ns_add_u32 s{sCOL}, s{sCOL}, s{sT1}")
    a(f"s_mul_i32 s{sT0}, s{sROW0}, {RS_OUT}\ns_add_u32 s{sT0}, s{sT0}, s{sCOL}")
    a(f"v_mul_u32_u24 v{vO1}, {4*RS_OUT}, v{vL}\nv_lshl_add_u32 v{vO1}, v{vG}, 3, v{vO1}\nv_add_u32 v{vO1}, s{sT0}, v{vO1}")
    a(f"v_add_u32 v{vO2}, {2*RS_OUT}, v{vO1}")
    a(f"s_lshl_b32 s{sT1}, s47, 12\ns_lshl_b32 s{sT2}, s{sH}, 19\ns_add_u32 s{sT1}, s{sT1}, s{sT2}\ns_mov_b32 s{sT2}, {RS_OUT}")
    a(f"s_cmp_eq_u32 s{sE}, 8\ns_cselect_b32 s{sT0}, s{sT1}, s{sT0}\ns_cselect_b32 s{sT1}, 256, s{sT2}\ns_cselect_b32 s{sT2}, 6, 5")
    a(f"v_and_b32 v{vX}, 12, v{vG}\nv_add3_u32 v{vX}, v{vX}, v{vL}, s47\nv_and_b32 v{vX}, 15, v{vX}\nv_mul_u32_u24 v{vX}, s{sT1}, v{vX}")
    a(f"v_and_b32 v{vT}, 3, v{vG}\nv_lshlrev_b32 v{vT}, s{sT2}, v{vT}\nv_add3_u32 v{vX}, v{vX}, v{vT}, s{sT0}")
    a(f"v_mov_b32 v{vFL}, {FL0}\nv_mov_b32 v{vONE}, 1\nv_lshlrev_b32 v{vL4}, 3, v0\nv_lshlrev_b32 v{v128}, 9, v0")
    a(f"s_and_b32 s{sX3}, s{sE}, 3\ns_lshl_b32 s{sEV}, s{sR}, 2\ns_add_u32 s{sEV}, s{sEV}, s{sX3}\ns_lshl_b32 s{sEV}, s{sEV}, 2\ns_add_u32 s{sEV}, s{sEV}, s{sGB}")
    a(f"s_mov_b32 s47, 0xffff0000")
    get_nonce(G, vFL, vT, vF)
    a(f"s_cbranch_vccnz {L2}")

    def unpack_w():
        for c in range(4):
            for j in range(4):
                src = WR + 2 * c + (j >> 1)
                a(f"v_lshlrev_b32 v{WF+4*j+c}, 16, v{src}" if j % 2 == 0 else f"v_and_b32 v{WF+4*j+c}, s47, v{src}")
    def first_phase(packed, wait_v):
        for i in range(7):
            for d in range(2):
                a(f"v_lshlrev_b32 v{KF+4*i+2*d}, 16, v{KR+2*i+d}")
                a(f"v_and_b32 v{KF+4*i+2*d+1}, s47, v{KR+2*i+d}")
        for j in (3, 2, 1, 0):
            if j == 0: wait_v(0)
            for r in range(4):
                for d in range(2):
                    ks, w, k = KS + 4 * r + 2 * d, WF + 4 * j + 2 * d, KF + 4 * (3 + r - j) + 2 * d
                    if j == 3: pk(G, "mul", ks, k, w, force=packed)
                    else: pk(G, "fma", ks, k, w, ks, force=packed)
        wait_v(1)
        for r in range(4):
            for d in range(2):
                a(f"v_lshlrev_b32 v{KF+4*r+2*d}, 16, v{VR+2*r+d}")
                a(f"v_and_b32 v{KF+4*r+2*d+1}, s47, v{VR+2*r+d}")
        for r in range(4):
            for d in range(2):
                pk(G, "mul", KS + 4 * r + 2 * d, KS + 4 * r + 2 * d, KF + 4 * r + 2 * d, force=packed)
        regs = [PKU + 2 * (3 - j) for j in range(4)]
        for c in range(4):
            a(f"v_cvt_pk_bf16_f32 v{regs[c]}, v{KS+12+c}, v{KS+8+c}")
            a(f"v_cvt_pk_bf16_f32 v{regs[c]+1}, v{KS+4+c}, v{KS+c}")
        transpose4(G, regs)
    def skip_term(packed=True):
        for d in range(2):
            a(f"v_lshlrev_b32 v{DF+2*d}, 16, v{DR+d}\nv_and_b32 v{DF+2*d+1}, s47, v{DR+d}")
        for r in range(4):
            for d in range(2):
                pk(G, "mul", KS + 4 * r + 2 * d, KS + 4 * r + 2 * d, DF + 2 * d, force=packed)
    def qloads():
        for i in range(4):
            a(f"buffer_load_dwordx2 v[{QR+2*i}:{QR+2*i+1}], v{vIN}, s[{sQ}:{sQ+3}], 0 offen offset:{i*RS_IN} {nt}")
    def gate(nyoung):
        a(f"s_setprio {o.eprio}\ns_waitcnt vmcnt({nyoung})")
        G.stamp(1)
        for r in range(4):
            for d in range(2):
                a(f"v_lshlrev_b32 v{QF+4*r+2*d}, 16, v{QR+2*r+d}\nv_and_b32 v{QF+4*r+2*d+1}, s47, v{QR+2*r+d}")
        for r in range(4):
            for d in range(2):
                pk(G, "mul", KS + 4 * r + 2 * d, KS + 4 * r + 2 * d, QF + 4 * r + 2 * d)
        G.stamp(4)
    def mode_stores(lines):
        A, B = G.lab("ms"), G.lab("md")
        a(f"s_cmp_eq_u32 s{sM}, 0\ns_cbranch_scc0 {A}")
        a("\n".join(lines))
        a(f"{B}:")
        def cold():
            a(f"{A}:")
            a("\n".join(l + " sc1" for l in lines))
            a(f"s_branch {B}")
        G.cold.append(cold)
    ustores = [f"buffer_store_dwordx4 v[{PKU}:{PKU+3}], v{vX}, s[{sXU}:{sXU+3}], 0 offen",
               f"buffer_store_dwordx4 v[{PKU+4}:{PKU+7}], v{vX}, s[{sXU}:{sXU+3}], 0 offen offset:16"]
    def last_phase(packed, line, cnt, mid_label=None):
        held = []
        a(f"s_lshl_b32 s{sT0}, s{sX3}, 9\ns_add_u32 s{sX2}, s{sT0}, s{sGB}\ns_add_u32 s{sX2}, s{sX2}, {line}")
        poll_line(G, vL4, sX2, 2, vT, (f"s{sDGO}", cnt), 128, sleep=(o.sleep if packed else 2))
        G.stamp(5)
        a(f"buffer_load_dwordx4 v[{YR}:{YR+3}], v{vX}, s[{sXY}:{sXY+3}], 0 offen sc1")
        a(f"buffer_load_dwordx4 v[{YR+4}:{YR+7}], v{vX}, s[{sXY}:{sXY+3}], 0 offen offset:16 sc1")
        if packed and o.defer: lds_count(G, vFL, vONE, C_R)
        a("s_waitcnt vmcnt(0)")
        G.stamp(6)
        transpose4(G, [YR + 2 * j for j in range(4)])
        if mid_label: a(f"{mid_label}:")
        for c in range(4):
            for d in range(2):
                a(f"v_lshlrev_b32 v{YF+8*d+c}, 16, v{YR+2*c+d}\nv_and_b32 v{YF+8*d+4+c}, s47, v{YR+2*c+d}")
        for r in range(4):
            for d in range(2):
                ks, q, y = KS + 4 * r + 2 * d, QF + 4 * r + 2 * d, YF + 4 * r + 2 * d
                pk(G, "fma", ks, q, y, ks, force=packed)
            for d in range(2):
                ks = KS + 4 * r + 2 * d
                a(f"v_cvt_pk_bf16_f32 v{PKU+2*r+d}, v{ks}, v{ks+1}")
            st = f"buffer_store_dwordx2 v[{PKU+2*r}:{PKU+2*r+1}], v{vO1 if r < 2 else vO2}, s[{sOUT}:{sOUT+3}], 0 offen offset:{(r&1)*RS_OUT} {o.out_flag}"
            if packed or not o.defer: a(st)
            else: held.append(st)
        if held:
            poll_lds(G, vFL, C_R, 4, vT, sleep=1)
            a("\n".join(held))
        finish(G)

    a("s_waitcnt vmcnt(2)")
    G.stamp(-1, 4)
    a(f"ds_read_b128 v[{WR}:{WR+3}], v{vWo} offset:4480\nds_read_b128 v[{WR+4}:{WR+7}], v{vWo} offset:4496")
    for i in range(7):
        a(f"ds_read_b64 v[{KR+2*i}:{KR+2*i+1}], v{vRD} offset:{128*i}")
    a(f"ds_read_b64 v[{DR}:{DR+1}], v{vDo} offset:4992")
    a("s_waitcnt lgkmcnt(8)")
    unpack_w()
    a("s_waitcnt lgkmcnt(0)")
    def wait_v(k):
        if k == 0:
            a("s_waitcnt vmcnt(0)")
            G.stamp(2, 5)
            for i in range(4):
                a(f"ds_read_b64 v[{VR+2*i}:{VR+2*i+1}], v{vRD} offset:{2432 + 128*i}")
        else:
            a("s_waitcnt lgkmcnt(0)")
    first_phase(True, wait_v)
    a(f"s_cmp_eq_u32 s{sE}, 8\ns_cbranch_scc1 {LX}")
    a("\n".join(ustores))
    skip_term()
    a(f"{LP}:")
    a("s_waitcnt vmcnt(0)")
    signal(G, vF, v128, sEV, L_U1, 2, 4, YR)
    G.stamp(3, 6)
    chan_of(G, sE, sT0)
    a(f"s_lshl_b32 s{sT0}, s{sT0}, 12\nv_lshl_add_u32 v{vA3}, v0, 4, s{sT0}")
    a(f"s_mul_i32 s{sT0}, s{sE}, {XA_SZ}\nv_lshl_add_u32 v{vRD}, v0, 4, s{sT0}")
    inbox_of(G, sX1, sX2)
    for k in range(2):
        a(f"v_lshrrev_b32 v{vA1 if k == 0 else vA2}, 3, v0" + (f"\nv_add_u32 v{vA2}, 8, v{vA2}" if k else ""))
        blk_addr(G, vA1 if k == 0 else vA2, vT, sX2, RS_OUT, sX1)
    a(f"v_and_b32 v{vT}, 7, v0\nv_lshl_add_u32 v{vA1}, v{vT}, 4, v{vA1}\nv_lshl_add_u32 v{vA2}, v{vT}, 4, v{vA2}")
    a(f"s_lshl_b32 s{sT0}, s{sE}, 5\ns_add_u32 s{sX1}, s{sX1}, s{sT0}")
    u_src(G, vA4, vT, sX2, sX1)
    a(f"s_mul_i32 s{sT0}, s{sE}, {U_SZ}\ns_add_u32 s{sT0}, s{sT0}, {U0}\nv_lshl_add_u32 v{vL}, v0, 4, s{sT0}\nv_add_u32 v{vA5}, {UP1 - 8}, v{vL}")
    a(f"s_lshl_b32 s{sT0}, s{sE}, 11\ns_add_u32 s{sT0}, s{sT0}, {YB0}\nv_lshl_add_u32 v{vG}, v0, 4, s{sT0}\ns_mul_i32 s{sX1}, s{sE}, {TILE_STEP}")
    a(f"s_add_u32 s{sWMY}, s{pWS}, {XY_OFF}\ns_addc_u32 s{sWMY+1}, s{pWS+1}, 0")
    G.srd(sWMY, None, 1 << 20)
    a(f"s_lshl_b32 s{sT0}, s{sGQ}, 5\ns_add_u32 s{sT0}, s{sT0}, s{sR}\ns_lshr_b32 s{sT0}, s{sT0}, 1\ns_lshl_b32 s{sX4}, s{sH}, 19")
    a(f"v_lshrrev_b32 v{vB1}, 3, v0\nv_add_u32 v{vT}, s{sT0}, v{vB1}\nv_and_b32 v{vT}, 7, v{vT}\ns_and_b32 s{sT0}, s{sT0}, 56\nv_or_b32 v{vT}, s{sT0}, v{vT}")
    a(f"v_lshl_add_u32 v{vB1}, v{vB1}, 6, v{vT}\nv_lshlrev_b32 v{vB1}, 7, v{vB1}\nv_and_b32 v{vT}, 7, v0\nv_lshl_add_u32 v{vB1}, v{vT}, 4, v{vB1}\nv_add_u32 v{vB1}, s{sX4}, v{vB1}")
    a(f"s_lshl_b32 s{sT0}, s{sX3}, 12\ns_add_u32 s{sT0}, s{sT0}, {SCR0}\nv_lshl_add_u32 v{vB2}, v0, 4, s{sT0}\nv_mov_b32 v{vB3}, s{sTAG}")
    a(f"s_mov_b32 s{sT0}, 0x7430\ns_mov_b32 s{sT1}, 0x6521\ns_and_b32 s{sT2}, s{sR}, 1\ns_cselect_b32 s{sT0}, s{sT1}, s{sT0}")
    a(f"s_lshl_b32 s{sT1}, s{sX3}, 2\ns_lshr_b32 s{sT0}, s{sT0}, s{sT1}\ns_and_b32 s{sT0}, s{sT0}, 7\ns_lshl_b32 s{sX4}, s{sT0}, 16")
    def hook(L):
        R = G.lab("rp")
        a(f"s_cmp_gt_u32 s{sX2}, s{sM}\ns_cbranch_scc1 {R}")
        def cold():
            a(f"{R}:")
            to_mode1(G, vF)
            a("\n".join(l + " sc1" for l in ustores))
            a(f"s_branch {LP}")
        G.cold.append(cold)
    poll_lds(G, vFL, C_GO, 9, vT, pair=sX2, hook=hook)
    xa_loads(G, KR, vA3, 2)
    xa_loads(G, KR + 8, vA3, 3)
    G.stamp(-1, mid=1)
    a(f"s_setprio {o.hiprio}\ns_add_u32 s{sEV}, s{sEV}, {L_Y1}\ns_lshl_b32 s{sT0}, s{sE}, 9\ns_add_u32 s{sX2}, s{sT0}, s{sGB}\ns_add_u32 s{sX2}, s{sX2}, {L_U2}")
    a("s_waitcnt vmcnt(2)")
    xa_build(G, KR, WF, vRD, XA0 + 384 + 2048, 2, plain=True)
    a("s_waitcnt vmcnt(0)")
    xa_build(G, KR + 8, KF, vRD, XA0 + 384 + 3072, 3, plain=True)
    a("s_waitcnt lgkmcnt(0)")
    lds_count(G, vFL, vONE, C_H)
    G.stamp(-1, mid=2)
    poll_lds(G, vFL, C_P, 4, vT, sleep=2)
    r = WF
    for i in range(4):
        a(f"ds_read_b128 v[{r+4*i}:{r+4*i+3}], v{vB2} offset:{1024*i}")
    a("s_waitcnt lgkmcnt(2)")
    for d in (0, 2): pk(G, "add", r + d, r + d, r + 4 + d)
    a("s_waitcnt lgkmcnt(0)")
    for d in (0, 2): pk(G, "add", r + 8 + d, r + 8 + d, r + 12 + d)
    for d in (0, 2): pk(G, "add", r + d, r + d, r + 8 + d)
    a(f"v_cvt_pk_bf16_f32 v{r+4}, v{r}, v{r+1}\nv_cvt_pk_bf16_f32 v{r+5}, v{r+2}, v{r+3}")
    for d in (0, 1):
        a(f"v_lshl_or_b32 v{QR+2*d}, v{r+4+d}, 16, v{vB3}\nv_and_or_b32 v{QR+2*d+1}, v{r+4+d}, s47, v{vB3}")
    G.stamp(-1, mid=3)
    def carry():
        poll_lds(G, vFL, C_Y1, 4, vT, sleep=2)
        a(f"ds_read_b128 v[{YR}:{YR+3}], v{vG}\nds_read_b128 v[{YR+4}:{YR+7}], v{vG} offset:1024\ns_waitcnt lgkmcnt(0)")
        mode_stores([f"buffer_store_dwordx4 v[{YR}:{YR+3}], v{vA1}, s[{sXY}:{sXY+3}], s{sX1} offen",
                     f"buffer_store_dwordx4 v[{YR+4}:{YR+7}], v{vA2}, s[{sXY}:{sXY+3}], s{sX1} offen"])
        a("s_waitcnt vmcnt(0)")
        signal(G, vF, v128, sEV, L_Y1, 2, 8, YR)
    def u2duty():
        poll_line(G, vL4, sX2, 2, vT, (f"s{sDGO}", 16), 128, sleep=1)
        G.stamp(-1, mid=4)
        u_loads(G, KR + 2, vA4, (1, 0))
        lds_count(G, vFL, vONE, C_U0)
        poll_lds(G, vFL, C_U0, 4, vT)
        a(f"buffer_store_dwordx4 v[{QR}:{QR+3}], v{vB1}, s[{sWMY}:{sWMY+3}], s{sX4} offen sc1")
        lds_count(G, vFL, vONE, C_U1)
        a(f"s_waitcnt vmcnt(2)")
        u_write(G, KR + 2, vL, vA5, 1)
        a(f"s_waitcnt vmcnt(1)")
        u_write(G, KR + 6, vL, vA5, 0)
        a("s_waitcnt lgkmcnt(0)")
        lds_count(G, vFL, vONE, F_U2)
        G.stamp(-1, mid=5)
        a("s_waitcnt vmcnt(0)")
        lds_count(G, vFL, vONE, C_YX)
    if o.u2first: u2duty(); qloads(); carry()
    else: carry(); u2duty(); qloads()
    gate(0)
    G.stamp(-1, mid=6)
    last_phase(False, L_Y1, 8, f"{LZ}2")

    a(f"{L2}:")
    a(f"v_add_u32 v{vA1}, {(-3*RS_IN) & 0xffffffff}, v{vIN}")
    inbox_of(G, sX1, sX2)
    a(f"s_lshl_b32 s{sT0}, s{sX3}, 4\ns_add_u32 s{sT0}, s{sT0}, 64\nv_lshrrev_b32 v{vA2}, 2, v0\nv_add_u32 v{vA2}, s{sT0}, v{vA2}")
    blk_addr(G, vA2, vT, sX2, RS_OUT, sX1)
    a(f"s_add_u32 s{sEV}, s{sEV}, {L_U2}")
    a("s_waitcnt vmcnt(0)")
    unpack_w()
    poll_lds(G, vFL, C_GO, 5, vT, pair=sX2)
    adopt_mode(G, sX2, vF)
    for i in range(3):
        a(f"buffer_load_dwordx2 v[{KR+2*i}:{KR+2*i+1}], v{vA1}, s[{sK}:{sK+3}], 0 offen offset:{i*RS_IN} {o.k_nt}")
    for i in range(4):
        a(f"buffer_load_dwordx2 v[{KR+6+2*i}:{KR+7+2*i}], v{vIN}, s[{sK}:{sK+3}], 0 offen offset:{i*RS_IN} {o.k_nt}")
    for i in range(4):
        a(f"buffer_load_dwordx2 v[{VR+2*i}:{VR+2*i+1}], v{vIN}, s[{sV}:{sV+3}], 0 offen offset:{i*RS_IN} {nt}")
    a(f"buffer_load_dword v{vA2}, v{vA2}, s[{sOUT}:{sOUT+3}], 0 offen {o.pf_nt}")
    lds_count(G, vFL, vONE, C_GO)
    G.stamp(-1, mid=1)
    a(f"s_setprio {o.hiprio}")
    a("s_waitcnt vmcnt(5)")
    G.stamp(-1, mid=3)
    first_phase(False, lambda k: a("s_waitcnt vmcnt(1)") if k else None)
    G.stamp(2, mid=4)
    mode_stores(ustores)
    skip_term(False)
    a("s_waitcnt vmcnt(0)")
    signal(G, vF, v128, sEV, L_U2, 2, 16, YR)
    G.stamp(3, mid=5)
    poll_lds(G, vFL, C_U1, 4, vT, sleep=2)
    qloads()
    gate(0)
    G.stamp(-1, mid=6)
    last_phase(True, L_Y2, 12)
    a(f"{LX}:")
    a(f"s_add_u32 s{sXU}, s{pWS}, {XU_OFF}\ns_addc_u32 s{sXU+1}, s{pWS+1}, 0\ns_add_u32 s{sXY}, s{pWS}, {XY_OFF}\ns_addc_u32 s{sXY+1}, s{pWS+1}, 0")
    a(f"v_and_b32 v{vT}, 4095, v{vX}\nv_lshrrev_b32 v{vT}, 1, v{vT}\nv_add_u32 v{vT}, s{sSTG}, v{vT}")
    a(f"ds_write_b128 v{vT}, v[{PKU}:{PKU+3}]\nds_write_b128 v{vT}, v[{PKU+4}:{PKU+7}] offset:16")
    a(f"v_lshl_add_u32 v{vT}, v0, 3, s{sSTG}")
    for k in range(4):
        a(f"ds_read_b64 v[{KF+2*k}:{KF+2*k+1}], v{vT} offset:{512*k}")
    a(f"v_and_b32 v{vG}, 0xfffff000, v{vX}\nv_lshl_add_u32 v{vG}, v0, 4, v{vG}\nv_mov_b32 v{vK3}, s{sTAG}")
    for k in range(4):
        a(f"s_waitcnt lgkmcnt({3-k})")
        for d in (0, 1):
            a(f"v_lshl_or_b32 v{QR-8+4*k+2*d}, v{KF+2*k+d}, 16, v{vK3}\nv_and_or_b32 v{QR-8+4*k+2*d+1}, v{KF+2*k+d}, s47, v{vK3}")
        a(f"buffer_store_dwordx4 v[{QR-8+4*k}:{QR-8+4*k+3}], v{vG}, s[{sXU}:{sXU+3}], 0 offen offset:{1024*k} sc1")
    G.stamp(3, 6)
    skip_term()
    a(f"s_lshr_b32 s{sT0}, s{sROW0}, 5\ns_lshl_b32 s{sT1}, s{sT0}, 13\ns_lshl_b32 s{sT2}, s{sH}, 19\ns_add_u32 s{sT1}, s{sT1}, s{sT2}")
    a(f"s_bfe_u32 s{sT2}, s{sROW0}, {(1<<16)|4}\ns_lshl_b32 s{sT2}, s{sT2}, 6\ns_add_u32 s{sT1}, s{sT1}, s{sT2}")
    a(f"v_lshrrev_b32 v{vX}, 2, v0")
    a(f"v_add_u32 v{vT}, s{sT0}, v{vX}\nv_and_b32 v{vT}, 7, v{vT}\nv_and_b32 v{vX}, 8, v{vX}\nv_or_b32 v{vX}, v{vX}, v{vT}\nv_lshl_add_u32 v{vX}, v{vX}, 7, s{sT1}")
    a(f"v_and_b32 v{vT}, 3, v0\nv_lshl_add_u32 v{vX}, v{vT}, 4, v{vX}")
    a(f"v_lshlrev_b32 v{vA1}, 3, v0\nv_add_u32 v{vA1}, {XT0}, v{vA1}")
    a(f"v_and_b32 v{vA2}, 15, v0\nv_lshlrev_b32 v{vA2}, 7, v{vA2}\nv_lshrrev_b32 v{vT}, 4, v0\nv_lshl_add_u32 v{vA2}, v{vT}, 3, v{vA2}\nv_add_u32 v{vA2}, {XT0}, v{vA2}")
    poll_lds(G, vFL, C_U1, 4, vT, sleep=3)
    qloads()
    poll_lds(G, vFL, C_YX, 4, vT, sleep=2)
    G.stamp(5, mid=3)
    tagged_loads(G, 4, 24, vX, sXY, lambda k: (0, 2048 * k) if k < 2 else (4096, 2048 * (k - 2)), vT)
    a(f"s_mov_b32 s{sT0}, 0x07060302")
    G.stamp(-1, mid=4)
    for k in range(4):
        a(f"v_perm_b32 v{YR+2*k}, v{25+4*k}, v{24+4*k}, s{sT0}\nv_perm_b32 v{YR+2*k+1}, v{27+4*k}, v{26+4*k}, s{sT0}")
        a(f"ds_write_b64 v{vA1}, v[{YR+2*k}:{YR+2*k+1}] offset:{512*k}")
    for c in range(4):
        a(f"ds_read_b64 v[{YR+2*c}:{YR+2*c+1}], v{vA2} offset:{32*c}")
    gate(0)
    a(f"s_waitcnt lgkmcnt(0)\ns_branch {LZ}2")
    G.flush_cold()

    a("L_Cm:")
    if o.w1only:
        a("s_waitcnt vmcnt(1)"); G.stamp(1, 4); a("s_waitcnt vmcnt(0)"); finish(G)
    a(f"s_setprio {o.cprio}")
    G.stamp(1, 3)
    ctl_srd(G)
    misc_srd(G)
    a(f"s_mov_b32 s{sJ}, s46\ns_mov_b32 s{sCOL}, s47")
    a(f"s_mul_i32 s{sX2}, s{sJ}, {XA_SZ}\ns_mul_i32 s{sX3}, s{sJ}, {U_SZ}\ns_add_u32 s{sX3}, s{sX3}, {U0}")
    for i in range(4): a(f"v_mov_b32 v{cZ+i}, 0")
    a(f"v_lshl_add_u32 v{cHA}, v0, 4, s{sX2}")
    for p in range(4):
        a(f"ds_write_b128 v{cHA}, v[{cZ}:{cZ+3}] offset:{XA0 + p*PLANE}")
    a(f"v_lshl_add_u32 v{cHB}, v0, 4, s{sX3}\nv_add_u32 v{cHB0}, {UP1 - 8 + 2048}, v{cHB}")
    u_pad(G, 62, cZ, f"s{sX3}")
    a(f"v_and_b32 v{cT}, 3, v0\nv_mul_u32_u24 v{cA}, {PLANE}, v{cT}")
    a(f"v_bfe_u32 v{cB}, v0, 2, 2\nv_lshl_add_u32 v{cA}, v{cB}, 7, v{cA}")
    a(f"v_lshrrev_b32 v{cB}, 4, v0\nv_lshl_add_u32 v{cA}, v{cB}, 4, v{cA}")
    a(f"s_lshl_b32 s{sT0}, s{sJ}, 7")
    a(f"s_add_u32 s{sT1}, s{sT0}, {XA0 + 4*XA_SZ}\nv_add_u32 v{cAX}, s{sT1}, v{cA}\nv_add_u32 v{cA}, s{sX2}, v{cA}")
    a(f"v_lshlrev_b32 v{cB}, 4, v{cB}\nv_and_b32 v{cBX}, 15, v0\nv_lshlrev_b32 v{cBX}, 3, v{cBX}\nv_sub_u32 v{cB}, v{cB}, v{cBX}\nv_add_u32 v{cB}, 120, v{cB}")
    a(f"v_and_b32 v{cBX}, 1, v0\nv_xor_b32 v{cBX}, 1, v{cBX}\nv_mul_u32_u24 v{cBX}, {UP1 - 8}, v{cBX}\nv_add_u32 v{cB}, v{cB}, v{cBX}")
    a(f"s_add_u32 s{sT1}, s{sT0}, {U0 + 4*U_SZ}\nv_add_u32 v{cBX}, s{sT1}, v{cB}\nv_add_u32 v{cB}, s{sX3}, v{cB}")
    a(f"s_and_b32 s{sTS}, s{sR}, 1\ns_lshl_b32 s{sT2}, s{sJ}, 5\ns_add_u32 s{sCOL}, s{sCOL}, s{sT2}")
    a(f"v_lshrrev_b32 v{cY}, 2, v0")
    blk_addr(G, cY, cU, sSIG, RS_OUT, sCOL)
    a(f"v_lshl_add_u32 v{cY}, v{cT}, 3, v{cY}")
    a(f"v_lshrrev_b32 v{cYX}, 2, v0\nv_lshlrev_b32 v{cYX}, 7, v{cYX}\nv_lshl_add_u32 v{cYX}, v{cT}, 3, v{cYX}\ns_lshl_b32 s{sT2}, s{sJ}, 5\ns_add_u32 s{sT2}, s{sT2}, {YB0}\nv_add_u32 v{cYX}, s{sT2}, v{cYX}")
    a(f"s_lshl_b32 s{sT0}, s{sJ}, 10\ns_add_u32 s{sT0}, s{sT0}, {SCR0}\nv_lshl_add_u32 v{cSW}, v0, 4, s{sT0}")
    a(f"v_mov_b32 v{cFL}, {FL0}\nv_mov_b32 v{cONE}, 1\nv_lshlrev_b32 v{cL4}, 3, v0\nv_lshlrev_b32 v{c128}, 9, v0")
    a(f"s_lshl_b32 s{sEV}, s{sR}, 2\ns_add_u32 s{sEV}, s{sEV}, s{sJ}\ns_lshl_b32 s{sEV}, s{sEV}, 2\ns_add_u32 s{sEV}, s{sEV}, s{sGB}\ns_add_u32 s{sEV}, s{sEV}, {L_Y2}")
    u_src(G, cU, cT, sSIG, sCOL)
    a(f"s_lshl_b32 s{sX4}, s{sJ}, 9\ns_add_u32 s{sX4}, s{sX4}, s{sGB}\ns_add_u32 s{sX4}, s{sX4}, {L_U1}")
    npf = 1 if o.prefill else 0
    if o.h2early: npf += 4
    a(f"s_waitcnt vmcnt({2+npf})")
    G.stamp(-1, 4)
    xa_build(G, 64, 80, cHA, XA0 + 384, 0)
    a(f"s_waitcnt vmcnt({npf})")
    xa_build(G, 72, 16, cHA, XA0 + 384 + 1024, 1)
    if o.h2early:
        a(f"s_waitcnt vmcnt({npf-2})")
        xa_build(G, 112, 80, cHA, XA0 + 384 + 2048, 2)
        a(f"s_waitcnt vmcnt({npf-4})")
        xa_build(G, 120, 16, cHA, XA0 + 384 + 3072, 3)
    get_nonce(G, cFL, cT, cF)
    G.stamp(-1, -1)
    def detect(R):
        SW, NX = G.lab("dsw"), G.lab("dnx")
        a("s_mov_b64 exec, -1")
        a(f"ds_read_b32 v{cT}, v{cFL} offset:{F_M}\ns_waitcnt lgkmcnt(0)\nv_readfirstlane_b32 s{sT0}, v{cT}")
        a(f"s_cmp_eq_u32 s{sT0}, 0\ns_cbranch_scc0 {SW}")
        a(f"s_cmp_eq_u32 s{sJ}, 0\ns_cbranch_scc0 {NX}")
        a(f"s_sub_u32 s{sT2}, s{sF}, s{sN}\ns_sub_u32 s{sT2}, s{sT2}, 1\ns_mul_i32 s{sT3}, s{sT2}, s{sT2}\ns_lshl_b32 s{sT3}, s{sT3}, 16")
        a(f"s_lshl_b32 s{sT2}, s{sT2}, 8\ns_add_u32 s{sT2}, s{sT2}, s{sT3}\ns_add_u32 s{sT2}, s{sT2}, 1\ns_lshl_b32 s{sT3}, s{sT2}, 5")
        a(f"s_cmp_eq_u32 s{sCNT}, 64\ns_cselect_b32 s{sT2}, s{sT2}, 0")
        a(f"s_mov_b64 exec, 1\nv_mov_b32 v{cT}, s{sT2}")
        a(f"buffer_atomic_add v{cT}, off, s[{sDG}:{sDG+3}], s{sDGO} sc0 sc1")
        a("s_waitcnt vmcnt(0)")
        a(f"v_readfirstlane_b32 s{sT0}, v{cT}\ns_mov_b64 exec, -1\ns_add_u32 s{sT0}, s{sT0}, s{sT2}")
        if not o.force_mode1:
            a(f"s_cmp_eq_u32 s{sT0}, s{sT3}\ns_cbranch_scc1 {NX}")
        a(f"s_and_b32 s{sT0}, s{sT0}, 0xff\ns_cmp_ge_u32 s{sT0}, 32\ns_cbranch_scc0 {NX}")
        a(f"ds_write_b32 v{cFL}, v{cONE} offset:{F_M}")
        a(f"{SW}:")
        to_mode1(G, cF)
        a(f"s_add_u32 s{sX4}, s{sX4}, {UOFF}\ns_mov_b32 s{sLR}, s{sN}")
        a(f"{NX}:")
    if o.force_mode1:
        a(f"s_add_u32 s{sF}, s{sF}, 0")
    if not o.iso:
        if o.force_mode1:
            a(f"s_xor_b32 s{sLR}, s{sF}, 0x40000000")
        poll_line(G, cL4, sX4, 2, 80, (f"s{sDGO}", 4), 128, sleep=0, detect=detect, scmp=(sLR if o.force_mode1 else sF))
    G.stamp(-1, 5)
    u_loads(G, 64, cU, (3, 2, 1, 0) if o.u2early else (3, 2))
    lds_count(G, cFL, cONE, C_GO)
    u_pad_write(G, 62, cZ)
    a(f"s_cmp_lg_u32 s{sM}, 0\ns_cselect_b64 vcc, -1, 0")
    n2 = 2 if o.u2early else 0
    a(f"s_waitcnt vmcnt({1+n2})")
    u_write(G, 64, cHB, cHB0, 3)
    a(f"s_waitcnt vmcnt({n2})")
    u_write(G, 68, cHB, cHB0, 2)
    if o.u2early:
        a(f"v_add_u32 v{cU}, {(-2048) & 0xffffffff}, v{cHB0}\ns_waitcnt vmcnt(1)")
        u_write(G, 72, cHB, cU, 1)
        a(f"s_waitcnt vmcnt(0)")
        u_write(G, 76, cHB, cU, 0)
    G.stamp(2, 6, 2)
    a(f"s_cmp_eq_u32 s{sTS}, 0")
    a("s_cbranch_scc0 L_C1")
    st0 = c_stream(G, 0)
    a("L_C1:")
    st1 = c_stream(G, 1)
    a("L_exit:")
    a("s_endpgm")

    head = open("cdna_kernels/" + NAME + ".s.ref").read().split("\n")
    hdr = [l for l in head if l.startswith("; Kernarg") or l.startswith(";   offset")]
    out = hdr + [f"; @launch grid=(256,1,1) block=(896,1,1) lds={LDS_SZ}",
                 '.amdgcn_target "amdgcn-amd-amdhsa--gfx950"', ".text", f".globl {K}", ".p2align 8", f".type {K},@function"]
    out += G.L
    out += ['.section .rodata,"a"', ".p2align 6", f".amdhsa_kernel {K}",
            "  .amdhsa_next_free_vgpr 128", "  .amdhsa_next_free_sgpr 102", "  .amdhsa_accum_offset 128",
            "  .amdhsa_group_segment_fixed_size 0", "  .amdhsa_kernarg_size 120", "  .amdhsa_user_sgpr_count 2",
            "  .amdhsa_user_sgpr_kernarg_segment_ptr 1", "  .amdhsa_system_sgpr_workgroup_id_x 1",
            "  .amdhsa_float_denorm_mode_32 3", ".end_amdhsa_kernel", ""]
    print("stream stats (mfma, ds, max/gap, gaps>1):", st0, st1, file=sys.stderr)
    return "\n".join(out)


if __name__ == "__main__":
    ap = argparse.ArgumentParser()
    ap.add_argument("-o", default="cdna_kernels/" + NAME + ".s")
    ap.add_argument("opts", nargs="*")
    args = ap.parse_args()
    o = Opt()
    for kv in args.opts:
        k, v = kv.split("=", 1)
        cur = getattr(o, k)
        setattr(o, k, (v not in ("0", "False", "")) if isinstance(cur, bool) else type(cur)(v))
    open(args.o, "w").write(gen(o))
```

```python
import sys, argparse

NAME = "concat_heads__ssm_conv_h3__ssm_conv_h3__prompt"

RS_IN = 1152
RS_OUT = 2304
TENS = 2359296
OUTB = 4718592
PLANE = 4640
XA_SZ = 4 * PLANE
UP1 = 4224
U_SZ = 2 * UP1
XA0 = 0
U0 = 5 * XA_SZ
STG_SZ = 5120
STGX = U0 + 5 * U_SZ
YB0 = STGX
XT0 = YB0 + 8192
SCR0 = XT0 + 2048
FL0 = SCR0 + 16384 + 1536
LDS_SZ = FL0 + 64
F_N, F_V, C_GO, F_M, C_U0, C_U1, C_R, C_H, F_X, F_U2, F_YX, C_P, C_Y1, C_Y2, C_YX = [4 * i for i in range(15)]
CT_OFF = 16 << 20
L_U1, L_U2, L_Y1, L_Y2 = 0, 2048, 4096, 6144
XU_OFF, XY_OFF = 10 << 20, 12 << 20
UOFF = 8192
GSTRIDE = 16384
TILE_STEP = 256 * RS_OUT
CAP_G = 1 << 15
CAP_L = 1 << 17
W_S, W_C = 0, 10


class Opt:
    stamps = False
    only07 = False
    force_mode1 = False
    ld_nt = "nt"
    out_flag = ""
    lead = 16
    prefetch_code = True
    prefill = True
    sleep = 1
    cyc = False
    iso = False
    dspan = False
    early = False
    order = "ax123"
    ya = 6
    uxearly = True
    pfx = False
    kvfirst = True
    seq2 = False
    konly = False
    q1w2 = False
    stag = 2
    ydata = True
    ygo = 0
    ysleep = 1
    pfyx = True
    pfux = False
    ulead = 7
    xlead = 9
    yxearly = False
    e2lvl = 5
    y1dir = True
    merge = False
    y1ack = 25
    lsleep = 0
    x_skip = ""
    nock = ""
    wbatch = 8
    apre = True
    qw2 = False
    redlate = False
    u2first = True
    x_noaux = 0
    split3 = False
    defer = False
    golate = False
    y1wait = 25
    y1pos = 90
    w3 = False
    w1only = False
    noh = False
    nohalo = False
    h2early = True
    u2early = False
    mid = False
    hiprio = 3
    x_noh2 = False
    x_nogate = False
    x_nou2 = False
    x_nock = False
    x_noq = False
    k_nt = "nt"
    h_nt = "nt"
    yxack = True
    cprio = 2
    eprio = 0
    sprio = 3
    nopk = True
    tl_fl = "sc1"
    noq = False
    pf_nt = ""
    dma_fl = "sc1"
    win = True


STAMP_REGS = [88, 90, 92, 94, 96, 98, 36, 38]


class Gen:
    def __init__(self, o):
        self.o = o
        self.L = []
        self.uid = 0
        self.cold = []
    def a(self, s):
        for ln in s.split("\n"):
            self.L.append("    " + ln.strip() if not ln.strip().endswith(":") else ln.strip())
    def flush_cold(self):
        while self.cold:
            c, self.cold = self.cold, []
            for fn in c: fn()
    def lab(self, base):
        self.uid += 1
        return f"L_{base}_{self.uid}"
    def srd(self, d, lo, nrec):
        if lo is not None and lo != d:
            self.a(f"s_mov_b64 s[{d}:{d+1}], s[{lo}:{lo+1}]")
        self.a(f"s_mov_b32 s{d+2}, {nrec}\ns_mov_b32 s{d+3}, 0x00020000")
    def stamp(self, i, early=None, mid=None):
        if self.o.early: i = -1 if early is None else early
        if self.o.mid and i != 7: i = -1 if mid is None else mid
        if self.o.only07 and i != 7: i = -1
        if (self.o.stamps or self.o.dspan) and i >= 0:
            r = STAMP_REGS[i]
            self.a(f"{'s_memtime' if self.o.cyc else 's_memrealtime'} s[{r}:{r+1}]")


sWV, sG, sR, sH, sGQ = 3, 4, 5, 6, 7
sT0, sT1, sT2, sT3 = 8, 9, 10, 11
sM, sEV, sCNT, sSIG = 12, 13, 14, 15
pOUT, pDBG, pWS = 40, 42, 44
sK, sV, sQ, sW, sD, sXU, sXY, sOUT, sCT, sHH = 48, 52, 56, 60, 64, 68, 72, 76, 80, 84
sDG = 60
sROW0, sLC, sCOL, sLR, sCHJ, sX1, sX2, sX3, sX4, sF, sN = 16, 17, 18, 19, 20, 21, 22, 23, 24, 26, 27
sWMY, sTS, sGB, sDGO, sJ = 28, 32, 33, 34, 35
sTAG = 25
sE, sSTG = 100, 101


def poll_line(G, vl, soff, w, vt, cnt, n, sleep=None, scmp=sF, detect=None):
    L, D, C, R = G.lab("pg"), G.lab("pgd"), G.lab("pgc"), G.lab("pgr")
    G.a(f"s_mov_b32 s{sCNT}, 0")
    G.a(f"{L}:")
    G.a(f"buffer_load_dwordx{w} v[{vt}:{vt+w-1}], v{vl}, s[{sCT}:{sCT+3}], s{soff} offen sc1")
    G.a(f"s_add_u32 s{sCNT}, s{sCNT}, 1")
    G.a("s_waitcnt vmcnt(0)")
    G.a(f"v_xor_b32 v{vt}, s{scmp}, v{vt}")
    for k in range(1, w):
        G.a(f"v_bitop3_b32 v{vt}, v{vt}, v{vt+k}, s{scmp} bitop3:0xf6")
    G.a(f"v_cmp_ne_u32 vcc, 0, v{vt}")
    G.a(f"s_cbranch_vccz {D}")
    sl = G.o.sleep if sleep is None else sleep
    if sl:
        G.a(f"s_sleep {sl}")
    G.a(f"s_and_b32 s{sT0}, s{sCNT}, 63\ns_cbranch_scc1 {L}")
    G.a(f"s_branch {C}")
    G.a(f"{D}:")
    def cold():
        G.a(f"{C}:")
        R0 = G.lab("pgx") if detect else R
        G.a(f"s_cmp_eq_u32 s{sM}, 0\ns_cbranch_scc1 {R0}")
        G.a(f"s_mov_b64 exec, 1\nv_mov_b32 v{vt}, 0")
        G.a(f"buffer_atomic_add v{vt}, off, s[{sDG}:{sDG+3}], {cnt[0]} offset:{cnt[1]} sc0 sc1")
        G.a(f"s_waitcnt vmcnt(0)")
        G.a(f"v_readfirstlane_b32 s{sT0}, v{vt}\ns_mov_b64 exec, -1")
        G.a(f"s_cmp_ge_u32 s{sT0}, {n}\ns_cbranch_scc1 {D}")
        G.a(f"{R}:")
        G.a(f"s_cmp_lt_u32 s{sCNT}, {CAP_G}\ns_cbranch_scc1 {L}\ns_branch {D}")
        if detect:
            G.a(f"{R0}:")
            detect(R)
            G.a(f"s_branch {R}")
    G.cold.append(cold)


def poll_lds(G, vfl, off, expected, vt, sleep=1, pair=None, hook=None):
    L, D = G.lab("pl"), G.lab("pld")
    G.a(f"s_mov_b32 s{sCNT}, 0")
    G.a(f"{L}:")
    if pair is None:
        G.a(f"ds_read_b32 v{vt}, v{vfl} offset:{off}")
    else:
        G.a(f"ds_read_b64 v[{vt}:{vt+1}], v{vfl} offset:{off}")
    G.a(f"s_add_u32 s{sCNT}, s{sCNT}, 1")
    G.a("s_waitcnt lgkmcnt(0)")
    G.a(f"v_readfirstlane_b32 s{sT0}, v{vt}")
    if pair is not None:
        G.a(f"v_readfirstlane_b32 s{pair}, v{vt+1}")
    if hook: hook(L)
    G.a(f"s_cmp_ge_u32 s{sT0}, {expected}")
    G.a(f"s_cbranch_scc1 {D}")
    G.a(f"s_sleep {max(sleep, G.o.lsleep)}")
    G.a(f"s_cmp_lt_u32 s{sCNT}, {CAP_L}")
    G.a(f"s_cbranch_scc1 {L}")
    G.a(f"{D}:")


def get_nonce(G, vfl, vt, vf):
    L, D = G.lab("gn"), G.lab("gnd")
    G.a(f"s_getreg_b32 s{sF}, hwreg(HW_REG_XCC_ID, 0, 4)\ns_mov_b32 s{sCNT}, 0")
    G.a(f"{L}:")
    G.a(f"ds_read_b64 v[{vt}:{vt+1}], v{vfl} offset:{F_N}")
    G.a(f"s_add_u32 s{sCNT}, s{sCNT}, 1")
    G.a("s_waitcnt lgkmcnt(0)")
    G.a(f"v_readfirstlane_b32 s{sTAG}, v{vt+1}")
    G.a(f"v_readfirstlane_b32 s{sN}, v{vt}")
    G.a(f"s_cmp_ge_u32 s{sTAG}, 1")
    G.a(f"s_cbranch_scc1 {D}")
    G.a("s_sleep 1")
    G.a(f"s_cmp_lt_u32 s{sCNT}, {CAP_L}")
    G.a(f"s_cbranch_scc1 {L}")
    G.a(f"{D}:")
    G.a(f"s_add_u32 s{sF}, s{sF}, s{sN}\ns_add_u32 s{sF}, s{sF}, 1\nv_mov_b32 v{vf}, s{sF}\ns_and_b32 s{sTAG}, s{sTAG}, 0xffff")


def to_mode1(G, vf):
    G.a(f"s_mov_b32 s{sM}, 1\ns_mov_b32 s{sF}, s{sN}\nv_mov_b32 v{vf}, s{sN}")
    G.a(f"s_add_u32 s{sGB}, s{sGB}, {UOFF}")
    G.a(f"s_mov_b64 s[{sXU}:{sXU+1}], s[{pWS}:{pWS+1}]")
    G.a(f"s_add_u32 s{sXY}, s{pWS}, {OUTB}\ns_addc_u32 s{sXY+1}, s{pWS+1}, 0")


def adopt_mode(G, sm, vf):
    A, B = G.lab("am"), G.lab("amb")
    G.a(f"s_cmp_gt_u32 s{sm}, s{sM}\ns_cbranch_scc1 {A}")
    G.a(f"{B}:")
    def cold():
        G.a(f"{A}:")
        to_mode1(G, vf)
        G.a(f"s_branch {B}")
    G.cold.append(cold)


def signal(G, vf, vrep, sslot, line, w, cnt, vt):
    A, B = G.lab("ma"), G.lab("mb")
    G.a(f"s_mov_b64 exec, 15")
    G.a(f"s_cmp_eq_u32 s{sM}, 0\ns_cbranch_scc0 {A}")
    G.a(f"buffer_store_dword v{vf}, v{vrep}, s[{sCT}:{sCT+3}], s{sslot} offen")
    G.a(f"{B}:")
    G.a("s_mov_b64 exec, -1")
    def cold():
        G.a(f"{A}:")
        G.a(f"s_mov_b64 exec, 1\nv_mov_b32 v{vt}, 1")
        G.a(f"buffer_atomic_add v{vt}, off, s[{sDG}:{sDG+3}], s{sDGO} offset:{cnt} sc0 sc1")
        G.a("s_waitcnt vmcnt(0)")
        G.a(f"v_readfirstlane_b32 s{sT0}, v{vt}")
        G.a(f"s_cmp_eq_u32 s{sT0}, {64*w-1}\ns_cbranch_scc0 {B}")
        G.a(f"s_mov_b64 exec, -1\ns_add_u32 s{sT1}, s{sGB}, {line}")
        G.a(f"v_lshlrev_b32 v{vt+4}, 4, v0")
        for k in range(4): G.a(f"v_mov_b32 v{vt+k}, v{vf}")
        for fl in (" sc1", ""):
            for k in range(w):
                G.a(f"buffer_store_dwordx4 v[{vt}:{vt+3}], v{vt+4}, s[{sCT}:{sCT+3}], s{sT1} offen offset:{1024*k}{fl}")
        G.a(f"s_branch {B}")
    G.cold.append(cold)


def tagged_loads(G, n, r0, vaddr, srd, offs, vt, after=None):
    L, D, C = G.lab("tl"), G.lab("tld"), G.lab("tlc")
    def loads():
        for k in range(n):
            so, io = offs(k)
            if so: G.a(f"s_mov_b32 s{sT1}, {so}")
            G.a(f"buffer_load_dwordx4 v[{r0+4*k}:{r0+4*k+3}], v{vaddr}, s[{srd}:{srd+3}], {'s%d' % sT1 if so else 0} offen offset:{io} {G.o.tl_fl}")
    G.a(f"s_mov_b32 s{sCNT}, 0")
    loads()
    nyoung = after() if after else 0
    G.a(f"s_waitcnt vmcnt({nyoung})")
    if after: G.stamp(-1, 5, 2)
    G.a(f"{L}:")
    G.a(f"v_xor_b32 v{vt}, s{sTAG}, v{r0}")
    for k in range(1, 4 * n):
        G.a(f"v_bitop3_b32 v{vt}, v{vt}, v{r0+k}, s{sTAG} bitop3:0xf6")
    G.a(f"v_and_b32 v{vt}, 0xffff, v{vt}")
    G.a(f"v_cmp_ne_u32 vcc, 0, v{vt}")
    G.a(f"s_cbranch_vccnz {C}")
    G.a(f"{D}:")
    def cold():
        G.a(f"{C}:")
        G.a(f"s_add_u32 s{sCNT}, s{sCNT}, 1\ns_cmp_lt_u32 s{sCNT}, {CAP_G}\ns_cbranch_scc0 {D}")
        R = G.lab("tlr")
        G.a(f"s_and_b32 s{sT0}, s{sCNT}, 63\ns_cbranch_scc1 {R}\nbuffer_inv sc1\n{R}:")
        G.a("s_sleep 2")
        loads()
        G.a(f"s_waitcnt vmcnt(0)\ns_branch {L}")
    G.cold.append(cold)


def ctl_srd(G):
    G.a(f"s_add_u32 s{sCT}, s{pWS}, {CT_OFF}\ns_addc_u32 s{sCT+1}, s{pWS+1}, 0")
    G.srd(sCT, None, 9 * GSTRIDE)
    G.a(f"s_add_u32 s{sGB}, s{sG}, 1\ns_lshl_b32 s{sGB}, s{sGB}, 14")


def misc_srd(G):
    G.srd(sDG, pDBG, 256)
    G.a(f"s_mul_i32 s{sDGO}, s{sGQ}, 20\ns_lshl_b32 s{sT0}, s{sH}, 7\ns_add_u32 s{sDGO}, s{sDGO}, s{sT0}\ns_add_u32 s{sDGO}, s{sDGO}, 8")
    G.srd(sXU, pOUT, OUTB)
    G.srd(sXY, pOUT, OUTB)
    G.a(f"s_mov_b32 s{sM}, 0")


def chan_of(G, sj, dst):
    G.a(f"s_and_b32 s{sT1}, s{sR}, 12\ns_add_u32 s{sT1}, s{sT1}, s{sj}\ns_lshl_b32 s{sT1}, s{sT1}, 2\ns_and_b32 s{sT2}, s{sR}, 3\ns_add_u32 s{sT1}, s{sT1}, s{sT2}")
    G.a(f"s_lshr_b32 s{sT2}, s{sR}, 4\ns_lshl_b32 s{sT3}, s{sGQ}, 1\ns_add_u32 s{sT2}, s{sT2}, s{sT3}\ns_lshl_b32 s{sT2}, s{sT2}, 6\ns_add_u32 s{dst}, s{sT1}, s{sT2}")


def inbox_of(G, dst, slr):
    G.a(f"s_lshr_b32 s{sT2}, s{sR}, 4\ns_lshl_b32 s{sT3}, s{sGQ}, 1\ns_add_u32 s{sT2}, s{sT2}, s{sT3}\ns_lshl_b32 s{sT2}, s{sT2}, 7")
    G.a(f"s_mul_i32 s{dst}, s{sH}, 1152\ns_add_u32 s{dst}, s{dst}, s{sT2}\ns_and_b32 s{slr}, s{sR}, 15")


def xbox_of(G, dst, se, slr):
    G.a(f"s_lshl_b32 s{se}, s{sGQ}, 5\ns_add_u32 s{se}, s{se}, s{sR}\ns_lshr_b32 s{se}, s{se}, 1")
    G.a(f"s_lshr_b32 s{sT1}, s{se}, 4\ns_lshl_b32 s{sT1}, s{sT1}, 2\ns_and_b32 s{sT2}, s{se}, 3\ns_add_u32 s{slr}, s{sT1}, s{sT2}")
    G.a(f"s_bfe_u32 s{sT1}, s{se}, {(2<<16)|2}\ns_lshl_b32 s{sT1}, s{sT1}, 6")
    G.a(f"s_lshl_b32 s{sT2}, s{sH}, 19\ns_add_u32 s{dst}, s{sT1}, s{sT2}")


def blk_addr(G, vd, vt, slr, rowb, scol):
    G.a(f"v_add_u32 v{vt}, s{slr}, v{vd}\nv_and_b32 v{vt}, 15, v{vt}\nv_lshl_add_u32 v{vd}, v{vd}, 4, v{vt}")
    G.a(f"v_mul_u32_u24 v{vd}, {rowb}, v{vd}\nv_add_u32 v{vd}, s{scol}, v{vd}")


def xa_loads(G, b, va, q):
    nt = G.o.h_nt
    if G.o.noh: return
    G.a(f"buffer_load_dwordx4 v[{b+2}:{b+5}], v{va}, s[{sHH}:{sHH+3}], 0 offen offset:{1024*q} {nt}")
    if q:
        G.a(f"s_mov_b64 exec, 1\nbuffer_load_dwordx2 v[{b}:{b+1}], v{va}, s[{sHH}:{sHH+3}], 0 offen offset:{1024*q-8} {nt}\ns_mov_b64 exec, -1")


def xa_build(G, b, t, vdst, off, q, plain=False):
    w = lambda i: b + 2 + i
    bc = "" if q else " bound_ctrl:0"
    G.a(f"v_mov_b32_dpp v{b}, v{w(2)} wave_shr:1 row_mask:0xf bank_mask:0xf{bc}")
    G.a(f"v_mov_b32_dpp v{b+1}, v{w(3)} wave_shr:1 row_mask:0xf bank_mask:0xf{bc}")
    G.a(f"ds_write_b128 v{vdst}, v[{b+2}:{b+5}] offset:{off + 3*PLANE}")
    for i in range(4):
        G.a(f"v_alignbit_b32 v{t+i}, v{w(i-1)}, v{w(i-2)}, 16")
    G.a(f"ds_write_b128 v{vdst}, v[{t}:{t+3}] offset:{off}")
    for i in range(4):
        G.a(f"v_alignbit_b32 v{t+4+i}, v{w(i)}, v{w(i-1)}, 16")
    G.a(f"ds_write_b128 v{vdst}, v[{t+4}:{t+7}] offset:{off + 2*PLANE}")
    if plain:
        for i in range(4): G.a(f"v_mov_b32 v{t+8+i}, v{w(i-1)}")
    else:
        G.a(f"v_pk_mov_b32 v[{t+8}:{t+9}], v[{b}:{b+1}], v[{b+2}:{b+3}] op_sel:[1,0]")
        G.a(f"v_pk_mov_b32 v[{t+10}:{t+11}], v[{b+2}:{b+3}], v[{b+4}:{b+5}] op_sel:[1,0]")
    G.a(f"ds_write_b128 v{vdst}, v[{t+8}:{t+11}] offset:{off + PLANE}")


def transpose4(G, regs):
    G.a("s_nop 1")
    for j in (0, 1):
        for d in (0, 1):
            G.a(f"v_permlane32_swap_b32 v{regs[j]+d}, v{regs[j+2]+d}")
    G.a("s_nop 1")
    for j in (0, 2):
        for d in (0, 1):
            G.a(f"v_permlane16_swap_b32 v{regs[j]+d}, v{regs[j+1]+d}")


def u_src(G, vd, vt, slr, scol):
    G.a(f"v_lshrrev_b32 v{vd}, 1, v0\nv_sub_u32 v{vd}, 31, v{vd}")
    blk_addr(G, vd, vt, slr, RS_OUT, scol)
    G.a(f"v_and_b32 v{vt}, 1, v0\nv_lshl_add_u32 v{vd}, v{vt}, 4, v{vd}")


def u_loads(G, r, vsrc, qs):
    for k, q in enumerate(qs):
        G.a(f"s_mov_b32 s{sT1}, {(3-q)*32*16*RS_OUT}")
        G.a(f"buffer_load_dwordx4 v[{r+4*k}:{r+4*k+3}], v{vsrc}, s[{sXU}:{sXU+3}], s{sT1} offen {G.o.dma_fl}")


def u_write(G, r, vdst, vdst1, q):
    G.a(f"ds_write_b128 v{vdst}, v[{r}:{r+3}] offset:{1024*q}")
    G.a(f"ds_write2_b64 v{vdst1}, v[{r}:{r+1}], v[{r+2}:{r+3}] offset0:{128*q if q < 2 else 128*(q-2)} offset1:{(128*q if q < 2 else 128*(q-2))+1}")


def u_pad(G, vt, vz, subase):
    G.a(f"v_lshlrev_b32 v{vt}, 3, v0\nv_cmp_lt_u32 vcc, 14, v0\nv_add_u32 v{vt}, {subase}, v{vt}\nv_add_u32 v{vt+1}, 4096, v{vt}")
    G.a(f"v_cndmask_b32 v{vt}, v{vt}, v{vt+1}, vcc")


def u_pad_write(G, vt, vz):
    G.a(f"s_mov_b32 exec_hi, 0\nds_write_b64 v{vt}, v[{vz}:{vz+1}] offset:4096\ns_mov_b32 exec_hi, -1")


def pk(G, op, d, x, y, z=None, force=False):
    if G.o.nopk and not force:
        for i in (0, 1):
            G.a(f"v_{op}_f32 v{d+i}, v{x+i}, v{y+i}" + (f", v{z+i}" if z is not None else ""))
    else:
        G.a(f"v_pk_{op}_f32 v[{d}:{d+1}], v[{x}:{x+1}], v[{y}:{y+1}]" + (f", v[{z}:{z+1}]" if z is not None else ""))


def lds_count(G, vfl, vone, off):
    G.a(f"s_mov_b64 exec, 1\nds_add_u32 v{vfl}, v{vone} offset:{off}\ns_mov_b64 exec, -1")


def finish(G):
    if G.o.dspan:
        G.a("s_waitcnt vmcnt(0)")
        G.stamp(7, 7)
        G.srd(sK, pDBG, 256)
        D = G.lab("ds")
        G.a(f"s_waitcnt lgkmcnt(0)\ns_and_b32 s{sT0}, s2, 0x78\ns_cbranch_scc1 {D}")
        G.a(f"s_cmp_eq_u32 s{sWV}, 10\ns_cselect_b32 s{sT1}, 0, 32\ns_cselect_b32 s{sT0}, 1, 0\ns_cmp_eq_u32 s{sWV}, 9\ns_cselect_b32 s{sT0}, 1, s{sT0}\ns_cmp_eq_u32 s{sT0}, 1\ns_cbranch_scc0 {D}")
        G.a("s_not_b32 s90, s88")
        G.a("s_mov_b64 exec, 1")
        for i in range(8):
            G.a(f"v_mov_b32 v8, s{STAMP_REGS[i]}\nbuffer_atomic_umax v8, off, s[{sK}:{sK+3}], s{sT1} offset:{4*i} sc1")
        G.a(f"{D}:")
        G.a("s_endpgm")
        G.flush_cold()
        return
    if G.o.stamps:
        G.a("s_waitcnt vmcnt(0)")
        G.stamp(7, 7)
        G.a(f"s_add_u32 s{sT2}, s{pWS}, {64<<20}\ns_addc_u32 s{sT3}, s{pWS+1}, 0")
        G.srd(sK, sT2, 1 << 20)
        G.a(f"s_lshl_b32 s{sT0}, s2, 4\ns_add_u32 s{sT0}, s{sT0}, s{sWV}\ns_lshl_b32 s{sT0}, s{sT0}, 5")
        G.a("s_waitcnt lgkmcnt(0)")
        for i in range(8):
            G.a(f"v_mov_b32 v{8+i}, s{STAMP_REGS[i]}")
        G.a("s_mov_b64 exec, 1")
        G.a(f"buffer_store_dwordx4 v[8:11], off, s[{sK}:{sK+3}], s{sT0}")
        G.a(f"buffer_store_dwordx4 v[12:15], off, s[{sK}:{sK+3}], s{sT0} offset:16")
    G.a("s_endpgm")
    G.flush_cold()


class Stream:
    def __init__(self, G, slots, lead):
        self.G, self.slots, self.lead = G, slots, lead
        self.mf = []
        self.side = {}
        self.busy = {}
        self.avail = {}
        self.gate = {}
    def mfma(self, acc, A, B, zero):
        self.mf.append((acc, A, B, zero))
    def at(self, pos, fn, ds=0):
        self.side.setdefault(pos, []).append(fn)
        self.busy[pos] = self.busy.get(pos, 0) + ds
    def spread(self, pos, lines, step=1):
        for ln in lines:
            self.at(pos, lambda S_, ln=ln: S_.G.a(ln))
            pos += step
        return pos
    def emit(self, loadtext, pre=None):
        G = self.G
        n = len(self.mf)
        first, last, order = {}, {}, []
        for i, (acc, A, B, z) in enumerate(self.mf):
            for k in (A, B):
                if k not in first:
                    first[k] = i; order.append(k)
                last[k] = i
        free = [self.avail.get(r, 0) for r in self.slots]
        sched = {}
        cnt = [self.busy.get(i, 0) for i in range(n + 1)]
        slot_of = {}
        prev = 0
        for k in order:
            s = min(range(len(free)), key=lambda j: free[j])
            ops = loadtext(k, self.slots[s])
            lo = max(self.gate.get(k[0:2] + (k[2] >> 2,), 0), free[s], prev)
            slot_of[k] = self.slots[s]
            for op in ops:
                p = max(lo, first[k] - self.lead)
                hi = max(p, first[k] - 4)
                q = min(range(p, hi + 1), key=lambda x: (cnt[x], x))
                p = min(q, first[k])
                assert p >= lo, (k, p, lo)
                cnt[p] += 1
                sched.setdefault(p, []).append((k, op))
                prev = lo = p
            free[s] = last[k] + 1
        self.nds = 0
        self.done = 0
        ready = {}
        issued = []
        if pre:
            for k, op in sched.get(0, []):
                if k[1] == "A": G.a(op); self.nds += 1; ready[k] = self.nds
            sched[0] = [e for e in sched.get(0, []) if e[0][1] != "A"]
            self.nds += pre()
        for i in range(n + 1):
            for fn in self.side.get(i, []):
                fn(self)
            for k, op in sched.get(i, []):
                G.a(op); self.nds += 1; ready[k] = self.nds
            issued.append(self.nds)
            if i == n: break
            acc, A, B, z = self.mf[i]
            nd = max(ready[A], ready[B])
            if nd > self.done and G.o.wbatch and i >= G.o.wbatch:
                nd = max(nd, issued[i - G.o.wbatch])
            self.need(nd)
            a_, b_ = slot_of[A], slot_of[B]
            c = "0" if z else f"v[{acc}:{acc+3}]"
            G.a(f"v_mfma_f32_16x16x32_bf16 v[{acc}:{acc+3}], v[{a_}:{a_+3}], v[{b_}:{b_+3}], {c}")
        self.stats = (n, sum(cnt), max(cnt), sum(1 for c in cnt if c > 1))
    def ds(self, text):
        self.G.a(text); self.nds += 1
        return self.nds
    def need(self, idx):
        if idx > self.done:
            out = min(self.nds - idx, 15)
            self.G.a(f"s_waitcnt lgkmcnt({out})")
            self.done = self.nds - out


cA, cB, cAX, cBX, cY, cYX, cSW, cSR, cFL, cONE, c128, cT, cF, cL4 = 1, 2, 3, 4, 5, 6, 7, 8, 9, 10, 11, 12, 14, 15


def c_stream(G, ts, pre=None):
    o = G.o
    ACC = 16
    PK = 48
    ACX = 56
    slots = [72 + 4 * i for i in range(14)]
    S = Stream(G, slots, o.lead)
    acc = lambda t: ACC + 4 * t
    S.nst = 0
    seen = set()
    def add(ph, ch, pairs, ys, accf):
        for y in ys:
            for (x, b) in pairs:
                r = accf(x + b)
                S.mfma(r, (ph, "A", x, y, ch), (ph, "B", b, y, ch), (r, ch) not in seen)
                seen.add((r, ch))
    def loadtext(k, r):
        ph, typ, i, y, ch = k
        if typ == "A":
            return [f"ds_read_b128 v[{r}:{r+3}], v{cAX if ch else cA} offset:{512*i + 64*y}"]
        off = 512 * (7 - i) + 64 * y
        v = cBX if ch else cB
        return [f"ds_read_b128 v[{r}:{r+3}], v{v} offset:{off}"]
    p1 = [(x, b) for x in range(4) for b in range(4)]
    p1.sort(key=lambda p: (max(p), p[0] + p[1]))
    p1only = list(p1)
    p2 = [(4, 0), (5, 0), (4, 1), (6, 0), (5, 1), (4, 2), (7, 0), (6, 1), (5, 2), (4, 3)]
    p3 = [(x, b) for (b, x) in p2]
    tiles = [0, 3, 4, 7] if ts == 0 else [1, 2, 5, 6]
    px = [(x, b) for x in range(4, 8) for b in range(4) if x + b in tiles] + \
         [(x, b) for x in range(4) for b in range(4) if x + b in tiles] + \
         [(x, b) for x in range(4) for b in range(4, 8) if x + b in tiles]
    assert len(px) == 18
    use = []
    for (x, b) in px:
        if x + b not in use: use.append(x + b)
    accx = lambda t: ACX + 4 * use.index(t)
    if o.merge: p1 = p2 + p1
    beg, end = {}, {}
    for ph in o.order:
        if ph == "2" and o.merge: continue
        beg[ph] = len(S.mf)
        if ph == "a": add(1, 0, p1, range(o.ya), acc)
        if ph == "1": add(1, 0, p1, range(o.ya if "a" in o.order else 0, 8), acc)
        if ph == "x": add(2, 1, px, range(2), accx)
        if ph == "2": add(3, 0, p2, range(8), acc)
        if ph == "3" and not o.split3: add(4, 0, p3, range(8), acc)
        if ph == "3" and o.split3:
            add(4, 0, [p for p in p3 if sum(p) < 6], range(8), acc)
            e3a = len(S.mf)
            add(6, 0, [p for p in p3 if sum(p) >= 6], range(8), acc)
        if ph == "5": add(5, 0, p2 + p3, range(8), acc)
        end[ph] = len(S.mf)
    e1, ex, e3 = end["1"], end["x"], len(S.mf)
    S.mf[e1 - 16:e1] = sorted(S.mf[e1 - 16:e1], key=lambda m: m[0])

    def check(pos, off, expected):
        st = {}
        def rd(S_):
            st["i"] = S_.ds(f"ds_read_b32 v{cT}, v{cFL} offset:{off}")
        def ck(S_):
            S_.need(st["i"])
            if o.iso or o.x_nock or {F_X: 'X', C_U0: 'S', F_U2: 'U', C_H: 'H'}[off] in o.nock: return
            D, C = G.lab("ck"), G.lab("ckc")
            G.a(f"v_readfirstlane_b32 s{sT0}, v{cT}")
            G.a(f"s_cmp_ge_u32 s{sT0}, {expected}")
            G.a(f"s_cbranch_scc0 {C}")
            G.a(f"{D}:")
            def cold():
                G.a(f"{C}:")
                poll_lds(G, cFL, off, expected, cT)
                G.a(f"s_branch {D}")
            G.cold.append(cold)
        S.at(max(pos - 5, 0), rd, ds=1); S.at(max(pos, 0), ck)
    def count(pos, off):
        def f(S_):
            G.a("s_mov_b64 exec, 1")
            S_.ds(f"ds_add_u32 v{cFL}, v{cONE} offset:{off}")
            G.a("s_mov_b64 exec, -1")
        S.at(pos, f, ds=1)
    def ystore1(t, pk):
        A, B = G.lab("ys"), G.lab("yd")
        S.nst += 1
        G.a(f"s_mov_b32 s{sT1}, {t*TILE_STEP}")
        G.a(f"s_cbranch_vccnz {A}")
        G.a(f"buffer_store_dwordx2 v[{pk}:{pk+1}], v{cY}, s[{sXY}:{sXY+3}], s{sT1} offen")
        G.a(f"{B}:")
        def cold():
            G.a(f"{A}:")
            G.a(f"buffer_store_dwordx2 v[{pk}:{pk+1}], v{cY}, s[{sXY}:{sXY+3}], s{sT1} offen sc1")
            G.a(f"s_branch {B}")
        G.cold.append(cold)
    Ld = o.lead + 1
    check(beg["x"] - o.xlead, F_X, 1)
    for h in (0, 1):
        S.gate[(2, "A", h)] = S.gate[(2, "B", h)] = beg["x"] - o.xlead
    if not o.h2early:
        check(beg["2"] - Ld, C_H, 4)
        S.gate[(3, "A", 1)] = beg["2"] - Ld
    if not o.u2early:
        check(beg["3"] - o.ulead, F_U2, 4)
        S.gate[(4, "B", 1)] = beg["3"] - o.ulead
    lastw = {t: max(i for i in range(e1) if S.mf[i][0] == acc(t)) for t in range(4)}
    reuse = beg["x"]
    p = 0
    for t in range(4):
        p = max(p, lastw[t] + 9)
        r = acc(t)
        p = S.spread(p, [f"v_cvt_pk_bf16_f32 v{PK+2*t}, v{r}, v{r+1}", f"v_cvt_pk_bf16_f32 v{PK+2*t+1}, v{r+2}, v{r+3}"])
    if o.y1dir:
        if o.merge: p = e3 - 30
        for t in range(4):
            S.at(p, lambda S_, t=t: ystore1(t, PK + 2 * t))
            p += 2
        if not o.merge:
            def y1flag(S_):
                G.a(f"s_sub_u32 s{sX1}, s{sEV}, {L_Y2 - L_Y1}\ns_waitcnt vmcnt(0)")
                signal(G, cF, c128, sX1, L_Y1, 2, 8, 16)
            S.at(p + o.y1ack, y1flag)
    for t in range(0 if o.y1dir else 4):
        def yw(S_, t=t):
            S_.last_yw = S_.ds(f"ds_write_b64 v{cYX}, v[{PK+2*t}:{PK+2*t+1}] offset:{2048*t}")
        S.at(p, yw, ds=1)
        p += 2
    if not o.y1dir:
        S.at(p + 4, lambda S_: S_.need(S_.last_yw))
        count(p + 4, C_Y1)
    S.at(e1, lambda S_: G.stamp(3, mid=3))
    p = ex + 8
    if not o.konly: check(p, C_U0, 4)
    for i in range(4):
        def pw(S_, i=i):
            S_.last_pw = S_.ds(f"ds_write_b128 v{cSW}, v[{accx(tiles[i])}:{accx(tiles[i])+3}] offset:{4096*i}")
        S.at(p + i, pw, ds=1)
    S.at(p + 8, lambda S_: S_.need(S_.last_pw))
    count(p + 8, C_P)
    for i in range(4):
        S.slots.append(ACX + 4 * i); S.avail[ACX + 4 * i] = p + 9
    S.at(end.get("3", ex + 80), lambda S_: G.stamp(4, mid=4))
    S.at(ex, lambda S_: G.stamp(5, mid=5))
    n = e3
    P2 = ACC + 8
    def cvt(t):
        r = acc(t)
        return [f"v_cvt_pk_bf16_f32 v{P2+2*(t-4)}, v{r}, v{r+1}", f"v_cvt_pk_bf16_f32 v{P2+2*(t-4)+1}, v{r+2}, v{r+3}"]
    nl = 10 * o.stag
    S.mf[n - nl:] = sorted(S.mf[n - nl:], key=lambda m: m[0])
    p, late = 0, []
    for t in (4, 5, 6, 7):
        lw = max(i for i in range(n) if S.mf[i][0] == acc(t))
        p = max(p, lw + 9)
        if p + 2 <= n:
            p = S.spread(p, cvt(t))
            S.at(p, lambda S_, t=t: ystore1(t, P2 + 2 * (t - 4)))
        else:
            late.append((t, n - 1 - lw))
    def tail(S_):
        G.stamp(6, mid=6)
        states = 0
        for t, d in late:
            if d + states < 8:
                G.a(f"s_nop {8 - d - states - 1}"); states = 8 - d
            G.a("\n".join(cvt(t))); ystore1(t, P2 + 2 * (t - 4))
            states += 5
    S.at(n, tail)
    if o.ydata and o.ygo: count(n - o.ygo, C_Y2)
    S.emit(loadtext, pre)
    if o.ydata and not o.ygo: lds_count(G, cFL, cONE, C_Y2)
    G.a("s_waitcnt vmcnt(0)")
    signal(G, cF, c128, sEV, L_Y2, 2, 12, 16)
    finish(G)
    return S.stats


def gen(o):
    G = Gen(o)
    a = G.a
    nt = o.ld_nt
    K = NAME + "_kernel"
    GO2 = 8 if o.uxearly else 9
    GO3 = GO2 + (0 if o.h2early else 4)
    a(f"{K}:")
    a("s_cmp_ge_u32 s2, 256\ns_cbranch_scc1 L_exit")
    if o.stamps or o.dspan:
        a("s_memtime s[88:89]" if o.cyc else "s_memrealtime s[88:89]")
    a("s_load_dwordx16 s[16:31], s[0:1], 0")
    a("s_load_dwordx8 s[32:39], s[0:1], 64")
    a("s_load_dwordx4 s[40:43], s[0:1], 96")
    a("s_load_dwordx2 s[44:45], s[0:1], 112")
    a("v_lshrrev_b32 v1, 6, v0")
    a(f"s_and_b32 s{sG}, s2, 7")
    a(f"v_readfirstlane_b32 s{sWV}, v1")
    a("v_and_b32 v0, 63, v0")
    a(f"s_lshr_b32 s{sR}, s2, 3\ns_lshr_b32 s{sH}, s{sG}, 2\ns_and_b32 s{sGQ}, s{sG}, 3")
    a(f"s_cmp_eq_u32 s{sWV}, {W_S}\ns_cbranch_scc1 L_Si")
    a(f"s_cmp_ge_u32 s{sWV}, {W_C}\ns_cbranch_scc1 L_Ci")

    vIN, vK3, vWo, vDo, vG, vL = 1, 2, 3, 4, 5, 6
    vFL, vONE, vX, vO1, vO2, vT, vF, vL4, v128, vRD = 7, 8, 9, 10, 11, 12, 14, 15, 124, 126
    WR, DR, KR, VR, QR = 16, 24, 26, 40, 48
    WF, KF, KS, PKU = 56, 72, 100, 116
    a(f"s_sub_u32 s{sE}, s{sWV}, 2\ns_cselect_b32 s{sE}, 8, s{sE}\ns_and_b32 s{sT0}, s{sE}, 4\ns_cselect_b64 vcc, -1, 0")
    a(f"s_lshl_b32 s{sT1}, s{sR}, 1\ns_and_b32 s{sT2}, s{sE}, 4\ns_lshl_b32 s{sT2}, s{sT2}, 4\ns_add_u32 s{sT1}, s{sT1}, s{sT2}")
    a(f"s_bfe_u32 s{sT2}, s{sE}, {(1<<16)|1}\ns_add_u32 s{sT1}, s{sT1}, s{sT2}")
    a(f"s_lshl_b32 s{sT0}, s{sGQ}, 1\ns_and_b32 s{sT3}, s{sE}, 1\ns_add_u32 s{sT0}, s{sT0}, s{sT3}")
    a(f"s_lshl_b32 s{sT2}, s{sGQ}, 5\ns_add_u32 s{sT2}, s{sT2}, s{sR}")
    a(f"v_lshrrev_b32 v{vK3}, 3, v0\nv_mul_u32_u24 v{vK3}, {RS_IN}, v{vK3}\nv_and_b32 v{vWo}, 7, v0\nv_lshl_add_u32 v{vK3}, v{vWo}, 4, v{vK3}")
    a(f"s_cmp_eq_u32 s{sE}, 8")
    a(f"s_cselect_b32 s46, 8, s{sT0}\ns_cselect_b32 s47, s{sT2}, s{sT1}")
    a(f"s_mul_i32 s{sT0}, s47, {16*RS_IN}\ns_lshl_b32 s{sT1}, s46, 7\ns_add_u32 s{sSIG}, s{sT0}, s{sT1}")
    a(f"v_add_u32 v{vIN}, s{sSIG}, v{vK3}")
    a(f"s_lshl_b32 s{sT2}, s46, 9")
    a(f"v_lshl_add_u32 v{vWo}, v0, 4, s{sT2}\nv_lshl_add_u32 v{vDo}, v0, 4, s{sT1}")
    a(f"v_add_u32 v{vK3}, {(-3*RS_IN) & 0xffffffff}, v{vIN}")
    G.srd(sK, None, TENS); G.srd(sV, None, TENS); G.srd(sW, None, 4608)
    a(f"s_mul_i32 s{sSTG}, s{sE}, {STG_SZ}\ns_add_u32 s{sSTG}, s{sSTG}, {U0}\ns_cmp_eq_u32 s{sE}, 8\ns_cselect_b32 s{sSTG}, {STGX}, s{sSTG}\ns_add_u32 s{sT0}, s{sSTG}, 1024")
    a(f"s_cmp_eq_u32 s{sH}, 0")
    a("s_waitcnt lgkmcnt(0)")
    G.stamp(-1, 1)
    a(f"s_cselect_b64 s[{sK}:{sK+1}], s[18:19], s[30:31]")
    a(f"s_cbranch_vccnz L_E2i")
    a(f"s_mov_b32 m0, s{sSTG}\ns_mov_b32 s{sT1}, {5*RS_IN}")
    a(f"buffer_load_dwordx4 v{vK3}, s[{sK}:{sK+3}], 0 offen {o.k_nt} lds")
    a(f"s_mov_b32 m0, s{sT0}\ns_cselect_b64 s[{sV}:{sV+1}], s[20:21], s[32:33]")
    a(f"buffer_load_dwordx4 v{vIN}, s[{sK}:{sK+3}], s{sT1} offen {o.k_nt} lds")
    a(f"s_cselect_b64 s[{sW}:{sW+1}], s[22:23], s[34:35]")
    a(f"s_cselect_b64 s[{sD}:{sD+1}], s[26:27], s[38:39]")
    a(f"s_cselect_b64 s[{sQ}:{sQ+1}], s[16:17], s[28:29]")
    a(f"s_cselect_b64 s[{sHH}:{sHH+1}], s[24:25], s[36:37]")
    a("s_barrier")
    a(f"s_add_u32 s{sT0}, s{sSTG}, 2048\ns_mov_b32 m0, s{sT0}\ns_mov_b32 s{sT1}, {13*RS_IN}\ns_mov_b64 exec, 0xffffff\ns_add_u32 s{sT0}, s{sSTG}, 4480")
    a(f"buffer_load_dwordx4 v{vIN}, s[{sK}:{sK+3}], s{sT1} offen {o.k_nt} lds")
    a(f"s_mov_b32 m0, s{sT0}\ns_mov_b32 exec_lo, -1\ns_add_u32 s{sT0}, s{sSTG}, 4992")
    a(f"buffer_load_dwordx4 v{vWo}, s[{sW}:{sW+3}], 0 offen lds")
    G.srd(sD, None, 1152)
    a(f"s_mov_b32 m0, s{sT0}\ns_mov_b32 exec_lo, 0xff\ns_add_u32 s{sT0}, s{sSTG}, 2432")
    a(f"buffer_load_dwordx4 v{vDo}, s[{sD}:{sD+3}], 0 offen lds")
    a(f"s_mov_b32 m0, s{sT0}\ns_mov_b64 exec, -1\ns_add_u32 s{sT0}, s{sSTG}, {2432+1024}")
    a(f"buffer_load_dwordx4 v{vIN}, s[{sV}:{sV+3}], 0 offen {nt} lds")
    a(f"s_mov_b32 m0, s{sT0}\ns_mov_b32 s{sT1}, {8*RS_IN}")
    a(f"buffer_load_dwordx4 v{vIN}, s[{sV}:{sV+3}], s{sT1} offen {nt} lds")
    G.stamp(-1, 2)
    a("s_branch L_Em")
    a("L_E2i:")
    a(f"s_cselect_b64 s[{sV}:{sV+1}], s[20:21], s[32:33]")
    a(f"s_cselect_b64 s[{sW}:{sW+1}], s[22:23], s[34:35]")
    a(f"s_cselect_b64 s[{sD}:{sD+1}], s[26:27], s[38:39]")
    a(f"s_cselect_b64 s[{sQ}:{sQ+1}], s[16:17], s[28:29]")
    a(f"s_cselect_b64 s[{sHH}:{sHH+1}], s[24:25], s[36:37]")
    a("s_barrier\ns_branch L_Em")

    cHA, cHB, cHB0, cPF, cZ, cU = 48, 49, 50, 51, 56, 60
    a("L_Ci:")
    a(f"s_sub_u32 s46, s{sWV}, {W_C}")
    chan_of(G, 46, sT0)
    a(f"s_lshl_b32 s{sT0}, s{sT0}, 12")
    a(f"v_lshl_add_u32 v{cHA}, v0, 4, s{sT0}")
    inbox_of(G, 47, sSIG)
    G.srd(sHH, None, TENS)
    if o.prefill:
        G.srd(sOUT, None, OUTB)
        a(f"s_lshl_b32 s{sT0}, s46, {5 if o.u2early else 4}\nv_lshrrev_b32 v{cPF}, {1 if o.u2early else 2}, v0\nv_add_u32 v{cPF}, s{sT0}, v{cPF}")
        blk_addr(G, cPF, cHB, sSIG, RS_OUT, 47)
    a(f"s_cmp_eq_u32 s{sH}, 0")
    a("s_waitcnt lgkmcnt(0)\ns_barrier")
    G.stamp(-1, 1)
    a(f"s_cselect_b64 s[{sHH}:{sHH+1}], s[24:25], s[36:37]")
    xa_loads(G, 64, cHA, 0)
    xa_loads(G, 72, cHA, 1)
    if o.h2early:
        xa_loads(G, 112, cHA, 2)
        xa_loads(G, 120, cHA, 3)
    if o.prefill:
        a(f"s_mov_b64 s[{sOUT}:{sOUT+1}], s[{pOUT}:{pOUT+1}]")
        a(f"buffer_load_dword v{cPF}, v{cPF}, s[{sOUT}:{sOUT+3}], 0 offen {o.pf_nt}")
    G.stamp(-1, 2)
    a("s_branch L_Cm")

    sFL, sONE, s128, sT_, sF_, sL4, sZ, sHA, sHB, sHB0, sU, sU1, sP = 1, 2, 3, 4, 6, 7, 8, 12, 13, 14, 15, 16, 17
    a("L_Si:")
    if o.prefetch_code:
        a(f"s_getpc_b64 s[{sT0}:{sT1}]")
        a("L_pc:")
        a(f"s_and_b32 s{sT2}, s{sR}, 7\ns_mul_i32 s{sT2}, s{sT2}, 3072\nv_min_u32 v{sP}, 23, v0\nv_lshl_add_u32 v{sP}, v{sP}, 7, s{sT2}\nv_min_u32 v{sP}, L_exit-L_pc, v{sP}")
        a(f"global_load_dword v{sP}, v{sP}, s[{sT0}:{sT1}]")
    for i in range(4): a(f"v_mov_b32 v{sZ+i}, 0")
    a(f"v_lshlrev_b32 v{sL4}, 2, v0\nv_min_u32 v{sT_}, 60, v{sL4}\nv_add_u32 v{sT_}, {FL0}, v{sT_}\nds_write_b32 v{sT_}, v{sZ}")
    a(f"v_lshlrev_b32 v{s128}, 7, v0")
    a(f"s_lshl_b32 s46, s{sH}, 7")
    a("s_waitcnt lgkmcnt(0)\ns_barrier")
    G.stamp(-1, 1)
    a(f"s_cmp_eq_u32 s{sH}, 0")
    a(f"s_cselect_b64 s[{sHH}:{sHH+1}], s[24:25], s[36:37]")
    ctl_srd(G)
    a(f"s_load_dwordx2 s[{sX1+1}:{sX1+2}], s[{sCT}:{sCT+1}], s46")
    a(f"buffer_load_dword v{sHB0}, v{s128}, s[{sCT}:{sCT+3}], s{sGB} offen")
    if o.pfux:
        a(f"s_add_u32 s{sK}, s{pWS}, {XU_OFF}\ns_addc_u32 s{sK+1}, s{pWS+1}, 0")
        G.srd(sK, None, 1 << 20)
        a(f"s_lshl_b32 s{sT0}, s{sGQ}, 5\ns_add_u32 s{sT0}, s{sT0}, s{sR}\ns_lshl_b32 s{sT0}, s{sT0}, 12\ns_lshl_b32 s{sT1}, s{sH}, 19\ns_add_u32 s{sT0}, s{sT0}, s{sT1}")
        a(f"v_lshlrev_b32 v22, 6, v0\nbuffer_load_dword v22, v22, s[{sK}:{sK+3}], s{sT0} offen")
    G.stamp(-1, 2)
    if o.iso:
        a(f"v_mov_b32 v{sFL}, {FL0}\nv_mov_b32 v{sT_}, 2\nv_mov_b32 v{sT_+1}, 2\nds_write_b64 v{sFL}, v[{sT_}:{sT_+1}] offset:{F_N}\ns_waitcnt lgkmcnt(0)\ns_endpgm")
    a(f"v_mov_b32 v{sFL}, {FL0}\nv_mov_b32 v{sONE}, 1")
    a("s_waitcnt lgkmcnt(0)")
    a(f"s_and_b32 s{sN}, s{sX2}, 0xfffffff0\ns_add_u32 s{sN}, s{sN}, 0x9e3779b0\nv_mov_b32 v{sT_}, s{sN}")
    a(f"s_add_u32 s{sTAG}, s{sX3}, 1\ns_and_b32 s{sTAG}, s{sTAG}, 0xffff\ns_add_u32 s{sT0}, s{sTAG}, 0x10000\nv_mov_b32 v{sT_+1}, s{sT0}")
    a(f"ds_write_b64 v{sFL}, v[{sT_}:{sT_+1}] offset:{F_N}")
    G.stamp(1, -1)
    a(f"v_lshlrev_b32 v{sHA}, 4, v0")
    u_pad(G, 20, sZ, U0 + 4 * U_SZ)
    a(f"v_add_u32 v{sU1}, {XA0 + 4*XA_SZ}, v{sHA}")
    for p in range(4):
        a(f"ds_write_b128 v{sU1}, v[{sZ}:{sZ+3}] offset:{p*PLANE}")
    G.srd(sHH, None, TENS)
    misc_srd(G)
    a(f"s_add_u32 s{sK}, s{pWS}, {XU_OFF}\ns_addc_u32 s{sK+1}, s{pWS+1}, 0")
    G.srd(sK, None, 1 << 20)
    G.srd(sOUT, pOUT, OUTB)
    a(f"s_getreg_b32 s{sF}, hwreg(HW_REG_XCC_ID, 0, 4)\ns_add_u32 s{sF}, s{sF}, s{sN}\ns_add_u32 s{sF}, s{sF}, 1\nv_mov_b32 v{sF_}, s{sF}")
    xbox_of(G, sX3, sX2, sLR)
    a(f"s_add_u32 s{sT0}, s{sX2}, 512\ns_lshl_b32 s{sT0}, s{sT0}, 12")
    a(f"v_add_u32 v{sHA}, s{sT0}, v{sHA}")
    for q in range(4):
        xa_loads(G, 32 + 8 * q, sHA, q)
    if o.w1only: finish(G)
    a(f"v_lshrrev_b32 v{sHB}, 2, v0\nv_sub_u32 v{sHB}, 15, v{sHB}")
    blk_addr(G, sHB, sT_, sLR, 256, sX3)
    a(f"v_and_b32 v{sT_}, 3, v0\nv_lshl_add_u32 v{sHB}, v{sT_}, 4, v{sHB}")
    a(f"v_lshlrev_b32 v18, 3, v0\nv_add_u32 v18, {U0 + 4*U_SZ}, v18\ns_mov_b32 s47, 0x07060302\ns_setprio {o.sprio}")
    for q in range(4):
        a(f"s_waitcnt vmcnt({6-2*q})")
        xa_build(G, 32 + 8 * q, 96 + 12 * (q & 1), sU1, 384 + 1024 * q, q)
    G.stamp(-1, 3)
    poll_lds(G, sFL, C_GO, 4, sT_)
    G.stamp(2, 4, 1)
    def after():
        lds_count(G, sFL, sONE, C_GO)
        u_pad_write(G, 20, sZ)
        return 0
    if "s" in o.x_skip:
        lds_count(G, sFL, sONE, C_GO); a("s_endpgm")
    tagged_loads(G, 8, 96, sHB, sK, lambda k: ((7 - k) * 16 * 4096, 0), sT_, after)
    for k in range(8):
        a(f"v_perm_b32 v{64+2*k}, v{97+4*k}, v{96+4*k}, s47\nv_perm_b32 v{65+2*k}, v{99+4*k}, v{98+4*k}, s47")
        a(f"ds_write_b64 v18, v[{64+2*k}:{65+2*k}] offset:{512*k}\nds_write_b64 v18, v[{64+2*k}:{65+2*k}] offset:{512*k + UP1 - 8}")
    a("s_waitcnt lgkmcnt(0)")
    a(f"ds_write_b32 v{sFL}, v{sONE} offset:{F_X}")
    G.stamp(3, 6, 3)
    D = G.lab("epo")
    a(f"s_or_b32 s{sT0}, s{sGQ}, s{sR}\ns_cbranch_scc1 {D}")
    a(f"s_mov_b64 exec, 1\nv_mov_b32 v{sT_}, s{sN}\nv_mov_b32 v{sT_+1}, s{sTAG}\nbuffer_store_dwordx2 v[{sT_}:{sT_+1}], off, s[{sCT}:{sCT+3}], s46\ns_mov_b64 exec, -1")
    a(f"{D}:")
    finish(G)

    a("L_Em:")
    if o.w1only:
        a("s_waitcnt vmcnt(2)"); G.stamp(1, 4); a("s_waitcnt vmcnt(0)"); finish(G)
    if o.iso: a("s_waitcnt vmcnt(0)\ns_endpgm")
    a(f"s_setprio 1\ns_cmp_eq_u32 s{sE}, 8\ns_cbranch_scc0 L_Eh\ns_setprio 3")
    a("L_Eh:")
    G.stamp(-1, 3)
    vB1, vB2, vB3, vB4 = 42, 43, 44, 45
    vA1, vA2, vA3, vA4, vA5 = vK3, vWo, vDo, 125, 127
    QF, DF, YR, YF = KF, WF, 16, 24
    LX, LP, L2, LW, LZ = G.lab("ex"), G.lab("ep"), G.lab("e2"), G.lab("ew"), G.lab("ez")
    a(f"v_and_b32 v{vG}, 15, v0\nv_lshrrev_b32 v{vL}, 4, v0")
    a(f"v_mul_u32_u24 v{vIN}, {4*RS_IN}, v{vL}\nv_lshl_add_u32 v{vIN}, v{vG}, 3, v{vIN}\nv_add_u32 v{vIN}, s{sSIG}, v{vIN}")
    E2a = G.lab("e2a")
    a(f"s_cbranch_vccz {E2a}")
    a(f"s_sub_u32 s{sSTG}, s{sE}, 4\ns_mul_i32 s{sSTG}, s{sSTG}, {2432 if o.konly else 4480}\ns_add_u32 s{sSTG}, s{sSTG}, {YB0 if o.konly else SCR0}")
    G.srd(sD, None, 1152)
    a(f"s_lshl_b32 s{sT0}, s46, 9\nv_lshl_add_u32 v{vWo}, v{vG}, 5, s{sT0}\ns_lshl_b32 s{sT0}, s46, 7\nv_lshl_add_u32 v{vDo}, v{vG}, 3, s{sT0}")
    a(f"buffer_load_dwordx4 v[{WR}:{WR+3}], v{vWo}, s[{sW}:{sW+3}], 0 offen\nbuffer_load_dwordx4 v[{WR+4}:{WR+7}], v{vWo}, s[{sW}:{sW+3}], 0 offen offset:16")
    a(f"buffer_load_dwordx2 v[{DR}:{DR+1}], v{vDo}, s[{sD}:{sD+3}], 0 offen")
    a(f"{E2a}:")
    a(f"v_lshlrev_b32 v{vRD}, 9, v{vL}\nv_lshl_add_u32 v{vRD}, v{vG}, 3, v{vRD}\nv_add_u32 v{vRD}, s{sSTG}, v{vRD}")
    a(f"v_lshl_add_u32 v{vWo}, v{vG}, 5, s{sSTG}\nv_lshl_add_u32 v{vDo}, v{vG}, 3, s{sSTG}")
    G.srd(sQ, None, TENS); G.srd(sHH, None, TENS)
    G.srd(sOUT, pOUT, OUTB)
    ctl_srd(G)
    misc_srd(G)
    a(f"s_mov_b32 s{sLC}, s46\ns_lshl_b32 s{sROW0}, s47, 4")
    a(f"s_lshl_b32 s{sT1}, s{sLC}, 7\ns_mul_i32 s{sCOL}, s{sH}, 1152\ns_add_u32 s{sCOL}, s{sCOL}, s{sT1}")
    a(f"s_mul_i32 s{sT0}, s{sROW0}, {RS_OUT}\ns_add_u32 s{sT0}, s{sT0}, s{sCOL}")
    a(f"v_mul_u32_u24 v{vO1}, {4*RS_OUT}, v{vL}\nv_lshl_add_u32 v{vO1}, v{vG}, 3, v{vO1}\nv_add_u32 v{vO1}, s{sT0}, v{vO1}")
    a(f"v_add_u32 v{vO2}, {2*RS_OUT}, v{vO1}")
    a(f"s_lshl_b32 s{sT1}, s47, 12\ns_lshl_b32 s{sT2}, s{sH}, 19\ns_add_u32 s{sT1}, s{sT1}, s{sT2}\ns_mov_b32 s{sT2}, {RS_OUT}")
    a(f"s_cmp_eq_u32 s{sE}, 8\ns_cselect_b32 s{sT0}, s{sT1}, s{sT0}\ns_cselect_b32 s{sT1}, 256, s{sT2}\ns_cselect_b32 s{sT2}, 6, 5")
    a(f"v_and_b32 v{vX}, 12, v{vG}\nv_add3_u32 v{vX}, v{vX}, v{vL}, s47\nv_and_b32 v{vX}, 15, v{vX}\nv_mul_u32_u24 v{vX}, s{sT1}, v{vX}")
    a(f"v_and_b32 v{vT}, 3, v{vG}\nv_lshlrev_b32 v{vT}, s{sT2}, v{vT}\nv_add3_u32 v{vX}, v{vX}, v{vT}, s{sT0}")
    a(f"v_mov_b32 v{vFL}, {FL0}\nv_mov_b32 v{vONE}, 1\nv_lshlrev_b32 v{vL4}, 3, v0\nv_lshlrev_b32 v{v128}, 9, v0")
    a(f"s_and_b32 s{sX3}, s{sE}, 3\ns_lshl_b32 s{sEV}, s{sR}, 2\ns_add_u32 s{sEV}, s{sEV}, s{sX3}\ns_lshl_b32 s{sEV}, s{sEV}, 2\ns_add_u32 s{sEV}, s{sEV}, s{sGB}")
    a(f"s_mov_b32 s47, 0xffff0000")
    get_nonce(G, vFL, vT, vF)
    a(f"s_cbranch_vccnz {L2}")

    def unpack_w():
        for c in range(4):
            for j in range(4):
                src = WR + 2 * c + (j >> 1)
                a(f"v_lshlrev_b32 v{WF+4*j+c}, 16, v{src}" if j % 2 == 0 else f"v_and_b32 v{WF+4*j+c}, s47, v{src}")
    def first_phase(packed, wait_v):
        for i in range(7):
            for d in range(2):
                a(f"v_lshlrev_b32 v{KF+4*i+2*d}, 16, v{KR+2*i+d}")
                a(f"v_and_b32 v{KF+4*i+2*d+1}, s47, v{KR+2*i+d}")
        for j in (3, 2, 1, 0):
            if j == 0: wait_v(0)
            for r in range(4):
                for d in range(2):
                    ks, w, k = KS + 4 * r + 2 * d, WF + 4 * j + 2 * d, KF + 4 * (3 + r - j) + 2 * d
                    if j == 3: pk(G, "mul", ks, k, w, force=packed)
                    else: pk(G, "fma", ks, k, w, ks, force=packed)
        wait_v(1)
        for r in range(4):
            for d in range(2):
                a(f"v_lshlrev_b32 v{KF+4*r+2*d}, 16, v{VR+2*r+d}")
                a(f"v_and_b32 v{KF+4*r+2*d+1}, s47, v{VR+2*r+d}")
        for r in range(4):
            for d in range(2):
                pk(G, "mul", KS + 4 * r + 2 * d, KS + 4 * r + 2 * d, KF + 4 * r + 2 * d, force=packed)
        regs = [PKU + 2 * (3 - j) for j in range(4)]
        for c in range(4):
            a(f"v_cvt_pk_bf16_f32 v{regs[c]}, v{KS+12+c}, v{KS+8+c}")
            a(f"v_cvt_pk_bf16_f32 v{regs[c]+1}, v{KS+4+c}, v{KS+c}")
        transpose4(G, regs)
    def skip_term(packed=True):
        for d in range(2):
            a(f"v_lshlrev_b32 v{DF+2*d}, 16, v{DR+d}\nv_and_b32 v{DF+2*d+1}, s47, v{DR+d}")
        for r in range(4):
            for d in range(2):
                pk(G, "mul", KS + 4 * r + 2 * d, KS + 4 * r + 2 * d, DF + 2 * d, force=packed)
    def qloads():
        for i in range(4):
            a(f"buffer_load_dwordx2 v[{QR+2*i}:{QR+2*i+1}], v{vIN}, s[{sQ}:{sQ+3}], 0 offen offset:{i*RS_IN} {nt}")
    def gate(nyoung):
        a(f"s_setprio {o.eprio}\ns_waitcnt vmcnt({nyoung})")
        G.stamp(1)
        for r in range(4):
            for d in range(2):
                a(f"v_lshlrev_b32 v{QF+4*r+2*d}, 16, v{QR+2*r+d}\nv_and_b32 v{QF+4*r+2*d+1}, s47, v{QR+2*r+d}")
        for r in range(4):
            for d in range(2):
                pk(G, "mul", KS + 4 * r + 2 * d, KS + 4 * r + 2 * d, QF + 4 * r + 2 * d)
        G.stamp(4)
    def mode_stores(lines):
        A, B = G.lab("ms"), G.lab("md")
        a(f"s_cmp_eq_u32 s{sM}, 0\ns_cbranch_scc0 {A}")
        a("\n".join(lines))
        a(f"{B}:")
        def cold():
            a(f"{A}:")
            a("\n".join(l + " sc1" for l in lines))
            a(f"s_branch {B}")
        G.cold.append(cold)
    ustores = [f"buffer_store_dwordx4 v[{PKU}:{PKU+3}], v{vX}, s[{sXU}:{sXU+3}], 0 offen",
               f"buffer_store_dwordx4 v[{PKU+4}:{PKU+7}], v{vX}, s[{sXU}:{sXU+3}], 0 offen offset:16"]
    def last_phase(packed, line, cnt, mid_label=None):
        held = []
        a(f"s_lshl_b32 s{sT0}, s{sX3}, 9\ns_add_u32 s{sX2}, s{sT0}, s{sGB}\ns_add_u32 s{sX2}, s{sX2}, {line}")
        LG = G.lab("yg")
        if packed and o.ydata:
            L, F, C = G.lab("yl"), G.lab("yf"), G.lab("yc")
            a(f"s_cmp_eq_u32 s{sM}, 0\ns_cbranch_scc0 {F}")
            poll_lds(G, vFL, C_Y2, 4, vT, sleep=1)
            a(f"s_mov_b32 s{sCNT}, 0")
            a(f"{L}:")
            a(f"buffer_load_dwordx4 v[{YR}:{YR+3}], v{vX}, s[{sXY}:{sXY+3}], 0 offen sc1")
            a(f"buffer_load_dwordx4 v[{YR+4}:{YR+7}], v{vX}, s[{sXY}:{sXY+3}], 0 offen offset:16 sc1")
            a(f"s_add_u32 s{sCNT}, s{sCNT}, 1\ns_waitcnt vmcnt(1)")
            for g in range(4):
                if g == 2: a("s_waitcnt vmcnt(0)")
                a(f"v_xor_b32 v{YF+g}, v{YR+2*g}, v{PKU+2*g}\nv_bitop3_b32 v{YF+g}, v{YF+g}, v{YR+2*g+1}, v{PKU+2*g+1} bitop3:0xf6")
            a(f"v_min3_u32 v{YF}, v{YF}, v{YF+1}, v{YF+2}\nv_min_u32 v{YF}, v{YF}, v{YF+3}\nv_cmp_eq_u32 vcc, 0, v{YF}")
            a(f"s_cbranch_vccz {LG}")
            if o.ysleep: a(f"s_sleep {o.ysleep}")
            a(f"s_cmp_lt_u32 s{sCNT}, 6\ns_cbranch_scc1 {L}")
            a(f"{F}:")
        poll_line(G, vL4, sX2, 2, vT, (f"s{sDGO}", cnt), 128, sleep=(o.sleep if packed else 2))
        G.stamp(5)
        a(f"buffer_load_dwordx4 v[{YR}:{YR+3}], v{vX}, s[{sXY}:{sXY+3}], 0 offen sc1")
        a(f"buffer_load_dwordx4 v[{YR+4}:{YR+7}], v{vX}, s[{sXY}:{sXY+3}], 0 offen offset:16 sc1")
        if packed and o.defer: lds_count(G, vFL, vONE, C_R)
        a("s_waitcnt vmcnt(0)")
        a(f"{LG}:")
        G.stamp(6)
        transpose4(G, [YR + 2 * j for j in range(4)])
        if mid_label: a(f"{mid_label}:")
        for c in range(4):
            for d in range(2):
                a(f"v_lshlrev_b32 v{YF+8*d+c}, 16, v{YR+2*c+d}\nv_and_b32 v{YF+8*d+4+c}, s47, v{YR+2*c+d}")
        for r in range(4):
            for d in range(2):
                ks, q, y = KS + 4 * r + 2 * d, QF + 4 * r + 2 * d, YF + 4 * r + 2 * d
                pk(G, "fma", ks, q, y, ks, force=packed)
            for d in range(2):
                ks = KS + 4 * r + 2 * d
                a(f"v_cvt_pk_bf16_f32 v{PKU+2*r+d}, v{ks}, v{ks+1}")
            st = f"buffer_store_dwordx2 v[{PKU+2*r}:{PKU+2*r+1}], v{vO1 if r < 2 else vO2}, s[{sOUT}:{sOUT+3}], 0 offen offset:{(r&1)*RS_OUT} {o.out_flag}"
            if packed or not o.defer: a(st)
            else: held.append(st)
        if held:
            poll_lds(G, vFL, C_R, 4, vT, sleep=1)
            a("\n".join(held))
        finish(G)

    a("s_waitcnt vmcnt(2)")
    G.stamp(-1, 4)
    a(f"ds_read_b128 v[{WR}:{WR+3}], v{vWo} offset:4480\nds_read_b128 v[{WR+4}:{WR+7}], v{vWo} offset:4496")
    for i in range(7):
        a(f"ds_read_b64 v[{KR+2*i}:{KR+2*i+1}], v{vRD} offset:{128*i}")
    a(f"ds_read_b64 v[{DR}:{DR+1}], v{vDo} offset:4992")
    a("s_waitcnt lgkmcnt(8)")
    unpack_w()
    a("s_waitcnt lgkmcnt(0)")
    def wait_v(k):
        if k == 0:
            a("s_waitcnt vmcnt(0)")
            G.stamp(-1, 5)
            for i in range(4):
                a(f"ds_read_b64 v[{VR+2*i}:{VR+2*i+1}], v{vRD} offset:{2432 + 128*i}")
        else:
            a("s_waitcnt lgkmcnt(0)")
    first_phase(True, wait_v)
    a(f"s_cmp_eq_u32 s{sE}, 8\ns_cbranch_scc1 {LX}")
    a("\n".join(ustores))
    skip_term()
    a(f"{LP}:")
    a("s_waitcnt vmcnt(0)")
    signal(G, vF, v128, sEV, L_U1, 2, 4, YR)
    G.stamp(3, 6)
    chan_of(G, sE, sT0)
    a(f"s_lshl_b32 s{sT0}, s{sT0}, 12\nv_lshl_add_u32 v{vA3}, v0, 4, s{sT0}")
    a(f"s_mul_i32 s{sT0}, s{sE}, {XA_SZ}\nv_lshl_add_u32 v{vRD}, v0, 4, s{sT0}")
    inbox_of(G, sX1, sX2)
    for k in range(2):
        a(f"v_lshrrev_b32 v{vA1 if k == 0 else vA2}, 3, v0" + (f"\nv_add_u32 v{vA2}, 8, v{vA2}" if k else ""))
        blk_addr(G, vA1 if k == 0 else vA2, vT, sX2, RS_OUT, sX1)
    a(f"v_and_b32 v{vT}, 7, v0\nv_lshl_add_u32 v{vA1}, v{vT}, 4, v{vA1}\nv_lshl_add_u32 v{vA2}, v{vT}, 4, v{vA2}")
    a(f"s_lshl_b32 s{sT0}, s{sE}, 4\ns_add_u32 s{sT0}, s{sT0}, 64\nv_lshrrev_b32 v{vB4}, 2, v0\nv_add_u32 v{vB4}, s{sT0}, v{vB4}")
    blk_addr(G, vB4, vT, sX2, RS_OUT, sX1)
    a(f"s_lshl_b32 s{sT0}, s{sE}, 5\ns_add_u32 s{sX1}, s{sX1}, s{sT0}")
    u_src(G, vA4, vT, sX2, sX1)
    a(f"s_mul_i32 s{sT0}, s{sE}, {U_SZ}\ns_add_u32 s{sT0}, s{sT0}, {U0}\nv_lshl_add_u32 v{vL}, v0, 4, s{sT0}\nv_add_u32 v{vA5}, {UP1 - 8}, v{vL}")
    a(f"s_lshl_b32 s{sT0}, s{sE}, 11\ns_add_u32 s{sT0}, s{sT0}, {YB0}\nv_lshl_add_u32 v{vG}, v0, 4, s{sT0}\ns_mul_i32 s{sX1}, s{sE}, {TILE_STEP}")
    a(f"s_add_u32 s{sWMY}, s{pWS}, {XY_OFF}\ns_addc_u32 s{sWMY+1}, s{pWS+1}, 0")
    G.srd(sWMY, None, 1 << 20)
    a(f"s_lshl_b32 s{sT0}, s{sGQ}, 5\ns_add_u32 s{sT0}, s{sT0}, s{sR}\ns_lshr_b32 s{sT0}, s{sT0}, 1\ns_lshl_b32 s{sX4}, s{sH}, 19")
    a(f"v_lshrrev_b32 v{vB1}, 3, v0\nv_add_u32 v{vT}, s{sT0}, v{vB1}\nv_and_b32 v{vT}, 7, v{vT}\ns_and_b32 s{sT0}, s{sT0}, 56\nv_or_b32 v{vT}, s{sT0}, v{vT}")
    a(f"v_lshl_add_u32 v{vB1}, v{vB1}, 6, v{vT}\nv_lshlrev_b32 v{vB1}, 7, v{vB1}\nv_and_b32 v{vT}, 7, v0\nv_lshl_add_u32 v{vB1}, v{vT}, 4, v{vB1}\nv_add_u32 v{vB1}, s{sX4}, v{vB1}")
    a(f"s_lshl_b32 s{sT0}, s{sX3}, 12\ns_add_u32 s{sT0}, s{sT0}, {SCR0}\nv_lshl_add_u32 v{vB2}, v0, 4, s{sT0}\nv_mov_b32 v{vB3}, s{sTAG}")
    a(f"s_mov_b32 s{sT0}, 0x7430\ns_mov_b32 s{sT1}, 0x6521\ns_and_b32 s{sT2}, s{sR}, 1\ns_cselect_b32 s{sT0}, s{sT1}, s{sT0}")
    a(f"s_lshl_b32 s{sT1}, s{sX3}, 2\ns_lshr_b32 s{sT0}, s{sT0}, s{sT1}\ns_and_b32 s{sT0}, s{sT0}, 7\ns_lshl_b32 s{sX4}, s{sT0}, 16")
    def hook(L):
        R = G.lab("rp")
        a(f"s_cmp_gt_u32 s{sX2}, s{sM}\ns_cbranch_scc1 {R}")
        def cold():
            a(f"{R}:")
            to_mode1(G, vF)
            a("\n".join(l + " sc1" for l in ustores))
            a(f"s_branch {LP}")
        G.cold.append(cold)
    poll_lds(G, vFL, C_GO, 9, vT, pair=sX2, hook=hook)
    if not o.h2early:
        xa_loads(G, KR, vA3, 2)
        xa_loads(G, KR + 8, vA3, 3)
    a(f"buffer_load_dword v{vB4}, v{vB4}, s[{sOUT}:{sOUT+3}], 0 offen {o.pf_nt}")
    if o.pfyx: a(f"buffer_load_dword v46, v{vB1}, s[{sWMY}:{sWMY+3}], s{sX4} offen")
    if o.q1w2: qloads()
    if o.qw2:
        lds_count(G, vFL, vONE, C_GO)
        poll_lds(G, vFL, C_GO, 13, vT)
        qloads()
    if "1" in o.x_skip: a("s_endpgm")
    G.stamp(-1, mid=1)
    a(f"s_setprio {o.hiprio}\ns_add_u32 s{sEV}, s{sEV}, {L_Y1}\ns_lshl_b32 s{sT0}, s{sE}, 9\ns_add_u32 s{sX2}, s{sT0}, s{sGB}\ns_add_u32 s{sX2}, s{sX2}, {L_U2}")
    if not o.h2early:
        a("s_waitcnt vmcnt(2)")
        xa_build(G, KR, WF, vRD, XA0 + 384 + 2048, 2, plain=True)
        a("s_waitcnt vmcnt(0)")
        xa_build(G, KR + 8, KF, vRD, XA0 + 384 + 3072, 3, plain=True)
        a("s_waitcnt lgkmcnt(0)")
        lds_count(G, vFL, vONE, C_H)
    if not o.seq2: G.stamp(-1, mid=2)
    YX = KF
    yxstore = f"buffer_store_dwordx4 v[{YX}:{YX+3}], v{vB1}, s[{sWMY}:{sWMY+3}], s{sX4} offen sc1"
    def reduce():
        poll_lds(G, vFL, C_P, 4, vT, sleep=2)
        r = WF
        for i in range(4):
            a(f"ds_read_b128 v[{r+4*i}:{r+4*i+3}], v{vB2} offset:{1024*i}")
        a("s_waitcnt lgkmcnt(2)")
        for d in (0, 2): pk(G, "add", r + d, r + d, r + 4 + d)
        a("s_waitcnt lgkmcnt(0)")
        for d in (0, 2): pk(G, "add", r + 8 + d, r + 8 + d, r + 12 + d)
        for d in (0, 2): pk(G, "add", r + d, r + d, r + 8 + d)
        a(f"v_cvt_pk_bf16_f32 v{r+4}, v{r}, v{r+1}\nv_cvt_pk_bf16_f32 v{r+5}, v{r+2}, v{r+3}")
        for d in (0, 1):
            a(f"v_lshl_or_b32 v{YX+2*d}, v{r+4+d}, 16, v{vB3}\nv_and_or_b32 v{YX+2*d+1}, v{r+4+d}, s47, v{vB3}")
        G.stamp(-1, mid=3)
    def carry():
        if o.y1dir: return
        poll_lds(G, vFL, C_Y1, 4, vT, sleep=2)
        a(f"ds_read_b128 v[{YR}:{YR+3}], v{vG}\nds_read_b128 v[{YR+4}:{YR+7}], v{vG} offset:1024\ns_waitcnt lgkmcnt(0)")
        mode_stores([f"buffer_store_dwordx4 v[{YR}:{YR+3}], v{vA1}, s[{sXY}:{sXY+3}], s{sX1} offen",
                     f"buffer_store_dwordx4 v[{YR+4}:{YR+7}], v{vA2}, s[{sXY}:{sXY+3}], s{sX1} offen"])
        if o.seq2: G.stamp(-1, mid=2)
        a("s_waitcnt vmcnt(0)")
        signal(G, vF, v128, sEV, L_Y1, 2, 8, YR)
    def u2duty():
        poll_line(G, vL4, sX2, 2, vT, (f"s{sDGO}", 16), 128, sleep=1)
        G.stamp(-1, mid=4)
        u_loads(G, KR + 2, vA4, (1, 0))
        a(f"s_waitcnt vmcnt(1)")
        u_write(G, KR + 2, vL, vA5, 1)
        a(f"s_waitcnt vmcnt(0)")
        u_write(G, KR + 6, vL, vA5, 0)
        if not o.qw2 and not o.redlate and not o.yxearly: a(yxstore)
        a("s_waitcnt lgkmcnt(0)")
        lds_count(G, vFL, vONE, F_U2)
        G.stamp(-1, mid=5)
    def yxdone():
        a("s_waitcnt vmcnt(0)")
        lds_count(G, vFL, vONE, C_YX)
    if o.seq2:
        reduce(); carry(); u2duty(); qloads()
        a("s_waitcnt vmcnt(4)")
        lds_count(G, vFL, vONE, C_YX)
    elif o.qw2 and o.redlate: u2duty(); reduce(); a(yxstore); yxdone(); carry()
    elif o.qw2: reduce(); a(yxstore); yxdone(); u2duty(); carry()
    elif o.redlate: u2duty(); reduce(); a(yxstore); yxdone(); qloads(); carry()
    elif o.yxearly:
        reduce(); a(yxstore); u2duty()
        if not o.q1w2: qloads()
        carry()
    else:
        reduce(); u2duty()
        if not o.q1w2: qloads()
        a(f"s_waitcnt vmcnt({0 if o.q1w2 else 4})")
        lds_count(G, vFL, vONE, C_YX)
        carry()
    gate(0)
    G.stamp(-1, mid=6)
    last_phase(False, L_Y2 if o.merge else L_Y1, 12 if o.merge else 8, f"{LZ}2")

    a(f"{L2}:")
    a(f"v_lshrrev_b32 v{vA2}, 3, v0\nv_mul_u32_u24 v{vA2}, {RS_IN}, v{vA2}\nv_and_b32 v{vT}, 7, v0\nv_lshl_add_u32 v{vA2}, v{vT}, 4, v{vA2}\nv_add_u32 v{vA2}, s{sSIG}, v{vA2}")
    a(f"v_add_u32 v{vA1}, {(-3*RS_IN) & 0xffffffff}, v{vA2}")
    a(f"s_add_u32 s{sEV}, s{sEV}, {L_U2}")
    a("s_waitcnt vmcnt(0)")
    unpack_w()
    if o.konly: poll_lds(G, vFL, C_U1, 1, vT, sleep=2)
    if "2" in o.x_skip:
        poll_lds(G, vFL, C_GO, 5, vT); lds_count(G, vFL, vONE, C_GO); a("s_endpgm")
    poll_lds(G, vFL, C_GO, o.e2lvl, vT, pair=sX2)
    adopt_mode(G, sX2, vF)
    a(f"s_mov_b32 m0, s{sSTG}\ns_add_u32 s{sT0}, s{sSTG}, 1024\ns_mov_b32 s{sT1}, {5*RS_IN}")
    a(f"buffer_load_dwordx4 v{vA1}, s[{sK}:{sK+3}], 0 offen {o.k_nt} lds")
    a(f"s_mov_b32 m0, s{sT0}\ns_add_u32 s{sT0}, s{sSTG}, 2048")
    a(f"buffer_load_dwordx4 v{vA2}, s[{sK}:{sK+3}], s{sT1} offen {o.k_nt} lds")
    a(f"s_mov_b32 m0, s{sT0}\ns_mov_b32 s{sT1}, {13*RS_IN}\ns_mov_b64 exec, 0xffffff\ns_add_u32 s{sT0}, s{sSTG}, 2432")
    a(f"buffer_load_dwordx4 v{vA2}, s[{sK}:{sK+3}], s{sT1} offen {o.k_nt} lds")
    if o.konly:
        a("s_mov_b64 exec, -1")
        for i in range(4):
            a(f"buffer_load_dwordx2 v[{VR+2*i}:{VR+2*i+1}], v{vIN}, s[{sV}:{sV+3}], 0 offen offset:{i*RS_IN} {nt}")
    else:
        a(f"s_mov_b32 m0, s{sT0}\ns_mov_b64 exec, -1\ns_add_u32 s{sT0}, s{sSTG}, {2432+1024}")
        a(f"buffer_load_dwordx4 v{vA2}, s[{sV}:{sV+3}], 0 offen {nt} lds")
        a(f"s_mov_b32 m0, s{sT0}\ns_mov_b32 s{sT1}, {8*RS_IN}")
        a(f"buffer_load_dwordx4 v{vA2}, s[{sV}:{sV+3}], s{sT1} offen {nt} lds")
    lds_count(G, vFL, vONE, C_GO)
    G.stamp(-1, mid=1)
    a(f"s_setprio {o.hiprio}\ns_waitcnt vmcnt({4 if o.konly else 2})")
    G.stamp(-1, mid=3)
    for i in range(7):
        a(f"ds_read_b64 v[{KR+2*i}:{KR+2*i+1}], v{vRD} offset:{128*i}")
    a("s_waitcnt lgkmcnt(0)")
    def wait_v2(k):
        if o.konly:
            if k: a("s_waitcnt vmcnt(0)")
            return
        wait_v(k)
        if k == 0 and o.qw2: qloads()
        if k: lds_count(G, vFL, vONE, C_U0)
    first_phase(False, wait_v2)
    G.stamp(2, mid=4)
    mode_stores(ustores)
    skip_term(False)
    a("s_waitcnt vmcnt(0)")
    signal(G, vF, v128, sEV, L_U2, 2, 16, YR)
    G.stamp(3, mid=5)
    if not o.qw2:
        poll_lds(G, vFL, F_U2, 5 if o.yxearly else 4, vT, sleep=2)
        qloads()
    gate(0)
    G.stamp(-1, mid=6)
    last_phase(True, L_Y2, 12)
    a(f"{LX}:")
    a(f"s_add_u32 s{sXU}, s{pWS}, {XU_OFF}\ns_addc_u32 s{sXU+1}, s{pWS+1}, 0\ns_add_u32 s{sXY}, s{pWS}, {XY_OFF}\ns_addc_u32 s{sXY+1}, s{pWS+1}, 0")
    a(f"v_and_b32 v{vT}, 4095, v{vX}\nv_lshrrev_b32 v{vT}, 1, v{vT}\nv_add_u32 v{vT}, s{sSTG}, v{vT}")
    a(f"ds_write_b128 v{vT}, v[{PKU}:{PKU+3}]\nds_write_b128 v{vT}, v[{PKU+4}:{PKU+7}] offset:16")
    a(f"v_lshl_add_u32 v{vT}, v0, 3, s{sSTG}")
    for k in range(4):
        a(f"ds_read_b64 v[{KF+2*k}:{KF+2*k+1}], v{vT} offset:{512*k}")
    a(f"v_and_b32 v{vG}, 0xfffff000, v{vX}\nv_lshl_add_u32 v{vG}, v0, 4, v{vG}\nv_mov_b32 v{vK3}, s{sTAG}")
    for k in range(4):
        a(f"s_waitcnt lgkmcnt({3-k})")
        for d in (0, 1):
            a(f"v_lshl_or_b32 v{QR-8+4*k+2*d}, v{KF+2*k+d}, 16, v{vK3}\nv_and_or_b32 v{QR-8+4*k+2*d+1}, v{KF+2*k+d}, s47, v{vK3}")
        a(f"buffer_store_dwordx4 v[{QR-8+4*k}:{QR-8+4*k+3}], v{vG}, s[{sXU}:{sXU+3}], 0 offen offset:{1024*k} sc1")
    if o.konly: lds_count(G, vFL, vONE, C_U1)
    G.stamp(3, 6)
    skip_term()
    a(f"s_lshr_b32 s{sT0}, s{sROW0}, 5\ns_lshl_b32 s{sT1}, s{sT0}, 13\ns_lshl_b32 s{sT2}, s{sH}, 19\ns_add_u32 s{sT1}, s{sT1}, s{sT2}")
    a(f"s_bfe_u32 s{sT2}, s{sROW0}, {(1<<16)|4}\ns_lshl_b32 s{sT2}, s{sT2}, 6\ns_add_u32 s{sT1}, s{sT1}, s{sT2}")
    a(f"v_lshrrev_b32 v{vX}, 2, v0")
    a(f"v_add_u32 v{vT}, s{sT0}, v{vX}\nv_and_b32 v{vT}, 7, v{vT}\nv_and_b32 v{vX}, 8, v{vX}\nv_or_b32 v{vX}, v{vX}, v{vT}\nv_lshl_add_u32 v{vX}, v{vX}, 7, s{sT1}")
    a(f"v_and_b32 v{vT}, 3, v0\nv_lshl_add_u32 v{vX}, v{vT}, 4, v{vX}")
    a(f"v_lshlrev_b32 v{vA1}, 3, v0\nv_add_u32 v{vA1}, {XT0}, v{vA1}")
    a(f"v_and_b32 v{vA2}, 15, v0\nv_lshlrev_b32 v{vA2}, 7, v{vA2}\nv_lshrrev_b32 v{vT}, 4, v0\nv_lshl_add_u32 v{vA2}, v{vT}, 3, v{vA2}\nv_add_u32 v{vA2}, {XT0}, v{vA2}")
    if "x" in o.x_skip: a("s_endpgm")
    if o.qw2: poll_lds(G, vFL, C_GO, 13, vT, sleep=3)
    else: poll_lds(G, vFL, F_U2, 4, vT, sleep=3)
    if not o.yxearly:
        qloads()
        poll_lds(G, vFL, C_YX, 4, vT, sleep=2)
    G.stamp(5, mid=3)
    tagged_loads(G, 4, 24, vX, sXY, lambda k: (0, 2048 * k) if k < 2 else (4096, 2048 * (k - 2)), vT, after=(lambda: (lds_count(G, vFL, vONE, F_U2), qloads(), 4)[2]) if o.yxearly else None)
    a(f"s_mov_b32 s{sT0}, 0x07060302")
    G.stamp(-1, mid=4)
    for k in range(4):
        a(f"v_perm_b32 v{YR+2*k}, v{25+4*k}, v{24+4*k}, s{sT0}\nv_perm_b32 v{YR+2*k+1}, v{27+4*k}, v{26+4*k}, s{sT0}")
        a(f"ds_write_b64 v{vA1}, v[{YR+2*k}:{YR+2*k+1}] offset:{512*k}")
    for c in range(4):
        a(f"ds_read_b64 v[{YR+2*c}:{YR+2*c+1}], v{vA2} offset:{32*c}")
    gate(0)
    a(f"s_waitcnt lgkmcnt(0)\ns_branch {LZ}2")
    G.flush_cold()

    a("L_Cm:")
    if o.w1only:
        a("s_waitcnt vmcnt(1)"); G.stamp(1, 4); a("s_waitcnt vmcnt(0)"); finish(G)
    a(f"s_setprio {o.cprio}")
    G.stamp(1, 3)
    ctl_srd(G)
    misc_srd(G)
    a(f"s_mov_b32 s{sJ}, s46\ns_mov_b32 s{sCOL}, s47")
    a(f"s_mul_i32 s{sX2}, s{sJ}, {XA_SZ}\ns_mul_i32 s{sX3}, s{sJ}, {U_SZ}\ns_add_u32 s{sX3}, s{sX3}, {U0}")
    for i in range(4): a(f"v_mov_b32 v{cZ+i}, 0")
    a(f"v_lshl_add_u32 v{cHA}, v0, 4, s{sX2}")
    for p in range(4):
        a(f"ds_write_b128 v{cHA}, v[{cZ}:{cZ+3}] offset:{XA0 + p*PLANE}")
    a(f"v_lshl_add_u32 v{cHB}, v0, 4, s{sX3}\nv_add_u32 v{cHB0}, {UP1 - 8 + 2048}, v{cHB}")
    u_pad(G, 62, cZ, f"s{sX3}")
    a(f"v_and_b32 v{cT}, 3, v0\nv_mul_u32_u24 v{cA}, {PLANE}, v{cT}")
    a(f"v_bfe_u32 v{cB}, v0, 2, 2\nv_lshl_add_u32 v{cA}, v{cB}, 7, v{cA}")
    a(f"v_lshrrev_b32 v{cB}, 4, v0\nv_lshl_add_u32 v{cA}, v{cB}, 4, v{cA}")
    a(f"s_lshl_b32 s{sT0}, s{sJ}, 7")
    a(f"s_add_u32 s{sT1}, s{sT0}, {XA0 + 4*XA_SZ}\nv_add_u32 v{cAX}, s{sT1}, v{cA}\nv_add_u32 v{cA}, s{sX2}, v{cA}")
    a(f"v_lshlrev_b32 v{cB}, 4, v{cB}\nv_and_b32 v{cBX}, 15, v0\nv_lshlrev_b32 v{cBX}, 3, v{cBX}\nv_sub_u32 v{cB}, v{cB}, v{cBX}\nv_add_u32 v{cB}, 120, v{cB}")
    a(f"v_and_b32 v{cBX}, 1, v0\nv_xor_b32 v{cBX}, 1, v{cBX}\nv_mul_u32_u24 v{cBX}, {UP1 - 8}, v{cBX}\nv_add_u32 v{cB}, v{cB}, v{cBX}")
    a(f"s_add_u32 s{sT1}, s{sT0}, {U0 + 4*U_SZ}\nv_add_u32 v{cBX}, s{sT1}, v{cB}\nv_add_u32 v{cB}, s{sX3}, v{cB}")
    a(f"s_and_b32 s{sTS}, s{sR}, 1\ns_lshl_b32 s{sT2}, s{sJ}, 5\ns_add_u32 s{sCOL}, s{sCOL}, s{sT2}")
    a(f"v_lshrrev_b32 v{cY}, 2, v0")
    blk_addr(G, cY, cU, sSIG, RS_OUT, sCOL)
    a(f"v_lshl_add_u32 v{cY}, v{cT}, 3, v{cY}")
    a(f"v_lshrrev_b32 v{cYX}, 2, v0\nv_lshlrev_b32 v{cYX}, 7, v{cYX}\nv_lshl_add_u32 v{cYX}, v{cT}, 3, v{cYX}\ns_lshl_b32 s{sT2}, s{sJ}, 5\ns_add_u32 s{sT2}, s{sT2}, {YB0}\nv_add_u32 v{cYX}, s{sT2}, v{cYX}")
    a(f"s_lshl_b32 s{sT0}, s{sJ}, 10\ns_add_u32 s{sT0}, s{sT0}, {SCR0}\nv_lshl_add_u32 v{cSW}, v0, 4, s{sT0}")
    a(f"v_mov_b32 v{cFL}, {FL0}\nv_mov_b32 v{cONE}, 1\nv_lshlrev_b32 v{cL4}, 3, v0\nv_lshlrev_b32 v{c128}, 9, v0")
    a(f"s_lshl_b32 s{sEV}, s{sR}, 2\ns_add_u32 s{sEV}, s{sEV}, s{sJ}\ns_lshl_b32 s{sEV}, s{sEV}, 2\ns_add_u32 s{sEV}, s{sEV}, s{sGB}\ns_add_u32 s{sEV}, s{sEV}, {L_Y2}")
    u_src(G, cU, cT, sSIG, sCOL)
    a(f"s_lshl_b32 s{sX4}, s{sJ}, 9\ns_add_u32 s{sX4}, s{sX4}, s{sGB}\ns_add_u32 s{sX4}, s{sX4}, {L_U1}")
    npf = 1 if o.prefill else 0
    if o.h2early: npf += 4
    a(f"s_waitcnt vmcnt({2+npf})")
    G.stamp(-1, 4)
    xa_build(G, 64, 80, cHA, XA0 + 384, 0)
    a(f"s_waitcnt vmcnt({npf})")
    xa_build(G, 72, 16, cHA, XA0 + 384 + 1024, 1)
    if o.h2early:
        a(f"s_waitcnt vmcnt({npf-2})")
        xa_build(G, 112, 80, cHA, XA0 + 384 + 2048, 2)
        a(f"s_waitcnt vmcnt({npf-4})")
        xa_build(G, 120, 16, cHA, XA0 + 384 + 3072, 3)
    get_nonce(G, cFL, cT, cF)
    G.stamp(-1, -1)
    def detect(R):
        SW, NX = G.lab("dsw"), G.lab("dnx")
        a("s_mov_b64 exec, -1")
        a(f"ds_read_b32 v{cT}, v{cFL} offset:{F_M}\ns_waitcnt lgkmcnt(0)\nv_readfirstlane_b32 s{sT0}, v{cT}")
        a(f"s_cmp_eq_u32 s{sT0}, 0\ns_cbranch_scc0 {SW}")
        a(f"s_cmp_eq_u32 s{sJ}, 0\ns_cbranch_scc0 {NX}")
        a(f"s_sub_u32 s{sT2}, s{sF}, s{sN}\ns_sub_u32 s{sT2}, s{sT2}, 1\ns_mul_i32 s{sT3}, s{sT2}, s{sT2}\ns_lshl_b32 s{sT3}, s{sT3}, 16")
        a(f"s_lshl_b32 s{sT2}, s{sT2}, 8\ns_add_u32 s{sT2}, s{sT2}, s{sT3}\ns_add_u32 s{sT2}, s{sT2}, 1\ns_lshl_b32 s{sT3}, s{sT2}, 5")
        a(f"s_cmp_eq_u32 s{sCNT}, 64\ns_cselect_b32 s{sT2}, s{sT2}, 0")
        a(f"s_mov_b64 exec, 1\nv_mov_b32 v{cT}, s{sT2}")
        a(f"buffer_atomic_add v{cT}, off, s[{sDG}:{sDG+3}], s{sDGO} sc0 sc1")
        a("s_waitcnt vmcnt(0)")
        a(f"v_readfirstlane_b32 s{sT0}, v{cT}\ns_mov_b64 exec, -1\ns_add_u32 s{sT0}, s{sT0}, s{sT2}")
        if not o.force_mode1:
            a(f"s_cmp_eq_u32 s{sT0}, s{sT3}\ns_cbranch_scc1 {NX}")
        a(f"s_and_b32 s{sT0}, s{sT0}, 0xff\ns_cmp_ge_u32 s{sT0}, 32\ns_cbranch_scc0 {NX}")
        a(f"ds_write_b32 v{cFL}, v{cONE} offset:{F_M}")
        a(f"{SW}:")
        to_mode1(G, cF)
        a(f"s_add_u32 s{sX4}, s{sX4}, {UOFF}\ns_mov_b32 s{sLR}, s{sN}")
        a(f"{NX}:")
    if o.force_mode1:
        a(f"s_add_u32 s{sF}, s{sF}, 0")
    if not o.iso:
        if o.force_mode1:
            a(f"s_xor_b32 s{sLR}, s{sF}, 0x40000000")
        poll_line(G, cL4, sX4, 2, 80, (f"s{sDGO}", 4), 128, sleep=0, detect=detect, scmp=(sLR if o.force_mode1 else sF))
    G.stamp(-1, 5)
    u_loads(G, 64, cU, (3, 2, 1, 0) if o.u2early else (3, 2))
    lds_count(G, cFL, cONE, C_GO)
    u_pad_write(G, 62, cZ)
    a(f"s_cmp_lg_u32 s{sM}, 0\ns_cselect_b64 vcc, -1, 0")
    def pre():
        a("s_waitcnt vmcnt(1)")
        u_write(G, 64, cHB, cHB0, 3)
        a("s_waitcnt vmcnt(0)")
        u_write(G, 68, cHB, cHB0, 2)
        G.stamp(2, 6, 2)
        return 4
    if not o.apre: pre()
    a(f"s_cmp_eq_u32 s{sTS}, 0")
    a("s_cbranch_scc0 L_C1")
    st0 = c_stream(G, 0, pre if o.apre else None)
    a("L_C1:")
    st1 = c_stream(G, 1, pre if o.apre else None)
    a("L_exit:")
    a("s_endpgm")

    head = open("cdna_kernels/" + NAME + ".s.ref").read().split("\n")
    hdr = [l for l in head if l.startswith("; Kernarg") or l.startswith(";   offset")]
    out = hdr + [f"; @launch grid=(256,1,1) block=(896,1,1) lds={LDS_SZ}",
                 '.amdgcn_target "amdgcn-amd-amdhsa--gfx950"', ".text", f".globl {K}", ".p2align 8", f".type {K},@function"]
    out += G.L
    out += ['.section .rodata,"a"', ".p2align 6", f".amdhsa_kernel {K}",
            "  .amdhsa_next_free_vgpr 128", "  .amdhsa_next_free_sgpr 102", "  .amdhsa_accum_offset 128",
            "  .amdhsa_group_segment_fixed_size 0", "  .amdhsa_kernarg_size 120", "  .amdhsa_user_sgpr_count 2",
            "  .amdhsa_user_sgpr_kernarg_segment_ptr 1", "  .amdhsa_system_sgpr_workgroup_id_x 1",
            "  .amdhsa_float_denorm_mode_32 3", ".end_amdhsa_kernel", ""]
    print("stream stats (mfma, ds, max/gap, gaps>1):", st0, st1, file=sys.stderr)
    return "\n".join(out)


if __name__ == "__main__":
    ap = argparse.ArgumentParser()
    ap.add_argument("-o", default="cdna_kernels/" + NAME + ".s")
    ap.add_argument("opts", nargs="*")
    args = ap.parse_args()
    o = Opt()
    for kv in args.opts:
        k, v = kv.split("=", 1)
        cur = getattr(o, k)
        setattr(o, k, (v not in ("0", "False", "")) if isinstance(cur, bool) else type(cur)(v))
    open(args.o, "w").write(gen(o))
```

```python
import sys, argparse

NAME = "concat_heads__ssm_conv_h3__ssm_conv_h3__prompt"

RS_IN = 1152
RS_OUT = 2304
TENS = 2359296
OUTB = 4718592
PLANE = 4640
XA_SZ = 4 * PLANE
UP1 = 4224
U_SZ = 2 * UP1 + 32
XA0 = 0
U0 = 5 * XA_SZ
STG_SZ = 5120
STGX = U0 + 5 * U_SZ
YB0 = STGX
XT0 = YB0 + 8192
SCR0 = XT0 + 2048
FL0 = SCR0 + 16384 + 1536
LDS_SZ = FL0 + 64
F_N, F_V, C_GO, F_M, C_U0, C_U1, C_R, C_H, F_X, F_U2, F_YX, C_P, C_Y1, C_Y2, C_YX = [4 * i for i in range(15)]
CT_OFF = 16 << 20
L_U1, L_U2, L_Y1, L_Y2 = 0, 2048, 4096, 6144
XU_OFF, XY_OFF = 10 << 20, 12 << 20
UOFF = 8192
GSTRIDE = 16384
TILE_STEP = 256 * RS_OUT
CAP_G = 1 << 15
CAP_L = 1 << 17
W_S, W_C = 0, 10


class Opt:
    stamps = False
    only07 = False
    force_mode1 = False
    ld_nt = "nt"
    out_flag = ""
    lead = 12
    prefetch_code = True
    prefill = True
    sleep = 1
    cyc = False
    iso = False
    dspan = False
    early = False
    order = "ax123"
    ya = 6
    uxearly = True
    pfx = False
    kvfirst = True
    seq2 = False
    share3 = False
    dry = False
    pfentry = True
    ebar2 = 1
    barpos = 7
    tl = False
    qhold = True
    coop1 = True
    coop2 = True
    k2early = True
    konly = False
    q1w2 = False
    stag = 2
    ydata = True
    ygo = -1
    ysleep = 1
    pfyx = True
    pfux = False
    ulead = 7
    xlead = 9
    yxearly = False
    e2lvl = 5
    y1dir = True
    merge = False
    y1ack = 25
    lsleep = 0
    x_skip = ""
    nock = ""
    wbatch = 8
    apre = True
    qw2 = False
    redlate = True
    u2first = True
    x_noaux = 0
    split3 = False
    defer = False
    golate = False
    y1wait = 25
    y1pos = 90
    w3 = False
    w1only = False
    noh = False
    nohalo = False
    h2early = True
    u2early = False
    mid = False
    hiprio = 3
    x_noh2 = False
    x_nogate = False
    x_nou2 = False
    x_nock = False
    x_noq = False
    k_nt = "nt"
    h_nt = "nt"
    yxack = True
    cprio = 2
    eprio = 0
    sprio = 3
    nopk = True
    tl_fl = "sc1"
    noq = False
    pf_nt = ""
    dma_fl = "sc1"
    win = True


STAMP_REGS = [88, 90, 92, 94, 96, 98, 36, 38]


class Gen:
    def __init__(self, o):
        self.o = o
        self.L = []
        self.uid = 0
        self.cold = []
    def a(self, s):
        for ln in s.split("\n"):
            self.L.append("    " + ln.strip() if not ln.strip().endswith(":") else ln.strip())
    def flush_cold(self):
        while self.cold:
            c, self.cold = self.cold, []
            for fn in c: fn()
    def lab(self, base):
        self.uid += 1
        return f"L_{base}_{self.uid}"
    def srd(self, d, lo, nrec):
        if lo is not None and lo != d:
            self.a(f"s_mov_b64 s[{d}:{d+1}], s[{lo}:{lo+1}]")
        self.a(f"s_mov_b32 s{d+2}, {nrec}\ns_mov_b32 s{d+3}, 0x00020000")
    def stamp(self, i, early=None, mid=None, tl=None):
        if self.o.tl and i != 7: i = -1 if tl is None else tl
        if self.o.early: i = -1 if early is None else early
        if self.o.mid and i != 7: i = -1 if mid is None else mid
        if self.o.only07 and i != 7: i = -1
        if (self.o.stamps or self.o.dspan) and i >= 0:
            r = STAMP_REGS[i]
            self.a(f"{'s_memtime' if self.o.cyc else 's_memrealtime'} s[{r}:{r+1}]")


sWV, sG, sR, sH, sGQ = 3, 4, 5, 6, 7
sT0, sT1, sT2, sT3 = 8, 9, 10, 11
sM, sEV, sCNT, sSIG = 12, 13, 14, 15
pOUT, pDBG, pWS = 40, 42, 44
sK, sV, sQ, sW, sD, sXU, sXY, sOUT, sCT, sHH = 48, 52, 56, 60, 64, 68, 72, 76, 80, 84
sDG = 60
sROW0, sLC, sCOL, sLR, sCHJ, sX1, sX2, sX3, sX4, sF, sN = 16, 17, 18, 19, 20, 21, 22, 23, 24, 26, 27
sWMY, sTS, sGB, sDGO, sJ = 28, 32, 33, 34, 35
sTAG = 25
sE, sSTG = 100, 101


def poll_line(G, vl, soff, w, vt, cnt, n, sleep=None, scmp=sF, detect=None):
    L, D, C, R = G.lab("pg"), G.lab("pgd"), G.lab("pgc"), G.lab("pgr")
    G.a(f"s_mov_b32 s{sCNT}, 0")
    G.a(f"{L}:")
    G.a(f"buffer_load_dwordx{w} v[{vt}:{vt+w-1}], v{vl}, s[{sCT}:{sCT+3}], s{soff} offen sc1")
    G.a(f"s_add_u32 s{sCNT}, s{sCNT}, 1")
    G.a("s_waitcnt vmcnt(0)")
    G.a(f"v_xor_b32 v{vt}, s{scmp}, v{vt}")
    for k in range(1, w):
        G.a(f"v_bitop3_b32 v{vt}, v{vt}, v{vt+k}, s{scmp} bitop3:0xf6")
    G.a(f"v_cmp_ne_u32 vcc, 0, v{vt}")
    G.a(f"s_cbranch_vccz {D}")
    sl = G.o.sleep if sleep is None else sleep
    if sl:
        G.a(f"s_sleep {sl}")
    G.a(f"s_and_b32 s{sT0}, s{sCNT}, 63\ns_cbranch_scc1 {L}")
    G.a(f"s_branch {C}")
    G.a(f"{D}:")
    def cold():
        G.a(f"{C}:")
        R0 = G.lab("pgx") if detect else R
        G.a(f"s_cmp_eq_u32 s{sM}, 0\ns_cbranch_scc1 {R0}")
        G.a(f"s_mov_b64 exec, 1\nv_mov_b32 v{vt}, 0")
        G.a(f"buffer_atomic_add v{vt}, off, s[{sDG}:{sDG+3}], {cnt[0]} offset:{cnt[1]} sc0 sc1")
        G.a(f"s_waitcnt vmcnt(0)")
        G.a(f"v_readfirstlane_b32 s{sT0}, v{vt}\ns_mov_b64 exec, -1")
        G.a(f"s_cmp_ge_u32 s{sT0}, {n}\ns_cbranch_scc1 {D}")
        G.a(f"{R}:")
        G.a(f"s_cmp_lt_u32 s{sCNT}, {CAP_G}\ns_cbranch_scc1 {L}\ns_branch {D}")
        if detect:
            G.a(f"{R0}:")
            detect(R)
            G.a(f"s_branch {R}")
    G.cold.append(cold)


def poll_lds(G, vfl, off, expected, vt, sleep=1, pair=None, hook=None):
    L, D = G.lab("pl"), G.lab("pld")
    G.a(f"s_mov_b32 s{sCNT}, 0")
    G.a(f"{L}:")
    if pair is None:
        G.a(f"ds_read_b32 v{vt}, v{vfl} offset:{off}")
    else:
        G.a(f"ds_read_b64 v[{vt}:{vt+1}], v{vfl} offset:{off}")
    G.a(f"s_add_u32 s{sCNT}, s{sCNT}, 1")
    G.a("s_waitcnt lgkmcnt(0)")
    G.a(f"v_readfirstlane_b32 s{sT0}, v{vt}")
    if pair is not None:
        G.a(f"v_readfirstlane_b32 s{pair}, v{vt+1}")
    if hook: hook(L)
    G.a(f"s_cmp_ge_u32 s{sT0}, {expected}")
    G.a(f"s_cbranch_scc1 {D}")
    if sleep: G.a(f"s_sleep {max(sleep, G.o.lsleep)}")
    G.a(f"s_cmp_lt_u32 s{sCNT}, {CAP_L}")
    G.a(f"s_cbranch_scc1 {L}")
    G.a(f"{D}:")


def get_nonce(G, vfl, vt, vf):
    L, D = G.lab("gn"), G.lab("gnd")
    G.a(f"s_getreg_b32 s{sF}, hwreg(HW_REG_XCC_ID, 0, 4)\ns_mov_b32 s{sCNT}, 0")
    G.a(f"{L}:")
    G.a(f"ds_read_b64 v[{vt}:{vt+1}], v{vfl} offset:{F_N}")
    G.a(f"s_add_u32 s{sCNT}, s{sCNT}, 1")
    G.a("s_waitcnt lgkmcnt(0)")
    G.a(f"v_readfirstlane_b32 s{sTAG}, v{vt+1}")
    G.a(f"v_readfirstlane_b32 s{sN}, v{vt}")
    G.a(f"s_cmp_ge_u32 s{sTAG}, 1")
    G.a(f"s_cbranch_scc1 {D}")
    G.a("s_sleep 1")
    G.a(f"s_cmp_lt_u32 s{sCNT}, {CAP_L}")
    G.a(f"s_cbranch_scc1 {L}")
    G.a(f"{D}:")
    G.a(f"s_add_u32 s{sF}, s{sF}, s{sN}\ns_add_u32 s{sF}, s{sF}, 1\nv_mov_b32 v{vf}, s{sF}\ns_and_b32 s{sTAG}, s{sTAG}, 0xffff")


def to_mode1(G, vf):
    G.a(f"s_mov_b32 s{sM}, 1\ns_mov_b32 s{sF}, s{sN}\nv_mov_b32 v{vf}, s{sN}")
    G.a(f"s_add_u32 s{sGB}, s{sGB}, {UOFF}")
    G.a(f"s_mov_b64 s[{sXU}:{sXU+1}], s[{pWS}:{pWS+1}]")
    G.a(f"s_add_u32 s{sXY}, s{pWS}, {OUTB}\ns_addc_u32 s{sXY+1}, s{pWS+1}, 0")


def adopt_mode(G, sm, vf):
    A, B = G.lab("am"), G.lab("amb")
    G.a(f"s_cmp_gt_u32 s{sm}, s{sM}\ns_cbranch_scc1 {A}")
    G.a(f"{B}:")
    def cold():
        G.a(f"{A}:")
        to_mode1(G, vf)
        G.a(f"s_branch {B}")
    G.cold.append(cold)


def signal(G, vf, vrep, sslot, line, w, cnt, vt):
    A, B = G.lab("ma"), G.lab("mb")
    G.a(f"s_mov_b64 exec, 15")
    G.a(f"s_cmp_eq_u32 s{sM}, 0\ns_cbranch_scc0 {A}")
    G.a(f"buffer_store_dword v{vf}, v{vrep}, s[{sCT}:{sCT+3}], s{sslot} offen")
    G.a(f"{B}:")
    G.a("s_mov_b64 exec, -1")
    def cold():
        G.a(f"{A}:")
        G.a(f"s_mov_b64 exec, 1\nv_mov_b32 v{vt}, 1")
        G.a(f"buffer_atomic_add v{vt}, off, s[{sDG}:{sDG+3}], s{sDGO} offset:{cnt} sc0 sc1")
        G.a("s_waitcnt vmcnt(0)")
        G.a(f"v_readfirstlane_b32 s{sT0}, v{vt}")
        G.a(f"s_cmp_eq_u32 s{sT0}, {64*w-1}\ns_cbranch_scc0 {B}")
        G.a(f"s_mov_b64 exec, -1\ns_add_u32 s{sT1}, s{sGB}, {line}")
        G.a(f"v_lshlrev_b32 v{vt+4}, 4, v0")
        for k in range(4): G.a(f"v_mov_b32 v{vt+k}, v{vf}")
        for fl in (" sc1", ""):
            for k in range(w):
                G.a(f"buffer_store_dwordx4 v[{vt}:{vt+3}], v{vt+4}, s[{sCT}:{sCT+3}], s{sT1} offen offset:{1024*k}{fl}")
        G.a(f"s_branch {B}")
    G.cold.append(cold)


def tagged_loads(G, n, r0, vaddr, srd, offs, vt, after=None):
    L, D, C = G.lab("tl"), G.lab("tld"), G.lab("tlc")
    def loads():
        for k in range(n):
            so, io = offs(k)
            if so: G.a(f"s_mov_b32 s{sT1}, {so}")
            G.a(f"buffer_load_dwordx4 v[{r0+4*k}:{r0+4*k+3}], v{vaddr}, s[{srd}:{srd+3}], {'s%d' % sT1 if so else 0} offen offset:{io} {G.o.tl_fl}")
    G.a(f"s_mov_b32 s{sCNT}, 0")
    loads()
    nyoung = after() if after else 0
    G.a(f"s_waitcnt vmcnt({nyoung})")
    if after: G.stamp(-1, 5, 2)
    G.a(f"{L}:")
    G.a(f"v_xor_b32 v{vt}, s{sTAG}, v{r0}")
    for k in range(1, 4 * n):
        G.a(f"v_bitop3_b32 v{vt}, v{vt}, v{r0+k}, s{sTAG} bitop3:0xf6")
    G.a(f"v_and_b32 v{vt}, 0xffff, v{vt}")
    G.a(f"v_cmp_ne_u32 vcc, 0, v{vt}")
    G.a(f"s_cbranch_vccnz {C}")
    G.a(f"{D}:")
    def cold():
        G.a(f"{C}:")
        G.a(f"s_add_u32 s{sCNT}, s{sCNT}, 1\ns_cmp_lt_u32 s{sCNT}, {CAP_G}\ns_cbranch_scc0 {D}")
        R = G.lab("tlr")
        G.a(f"s_and_b32 s{sT0}, s{sCNT}, 63\ns_cbranch_scc1 {R}\nbuffer_inv sc1\n{R}:")
        G.a("s_sleep 2")
        loads()
        G.a(f"s_waitcnt vmcnt(0)\ns_branch {L}")
    G.cold.append(cold)


def ctl_srd(G):
    G.a(f"s_add_u32 s{sCT}, s{pWS}, {CT_OFF}\ns_addc_u32 s{sCT+1}, s{pWS+1}, 0")
    G.srd(sCT, None, 9 * GSTRIDE)
    G.a(f"s_add_u32 s{sGB}, s{sG}, 1\ns_lshl_b32 s{sGB}, s{sGB}, 14")


def misc_srd(G):
    G.srd(sDG, pDBG, 256)
    G.a(f"s_mul_i32 s{sDGO}, s{sGQ}, 20\ns_lshl_b32 s{sT0}, s{sH}, 7\ns_add_u32 s{sDGO}, s{sDGO}, s{sT0}\ns_add_u32 s{sDGO}, s{sDGO}, 8")
    G.srd(sXU, pOUT, OUTB)
    G.srd(sXY, pOUT, OUTB)
    G.a(f"s_mov_b32 s{sM}, 0")


def chan_of(G, sj, dst):
    G.a(f"s_and_b32 s{sT1}, s{sR}, 12\ns_add_u32 s{sT1}, s{sT1}, s{sj}\ns_lshl_b32 s{sT1}, s{sT1}, 2\ns_and_b32 s{sT2}, s{sR}, 3\ns_add_u32 s{sT1}, s{sT1}, s{sT2}")
    G.a(f"s_lshr_b32 s{sT2}, s{sR}, 4\ns_lshl_b32 s{sT3}, s{sGQ}, 1\ns_add_u32 s{sT2}, s{sT2}, s{sT3}\ns_lshl_b32 s{sT2}, s{sT2}, 6\ns_add_u32 s{dst}, s{sT1}, s{sT2}")


def inbox_of(G, dst, slr):
    G.a(f"s_lshr_b32 s{sT2}, s{sR}, 4\ns_lshl_b32 s{sT3}, s{sGQ}, 1\ns_add_u32 s{sT2}, s{sT2}, s{sT3}\ns_lshl_b32 s{sT2}, s{sT2}, 7")
    G.a(f"s_mul_i32 s{dst}, s{sH}, 1152\ns_add_u32 s{dst}, s{dst}, s{sT2}\ns_and_b32 s{slr}, s{sR}, 15")


def xbox_of(G, dst, se, slr):
    G.a(f"s_lshl_b32 s{se}, s{sGQ}, 5\ns_add_u32 s{se}, s{se}, s{sR}\ns_lshr_b32 s{se}, s{se}, 1")
    G.a(f"s_lshr_b32 s{sT1}, s{se}, 4\ns_lshl_b32 s{sT1}, s{sT1}, 2\ns_and_b32 s{sT2}, s{se}, 3\ns_add_u32 s{slr}, s{sT1}, s{sT2}")
    G.a(f"s_bfe_u32 s{sT1}, s{se}, {(2<<16)|2}\ns_lshl_b32 s{sT1}, s{sT1}, 6")
    G.a(f"s_lshl_b32 s{sT2}, s{sH}, 19\ns_add_u32 s{dst}, s{sT1}, s{sT2}")


def blk_addr(G, vd, vt, slr, rowb, scol):
    G.a(f"v_add_u32 v{vt}, s{slr}, v{vd}\nv_and_b32 v{vt}, 15, v{vt}\nv_lshl_add_u32 v{vd}, v{vd}, 4, v{vt}")
    G.a(f"v_mul_u32_u24 v{vd}, {rowb}, v{vd}\nv_add_u32 v{vd}, s{scol}, v{vd}")


def xa_loads(G, b, va, q):
    nt = G.o.h_nt
    if G.o.noh: return
    G.a(f"buffer_load_dwordx4 v[{b+2}:{b+5}], v{va}, s[{sHH}:{sHH+3}], 0 offen offset:{1024*q} {nt}")
    if q:
        G.a(f"s_mov_b64 exec, 1\nbuffer_load_dwordx2 v[{b}:{b+1}], v{va}, s[{sHH}:{sHH+3}], 0 offen offset:{1024*q-8} {nt}\ns_mov_b64 exec, -1")


def xa_build(G, b, t, vdst, off, q, plain=False):
    w = lambda i: b + 2 + i
    bc = "" if q else " bound_ctrl:0"
    G.a(f"v_mov_b32_dpp v{b}, v{w(2)} wave_shr:1 row_mask:0xf bank_mask:0xf{bc}")
    G.a(f"v_mov_b32_dpp v{b+1}, v{w(3)} wave_shr:1 row_mask:0xf bank_mask:0xf{bc}")
    G.a(f"ds_write_b128 v{vdst}, v[{b+2}:{b+5}] offset:{off + 3*PLANE}")
    for i in range(4):
        G.a(f"v_alignbit_b32 v{t+i}, v{w(i-1)}, v{w(i-2)}, 16")
    G.a(f"ds_write_b128 v{vdst}, v[{t}:{t+3}] offset:{off}")
    for i in range(4):
        G.a(f"v_alignbit_b32 v{t+4+i}, v{w(i)}, v{w(i-1)}, 16")
    G.a(f"ds_write_b128 v{vdst}, v[{t+4}:{t+7}] offset:{off + 2*PLANE}")
    if plain:
        for i in range(4): G.a(f"v_mov_b32 v{t+8+i}, v{w(i-1)}")
    else:
        G.a(f"v_pk_mov_b32 v[{t+8}:{t+9}], v[{b}:{b+1}], v[{b+2}:{b+3}] op_sel:[1,0]")
        G.a(f"v_pk_mov_b32 v[{t+10}:{t+11}], v[{b+2}:{b+3}], v[{b+4}:{b+5}] op_sel:[1,0]")
    G.a(f"ds_write_b128 v{vdst}, v[{t+8}:{t+11}] offset:{off + PLANE}")


def transpose4(G, regs):
    G.a("s_nop 1")
    for j in (0, 1):
        for d in (0, 1):
            G.a(f"v_permlane32_swap_b32 v{regs[j]+d}, v{regs[j+2]+d}")
    G.a("s_nop 1")
    for j in (0, 2):
        for d in (0, 1):
            G.a(f"v_permlane16_swap_b32 v{regs[j]+d}, v{regs[j+1]+d}")


def u_src(G, vd, vt, slr, scol):
    G.a(f"v_lshrrev_b32 v{vd}, 1, v0\nv_sub_u32 v{vd}, 31, v{vd}")
    blk_addr(G, vd, vt, slr, RS_OUT, scol)
    G.a(f"v_and_b32 v{vt}, 1, v0\nv_lshl_add_u32 v{vd}, v{vt}, 4, v{vd}")


def u_loads(G, r, vsrc, qs):
    for k, q in enumerate(qs):
        G.a(f"s_mov_b32 s{sT1}, {(3-q)*32*16*RS_OUT}")
        G.a(f"buffer_load_dwordx4 v[{r+4*k}:{r+4*k+3}], v{vsrc}, s[{sXU}:{sXU+3}], s{sT1} offen {G.o.dma_fl}")


def u_write(G, r, vdst, vdst1, q):
    G.a(f"ds_write_b128 v{vdst}, v[{r}:{r+3}] offset:{1024*q}")
    G.a(f"ds_write2_b64 v{vdst1}, v[{r}:{r+1}], v[{r+2}:{r+3}] offset0:{128*q if q < 2 else 128*(q-2)} offset1:{(128*q if q < 2 else 128*(q-2))+1}")


def uc_setup(G, va, vb, vd, vt, sj, slr, scol, half):
    G.a(f"s_lshl_b32 s{sT0}, s{sj}, 4\ns_sub_u32 s{sT0}, {63 + 64*half}, s{sT0}\nv_lshrrev_b32 v{vd}, 3, v0\nv_sub_u32 v{va}, s{sT0}, v{vd}\nv_add_u32 v{vb}, -8, v{va}")
    blk_addr(G, va, vt, slr, RS_OUT, scol)
    blk_addr(G, vb, vt, slr, RS_OUT, scol)
    G.a(f"v_and_b32 v{vt}, 7, v0\nv_lshl_add_u32 v{va}, v{vt}, 4, v{va}\nv_lshl_add_u32 v{vb}, v{vt}, 4, v{vb}")
    G.a(f"s_lshl_b32 s{sT0}, s{sj}, 9\ns_add_u32 s{sT0}, s{sT0}, {U0 + 2048*(1-half)}\nv_lshl_add_u32 v{vd}, v{vd}, 5, s{sT0}")
    G.a(f"v_lshrrev_b32 v{vt}, 1, v{vt}\nv_mul_u32_u24 v{vt}, {U_SZ}, v{vt}\nv_add_u32 v{vd}, v{vd}, v{vt}\nv_and_b32 v{vt}, 1, v0\nv_lshl_add_u32 v{vd}, v{vt}, 4, v{vd}")
    G.a(f"v_add_u32 v{vd+1}, {UP1 - 8}, v{vd}")


def uc_loads(G, r, va, vb):
    for k, v in enumerate((va, vb)):
        G.a(f"buffer_load_dwordx4 v[{r+4*k}:{r+4*k+3}], v{v}, s[{sXU}:{sXU+3}], 0 offen {G.o.dma_fl}")


def uc_write(G, r, vd, k):
    G.a(f"ds_write_b128 v{vd}, v[{r}:{r+3}] offset:{256*k}")
    G.a(f"ds_write2_b64 v{vd+1}, v[{r}:{r+1}], v[{r+2}:{r+3}] offset0:{32*k} offset1:{32*k+1}")


def u_pad(G, vt, vz, subase):
    G.a(f"v_lshlrev_b32 v{vt}, 3, v0\nv_cmp_lt_u32 vcc, 14, v0\nv_add_u32 v{vt}, {subase}, v{vt}\nv_add_u32 v{vt+1}, 4096, v{vt}")
    G.a(f"v_cndmask_b32 v{vt}, v{vt}, v{vt+1}, vcc")


def u_pad_write(G, vt, vz):
    G.a(f"s_mov_b32 exec_hi, 0\nds_write_b64 v{vt}, v[{vz}:{vz+1}] offset:4096\ns_mov_b32 exec_hi, -1")


def pk(G, op, d, x, y, z=None, force=False):
    if G.o.nopk and not force:
        for i in (0, 1):
            G.a(f"v_{op}_f32 v{d+i}, v{x+i}, v{y+i}" + (f", v{z+i}" if z is not None else ""))
    else:
        G.a(f"v_pk_{op}_f32 v[{d}:{d+1}], v[{x}:{x+1}], v[{y}:{y+1}]" + (f", v[{z}:{z+1}]" if z is not None else ""))


def lds_count(G, vfl, vone, off):
    G.a(f"s_mov_b64 exec, 1\nds_add_u32 v{vfl}, v{vone} offset:{off}\ns_mov_b64 exec, -1")


def finish(G):
    if G.o.dspan:
        G.a("s_waitcnt vmcnt(0)")
        G.stamp(7, 7)
        G.srd(sK, pDBG, 256)
        D = G.lab("ds")
        G.a(f"s_waitcnt lgkmcnt(0)\ns_and_b32 s{sT0}, s2, 0x78\ns_cbranch_scc1 {D}")
        G.a(f"s_cmp_eq_u32 s{sWV}, 10\ns_cselect_b32 s{sT1}, 0, 32\ns_cselect_b32 s{sT0}, 1, 0\ns_cmp_eq_u32 s{sWV}, 9\ns_cselect_b32 s{sT0}, 1, s{sT0}\ns_cmp_eq_u32 s{sT0}, 1\ns_cbranch_scc0 {D}")
        G.a("s_not_b32 s90, s88")
        G.a("s_mov_b64 exec, 1")
        for i in range(8):
            G.a(f"v_mov_b32 v8, s{STAMP_REGS[i]}\nbuffer_atomic_umax v8, off, s[{sK}:{sK+3}], s{sT1} offset:{4*i} sc1")
        G.a(f"{D}:")
        G.a("s_endpgm")
        G.flush_cold()
        return
    if G.o.stamps:
        G.a("s_waitcnt vmcnt(0)")
        G.stamp(7, 7)
        G.a(f"s_add_u32 s{sT2}, s{pWS}, {64<<20}\ns_addc_u32 s{sT3}, s{pWS+1}, 0")
        G.srd(sK, sT2, 1 << 20)
        G.a(f"s_lshl_b32 s{sT0}, s2, 4\ns_add_u32 s{sT0}, s{sT0}, s{sWV}\ns_lshl_b32 s{sT0}, s{sT0}, 5")
        G.a("s_waitcnt lgkmcnt(0)")
        for i in range(8):
            G.a(f"v_mov_b32 v{8+i}, s{STAMP_REGS[i]}")
        G.a("s_mov_b64 exec, 1")
        G.a(f"buffer_store_dwordx4 v[8:11], off, s[{sK}:{sK+3}], s{sT0}")
        G.a(f"buffer_store_dwordx4 v[12:15], off, s[{sK}:{sK+3}], s{sT0} offset:16")
    G.a("s_endpgm")
    G.flush_cold()


class Stream:
    def __init__(self, G, slots, lead):
        self.G, self.slots, self.lead = G, slots, lead
        self.mf = []
        self.side = {}
        self.busy = {}
        self.avail = {}
        self.gate = {}
    def mfma(self, acc, A, B, zero):
        self.mf.append((acc, A, B, zero))
    def at(self, pos, fn, ds=0):
        self.side.setdefault(pos, []).append(fn)
        self.busy[pos] = self.busy.get(pos, 0) + ds
    def spread(self, pos, lines, step=1):
        for ln in lines:
            self.at(pos, lambda S_, ln=ln: S_.G.a(ln))
            pos += step
        return pos
    def emit(self, loadtext, pre=None):
        G = self.G
        n = len(self.mf)
        first, last, order = {}, {}, []
        for i, (acc, A, B, z) in enumerate(self.mf):
            for k in (A, B):
                if k not in first:
                    first[k] = i; order.append(k)
                last[k] = i
        free = [self.avail.get(r, 0) for r in self.slots]
        sched = {}
        cnt = [self.busy.get(i, 0) for i in range(n + 1)]
        slot_of = {}
        prev = 0
        for k in order:
            s = min(range(len(free)), key=lambda j: free[j])
            ops = loadtext(k, self.slots[s])
            lo = max(self.gate.get(k[0:2] + (k[2] >> 2,), 0), free[s], prev)
            slot_of[k] = self.slots[s]
            for op in ops:
                p = max(lo, first[k] - self.lead)
                hi = max(p, first[k] - 4)
                q = min(range(p, hi + 1), key=lambda x: (cnt[x], x))
                p = min(q, first[k])
                assert p >= lo, (k, p, lo)
                cnt[p] += 1
                sched.setdefault(p, []).append((k, op))
                prev = lo = p
            free[s] = last[k] + 1
        self.nds = 0
        self.done = 0
        ready = {}
        issued = []
        if pre:
            for k, op in sched.get(0, []):
                if k[1] == "A": G.a(op); self.nds += 1; ready[k] = self.nds
            sched[0] = [e for e in sched.get(0, []) if e[0][1] != "A"]
            self.nds += pre()
        for i in range(n + 1):
            for fn in self.side.get(i, []):
                fn(self)
            for k, op in sched.get(i, []):
                G.a(op); self.nds += 1; ready[k] = self.nds
            issued.append(self.nds)
            if i == n: break
            acc, A, B, z = self.mf[i]
            nd = max(ready[A], ready[B])
            if nd > self.done and G.o.wbatch and i >= G.o.wbatch:
                nd = max(nd, issued[i - G.o.wbatch])
            self.need(nd)
            a_, b_ = slot_of[A], slot_of[B]
            c = "0" if z else f"v[{acc}:{acc+3}]"
            G.a(f"v_mfma_f32_16x16x32_bf16 v[{acc}:{acc+3}], v[{a_}:{a_+3}], v[{b_}:{b_+3}], {c}")
        self.stats = (n, sum(cnt), max(cnt), sum(1 for c in cnt if c > 1))
    def ds(self, text):
        self.G.a(text); self.nds += 1
        return self.nds
    def need(self, idx):
        if idx > self.done:
            out = min(self.nds - idx, 15)
            self.G.a(f"s_waitcnt lgkmcnt({out})")
            self.done = self.nds - out


cA, cB, cAX, cBX, cY, cYX, cSW, cSR, cFL, cONE, c128, cT, cF, cL4 = 1, 2, 3, 4, 5, 6, 7, 8, 9, 10, 11, 12, 14, 15


def c_stream(G, ts, pre=None):
    o = G.o
    ACC = 16
    PK = 48
    ACX = 56
    slots = [72 + 4 * i for i in range(14)]
    S = Stream(G, slots, o.lead)
    acc = lambda t: ACC + 4 * t
    S.nst = 0
    seen = set()
    def add(ph, ch, pairs, ys, accf):
        for y in ys:
            for (x, b) in pairs:
                r = accf(x + b)
                S.mfma(r, (ph, "A", x, y, ch), (ph, "B", b, y, ch), (r, ch) not in seen)
                seen.add((r, ch))
    def loadtext(k, r):
        ph, typ, i, y, ch = k
        if typ == "A":
            return [f"ds_read_b128 v[{r}:{r+3}], v{cAX if ch else cA} offset:{512*i + 64*y}"]
        off = 512 * (7 - i) + 64 * y
        v = cBX if ch else cB
        return [f"ds_read_b128 v[{r}:{r+3}], v{v} offset:{off}"]
    p1 = [(x, b) for x in range(4) for b in range(4)]
    p1.sort(key=lambda p: (max(p), p[0] + p[1]))
    p1only = list(p1)
    p2 = [(4, 0), (5, 0), (4, 1), (6, 0), (5, 1), (4, 2), (7, 0), (6, 1), (5, 2), (4, 3)]
    p3 = [(x, b) for (b, x) in p2]
    tiles = [0, 3, 4, 7] if ts == 0 else [1, 2, 5, 6]
    px = [(x, b) for x in range(4, 8) for b in range(4) if x + b in tiles] + \
         [(x, b) for x in range(4) for b in range(4) if x + b in tiles] + \
         [(x, b) for x in range(4) for b in range(4, 8) if x + b in tiles]
    assert len(px) == 18
    use = []
    for (x, b) in px:
        if x + b not in use: use.append(x + b)
    accx = lambda t: ACX + 4 * use.index(t)
    if o.merge: p1 = p2 + p1
    beg, end = {}, {}
    for ph in o.order:
        if ph == "2" and o.merge: continue
        beg[ph] = len(S.mf)
        if ph == "a": add(1, 0, p1, range(o.ya), acc)
        if ph == "1": add(1, 0, p1, range(o.ya if "a" in o.order else 0, 8), acc)
        if ph == "x": add(2, 1, px, range(2), accx)
        if ph == "2": add(3, 0, p2, range(8), acc)
        if ph == "3" and not o.split3: add(4, 0, p3, range(8), acc)
        if ph == "3" and o.split3:
            add(4, 0, [p for p in p3 if sum(p) < 6], range(8), acc)
            e3a = len(S.mf)
            add(6, 0, [p for p in p3 if sum(p) >= 6], range(8), acc)
        if ph == "5": add(5, 0, p2 + p3, range(8), acc)
        end[ph] = len(S.mf)
    e1, ex, e3 = end["1"], end["x"], len(S.mf)
    S.mf[e1 - 16:e1] = sorted(S.mf[e1 - 16:e1], key=lambda m: m[0])

    def check(pos, off, expected):
        st = {}
        def rd(S_):
            st["i"] = S_.ds(f"ds_read_b32 v{cT}, v{cFL} offset:{off}")
        def ck(S_):
            S_.need(st["i"])
            if o.iso or o.x_nock or {F_X: 'X', C_U0: 'S', F_U2: 'U', C_H: 'H'}[off] in o.nock: return
            D, C = G.lab("ck"), G.lab("ckc")
            G.a(f"v_readfirstlane_b32 s{sT0}, v{cT}")
            G.a(f"s_cmp_ge_u32 s{sT0}, {expected}")
            G.a(f"s_cbranch_scc0 {C}")
            G.a(f"{D}:")
            def cold():
                G.a(f"{C}:")
                poll_lds(G, cFL, off, expected, cT)
                G.a(f"s_branch {D}")
            G.cold.append(cold)
        S.at(max(pos - 5, 0), rd, ds=1); S.at(max(pos, 0), ck)
    def count(pos, off):
        def f(S_):
            G.a("s_mov_b64 exec, 1")
            S_.ds(f"ds_add_u32 v{cFL}, v{cONE} offset:{off}")
            G.a("s_mov_b64 exec, -1")
        S.at(pos, f, ds=1)
    def ystore1(t, pk):
        A, B = G.lab("ys"), G.lab("yd")
        S.nst += 1
        G.a(f"s_mov_b32 s{sT1}, {t*TILE_STEP}")
        G.a(f"s_cbranch_vccnz {A}")
        G.a(f"buffer_store_dwordx2 v[{pk}:{pk+1}], v{cY}, s[{sXY}:{sXY+3}], s{sT1} offen")
        G.a(f"{B}:")
        def cold():
            G.a(f"{A}:")
            G.a(f"buffer_store_dwordx2 v[{pk}:{pk+1}], v{cY}, s[{sXY}:{sXY+3}], s{sT1} offen sc1")
            G.a(f"s_branch {B}")
        G.cold.append(cold)
    Ld = o.lead + 1
    check(beg["x"] - o.xlead, F_X, 1)
    for h in (0, 1):
        S.gate[(2, "A", h)] = S.gate[(2, "B", h)] = beg["x"] - o.xlead
    if not o.h2early:
        check(beg["2"] - Ld, C_H, 4)
        S.gate[(3, "A", 1)] = beg["2"] - Ld
    if not o.u2early:
        check(beg["3"] - o.ulead, F_U2, 4)
        S.gate[(4, "B", 1)] = beg["3"] - o.ulead
    lastw = {t: max(i for i in range(e1) if S.mf[i][0] == acc(t)) for t in range(4)}
    reuse = beg["x"]
    p = 0
    for t in range(4):
        p = max(p, lastw[t] + 9)
        r = acc(t)
        p = S.spread(p, [f"v_cvt_pk_bf16_f32 v{PK+2*t}, v{r}, v{r+1}", f"v_cvt_pk_bf16_f32 v{PK+2*t+1}, v{r+2}, v{r+3}"])
    if o.y1dir:
        if o.merge: p = e3 - 30
        for t in range(4):
            S.at(p, lambda S_, t=t: ystore1(t, PK + 2 * t))
            p += 2
        if not o.merge:
            def y1flag(S_):
                G.a(f"s_sub_u32 s{sX1}, s{sEV}, {L_Y2 - L_Y1}\ns_waitcnt vmcnt(0)")
                signal(G, cF, c128, sX1, L_Y1, 2, 8, 16)
            S.at(p + o.y1ack, y1flag)
    for t in range(0 if o.y1dir else 4):
        def yw(S_, t=t):
            S_.last_yw = S_.ds(f"ds_write_b64 v{cYX}, v[{PK+2*t}:{PK+2*t+1}] offset:{2048*t}")
        S.at(p, yw, ds=1)
        p += 2
    if not o.y1dir:
        S.at(p + 4, lambda S_: S_.need(S_.last_yw))
        count(p + 4, C_Y1)
    S.at(e1, lambda S_: G.stamp(3, mid=3))
    p = ex + 8
    if not o.konly: check(p, C_U0, 4)
    for i in range(4):
        def pw(S_, i=i):
            S_.last_pw = S_.ds(f"ds_write_b128 v{cSW}, v[{accx(tiles[i])}:{accx(tiles[i])+3}] offset:{4096*i}")
        S.at(p + i, pw, ds=1)
    S.at(p + 8, lambda S_: S_.need(S_.last_pw))
    count(p + 8, C_P)
    for i in range(4):
        S.slots.append(ACX + 4 * i); S.avail[ACX + 4 * i] = p + 9
    S.at(end.get("3", ex + 80), lambda S_: G.stamp(4, mid=4))
    S.at(ex, lambda S_: G.stamp(5, mid=5))
    n = e3
    P2 = ACC + 8
    def cvt(t):
        r = acc(t)
        return [f"v_cvt_pk_bf16_f32 v{P2+2*(t-4)}, v{r}, v{r+1}", f"v_cvt_pk_bf16_f32 v{P2+2*(t-4)+1}, v{r+2}, v{r+3}"]
    nl = 10 * o.stag
    S.mf[n - nl:] = sorted(S.mf[n - nl:], key=lambda m: m[0])
    p, late = 0, []
    for t in (4, 5, 6, 7):
        lw = max(i for i in range(n) if S.mf[i][0] == acc(t))
        p = max(p, lw + 9)
        if p + 2 <= n:
            p = S.spread(p, cvt(t))
            S.at(p, lambda S_, t=t: ystore1(t, P2 + 2 * (t - 4)))
        else:
            late.append((t, n - 1 - lw))
    def tail(S_):
        G.stamp(6, mid=6, tl=3)
        states = 0
        for t, d in late:
            if d + states < 8:
                G.a(f"s_nop {8 - d - states - 1}"); states = 8 - d
            G.a("\n".join(cvt(t))); ystore1(t, P2 + 2 * (t - 4))
            states += 5
    S.at(n, tail)
    if o.ydata and o.ygo > 0: count(n - o.ygo, C_Y2)
    S.emit(loadtext, pre)
    if o.ydata and not o.ygo: lds_count(G, cFL, cONE, C_Y2)
    G.stamp(-1, tl=4)
    G.a("s_waitcnt vmcnt(0)")
    G.stamp(-1, tl=5)
    if o.ydata and o.ygo < 0: lds_count(G, cFL, cONE, C_Y2)
    signal(G, cF, c128, sEV, L_Y2, 2, 12, 16)
    finish(G)
    return S.stats


def gen(o):
    G = Gen(o)
    a = G.a
    nt = o.ld_nt
    K = NAME + "_kernel"
    GO2 = 8 if o.uxearly else 9
    GO3 = GO2 + (0 if o.h2early else 4)
    a(f"{K}:")
    a("s_cmp_ge_u32 s2, 256\ns_cbranch_scc1 L_exit")
    if o.stamps or o.dspan:
        a("s_memtime s[88:89]" if o.cyc else "s_memrealtime s[88:89]")
    a("s_load_dwordx16 s[16:31], s[0:1], 0")
    a("s_load_dwordx8 s[32:39], s[0:1], 64")
    a("s_load_dwordx4 s[40:43], s[0:1], 96")
    a("s_load_dwordx2 s[44:45], s[0:1], 112")
    if o.pfentry:
        a(f"s_getpc_b64 s[{sT0}:{sT1}]")
        a("L_pc:")
        a(f"s_bfe_u32 s{sT2}, s2, {(3<<16)|3}\ns_mul_i32 s{sT2}, s{sT2}, 24\nv_cmp_gt_u32 vcc, 16, v0\nv_add_u32 v2, s{sT2}, v0\ns_nop 0")
        a(f"v_cndmask_b32 v2, v2, v0, vcc\nv_lshlrev_b32 v2, 7, v2\nv_min_u32 v2, L_exit-L_pc, v2\nv_cmp_gt_u32 vcc, 40, v0\ns_and_saveexec_b64 s[{sT2}:{sT3}], vcc\ns_cbranch_execz L_pd")
        a(f"global_load_dword v17, v2, s[{sT0}:{sT1}]")
        a(f"L_pd:\ns_mov_b64 exec, s[{sT2}:{sT3}]")
    a("v_lshrrev_b32 v1, 6, v0")
    a(f"s_and_b32 s{sG}, s2, 7")
    a(f"v_readfirstlane_b32 s{sWV}, v1")
    a("v_and_b32 v0, 63, v0")
    a(f"s_lshr_b32 s{sR}, s2, 3\ns_lshr_b32 s{sH}, s{sG}, 2\ns_and_b32 s{sGQ}, s{sG}, 3")
    a(f"s_cmp_eq_u32 s{sWV}, {W_S}\ns_cbranch_scc1 L_Si")
    a(f"s_cmp_ge_u32 s{sWV}, {W_C}\ns_cbranch_scc1 L_Ci")

    vIN, vK3, vWo, vDo, vG, vL = 1, 2, 3, 4, 5, 6
    vFL, vONE, vX, vO1, vO2, vT, vF, vL4, v128, vRD = 7, 8, 9, 10, 11, 12, 14, 15, 124, 126
    WR, DR, KR, VR, QR = 16, 24, 26, 40, 48
    WF, KF, KS, PKU = 56, 72, 100, 116
    a(f"s_sub_u32 s{sE}, s{sWV}, 2\ns_cselect_b32 s{sE}, 8, s{sE}\ns_and_b32 s{sT0}, s{sE}, 4\ns_cselect_b64 vcc, -1, 0")
    a(f"s_lshl_b32 s{sT1}, s{sR}, 1\ns_and_b32 s{sT2}, s{sE}, 4\ns_lshl_b32 s{sT2}, s{sT2}, 4\ns_add_u32 s{sT1}, s{sT1}, s{sT2}")
    a(f"s_bfe_u32 s{sT2}, s{sE}, {(1<<16)|1}\ns_add_u32 s{sT1}, s{sT1}, s{sT2}")
    a(f"s_lshl_b32 s{sT0}, s{sGQ}, 1\ns_and_b32 s{sT3}, s{sE}, 1\ns_add_u32 s{sT0}, s{sT0}, s{sT3}")
    a(f"s_lshl_b32 s{sT2}, s{sGQ}, 5\ns_add_u32 s{sT2}, s{sT2}, s{sR}")
    a(f"v_lshrrev_b32 v{vK3}, 3, v0\nv_mul_u32_u24 v{vK3}, {RS_IN}, v{vK3}\nv_and_b32 v{vWo}, 7, v0\nv_lshl_add_u32 v{vK3}, v{vWo}, 4, v{vK3}")
    a(f"s_cmp_eq_u32 s{sE}, 8")
    a(f"s_cselect_b32 s46, 8, s{sT0}\ns_cselect_b32 s47, s{sT2}, s{sT1}")
    a(f"s_mul_i32 s{sT0}, s47, {16*RS_IN}\ns_lshl_b32 s{sT1}, s46, 7\ns_add_u32 s{sSIG}, s{sT0}, s{sT1}")
    a(f"v_add_u32 v{vIN}, s{sSIG}, v{vK3}")
    a(f"s_lshl_b32 s{sT2}, s46, 9")
    a(f"v_lshl_add_u32 v{vWo}, v0, 4, s{sT2}\nv_lshl_add_u32 v{vDo}, v0, 4, s{sT1}")
    a(f"v_add_u32 v{vK3}, {(-3*RS_IN) & 0xffffffff}, v{vIN}")
    G.srd(sK, None, TENS); G.srd(sV, None, TENS); G.srd(sW, None, 4608)
    a(f"s_mul_i32 s{sSTG}, s{sE}, {STG_SZ}\ns_add_u32 s{sSTG}, s{sSTG}, {U0}\ns_cmp_eq_u32 s{sE}, 8\ns_cselect_b32 s{sSTG}, {STGX}, s{sSTG}\ns_add_u32 s{sT0}, s{sSTG}, 1024")
    a(f"s_cmp_eq_u32 s{sH}, 0")
    a("s_waitcnt lgkmcnt(0)")
    G.stamp(-1, 1)
    a(f"s_cselect_b64 s[{sK}:{sK+1}], s[18:19], s[30:31]")
    a(f"s_cbranch_vccnz L_E2i")
    a(f"s_mov_b32 m0, s{sSTG}\ns_mov_b32 s{sT1}, {5*RS_IN}")
    a(f"buffer_load_dwordx4 v{vK3}, s[{sK}:{sK+3}], 0 offen {o.k_nt} lds")
    a(f"s_mov_b32 m0, s{sT0}\ns_cselect_b64 s[{sV}:{sV+1}], s[20:21], s[32:33]")
    a(f"buffer_load_dwordx4 v{vIN}, s[{sK}:{sK+3}], s{sT1} offen {o.k_nt} lds")
    a(f"s_cselect_b64 s[{sW}:{sW+1}], s[22:23], s[34:35]")
    a(f"s_cselect_b64 s[{sD}:{sD+1}], s[26:27], s[38:39]")
    a(f"s_cselect_b64 s[{sQ}:{sQ+1}], s[16:17], s[28:29]")
    a(f"s_cselect_b64 s[{sHH}:{sHH+1}], s[24:25], s[36:37]")
    if o.barpos == 2: a("s_barrier")
    a(f"s_add_u32 s{sT0}, s{sSTG}, 2048\ns_mov_b32 m0, s{sT0}\ns_mov_b32 s{sT1}, {13*RS_IN}\ns_mov_b64 exec, 0xffffff\ns_add_u32 s{sT0}, s{sSTG}, 4480")
    a(f"buffer_load_dwordx4 v{vIN}, s[{sK}:{sK+3}], s{sT1} offen {o.k_nt} lds")
    a(f"s_mov_b32 m0, s{sT0}\ns_mov_b32 exec_lo, -1\ns_add_u32 s{sT0}, s{sSTG}, 4992")
    a(f"buffer_load_dwordx4 v{vWo}, s[{sW}:{sW+3}], 0 offen lds")
    G.srd(sD, None, 1152)
    a(f"s_mov_b32 m0, s{sT0}\ns_mov_b32 exec_lo, 0xff\ns_add_u32 s{sT0}, s{sSTG}, 2432")
    a(f"buffer_load_dwordx4 v{vDo}, s[{sD}:{sD+3}], 0 offen lds")
    a(f"s_mov_b32 m0, s{sT0}\ns_mov_b64 exec, -1\ns_add_u32 s{sT0}, s{sSTG}, {2432+1024}")
    a(f"buffer_load_dwordx4 v{vIN}, s[{sV}:{sV+3}], 0 offen {nt} lds")
    a(f"s_mov_b32 m0, s{sT0}\ns_mov_b32 s{sT1}, {8*RS_IN}")
    a(f"buffer_load_dwordx4 v{vIN}, s[{sV}:{sV+3}], s{sT1} offen {nt} lds")
    G.stamp(-1, 2)
    if o.barpos != 2: a("s_barrier")
    a("s_branch L_Em")
    a("L_E2i:")
    a(f"s_cselect_b64 s[{sV}:{sV+1}], s[20:21], s[32:33]")
    a(f"s_cselect_b64 s[{sW}:{sW+1}], s[22:23], s[34:35]")
    a(f"s_cselect_b64 s[{sD}:{sD+1}], s[26:27], s[38:39]")
    a(f"s_cselect_b64 s[{sQ}:{sQ+1}], s[16:17], s[28:29]")
    a(f"s_cselect_b64 s[{sHH}:{sHH+1}], s[24:25], s[36:37]")
    a("s_barrier\ns_branch L_Em")

    cHA, cHB, cHB0, cPF, cZ, cU = 48, 49, 50, 51, 56, 60
    a("L_Ci:")
    if o.ebar2: a("s_barrier")
    a(f"s_sub_u32 s46, s{sWV}, {W_C}")
    chan_of(G, 46, sT0)
    a(f"s_lshl_b32 s{sT0}, s{sT0}, 12")
    a(f"v_lshl_add_u32 v{cHA}, v0, 4, s{sT0}")
    inbox_of(G, 47, sSIG)
    G.srd(sHH, None, TENS)
    if o.prefill:
        G.srd(sOUT, None, OUTB)
        a(f"s_lshl_b32 s{sT0}, s46, {5 if o.u2early else 4}\nv_lshrrev_b32 v{cPF}, {1 if o.u2early else 2}, v0\nv_add_u32 v{cPF}, s{sT0}, v{cPF}")
        blk_addr(G, cPF, cHB, sSIG, RS_OUT, 47)
    a(f"s_cmp_eq_u32 s{sH}, 0")
    a("s_waitcnt lgkmcnt(0)" + ("" if o.ebar2 else "\ns_barrier"))
    G.stamp(-1, 1)
    a(f"s_cselect_b64 s[{sHH}:{sHH+1}], s[24:25], s[36:37]")
    xa_loads(G, 64, cHA, 0)
    xa_loads(G, 72, cHA, 1)
    if o.h2early:
        xa_loads(G, 112, cHA, 2)
        xa_loads(G, 120, cHA, 3)
    if o.prefill:
        a(f"s_mov_b64 s[{sOUT}:{sOUT+1}], s[{pOUT}:{pOUT+1}]")
        a(f"buffer_load_dword v{cPF}, v{cPF}, s[{sOUT}:{sOUT+3}], 0 offen {o.pf_nt}")
    G.stamp(-1, 2)
    a("s_branch L_Cm")

    sFL, sONE, s128, sT_, sF_, sL4, sZ, sHA, sHB, sHB0, sU, sU1, sP = 1, 2, 3, 4, 6, 7, 8, 12, 13, 14, 15, 16, 17
    a("L_Si:")
    if o.prefetch_code and not o.pfentry:
        a(f"s_getpc_b64 s[{sT0}:{sT1}]")
        a("L_pc:")
        a(f"s_and_b32 s{sT2}, s{sR}, 7\ns_mul_i32 s{sT2}, s{sT2}, 3072\nv_min_u32 v{sP}, 23, v0\nv_lshl_add_u32 v{sP}, v{sP}, 7, s{sT2}\nv_min_u32 v{sP}, L_exit-L_pc, v{sP}")
        a(f"global_load_dword v{sP}, v{sP}, s[{sT0}:{sT1}]")
    for i in range(4): a(f"v_mov_b32 v{sZ+i}, 0")
    a(f"v_lshlrev_b32 v{sL4}, 2, v0\nv_min_u32 v{sT_}, 60, v{sL4}\nv_add_u32 v{sT_}, {FL0}, v{sT_}\nds_write_b32 v{sT_}, v{sZ}")
    a(f"v_lshlrev_b32 v{s128}, 7, v0")
    a(f"s_lshl_b32 s46, s{sH}, 7")
    a("s_waitcnt lgkmcnt(0)\ns_barrier")
    G.stamp(-1, 1)
    a(f"s_cmp_eq_u32 s{sH}, 0")
    a(f"s_cselect_b64 s[{sHH}:{sHH+1}], s[24:25], s[36:37]")
    ctl_srd(G)
    a(f"s_load_dwordx2 s[{sX1+1}:{sX1+2}], s[{sCT}:{sCT+1}], s46")
    a(f"buffer_load_dword v{sHB0}, v{s128}, s[{sCT}:{sCT+3}], s{sGB} offen")
    if o.pfux:
        a(f"s_add_u32 s{sK}, s{pWS}, {XU_OFF}\ns_addc_u32 s{sK+1}, s{pWS+1}, 0")
        G.srd(sK, None, 1 << 20)
        a(f"s_lshl_b32 s{sT0}, s{sGQ}, 5\ns_add_u32 s{sT0}, s{sT0}, s{sR}\ns_lshl_b32 s{sT0}, s{sT0}, 12\ns_lshl_b32 s{sT1}, s{sH}, 19\ns_add_u32 s{sT0}, s{sT0}, s{sT1}")
        a(f"v_lshlrev_b32 v22, 6, v0\nbuffer_load_dword v22, v22, s[{sK}:{sK+3}], s{sT0} offen")
    G.stamp(-1, 2)
    if o.iso:
        a(f"v_mov_b32 v{sFL}, {FL0}\nv_mov_b32 v{sT_}, 2\nv_mov_b32 v{sT_+1}, 2\nds_write_b64 v{sFL}, v[{sT_}:{sT_+1}] offset:{F_N}\ns_waitcnt lgkmcnt(0)\ns_endpgm")
    a(f"v_mov_b32 v{sFL}, {FL0}\nv_mov_b32 v{sONE}, 1")
    a("s_waitcnt lgkmcnt(0)")
    a(f"s_and_b32 s{sN}, s{sX2}, 0xfffffff0\ns_add_u32 s{sN}, s{sN}, 0x9e3779b0\nv_mov_b32 v{sT_}, s{sN}")
    a(f"s_add_u32 s{sTAG}, s{sX3}, 1\ns_and_b32 s{sTAG}, s{sTAG}, 0xffff\ns_add_u32 s{sT0}, s{sTAG}, 0x10000\nv_mov_b32 v{sT_+1}, s{sT0}")
    a(f"ds_write_b64 v{sFL}, v[{sT_}:{sT_+1}] offset:{F_N}")
    G.stamp(1, -1)
    a(f"v_lshlrev_b32 v{sHA}, 4, v0")
    u_pad(G, 20, sZ, U0 + 4 * U_SZ)
    a(f"v_add_u32 v{sU1}, {XA0 + 4*XA_SZ}, v{sHA}")
    for p in range(4):
        a(f"ds_write_b128 v{sU1}, v[{sZ}:{sZ+3}] offset:{p*PLANE}")
    G.srd(sHH, None, TENS)
    misc_srd(G)
    a(f"s_add_u32 s{sK}, s{pWS}, {XU_OFF}\ns_addc_u32 s{sK+1}, s{pWS+1}, 0")
    G.srd(sK, None, 1 << 20)
    G.srd(sOUT, pOUT, OUTB)
    a(f"s_getreg_b32 s{sF}, hwreg(HW_REG_XCC_ID, 0, 4)\ns_add_u32 s{sF}, s{sF}, s{sN}\ns_add_u32 s{sF}, s{sF}, 1\nv_mov_b32 v{sF_}, s{sF}")
    xbox_of(G, sX3, sX2, sLR)
    a(f"s_add_u32 s{sT0}, s{sX2}, 512\ns_lshl_b32 s{sT0}, s{sT0}, 12")
    a(f"v_add_u32 v{sHA}, s{sT0}, v{sHA}")
    for q in range(4):
        xa_loads(G, 32 + 8 * q, sHA, q)
    if o.w1only: finish(G)
    a(f"v_lshrrev_b32 v{sHB}, 2, v0\nv_sub_u32 v{sHB}, 15, v{sHB}")
    blk_addr(G, sHB, sT_, sLR, 256, sX3)
    a(f"v_and_b32 v{sT_}, 3, v0\nv_lshl_add_u32 v{sHB}, v{sT_}, 4, v{sHB}")
    a(f"v_lshlrev_b32 v18, 3, v0\nv_add_u32 v18, {U0 + 4*U_SZ}, v18\ns_mov_b32 s47, 0x07060302\ns_setprio {o.sprio}")
    for q in range(4):
        a(f"s_waitcnt vmcnt({6-2*q})")
        xa_build(G, 32 + 8 * q, 96 + 12 * (q & 1), sU1, 384 + 1024 * q, q)
    G.stamp(-1, 3)
    poll_lds(G, sFL, C_GO, 4, sT_)
    G.stamp(2, 4, 1)
    def after():
        lds_count(G, sFL, sONE, C_GO)
        u_pad_write(G, 20, sZ)
        return 0
    if "s" in o.x_skip:
        lds_count(G, sFL, sONE, C_GO); a("s_endpgm")
    tagged_loads(G, 8, 96, sHB, sK, lambda k: ((7 - k) * 16 * 4096, 0), sT_, after)
    for k in range(8):
        a(f"v_perm_b32 v{64+2*k}, v{97+4*k}, v{96+4*k}, s47\nv_perm_b32 v{65+2*k}, v{99+4*k}, v{98+4*k}, s47")
        a(f"ds_write_b64 v18, v[{64+2*k}:{65+2*k}] offset:{512*k}\nds_write_b64 v18, v[{64+2*k}:{65+2*k}] offset:{512*k + UP1 - 8}")
    a("s_waitcnt lgkmcnt(0)")
    a(f"ds_write_b32 v{sFL}, v{sONE} offset:{F_X}")
    G.stamp(3, 6, 3)
    D = G.lab("epo")
    a(f"s_or_b32 s{sT0}, s{sGQ}, s{sR}\ns_cbranch_scc1 {D}")
    a(f"s_mov_b64 exec, 1\nv_mov_b32 v{sT_}, s{sN}\nv_mov_b32 v{sT_+1}, s{sTAG}\nbuffer_store_dwordx2 v[{sT_}:{sT_+1}], off, s[{sCT}:{sCT+3}], s46\ns_mov_b64 exec, -1")
    a(f"{D}:")
    finish(G)

    a("L_Em:")
    if o.w1only:
        a("s_waitcnt vmcnt(2)"); G.stamp(1, 4); a("s_waitcnt vmcnt(0)"); finish(G)
    if o.iso: a("s_waitcnt vmcnt(0)\ns_endpgm")
    a(f"s_setprio 1\ns_cmp_eq_u32 s{sE}, 8\ns_cbranch_scc0 L_Eh\ns_setprio 3")
    a("L_Eh:")
    G.stamp(-1, 3)
    vB1, vB2, vB3, vB4 = 42, 43, 44, 45
    vA1, vA2, vA3, vA4, vA5 = vK3, vWo, vDo, 125, 127
    QF, DF, YR, YF = KF, WF, 16, 24
    LX, LP, L2, LW, LZ = G.lab("ex"), G.lab("ep"), G.lab("e2"), G.lab("ew"), G.lab("ez")
    a(f"v_and_b32 v{vG}, 15, v0\nv_lshrrev_b32 v{vL}, 4, v0")
    a(f"v_mul_u32_u24 v{vIN}, {4*RS_IN}, v{vL}\nv_lshl_add_u32 v{vIN}, v{vG}, 3, v{vIN}\nv_add_u32 v{vIN}, s{sSIG}, v{vIN}")
    E2a = G.lab("e2a")
    a(f"s_cbranch_vccz {E2a}")
    a(f"s_sub_u32 s{sSTG}, s{sE}, 4\ns_mul_i32 s{sSTG}, s{sSTG}, {2432 if o.konly else 4480}\ns_add_u32 s{sSTG}, s{sSTG}, {YB0 if o.konly else SCR0}")
    G.srd(sD, None, 1152)
    a(f"s_lshl_b32 s{sT0}, s46, 9\nv_lshl_add_u32 v{vWo}, v{vG}, 5, s{sT0}\ns_lshl_b32 s{sT0}, s46, 7\nv_lshl_add_u32 v{vDo}, v{vG}, 3, s{sT0}")
    a(f"buffer_load_dwordx4 v[{WR}:{WR+3}], v{vWo}, s[{sW}:{sW+3}], 0 offen\nbuffer_load_dwordx4 v[{WR+4}:{WR+7}], v{vWo}, s[{sW}:{sW+3}], 0 offen offset:16")
    a(f"buffer_load_dwordx2 v[{DR}:{DR+1}], v{vDo}, s[{sD}:{sD+3}], 0 offen")
    a(f"{E2a}:")
    a(f"v_lshlrev_b32 v{vRD}, 9, v{vL}\nv_lshl_add_u32 v{vRD}, v{vG}, 3, v{vRD}\nv_add_u32 v{vRD}, s{sSTG}, v{vRD}")
    a(f"v_lshl_add_u32 v{vWo}, v{vG}, 5, s{sSTG}\nv_lshl_add_u32 v{vDo}, v{vG}, 3, s{sSTG}")
    G.srd(sQ, None, TENS); G.srd(sHH, None, TENS)
    G.srd(sOUT, pOUT, OUTB)
    ctl_srd(G)
    misc_srd(G)
    a(f"s_mov_b32 s{sLC}, s46\ns_lshl_b32 s{sROW0}, s47, 4")
    a(f"s_lshl_b32 s{sT1}, s{sLC}, 7\ns_mul_i32 s{sCOL}, s{sH}, 1152\ns_add_u32 s{sCOL}, s{sCOL}, s{sT1}")
    a(f"s_mul_i32 s{sT0}, s{sROW0}, {RS_OUT}\ns_add_u32 s{sT0}, s{sT0}, s{sCOL}")
    a(f"v_mul_u32_u24 v{vO1}, {4*RS_OUT}, v{vL}\nv_lshl_add_u32 v{vO1}, v{vG}, 3, v{vO1}\nv_add_u32 v{vO1}, s{sT0}, v{vO1}")
    a(f"v_add_u32 v{vO2}, {2*RS_OUT}, v{vO1}")
    a(f"s_lshl_b32 s{sT1}, s47, 12\ns_lshl_b32 s{sT2}, s{sH}, 19\ns_add_u32 s{sT1}, s{sT1}, s{sT2}\ns_mov_b32 s{sT2}, {RS_OUT}")
    a(f"s_cmp_eq_u32 s{sE}, 8\ns_cselect_b32 s{sT0}, s{sT1}, s{sT0}\ns_cselect_b32 s{sT1}, 256, s{sT2}\ns_cselect_b32 s{sT2}, 6, 5")
    a(f"v_and_b32 v{vX}, 12, v{vG}\nv_add3_u32 v{vX}, v{vX}, v{vL}, s47\nv_and_b32 v{vX}, 15, v{vX}\nv_mul_u32_u24 v{vX}, s{sT1}, v{vX}")
    a(f"v_and_b32 v{vT}, 3, v{vG}\nv_lshlrev_b32 v{vT}, s{sT2}, v{vT}\nv_add3_u32 v{vX}, v{vX}, v{vT}, s{sT0}")
    a(f"v_mov_b32 v{vFL}, {FL0}\nv_mov_b32 v{vONE}, 1\nv_lshlrev_b32 v{vL4}, 3, v0\nv_lshlrev_b32 v{v128}, 9, v0")
    a(f"s_and_b32 s{sX3}, s{sE}, 3\ns_lshl_b32 s{sEV}, s{sR}, 2\ns_add_u32 s{sEV}, s{sEV}, s{sX3}\ns_lshl_b32 s{sEV}, s{sEV}, 2\ns_add_u32 s{sEV}, s{sEV}, s{sGB}")
    a(f"s_mov_b32 s47, 0xffff0000")
    if o.k2early: a(f"s_cbranch_vccnz {L2}")
    get_nonce(G, vFL, vT, vF)
    if not o.k2early: a(f"s_cbranch_vccnz {L2}")

    def unpack_w():
        for c in range(4):
            for j in range(4):
                src = WR + 2 * c + (j >> 1)
                a(f"v_lshlrev_b32 v{WF+4*j+c}, 16, v{src}" if j % 2 == 0 else f"v_and_b32 v{WF+4*j+c}, s47, v{src}")
    def first_phase(packed, wait_v, part=3):
        for i in range(7 if part & 1 else 0):
            for d in range(2):
                a(f"v_lshlrev_b32 v{KF+4*i+2*d}, 16, v{KR+2*i+d}")
                a(f"v_and_b32 v{KF+4*i+2*d+1}, s47, v{KR+2*i+d}")
        for j in ((3, 2, 1, 0) if part & 1 else ()):
            if j == 0: wait_v(0)
            for r in range(4):
                for d in range(2):
                    ks, w, k = KS + 4 * r + 2 * d, WF + 4 * j + 2 * d, KF + 4 * (3 + r - j) + 2 * d
                    if j == 3: pk(G, "mul", ks, k, w, force=packed)
                    else: pk(G, "fma", ks, k, w, ks, force=packed)
        if not part & 2: return
        wait_v(1)
        for r in range(4):
            for d in range(2):
                a(f"v_lshlrev_b32 v{KF+4*r+2*d}, 16, v{VR+2*r+d}")
                a(f"v_and_b32 v{KF+4*r+2*d+1}, s47, v{VR+2*r+d}")
        for r in range(4):
            for d in range(2):
                pk(G, "mul", KS + 4 * r + 2 * d, KS + 4 * r + 2 * d, KF + 4 * r + 2 * d, force=packed)
        regs = [PKU + 2 * (3 - j) for j in range(4)]
        for c in range(4):
            a(f"v_cvt_pk_bf16_f32 v{regs[c]}, v{KS+12+c}, v{KS+8+c}")
            a(f"v_cvt_pk_bf16_f32 v{regs[c]+1}, v{KS+4+c}, v{KS+c}")
        transpose4(G, regs)
    def skip_term(packed=True, part=3):
        for d in range(2 if part & 1 else 0):
            a(f"v_lshlrev_b32 v{DF+2*d}, 16, v{DR+d}\nv_and_b32 v{DF+2*d+1}, s47, v{DR+d}")
        for r in range(4 if part & 2 else 0):
            for d in range(2):
                pk(G, "mul", KS + 4 * r + 2 * d, KS + 4 * r + 2 * d, DF + 2 * d, force=packed)
    def qloads():
        for i in range(4):
            a(f"buffer_load_dwordx2 v[{QR+2*i}:{QR+2*i+1}], v{vIN}, s[{sQ}:{sQ+3}], 0 offen offset:{i*RS_IN} {nt}")
    def gate(nyoung):
        a(f"s_setprio {o.eprio}\ns_waitcnt vmcnt({nyoung})")
        G.stamp(1, tl=1)
        for r in range(4):
            for d in range(2):
                a(f"v_lshlrev_b32 v{QF+4*r+2*d}, 16, v{QR+2*r+d}\nv_and_b32 v{QF+4*r+2*d+1}, s47, v{QR+2*r+d}")
        for r in range(4):
            for d in range(2):
                pk(G, "mul", KS + 4 * r + 2 * d, KS + 4 * r + 2 * d, QF + 4 * r + 2 * d)
        G.stamp(4)
    def mode_stores(lines):
        A, B = G.lab("ms"), G.lab("md")
        a(f"s_cmp_eq_u32 s{sM}, 0\ns_cbranch_scc0 {A}")
        a("\n".join(lines))
        a(f"{B}:")
        def cold():
            a(f"{A}:")
            a("\n".join(l + " sc1" for l in lines))
            a(f"s_branch {B}")
        G.cold.append(cold)
    ustores = [f"buffer_store_dwordx4 v[{PKU}:{PKU+3}], v{vX}, s[{sXU}:{sXU+3}], 0 offen",
               f"buffer_store_dwordx4 v[{PKU+4}:{PKU+7}], v{vX}, s[{sXU}:{sXU+3}], 0 offen offset:16"]
    def last_phase(packed, line, cnt, mid_label=None):
        held = []
        a(f"s_lshl_b32 s{sT0}, s{sX3}, 9\ns_add_u32 s{sX2}, s{sT0}, s{sGB}\ns_add_u32 s{sX2}, s{sX2}, {line}")
        LG = G.lab("yg")
        if packed and o.ydata:
            L, F, C = G.lab("yl"), G.lab("yf"), G.lab("yc")
            a(f"s_cmp_eq_u32 s{sM}, 0\ns_cbranch_scc0 {F}")
            poll_lds(G, vFL, C_Y2, 4, vT, sleep=1)
            G.stamp(-1, tl=2)
            a(f"s_mov_b32 s{sCNT}, 0")
            a(f"{L}:")
            a(f"buffer_load_dwordx4 v[{YR}:{YR+3}], v{vX}, s[{sXY}:{sXY+3}], 0 offen sc1")
            a(f"buffer_load_dwordx4 v[{YR+4}:{YR+7}], v{vX}, s[{sXY}:{sXY+3}], 0 offen offset:16 sc1")
            a(f"s_add_u32 s{sCNT}, s{sCNT}, 1\ns_waitcnt vmcnt(1)")
            for g in range(4):
                if g == 2: a("s_waitcnt vmcnt(0)")
                a(f"v_xor_b32 v{YF+g}, v{YR+2*g}, v{PKU+2*g}\nv_bitop3_b32 v{YF+g}, v{YF+g}, v{YR+2*g+1}, v{PKU+2*g+1} bitop3:0xf6")
            a(f"v_min3_u32 v{YF}, v{YF}, v{YF+1}, v{YF+2}\nv_min_u32 v{YF}, v{YF}, v{YF+3}\nv_cmp_eq_u32 vcc, 0, v{YF}")
            a(f"s_cbranch_vccz {LG}")
            if o.ysleep: a(f"s_sleep {o.ysleep}")
            a(f"s_cmp_lt_u32 s{sCNT}, 6\ns_cbranch_scc1 {L}")
            a(f"{F}:")
        poll_line(G, vL4, sX2, 2, vT, (f"s{sDGO}", cnt), 128, sleep=(o.sleep if packed else 2))
        G.stamp(5)
        a(f"buffer_load_dwordx4 v[{YR}:{YR+3}], v{vX}, s[{sXY}:{sXY+3}], 0 offen sc1")
        a(f"buffer_load_dwordx4 v[{YR+4}:{YR+7}], v{vX}, s[{sXY}:{sXY+3}], 0 offen offset:16 sc1")
        a("s_waitcnt vmcnt(0)")
        if packed and o.dry: a("s_mov_b64 vcc, 0")
        a(f"{LG}:")
        if packed and o.defer: lds_count(G, vFL, vONE, C_R)
        G.stamp(6, tl=3)
        if packed and o.share3:
            a(f"s_branch {LZ}1")
            G.flush_cold()
            return
        if not packed: a(f"{LZ}1:")
        if packed and o.dry: a(f"{LZ}d:")
        if o.tl: a(f"s_mul_i32 s{STAMP_REGS[5]}, s{sCNT}, 100\ns_add_u32 s{STAMP_REGS[5]}, s{STAMP_REGS[5]}, s88")
        transpose4(G, [YR + 2 * j for j in range(4)])
        if mid_label: a(f"{mid_label}:")
        for c in range(4):
            for d in range(2):
                a(f"v_lshlrev_b32 v{YF+8*d+c}, 16, v{YR+2*c+d}\nv_and_b32 v{YF+8*d+4+c}, s47, v{YR+2*c+d}")
        for r in range(4):
            for d in range(2):
                ks, q, y = KS + 4 * r + 2 * d, QF + 4 * r + 2 * d, YF + 4 * r + 2 * d
                pk(G, "fma", y, q, y, ks, force=packed)
            for d in range(2):
                y = YF + 4 * r + 2 * d
                a(f"v_cvt_pk_bf16_f32 v{YR+2*r+d}, v{y}, v{y+1}")
            st = f"buffer_store_dwordx2 v[{YR+2*r}:{YR+2*r+1}], v{vO1 if r < 2 else vO2}, s[{sOUT}:{sOUT+3}], 0 offen offset:{(r&1)*RS_OUT} {o.out_flag}"
            if packed and o.dry: held.append(st)
            elif packed or not o.defer: a(st)
            else: held.append(st)
        G.stamp(-1, tl=4)
        if packed and o.dry:
            a(f"s_cbranch_vccnz {LZ}r")
            a("\n".join(held)); held = []
        if held:
            poll_lds(G, vFL, C_R, 4, vT, sleep=1)
            a("\n".join(held))
        finish(G)

    a("s_waitcnt vmcnt(2)")
    G.stamp(-1, 4)
    a(f"ds_read_b128 v[{WR}:{WR+3}], v{vWo} offset:4480\nds_read_b128 v[{WR+4}:{WR+7}], v{vWo} offset:4496")
    for i in range(7):
        a(f"ds_read_b64 v[{KR+2*i}:{KR+2*i+1}], v{vRD} offset:{128*i}")
    a(f"ds_read_b64 v[{DR}:{DR+1}], v{vDo} offset:4992")
    a("s_waitcnt lgkmcnt(8)")
    unpack_w()
    a("s_waitcnt lgkmcnt(0)")
    def wait_v(k):
        if k == 0:
            a("s_waitcnt vmcnt(0)")
            G.stamp(-1, 5)
            for i in range(4):
                a(f"ds_read_b64 v[{VR+2*i}:{VR+2*i+1}], v{vRD} offset:{2432 + 128*i}")
        else:
            a("s_waitcnt lgkmcnt(0)")
    first_phase(True, wait_v)
    a(f"s_cmp_eq_u32 s{sE}, 8\ns_cbranch_scc1 {LX}")
    a("\n".join(ustores))
    skip_term()
    a(f"{LP}:")
    a("s_waitcnt vmcnt(0)")
    signal(G, vF, v128, sEV, L_U1, 2, 4, YR)
    G.stamp(3, 6)
    chan_of(G, sE, sT0)
    a(f"s_lshl_b32 s{sT0}, s{sT0}, 12\nv_lshl_add_u32 v{vA3}, v0, 4, s{sT0}")
    a(f"s_mul_i32 s{sT0}, s{sE}, {XA_SZ}\nv_lshl_add_u32 v{vRD}, v0, 4, s{sT0}")
    inbox_of(G, sX1, sX2)
    for k in range(2):
        a(f"v_lshrrev_b32 v{vA1 if k == 0 else vA2}, 3, v0" + (f"\nv_add_u32 v{vA2}, 8, v{vA2}" if k else ""))
        blk_addr(G, vA1 if k == 0 else vA2, vT, sX2, RS_OUT, sX1)
    a(f"v_and_b32 v{vT}, 7, v0\nv_lshl_add_u32 v{vA1}, v{vT}, 4, v{vA1}\nv_lshl_add_u32 v{vA2}, v{vT}, 4, v{vA2}")
    a(f"s_lshl_b32 s{sT0}, s{sE}, 4\ns_add_u32 s{sT0}, s{sT0}, 64\nv_lshrrev_b32 v{vB4}, 2, v0\nv_add_u32 v{vB4}, s{sT0}, v{vB4}")
    blk_addr(G, vB4, vT, sX2, RS_OUT, sX1)
    if o.coop2:
        uc_setup(G, vA4, vA5, 40, vT, sE, sX2, sX1, 1)
    else:
        a(f"s_lshl_b32 s{sT0}, s{sE}, 5\ns_add_u32 s{sX1}, s{sX1}, s{sT0}")
        u_src(G, vA4, vT, sX2, sX1)
        a(f"s_mul_i32 s{sT0}, s{sE}, {U_SZ}\ns_add_u32 s{sT0}, s{sT0}, {U0}\nv_lshl_add_u32 v{vL}, v0, 4, s{sT0}\nv_add_u32 v{vA5}, {UP1 - 8}, v{vL}")
    a(f"s_lshl_b32 s{sT0}, s{sE}, 11\ns_add_u32 s{sT0}, s{sT0}, {YB0}\nv_lshl_add_u32 v{vG}, v0, 4, s{sT0}\ns_mul_i32 s{sX1}, s{sE}, {TILE_STEP}")
    a(f"s_add_u32 s{sWMY}, s{pWS}, {XY_OFF}\ns_addc_u32 s{sWMY+1}, s{pWS+1}, 0")
    G.srd(sWMY, None, 1 << 20)
    a(f"s_lshl_b32 s{sT0}, s{sGQ}, 5\ns_add_u32 s{sT0}, s{sT0}, s{sR}\ns_lshr_b32 s{sT0}, s{sT0}, 1\ns_lshl_b32 s{sX4}, s{sH}, 19")
    a(f"v_lshrrev_b32 v{vB1}, 3, v0\nv_add_u32 v{vT}, s{sT0}, v{vB1}\nv_and_b32 v{vT}, 7, v{vT}\ns_and_b32 s{sT0}, s{sT0}, 56\nv_or_b32 v{vT}, s{sT0}, v{vT}")
    a(f"v_lshl_add_u32 v{vB1}, v{vB1}, 6, v{vT}\nv_lshlrev_b32 v{vB1}, 7, v{vB1}\nv_and_b32 v{vT}, 7, v0\nv_lshl_add_u32 v{vB1}, v{vT}, 4, v{vB1}\nv_add_u32 v{vB1}, s{sX4}, v{vB1}")
    a(f"s_lshl_b32 s{sT0}, s{sX3}, 12\ns_add_u32 s{sT0}, s{sT0}, {SCR0}\nv_lshl_add_u32 v{vB2}, v0, 4, s{sT0}\nv_mov_b32 v{vB3}, s{sTAG}")
    a(f"s_mov_b32 s{sT0}, 0x7430\ns_mov_b32 s{sT1}, 0x6521\ns_and_b32 s{sT2}, s{sR}, 1\ns_cselect_b32 s{sT0}, s{sT1}, s{sT0}")
    a(f"s_lshl_b32 s{sT1}, s{sX3}, 2\ns_lshr_b32 s{sT0}, s{sT0}, s{sT1}\ns_and_b32 s{sT0}, s{sT0}, 7\ns_lshl_b32 s{sX4}, s{sT0}, 16")
    def hook(L):
        R = G.lab("rp")
        a(f"s_cmp_gt_u32 s{sX2}, s{sM}\ns_cbranch_scc1 {R}")
        def cold():
            a(f"{R}:")
            to_mode1(G, vF)
            a("\n".join(l + " sc1" for l in ustores))
            a(f"s_branch {LP}")
        G.cold.append(cold)
    poll_lds(G, vFL, C_GO, 9, vT, pair=sX2, hook=hook)
    if not o.h2early:
        xa_loads(G, KR, vA3, 2)
        xa_loads(G, KR + 8, vA3, 3)
    a(f"buffer_load_dword v{vB4}, v{vB4}, s[{sOUT}:{sOUT+3}], 0 offen {o.pf_nt}")
    if o.pfyx: a(f"buffer_load_dword v46, v{vB1}, s[{sWMY}:{sWMY+3}], s{sX4} offen")
    if o.q1w2: qloads()
    if o.qw2:
        lds_count(G, vFL, vONE, C_GO)
        poll_lds(G, vFL, C_GO, 13, vT)
        qloads()
    if "1" in o.x_skip: a("s_endpgm")
    G.stamp(-1, mid=1)
    a(f"s_setprio {o.hiprio}\ns_add_u32 s{sEV}, s{sEV}, {L_Y1}\ns_lshl_b32 s{sT0}, s{sE}, 9\ns_add_u32 s{sX2}, s{sT0}, s{sGB}\ns_add_u32 s{sX2}, s{sX2}, {L_U2}")
    if not o.h2early:
        a("s_waitcnt vmcnt(2)")
        xa_build(G, KR, WF, vRD, XA0 + 384 + 2048, 2, plain=True)
        a("s_waitcnt vmcnt(0)")
        xa_build(G, KR + 8, KF, vRD, XA0 + 384 + 3072, 3, plain=True)
        a("s_waitcnt lgkmcnt(0)")
        lds_count(G, vFL, vONE, C_H)
    if not o.seq2: G.stamp(-1, mid=2)
    YX = KF
    yxstore = f"buffer_store_dwordx4 v[{YX}:{YX+3}], v{vB1}, s[{sWMY}:{sWMY+3}], s{sX4} offen sc1"
    def reduce():
        poll_lds(G, vFL, C_P, 4, vT, sleep=2)
        r = WF
        for i in range(4):
            a(f"ds_read_b128 v[{r+4*i}:{r+4*i+3}], v{vB2} offset:{1024*i}")
        a("s_waitcnt lgkmcnt(2)")
        for d in (0, 2): pk(G, "add", r + d, r + d, r + 4 + d)
        a("s_waitcnt lgkmcnt(0)")
        for d in (0, 2): pk(G, "add", r + 8 + d, r + 8 + d, r + 12 + d)
        for d in (0, 2): pk(G, "add", r + d, r + d, r + 8 + d)
        a(f"v_cvt_pk_bf16_f32 v{r+4}, v{r}, v{r+1}\nv_cvt_pk_bf16_f32 v{r+5}, v{r+2}, v{r+3}")
        for d in (0, 1):
            a(f"v_lshl_or_b32 v{YX+2*d}, v{r+4+d}, 16, v{vB3}\nv_and_or_b32 v{YX+2*d+1}, v{r+4+d}, s47, v{vB3}")
        G.stamp(-1, mid=3)
    def carry():
        if o.y1dir: return
        poll_lds(G, vFL, C_Y1, 4, vT, sleep=2)
        a(f"ds_read_b128 v[{YR}:{YR+3}], v{vG}\nds_read_b128 v[{YR+4}:{YR+7}], v{vG} offset:1024\ns_waitcnt lgkmcnt(0)")
        mode_stores([f"buffer_store_dwordx4 v[{YR}:{YR+3}], v{vA1}, s[{sXY}:{sXY+3}], s{sX1} offen",
                     f"buffer_store_dwordx4 v[{YR+4}:{YR+7}], v{vA2}, s[{sXY}:{sXY+3}], s{sX1} offen"])
        if o.seq2: G.stamp(-1, mid=2)
        a("s_waitcnt vmcnt(0)")
        signal(G, vF, v128, sEV, L_Y1, 2, 8, YR)
    def u2duty():
        poll_line(G, vL4, sX2, 2, vT, (f"s{sDGO}", 16), 128, sleep=1)
        G.stamp(-1, mid=4)
        if o.coop2: uc_loads(G, 28, vA4, vA5)
        else: u_loads(G, KR + 2, vA4, (1, 0))
        a(f"s_waitcnt vmcnt(1)")
        if o.coop2: uc_write(G, 28, 40, 0)
        else: u_write(G, KR + 2, vL, vA5, 1)
        a(f"s_waitcnt vmcnt(0)")
        if o.coop2: uc_write(G, 32, 40, 1)
        else: u_write(G, KR + 6, vL, vA5, 0)
        if not o.qw2 and not o.redlate and not o.yxearly: a(yxstore)
        a("s_waitcnt lgkmcnt(0)")
        lds_count(G, vFL, vONE, F_U2)
        G.stamp(-1, mid=5, tl=2)
    def yxdone():
        a("s_waitcnt vmcnt(0)")
        lds_count(G, vFL, vONE, C_YX)
    if o.seq2:
        reduce(); carry(); u2duty(); qloads()
        a("s_waitcnt vmcnt(4)")
        lds_count(G, vFL, vONE, C_YX)
    elif o.qw2 and o.redlate: u2duty(); reduce(); a(yxstore); yxdone(); carry()
    elif o.qw2: reduce(); a(yxstore); yxdone(); u2duty(); carry()
    elif o.redlate:
        u2duty(); reduce(); a(yxstore)
        if o.qhold: lds_count(G, vFL, vONE, C_H)
        if not o.q1w2: qloads()
        a(f"s_waitcnt vmcnt({0 if o.q1w2 else 4})")
        lds_count(G, vFL, vONE, C_YX)
        carry()
    elif o.yxearly:
        reduce(); a(yxstore); u2duty()
        if not o.q1w2: qloads()
        carry()
    else:
        reduce(); u2duty()
        if not o.q1w2: qloads()
        a(f"s_waitcnt vmcnt({0 if o.q1w2 else 4})")
        lds_count(G, vFL, vONE, C_YX)
        carry()
    gate(0)
    G.stamp(-1, mid=6)
    last_phase(False, L_Y2 if o.merge else L_Y1, 12 if o.merge else 8, f"{LZ}2")

    a(f"{L2}:")
    a(f"v_lshrrev_b32 v{vA2}, 3, v0\nv_mul_u32_u24 v{vA2}, {RS_IN}, v{vA2}\nv_and_b32 v{vT}, 7, v0\nv_lshl_add_u32 v{vA2}, v{vT}, 4, v{vA2}\nv_add_u32 v{vA2}, s{sSIG}, v{vA2}")
    a(f"v_add_u32 v{vA1}, {(-3*RS_IN) & 0xffffffff}, v{vA2}")
    a(f"s_add_u32 s{sEV}, s{sEV}, {L_U2}")
    if o.k2early:
        a(f"s_mov_b32 m0, s{sSTG}\ns_add_u32 s{sT0}, s{sSTG}, 1024\ns_mov_b32 s{sT1}, {5*RS_IN}")
        a(f"buffer_load_dwordx4 v{vA1}, s[{sK}:{sK+3}], 0 offen {o.k_nt} lds")
        a(f"s_mov_b32 m0, s{sT0}\ns_add_u32 s{sT0}, s{sSTG}, 2048")
        a(f"buffer_load_dwordx4 v{vA2}, s[{sK}:{sK+3}], s{sT1} offen {o.k_nt} lds")
        a(f"s_mov_b32 m0, s{sT0}\ns_mov_b32 s{sT1}, {13*RS_IN}\ns_mov_b64 exec, 0xffffff")
        a(f"buffer_load_dwordx4 v{vA2}, s[{sK}:{sK+3}], s{sT1} offen {o.k_nt} lds")
        a("s_mov_b64 exec, -1\ns_setprio 0\ns_waitcnt vmcnt(3)")
        unpack_w()
        a("s_waitcnt vmcnt(0)")
        for i in range(7):
            a(f"ds_read_b64 v[{KR+2*i}:{KR+2*i+1}], v{vRD} offset:{128*i}")
        a("s_waitcnt lgkmcnt(0)")
        lds_count(G, vFL, vONE, C_U0)
        first_phase(False, lambda k: None, part=1)
        skip_term(False, 1)
        if o.dry: a(f"s_mov_b64 vcc, -1\ns_branch {LZ}d\n{LZ}r:")
        get_nonce(G, vFL, vT, vF)
        G.stamp(-1, mid=2)
        poll_lds(G, vFL, C_GO, o.e2lvl, vT, pair=sX2)
        adopt_mode(G, sX2, vF)
        for i in range(4):
            a(f"buffer_load_dwordx2 v[{VR+2*i}:{VR+2*i+1}], v{vIN}, s[{sV}:{sV+3}], 0 offen offset:{i*RS_IN} {nt}")
        lds_count(G, vFL, vONE, C_GO)
        G.stamp(-1, mid=1)
        a(f"s_setprio {o.hiprio}\ns_waitcnt vmcnt(0)")
        G.stamp(-1, mid=3)
        first_phase(False, lambda k: None, part=2)
    else:
        a("s_waitcnt vmcnt(0)")
        unpack_w()
        if o.konly: poll_lds(G, vFL, C_U1, 1, vT, sleep=2)
        if "2" in o.x_skip:
            poll_lds(G, vFL, C_GO, 5, vT); lds_count(G, vFL, vONE, C_GO); a("s_endpgm")
        poll_lds(G, vFL, C_GO, o.e2lvl, vT, pair=sX2)
        adopt_mode(G, sX2, vF)
        a(f"s_mov_b32 m0, s{sSTG}\ns_add_u32 s{sT0}, s{sSTG}, 1024\ns_mov_b32 s{sT1}, {5*RS_IN}")
        a(f"buffer_load_dwordx4 v{vA1}, s[{sK}:{sK+3}], 0 offen {o.k_nt} lds")
        a(f"s_mov_b32 m0, s{sT0}\ns_add_u32 s{sT0}, s{sSTG}, 2048")
        a(f"buffer_load_dwordx4 v{vA2}, s[{sK}:{sK+3}], s{sT1} offen {o.k_nt} lds")
        a(f"s_mov_b32 m0, s{sT0}\ns_mov_b32 s{sT1}, {13*RS_IN}\ns_mov_b64 exec, 0xffffff\ns_add_u32 s{sT0}, s{sSTG}, 2432")
        a(f"buffer_load_dwordx4 v{vA2}, s[{sK}:{sK+3}], s{sT1} offen {o.k_nt} lds")
        if o.konly:
            a("s_mov_b64 exec, -1")
            for i in range(4):
                a(f"buffer_load_dwordx2 v[{VR+2*i}:{VR+2*i+1}], v{vIN}, s[{sV}:{sV+3}], 0 offen offset:{i*RS_IN} {nt}")
        else:
            a(f"s_mov_b32 m0, s{sT0}\ns_mov_b64 exec, -1\ns_add_u32 s{sT0}, s{sSTG}, {2432+1024}")
            a(f"buffer_load_dwordx4 v{vA2}, s[{sV}:{sV+3}], 0 offen {nt} lds")
            a(f"s_mov_b32 m0, s{sT0}\ns_mov_b32 s{sT1}, {8*RS_IN}")
            a(f"buffer_load_dwordx4 v{vA2}, s[{sV}:{sV+3}], s{sT1} offen {nt} lds")
        lds_count(G, vFL, vONE, C_GO)
        G.stamp(-1, mid=1)
        a(f"s_setprio {o.hiprio}\ns_waitcnt vmcnt({4 if o.konly else 2})")
        G.stamp(-1, mid=3)
        for i in range(7):
            a(f"ds_read_b64 v[{KR+2*i}:{KR+2*i+1}], v{vRD} offset:{128*i}")
        a("s_waitcnt lgkmcnt(0)")
        def wait_v2(k):
            if o.konly:
                if k: a("s_waitcnt vmcnt(0)")
                return
            wait_v(k)
            if k == 0 and o.qw2: qloads()
            if k: lds_count(G, vFL, vONE, C_U0)
        first_phase(False, wait_v2)
    G.stamp(2, mid=4)
    mode_stores(ustores)
    skip_term(False, 2 if o.k2early else 3)
    a("s_waitcnt vmcnt(0)")
    signal(G, vF, v128, sEV, L_U2, 2, 16, YR)
    G.stamp(3, mid=5)
    if not o.qw2:
        poll_lds(G, vFL, C_H if o.qhold else F_U2, 5 if o.yxearly else 4, vT, sleep=2)
        qloads()
    gate(0)
    G.stamp(-1, mid=6)
    last_phase(True, L_Y2, 12)
    a(f"{LX}:")
    a(f"s_add_u32 s{sXU}, s{pWS}, {XU_OFF}\ns_addc_u32 s{sXU+1}, s{pWS+1}, 0\ns_add_u32 s{sXY}, s{pWS}, {XY_OFF}\ns_addc_u32 s{sXY+1}, s{pWS+1}, 0")
    a(f"v_and_b32 v{vT}, 4095, v{vX}\nv_lshrrev_b32 v{vT}, 1, v{vT}\nv_add_u32 v{vT}, s{sSTG}, v{vT}")
    a(f"ds_write_b128 v{vT}, v[{PKU}:{PKU+3}]\nds_write_b128 v{vT}, v[{PKU+4}:{PKU+7}] offset:16")
    a(f"v_lshl_add_u32 v{vT}, v0, 3, s{sSTG}")
    for k in range(4):
        a(f"ds_read_b64 v[{KF+2*k}:{KF+2*k+1}], v{vT} offset:{512*k}")
    a(f"v_and_b32 v{vG}, 0xfffff000, v{vX}\nv_lshl_add_u32 v{vG}, v0, 4, v{vG}\nv_mov_b32 v{vK3}, s{sTAG}")
    for k in range(4):
        a(f"s_waitcnt lgkmcnt({3-k})")
        for d in (0, 1):
            a(f"v_lshl_or_b32 v{QR-8+4*k+2*d}, v{KF+2*k+d}, 16, v{vK3}\nv_and_or_b32 v{QR-8+4*k+2*d+1}, v{KF+2*k+d}, s47, v{vK3}")
        a(f"buffer_store_dwordx4 v[{QR-8+4*k}:{QR-8+4*k+3}], v{vG}, s[{sXU}:{sXU+3}], 0 offen offset:{1024*k} sc1")
    if o.konly: lds_count(G, vFL, vONE, C_U1)
    G.stamp(3, 6)
    skip_term()
    a(f"s_lshr_b32 s{sT0}, s{sROW0}, 5\ns_lshl_b32 s{sT1}, s{sT0}, 13\ns_lshl_b32 s{sT2}, s{sH}, 19\ns_add_u32 s{sT1}, s{sT1}, s{sT2}")
    a(f"s_bfe_u32 s{sT2}, s{sROW0}, {(1<<16)|4}\ns_lshl_b32 s{sT2}, s{sT2}, 6\ns_add_u32 s{sT1}, s{sT1}, s{sT2}")
    a(f"v_lshrrev_b32 v{vX}, 2, v0")
    a(f"v_add_u32 v{vT}, s{sT0}, v{vX}\nv_and_b32 v{vT}, 7, v{vT}\nv_and_b32 v{vX}, 8, v{vX}\nv_or_b32 v{vX}, v{vX}, v{vT}\nv_lshl_add_u32 v{vX}, v{vX}, 7, s{sT1}")
    a(f"v_and_b32 v{vT}, 3, v0\nv_lshl_add_u32 v{vX}, v{vT}, 4, v{vX}")
    a(f"v_lshlrev_b32 v{vA1}, 3, v0\nv_add_u32 v{vA1}, {XT0}, v{vA1}")
    a(f"v_and_b32 v{vA2}, 15, v0\nv_lshlrev_b32 v{vA2}, 7, v{vA2}\nv_lshrrev_b32 v{vT}, 4, v0\nv_lshl_add_u32 v{vA2}, v{vT}, 3, v{vA2}\nv_add_u32 v{vA2}, {XT0}, v{vA2}")
    if "x" in o.x_skip: a("s_endpgm")
    if o.qw2: poll_lds(G, vFL, C_GO, 13, vT, sleep=3)
    else: poll_lds(G, vFL, C_H if o.qhold else F_U2, 4, vT, sleep=3)
    if not o.yxearly:
        qloads()
        poll_lds(G, vFL, C_YX, 4, vT, sleep=2)
    G.stamp(5, mid=3, tl=2)
    tagged_loads(G, 4, 24, vX, sXY, lambda k: (0, 2048 * k) if k < 2 else (4096, 2048 * (k - 2)), vT, after=(lambda: (lds_count(G, vFL, vONE, F_U2), qloads(), 4)[2]) if o.yxearly else None)
    a(f"s_mov_b32 s{sT0}, 0x07060302")
    G.stamp(-1, mid=4, tl=3)
    for k in range(4):
        a(f"v_perm_b32 v{YR+2*k}, v{25+4*k}, v{24+4*k}, s{sT0}\nv_perm_b32 v{YR+2*k+1}, v{27+4*k}, v{26+4*k}, s{sT0}")
        a(f"ds_write_b64 v{vA1}, v[{YR+2*k}:{YR+2*k+1}] offset:{512*k}")
    for c in range(4):
        a(f"ds_read_b64 v[{YR+2*c}:{YR+2*c+1}], v{vA2} offset:{32*c}")
    gate(0)
    a(f"s_waitcnt lgkmcnt(0)\ns_branch {LZ}2")
    G.flush_cold()

    a("L_Cm:")
    if o.w1only:
        a("s_waitcnt vmcnt(1)"); G.stamp(1, 4); a("s_waitcnt vmcnt(0)"); finish(G)
    a(f"s_setprio {o.cprio}")
    G.stamp(1, 3)
    ctl_srd(G)
    misc_srd(G)
    a(f"s_mov_b32 s{sJ}, s46\ns_mov_b32 s{sCOL}, s47")
    a(f"s_mul_i32 s{sX2}, s{sJ}, {XA_SZ}\ns_mul_i32 s{sX3}, s{sJ}, {U_SZ}\ns_add_u32 s{sX3}, s{sX3}, {U0}")
    for i in range(4): a(f"v_mov_b32 v{cZ+i}, 0")
    a(f"v_lshl_add_u32 v{cHA}, v0, 4, s{sX2}")
    for p in range(4):
        a(f"ds_write_b128 v{cHA}, v[{cZ}:{cZ+3}] offset:{XA0 + p*PLANE}")
    a(f"v_lshl_add_u32 v{cHB}, v0, 4, s{sX3}\nv_add_u32 v{cHB0}, {UP1 - 8 + 2048}, v{cHB}")
    u_pad(G, 62, cZ, f"s{sX3}")
    a(f"v_and_b32 v{cT}, 3, v0\nv_mul_u32_u24 v{cA}, {PLANE}, v{cT}")
    a(f"v_bfe_u32 v{cB}, v0, 2, 2\nv_lshl_add_u32 v{cA}, v{cB}, 7, v{cA}")
    a(f"v_lshrrev_b32 v{cB}, 4, v0\nv_lshl_add_u32 v{cA}, v{cB}, 4, v{cA}")
    a(f"s_lshl_b32 s{sT0}, s{sJ}, 7")
    a(f"s_add_u32 s{sT1}, s{sT0}, {XA0 + 4*XA_SZ}\nv_add_u32 v{cAX}, s{sT1}, v{cA}\nv_add_u32 v{cA}, s{sX2}, v{cA}")
    a(f"v_lshlrev_b32 v{cB}, 4, v{cB}\nv_and_b32 v{cBX}, 15, v0\nv_lshlrev_b32 v{cBX}, 3, v{cBX}\nv_sub_u32 v{cB}, v{cB}, v{cBX}\nv_add_u32 v{cB}, 120, v{cB}")
    a(f"v_and_b32 v{cBX}, 1, v0\nv_xor_b32 v{cBX}, 1, v{cBX}\nv_mul_u32_u24 v{cBX}, {UP1 - 8}, v{cBX}\nv_add_u32 v{cB}, v{cB}, v{cBX}")
    a(f"s_add_u32 s{sT1}, s{sT0}, {U0 + 4*U_SZ}\nv_add_u32 v{cBX}, s{sT1}, v{cB}\nv_add_u32 v{cB}, s{sX3}, v{cB}")
    a(f"s_and_b32 s{sTS}, s{sR}, 1\ns_lshl_b32 s{sT2}, s{sJ}, 5\ns_add_u32 s{sCOL}, s{sCOL}, s{sT2}")
    a(f"v_lshrrev_b32 v{cY}, 2, v0")
    blk_addr(G, cY, cU, sSIG, RS_OUT, sCOL)
    a(f"v_lshl_add_u32 v{cY}, v{cT}, 3, v{cY}")
    a(f"v_lshrrev_b32 v{cYX}, 2, v0\nv_lshlrev_b32 v{cYX}, 7, v{cYX}\nv_lshl_add_u32 v{cYX}, v{cT}, 3, v{cYX}\ns_lshl_b32 s{sT2}, s{sJ}, 5\ns_add_u32 s{sT2}, s{sT2}, {YB0}\nv_add_u32 v{cYX}, s{sT2}, v{cYX}")
    a(f"s_lshl_b32 s{sT0}, s{sJ}, 10\ns_add_u32 s{sT0}, s{sT0}, {SCR0}\nv_lshl_add_u32 v{cSW}, v0, 4, s{sT0}")
    a(f"v_mov_b32 v{cFL}, {FL0}\nv_mov_b32 v{cONE}, 1\nv_lshlrev_b32 v{cL4}, 3, v0\nv_lshlrev_b32 v{c128}, 9, v0")
    a(f"s_lshl_b32 s{sEV}, s{sR}, 2\ns_add_u32 s{sEV}, s{sEV}, s{sJ}\ns_lshl_b32 s{sEV}, s{sEV}, 2\ns_add_u32 s{sEV}, s{sEV}, s{sGB}\ns_add_u32 s{sEV}, s{sEV}, {L_Y2}")
    if o.coop1: uc_setup(G, cU, cU + 1, 52, cT, sJ, sSIG, 47, 0)
    else: u_src(G, cU, cT, sSIG, sCOL)
    a(f"s_lshl_b32 s{sX4}, s{sJ}, 9\ns_add_u32 s{sX4}, s{sX4}, s{sGB}\ns_add_u32 s{sX4}, s{sX4}, {L_U1}")
    npf = 1 if o.prefill else 0
    if o.h2early: npf += 4
    a(f"s_waitcnt vmcnt({2+npf})")
    G.stamp(-1, 4)
    xa_build(G, 64, 80, cHA, XA0 + 384, 0)
    a(f"s_waitcnt vmcnt({npf})")
    xa_build(G, 72, 16, cHA, XA0 + 384 + 1024, 1)
    if o.h2early:
        a(f"s_waitcnt vmcnt({npf-2})")
        xa_build(G, 112, 80, cHA, XA0 + 384 + 2048, 2)
        a(f"s_waitcnt vmcnt({npf-4})")
        xa_build(G, 120, 16, cHA, XA0 + 384 + 3072, 3)
    get_nonce(G, cFL, cT, cF)
    G.stamp(-1, -1)
    def detect(R):
        SW, NX = G.lab("dsw"), G.lab("dnx")
        a("s_mov_b64 exec, -1")
        a(f"ds_read_b32 v{cT}, v{cFL} offset:{F_M}\ns_waitcnt lgkmcnt(0)\nv_readfirstlane_b32 s{sT0}, v{cT}")
        a(f"s_cmp_eq_u32 s{sT0}, 0\ns_cbranch_scc0 {SW}")
        a(f"s_cmp_eq_u32 s{sJ}, 0\ns_cbranch_scc0 {NX}")
        a(f"s_sub_u32 s{sT2}, s{sF}, s{sN}\ns_sub_u32 s{sT2}, s{sT2}, 1\ns_mul_i32 s{sT3}, s{sT2}, s{sT2}\ns_lshl_b32 s{sT3}, s{sT3}, 16")
        a(f"s_lshl_b32 s{sT2}, s{sT2}, 8\ns_add_u32 s{sT2}, s{sT2}, s{sT3}\ns_add_u32 s{sT2}, s{sT2}, 1\ns_lshl_b32 s{sT3}, s{sT2}, 5")
        a(f"s_cmp_eq_u32 s{sCNT}, 64\ns_cselect_b32 s{sT2}, s{sT2}, 0")
        a(f"s_mov_b64 exec, 1\nv_mov_b32 v{cT}, s{sT2}")
        a(f"buffer_atomic_add v{cT}, off, s[{sDG}:{sDG+3}], s{sDGO} sc0 sc1")
        a("s_waitcnt vmcnt(0)")
        a(f"v_readfirstlane_b32 s{sT0}, v{cT}\ns_mov_b64 exec, -1\ns_add_u32 s{sT0}, s{sT0}, s{sT2}")
        if not o.force_mode1:
            a(f"s_cmp_eq_u32 s{sT0}, s{sT3}\ns_cbranch_scc1 {NX}")
        a(f"s_and_b32 s{sT0}, s{sT0}, 0xff\ns_cmp_ge_u32 s{sT0}, 32\ns_cbranch_scc0 {NX}")
        a(f"ds_write_b32 v{cFL}, v{cONE} offset:{F_M}")
        a(f"{SW}:")
        to_mode1(G, cF)
        a(f"s_add_u32 s{sX4}, s{sX4}, {UOFF}\ns_mov_b32 s{sLR}, s{sN}")
        a(f"{NX}:")
    if o.force_mode1:
        a(f"s_add_u32 s{sF}, s{sF}, 0")
    if not o.iso:
        if o.force_mode1:
            a(f"s_xor_b32 s{sLR}, s{sF}, 0x40000000")
        poll_line(G, cL4, sX4, 2, 80, (f"s{sDGO}", 4), 128, sleep=0, detect=detect, scmp=(sLR if o.force_mode1 else sF))
    G.stamp(-1, 5)
    if o.coop1: uc_loads(G, 64, cU, cU + 1)
    else: u_loads(G, 64, cU, (3, 2))
    lds_count(G, cFL, cONE, C_GO)
    u_pad_write(G, 62, cZ)
    a(f"s_cmp_lg_u32 s{sM}, 0\ns_cselect_b64 vcc, -1, 0")
    def pre():
        if o.coop1:
            a("s_waitcnt vmcnt(1)")
            uc_write(G, 64, 52, 0)
            a("s_waitcnt vmcnt(0)")
            uc_write(G, 68, 52, 1)
            a("s_waitcnt lgkmcnt(0)")
            lds_count(G, cFL, cONE, F_YX)
            poll_lds(G, cFL, F_YX, 4, cT, sleep=0)
            G.stamp(2, 6, 2, 2)
            return 0
        a("s_waitcnt vmcnt(1)")
        u_write(G, 64, cHB, cHB0, 3)
        a("s_waitcnt vmcnt(0)")
        u_write(G, 68, cHB, cHB0, 2)
        G.stamp(2, 6, 2, 2)
        return 4
    if not o.apre: pre()
    a(f"s_cmp_eq_u32 s{sTS}, 0")
    a("s_cbranch_scc0 L_C1")
    st0 = c_stream(G, 0, pre if o.apre else None)
    a("L_C1:")
    st1 = c_stream(G, 1, pre if o.apre else None)
    a("L_exit:")
    a("s_endpgm")

    head = open("cdna_kernels/" + NAME + ".s.ref").read().split("\n")
    hdr = [l for l in head if l.startswith("; Kernarg") or l.startswith(";   offset")]
    out = hdr + [f"; @launch grid=(256,1,1) block=(896,1,1) lds={LDS_SZ}",
                 '.amdgcn_target "amdgcn-amd-amdhsa--gfx950"', ".text", f".globl {K}", ".p2align 8", f".type {K},@function"]
    out += G.L
    out += ['.section .rodata,"a"', ".p2align 6", f".amdhsa_kernel {K}",
            "  .amdhsa_next_free_vgpr 128", "  .amdhsa_next_free_sgpr 102", "  .amdhsa_accum_offset 128",
            "  .amdhsa_group_segment_fixed_size 0", "  .amdhsa_kernarg_size 120", "  .amdhsa_user_sgpr_count 2",
            "  .amdhsa_user_sgpr_kernarg_segment_ptr 1", "  .amdhsa_system_sgpr_workgroup_id_x 1",
            "  .amdhsa_float_denorm_mode_32 3", ".end_amdhsa_kernel", ""]
    print("stream stats (mfma, ds, max/gap, gaps>1):", st0, st1, file=sys.stderr)
    return "\n".join(out)


if __name__ == "__main__":
    ap = argparse.ArgumentParser()
    ap.add_argument("-o", default="cdna_kernels/" + NAME + ".s")
    ap.add_argument("opts", nargs="*")
    args = ap.parse_args()
    o = Opt()
    for kv in args.opts:
        k, v = kv.split("=", 1)
        cur = getattr(o, k)
        setattr(o, k, (v not in ("0", "False", "")) if isinstance(cur, bool) else type(cur)(v))
    open(args.o, "w").write(gen(o))
```

```python
import sys, argparse

NAME = "concat_heads__ssm_conv_h3__ssm_conv_h3__prompt"

RS_IN = 1152
RS_OUT = 2304
TENS = 2359296
OUTB = 4718592
PLANE = 4640
XA_SZ = 4 * PLANE
UP1 = 4224
U_SZ = 2 * UP1 + 32
XA0 = 0
U0 = 5 * XA_SZ
STG_SZ = 5120
STGX = U0 + 5 * U_SZ
YB0 = STGX
XT0 = YB0 + 8192
SCR0 = XT0 + 2048
FL0 = SCR0 + 16384 + 1536
LDS_SZ = FL0 + 64
F_N, F_V, C_GO, F_M, C_U0, C_U1, C_R, C_H, F_X, F_U2, F_YX, C_P, C_Y1, C_Y2, C_YX = [4 * i for i in range(15)]
CT_OFF = 17 << 20
L_U1, L_U2, L_Y1, L_Y2 = 0, 2048, 4096, 6144
HSH = 21
XU_OFF, XY_OFF = 16 << 20, (16 << 20) + (1 << 19)
UOFF = 8192
GSTRIDE = 16384
TILE_STEP = 256 * RS_OUT
CAP_G = 1 << 15
CAP_L = 1 << 17
W_S, W_C = 0, 10


class Opt:
    stamps = False
    only07 = False
    force_mode1 = False
    ld_nt = "nt"
    out_flag = ""
    lead = 12
    prefetch_code = True
    prefill = True
    sleep = 1
    cyc = False
    iso = False
    dspan = False
    early = False
    order = "ax123"
    ya = 6
    uxearly = True
    pfx = False
    kvfirst = True
    seq2 = False
    spf2 = 0
    sq2 = False
    sqx = False
    sqs = 0
    hgate = 0
    pfirst = False
    cfirst = False
    q2now = True
    share3 = False
    dry = False
    pfentry = True
    ebar2 = 1
    barpos = 7
    tl = False
    qhold = False
    coop1 = True
    coop2 = True
    k2early = False
    konly = False
    q1w2 = False
    stag = 2
    ydata = True
    ygo = -1
    ysleep = 1
    pfyx = False
    pfux = False
    ulead = 7
    xlead = 9
    yxearly = False
    e2lvl = 5
    y1dir = True
    merge = False
    y1ack = 45
    lsleep = 0
    x_skip = ""
    nock = ""
    wbatch = 8
    apre = True
    qw2 = False
    redlate = False
    u2first = True
    x_noaux = 0
    split3 = False
    defer = False
    golate = False
    y1wait = 25
    y1pos = 90
    w3 = False
    w1only = False
    noh = False
    nohalo = False
    h2early = False
    u2early = False
    mid = False
    hiprio = 3
    x_noh2 = False
    x_nogate = False
    x_nou2 = False
    x_nock = False
    x_noq = False
    k_nt = "nt"
    h_nt = "nt"
    yxack = True
    cprio = 2
    eprio = 0
    sprio = 3
    nopk = True
    tl_fl = "sc1"
    noq = False
    pf_nt = ""
    dma_fl = "sc1"
    win = True


STAMP_REGS = [88, 90, 92, 94, 96, 98, 36, 38]


class Gen:
    def __init__(self, o):
        self.o = o
        self.L = []
        self.uid = 0
        self.cold = []
    def a(self, s):
        for ln in s.split("\n"):
            self.L.append("    " + ln.strip() if not ln.strip().endswith(":") else ln.strip())
    def flush_cold(self):
        while self.cold:
            c, self.cold = self.cold, []
            for fn in c: fn()
    def lab(self, base):
        self.uid += 1
        return f"L_{base}_{self.uid}"
    def srd(self, d, lo, nrec):
        if lo is not None and lo != d:
            self.a(f"s_mov_b64 s[{d}:{d+1}], s[{lo}:{lo+1}]")
        self.a(f"s_mov_b32 s{d+2}, {nrec}\ns_mov_b32 s{d+3}, 0x00020000")
    def stamp(self, i, early=None, mid=None, tl=None):
        if self.o.tl and i != 7: i = -1 if tl is None else tl
        if self.o.early: i = -1 if early is None else early
        if self.o.mid and i != 7: i = -1 if mid is None else mid
        if self.o.only07 and i != 7: i = -1
        if (self.o.stamps or self.o.dspan) and i >= 0:
            r = STAMP_REGS[i]
            self.a(f"{'s_memtime' if self.o.cyc else 's_memrealtime'} s[{r}:{r+1}]")


sWV, sG, sR, sH, sGQ = 3, 4, 5, 6, 7
sT0, sT1, sT2, sT3 = 8, 9, 10, 11
sM, sEV, sCNT, sSIG = 12, 13, 14, 15
pOUT, pDBG, pWS = 40, 42, 44
sK, sV, sQ, sW, sD, sXU, sXY, sOUT, sCT, sHH = 48, 52, 56, 60, 64, 68, 72, 76, 80, 84
sDG = 60
sROW0, sLC, sCOL, sLR, sCHJ, sX1, sX2, sX3, sX4, sF, sN = 16, 17, 18, 19, 20, 21, 22, 23, 24, 26, 27
sWMY, sTS, sGB, sDGO, sJ = 28, 32, 33, 34, 35
sTAG = 25
sE, sSTG = 100, 101


def poll_line(G, vl, soff, w, vt, cnt, n, sleep=None, scmp=sF, detect=None):
    L, D, C, R = G.lab("pg"), G.lab("pgd"), G.lab("pgc"), G.lab("pgr")
    G.a(f"s_mov_b32 s{sCNT}, 0")
    G.a(f"{L}:")
    G.a(f"buffer_load_dwordx{w} v[{vt}:{vt+w-1}], v{vl}, s[{sCT}:{sCT+3}], s{soff} offen sc1")
    G.a(f"s_add_u32 s{sCNT}, s{sCNT}, 1")
    G.a("s_waitcnt vmcnt(0)")
    G.a(f"v_xor_b32 v{vt}, s{scmp}, v{vt}")
    for k in range(1, w):
        G.a(f"v_bitop3_b32 v{vt}, v{vt}, v{vt+k}, s{scmp} bitop3:0xf6")
    G.a(f"v_cmp_ne_u32 vcc, 0, v{vt}")
    G.a(f"s_cbranch_vccz {D}")
    sl = G.o.sleep if sleep is None else sleep
    if sl:
        G.a(f"s_sleep {sl}")
    G.a(f"s_and_b32 s{sT0}, s{sCNT}, 63\ns_cbranch_scc1 {L}")
    G.a(f"s_branch {C}")
    G.a(f"{D}:")
    def cold():
        G.a(f"{C}:")
        R0 = G.lab("pgx") if detect else R
        G.a(f"s_cmp_eq_u32 s{sM}, 0\ns_cbranch_scc1 {R0}")
        G.a(f"s_mov_b64 exec, 1\nv_mov_b32 v{vt}, 0")
        G.a(f"buffer_atomic_add v{vt}, off, s[{sDG}:{sDG+3}], {cnt[0]} offset:{cnt[1]} sc0 sc1")
        G.a(f"s_waitcnt vmcnt(0)")
        G.a(f"v_readfirstlane_b32 s{sT0}, v{vt}\ns_mov_b64 exec, -1")
        G.a(f"s_cmp_ge_u32 s{sT0}, {n}\ns_cbranch_scc1 {D}")
        G.a(f"{R}:")
        G.a(f"s_cmp_lt_u32 s{sCNT}, {CAP_G}\ns_cbranch_scc1 {L}\ns_branch {D}")
        if detect:
            G.a(f"{R0}:")
            detect(R)
            G.a(f"s_branch {R}")
    G.cold.append(cold)


def poll_lds(G, vfl, off, expected, vt, sleep=1, pair=None, hook=None):
    L, D = G.lab("pl"), G.lab("pld")
    G.a(f"s_mov_b32 s{sCNT}, 0")
    G.a(f"{L}:")
    if pair is None:
        G.a(f"ds_read_b32 v{vt}, v{vfl} offset:{off}")
    else:
        G.a(f"ds_read_b64 v[{vt}:{vt+1}], v{vfl} offset:{off}")
    G.a(f"s_add_u32 s{sCNT}, s{sCNT}, 1")
    G.a("s_waitcnt lgkmcnt(0)")
    G.a(f"v_readfirstlane_b32 s{sT0}, v{vt}")
    if pair is not None:
        G.a(f"v_readfirstlane_b32 s{pair}, v{vt+1}")
    if hook: hook(L)
    G.a(f"s_cmp_ge_u32 s{sT0}, {expected}")
    G.a(f"s_cbranch_scc1 {D}")
    if sleep: G.a(f"s_sleep {max(sleep, G.o.lsleep)}")
    G.a(f"s_cmp_lt_u32 s{sCNT}, {CAP_L}")
    G.a(f"s_cbranch_scc1 {L}")
    G.a(f"{D}:")


def get_nonce(G, vfl, vt, vf):
    L, D = G.lab("gn"), G.lab("gnd")
    G.a(f"s_getreg_b32 s{sF}, hwreg(HW_REG_XCC_ID, 0, 4)\ns_mov_b32 s{sCNT}, 0")
    G.a(f"{L}:")
    G.a(f"ds_read_b64 v[{vt}:{vt+1}], v{vfl} offset:{F_N}")
    G.a(f"s_add_u32 s{sCNT}, s{sCNT}, 1")
    G.a("s_waitcnt lgkmcnt(0)")
    G.a(f"v_readfirstlane_b32 s{sTAG}, v{vt+1}")
    G.a(f"v_readfirstlane_b32 s{sN}, v{vt}")
    G.a(f"s_cmp_ge_u32 s{sTAG}, 1")
    G.a(f"s_cbranch_scc1 {D}")
    G.a("s_sleep 1")
    G.a(f"s_cmp_lt_u32 s{sCNT}, {CAP_L}")
    G.a(f"s_cbranch_scc1 {L}")
    G.a(f"{D}:")
    G.a(f"s_add_u32 s{sF}, s{sF}, s{sN}\ns_add_u32 s{sF}, s{sF}, 1\nv_mov_b32 v{vf}, s{sF}\ns_and_b32 s{sTAG}, s{sTAG}, 0xffff")


def to_mode1(G, vf):
    G.a(f"s_mov_b32 s{sM}, 1\ns_mov_b32 s{sF}, s{sN}\nv_mov_b32 v{vf}, s{sN}")
    G.a(f"s_add_u32 s{sGB}, s{sGB}, {UOFF}")
    G.a(f"s_mov_b64 s[{sXU}:{sXU+1}], s[{pWS}:{pWS+1}]")
    G.a(f"s_add_u32 s{sXY}, s{pWS}, {OUTB}\ns_addc_u32 s{sXY+1}, s{pWS+1}, 0")


def adopt_mode(G, sm, vf):
    A, B = G.lab("am"), G.lab("amb")
    G.a(f"s_cmp_gt_u32 s{sm}, s{sM}\ns_cbranch_scc1 {A}")
    G.a(f"{B}:")
    def cold():
        G.a(f"{A}:")
        to_mode1(G, vf)
        G.a(f"s_branch {B}")
    G.cold.append(cold)


def signal(G, vf, vrep, sslot, line, w, cnt, vt):
    A, B = G.lab("ma"), G.lab("mb")
    G.a(f"s_mov_b64 exec, 15")
    G.a(f"s_cmp_eq_u32 s{sM}, 0\ns_cbranch_scc0 {A}")
    G.a(f"buffer_store_dword v{vf}, v{vrep}, s[{sCT}:{sCT+3}], s{sslot} offen")
    G.a(f"{B}:")
    G.a("s_mov_b64 exec, -1")
    def cold():
        G.a(f"{A}:")
        G.a(f"s_mov_b64 exec, 1\nv_mov_b32 v{vt}, 1")
        G.a(f"buffer_atomic_add v{vt}, off, s[{sDG}:{sDG+3}], s{sDGO} offset:{cnt} sc0 sc1")
        G.a("s_waitcnt vmcnt(0)")
        G.a(f"v_readfirstlane_b32 s{sT0}, v{vt}")
        G.a(f"s_cmp_eq_u32 s{sT0}, {64*w-1}\ns_cbranch_scc0 {B}")
        G.a(f"s_mov_b64 exec, -1\ns_add_u32 s{sT1}, s{sGB}, {line}")
        G.a(f"v_lshlrev_b32 v{vt+4}, 4, v0")
        for k in range(4): G.a(f"v_mov_b32 v{vt+k}, v{vf}")
        for fl in (" sc1", ""):
            for k in range(w):
                G.a(f"buffer_store_dwordx4 v[{vt}:{vt+3}], v{vt+4}, s[{sCT}:{sCT+3}], s{sT1} offen offset:{1024*k}{fl}")
        G.a(f"s_branch {B}")
    G.cold.append(cold)


def tagged_loads(G, n, r0, vaddr, srd, offs, vt, after=None):
    L, D, C = G.lab("tl"), G.lab("tld"), G.lab("tlc")
    def loads():
        for k in range(n):
            so, io = offs(k)
            if so: G.a(f"s_mov_b32 s{sT1}, {so}")
            G.a(f"buffer_load_dwordx4 v[{r0+4*k}:{r0+4*k+3}], v{vaddr}, s[{srd}:{srd+3}], {'s%d' % sT1 if so else 0} offen offset:{io} {G.o.tl_fl}")
    G.a(f"s_mov_b32 s{sCNT}, 0")
    loads()
    nyoung = after() if after else 0
    G.a(f"s_waitcnt vmcnt({nyoung})")
    if after: G.stamp(-1, 5, 2)
    G.a(f"{L}:")
    G.a(f"v_xor_b32 v{vt}, s{sTAG}, v{r0}")
    for k in range(1, 4 * n):
        G.a(f"v_bitop3_b32 v{vt}, v{vt}, v{r0+k}, s{sTAG} bitop3:0xf6")
    G.a(f"v_and_b32 v{vt}, 0xffff, v{vt}")
    G.a(f"v_cmp_ne_u32 vcc, 0, v{vt}")
    G.a(f"s_cbranch_vccnz {C}")
    G.a(f"{D}:")
    def cold():
        G.a(f"{C}:")
        G.a(f"s_add_u32 s{sCNT}, s{sCNT}, 1\ns_cmp_lt_u32 s{sCNT}, {CAP_G}\ns_cbranch_scc0 {D}")
        R = G.lab("tlr")
        G.a(f"s_and_b32 s{sT0}, s{sCNT}, 63\ns_cbranch_scc1 {R}\nbuffer_inv sc1\n{R}:")
        G.a("s_sleep 2")
        loads()
        G.a(f"s_waitcnt vmcnt(0)\ns_branch {L}")
    G.cold.append(cold)


def ctl_srd(G):
    G.a(f"s_lshl_b32 s{sGB}, s{sH}, {HSH}\ns_add_u32 s{sGB}, s{sGB}, {CT_OFF}\ns_add_u32 s{sCT}, s{pWS}, s{sGB}\ns_addc_u32 s{sCT+1}, s{pWS+1}, 0")
    G.srd(sCT, None, 5 * GSTRIDE)
    G.a(f"s_add_u32 s{sGB}, s{sGQ}, 1\ns_lshl_b32 s{sGB}, s{sGB}, 14")


def misc_srd(G):
    G.srd(sDG, pDBG, 256)
    G.a(f"s_mul_i32 s{sDGO}, s{sGQ}, 20\ns_lshl_b32 s{sT0}, s{sH}, 7\ns_add_u32 s{sDGO}, s{sDGO}, s{sT0}\ns_add_u32 s{sDGO}, s{sDGO}, 8")
    G.srd(sXU, pOUT, OUTB)
    G.srd(sXY, pOUT, OUTB)
    G.a(f"s_mov_b32 s{sM}, 0")


def chan_of(G, sj, dst):
    G.a(f"s_and_b32 s{sT1}, s{sR}, 12\ns_add_u32 s{sT1}, s{sT1}, s{sj}\ns_lshl_b32 s{sT1}, s{sT1}, 2\ns_and_b32 s{sT2}, s{sR}, 3\ns_add_u32 s{sT1}, s{sT1}, s{sT2}")
    G.a(f"s_lshr_b32 s{sT2}, s{sR}, 4\ns_lshl_b32 s{sT3}, s{sGQ}, 1\ns_add_u32 s{sT2}, s{sT2}, s{sT3}\ns_lshl_b32 s{sT2}, s{sT2}, 6\ns_add_u32 s{dst}, s{sT1}, s{sT2}")


def inbox_of(G, dst, slr):
    G.a(f"s_lshr_b32 s{sT2}, s{sR}, 4\ns_lshl_b32 s{sT3}, s{sGQ}, 1\ns_add_u32 s{sT2}, s{sT2}, s{sT3}\ns_lshl_b32 s{sT2}, s{sT2}, 7")
    G.a(f"s_mul_i32 s{dst}, s{sH}, 1152\ns_add_u32 s{dst}, s{dst}, s{sT2}\ns_and_b32 s{slr}, s{sR}, 15")


def xbox_of(G, dst, se, slr):
    G.a(f"s_lshl_b32 s{se}, s{sGQ}, 5\ns_add_u32 s{se}, s{se}, s{sR}\ns_lshr_b32 s{se}, s{se}, 1")
    G.a(f"s_lshr_b32 s{sT1}, s{se}, 4\ns_lshl_b32 s{sT1}, s{sT1}, 2\ns_and_b32 s{sT2}, s{se}, 3\ns_add_u32 s{slr}, s{sT1}, s{sT2}")
    G.a(f"s_bfe_u32 s{sT1}, s{se}, {(2<<16)|2}\ns_lshl_b32 s{sT1}, s{sT1}, 6")
    G.a(f"s_lshl_b32 s{sT2}, s{sH}, {HSH}\ns_add_u32 s{dst}, s{sT1}, s{sT2}")


def blk_addr(G, vd, vt, slr, rowb, scol):
    G.a(f"v_add_u32 v{vt}, s{slr}, v{vd}\nv_and_b32 v{vt}, 15, v{vt}\nv_lshl_add_u32 v{vd}, v{vd}, 4, v{vt}")
    G.a(f"v_mul_u32_u24 v{vd}, {rowb}, v{vd}\nv_add_u32 v{vd}, s{scol}, v{vd}")


def xa_loads(G, b, va, q):
    nt = G.o.h_nt
    if G.o.noh: return
    G.a(f"buffer_load_dwordx4 v[{b+2}:{b+5}], v{va}, s[{sHH}:{sHH+3}], 0 offen offset:{1024*q} {nt}")
    if q:
        G.a(f"s_mov_b64 exec, 1\nbuffer_load_dwordx2 v[{b}:{b+1}], v{va}, s[{sHH}:{sHH+3}], 0 offen offset:{1024*q-8} {nt}\ns_mov_b64 exec, -1")


def xa_build(G, b, t, vdst, off, q, plain=False):
    w = lambda i: b + 2 + i
    bc = "" if q else " bound_ctrl:0"
    G.a(f"v_mov_b32_dpp v{b}, v{w(2)} wave_shr:1 row_mask:0xf bank_mask:0xf{bc}")
    G.a(f"v_mov_b32_dpp v{b+1}, v{w(3)} wave_shr:1 row_mask:0xf bank_mask:0xf{bc}")
    G.a(f"ds_write_b128 v{vdst}, v[{b+2}:{b+5}] offset:{off + 3*PLANE}")
    for i in range(4):
        G.a(f"v_alignbit_b32 v{t+i}, v{w(i-1)}, v{w(i-2)}, 16")
    G.a(f"ds_write_b128 v{vdst}, v[{t}:{t+3}] offset:{off}")
    for i in range(4):
        G.a(f"v_alignbit_b32 v{t+4+i}, v{w(i)}, v{w(i-1)}, 16")
    G.a(f"ds_write_b128 v{vdst}, v[{t+4}:{t+7}] offset:{off + 2*PLANE}")
    if plain:
        for i in range(4): G.a(f"v_mov_b32 v{t+8+i}, v{w(i-1)}")
    else:
        G.a(f"v_pk_mov_b32 v[{t+8}:{t+9}], v[{b}:{b+1}], v[{b+2}:{b+3}] op_sel:[1,0]")
        G.a(f"v_pk_mov_b32 v[{t+10}:{t+11}], v[{b+2}:{b+3}], v[{b+4}:{b+5}] op_sel:[1,0]")
    G.a(f"ds_write_b128 v{vdst}, v[{t+8}:{t+11}] offset:{off + PLANE}")


def transpose4(G, regs):
    G.a("s_nop 1")
    for j in (0, 1):
        for d in (0, 1):
            G.a(f"v_permlane32_swap_b32 v{regs[j]+d}, v{regs[j+2]+d}")
    G.a("s_nop 1")
    for j in (0, 2):
        for d in (0, 1):
            G.a(f"v_permlane16_swap_b32 v{regs[j]+d}, v{regs[j+1]+d}")


def u_src(G, vd, vt, slr, scol):
    G.a(f"v_lshrrev_b32 v{vd}, 1, v0\nv_sub_u32 v{vd}, 31, v{vd}")
    blk_addr(G, vd, vt, slr, RS_OUT, scol)
    G.a(f"v_and_b32 v{vt}, 1, v0\nv_lshl_add_u32 v{vd}, v{vt}, 4, v{vd}")


def u_loads(G, r, vsrc, qs):
    for k, q in enumerate(qs):
        G.a(f"s_mov_b32 s{sT1}, {(3-q)*32*16*RS_OUT}")
        G.a(f"buffer_load_dwordx4 v[{r+4*k}:{r+4*k+3}], v{vsrc}, s[{sXU}:{sXU+3}], s{sT1} offen {G.o.dma_fl}")


def u_write(G, r, vdst, vdst1, q):
    G.a(f"ds_write_b128 v{vdst}, v[{r}:{r+3}] offset:{1024*q}")
    G.a(f"ds_write2_b64 v{vdst1}, v[{r}:{r+1}], v[{r+2}:{r+3}] offset0:{128*q if q < 2 else 128*(q-2)} offset1:{(128*q if q < 2 else 128*(q-2))+1}")


def uc_setup(G, va, vb, vd, vt, sj, slr, scol, half):
    G.a(f"s_lshl_b32 s{sT0}, s{sj}, 4\ns_sub_u32 s{sT0}, {63 + 64*half}, s{sT0}\nv_lshrrev_b32 v{vd}, 3, v0\nv_sub_u32 v{va}, s{sT0}, v{vd}\nv_add_u32 v{vb}, -8, v{va}")
    blk_addr(G, va, vt, slr, RS_OUT, scol)
    blk_addr(G, vb, vt, slr, RS_OUT, scol)
    G.a(f"v_and_b32 v{vt}, 7, v0\nv_lshl_add_u32 v{va}, v{vt}, 4, v{va}\nv_lshl_add_u32 v{vb}, v{vt}, 4, v{vb}")
    G.a(f"s_lshl_b32 s{sT0}, s{sj}, 9\ns_add_u32 s{sT0}, s{sT0}, {U0 + 2048*(1-half)}\nv_lshl_add_u32 v{vd}, v{vd}, 5, s{sT0}")
    G.a(f"v_lshrrev_b32 v{vt}, 1, v{vt}\nv_mul_u32_u24 v{vt}, {U_SZ}, v{vt}\nv_add_u32 v{vd}, v{vd}, v{vt}\nv_and_b32 v{vt}, 1, v0\nv_lshl_add_u32 v{vd}, v{vt}, 4, v{vd}")
    G.a(f"v_add_u32 v{vd+1}, {UP1 - 8}, v{vd}")


def uc_loads(G, r, va, vb):
    for k, v in enumerate((va, vb)):
        G.a(f"buffer_load_dwordx4 v[{r+4*k}:{r+4*k+3}], v{v}, s[{sXU}:{sXU+3}], 0 offen {G.o.dma_fl}")


def uc_write(G, r, vd, k):
    G.a(f"ds_write_b128 v{vd}, v[{r}:{r+3}] offset:{256*k}")
    G.a(f"ds_write2_b64 v{vd+1}, v[{r}:{r+1}], v[{r+2}:{r+3}] offset0:{32*k} offset1:{32*k+1}")


def u_pad(G, vt, vz, subase):
    G.a(f"v_lshlrev_b32 v{vt}, 3, v0\nv_cmp_lt_u32 vcc, 14, v0\nv_add_u32 v{vt}, {subase}, v{vt}\nv_add_u32 v{vt+1}, 4096, v{vt}")
    G.a(f"v_cndmask_b32 v{vt}, v{vt}, v{vt+1}, vcc")


def u_pad_write(G, vt, vz):
    G.a(f"s_mov_b32 exec_hi, 0\nds_write_b64 v{vt}, v[{vz}:{vz+1}] offset:4096\ns_mov_b32 exec_hi, -1")


def pk(G, op, d, x, y, z=None, force=False):
    if G.o.nopk and not force:
        for i in (0, 1):
            G.a(f"v_{op}_f32 v{d+i}, v{x+i}, v{y+i}" + (f", v{z+i}" if z is not None else ""))
    else:
        G.a(f"v_pk_{op}_f32 v[{d}:{d+1}], v[{x}:{x+1}], v[{y}:{y+1}]" + (f", v[{z}:{z+1}]" if z is not None else ""))


def sq_prefetch(G, soff):
    G.a(f"s_add_u32 s{sK}, s{sQ}, s{soff}\ns_addc_u32 s{sK+1}, s{sQ+1}, 0")
    for i in range(16):
        G.a(f"s_load_dword s{sV}, s[{sK}:{sK+1}], {i*RS_IN}\ns_load_dword s{sV+1}, s[{sK}:{sK+1}], {i*RS_IN+64}")


def lds_count(G, vfl, vone, off):
    G.a(f"s_mov_b64 exec, 1\nds_add_u32 v{vfl}, v{vone} offset:{off}\ns_mov_b64 exec, -1")


def finish(G):
    if G.o.dspan:
        G.a("s_waitcnt vmcnt(0)")
        G.stamp(7, 7)
        G.srd(sK, pDBG, 256)
        D = G.lab("ds")
        G.a(f"s_waitcnt lgkmcnt(0)\ns_and_b32 s{sT0}, s2, 0x78\ns_cbranch_scc1 {D}")
        G.a(f"s_cmp_eq_u32 s{sWV}, 10\ns_cselect_b32 s{sT1}, 0, 32\ns_cselect_b32 s{sT0}, 1, 0\ns_cmp_eq_u32 s{sWV}, 9\ns_cselect_b32 s{sT0}, 1, s{sT0}\ns_cmp_eq_u32 s{sT0}, 1\ns_cbranch_scc0 {D}")
        G.a("s_not_b32 s90, s88")
        G.a("s_mov_b64 exec, 1")
        for i in range(8):
            G.a(f"v_mov_b32 v8, s{STAMP_REGS[i]}\nbuffer_atomic_umax v8, off, s[{sK}:{sK+3}], s{sT1} offset:{4*i} sc1")
        G.a(f"{D}:")
        G.a("s_endpgm")
        G.flush_cold()
        return
    if G.o.stamps:
        G.a("s_waitcnt vmcnt(0)")
        G.stamp(7, 7)
        G.a(f"s_add_u32 s{sT2}, s{pWS}, {64<<20}\ns_addc_u32 s{sT3}, s{pWS+1}, 0")
        G.srd(sK, sT2, 1 << 20)
        G.a(f"s_lshl_b32 s{sT0}, s2, 4\ns_add_u32 s{sT0}, s{sT0}, s{sWV}\ns_lshl_b32 s{sT0}, s{sT0}, 5")
        G.a("s_waitcnt lgkmcnt(0)")
        for i in range(8):
            G.a(f"v_mov_b32 v{8+i}, s{STAMP_REGS[i]}")
        G.a("s_mov_b64 exec, 1")
        G.a(f"buffer_store_dwordx4 v[8:11], off, s[{sK}:{sK+3}], s{sT0}")
        G.a(f"buffer_store_dwordx4 v[12:15], off, s[{sK}:{sK+3}], s{sT0} offset:16")
    G.a("s_endpgm")
    G.flush_cold()


class Stream:
    def __init__(self, G, slots, lead):
        self.G, self.slots, self.lead = G, slots, lead
        self.mf = []
        self.side = {}
        self.busy = {}
        self.avail = {}
        self.gate = {}
    def mfma(self, acc, A, B, zero):
        self.mf.append((acc, A, B, zero))
    def at(self, pos, fn, ds=0):
        self.side.setdefault(pos, []).append(fn)
        self.busy[pos] = self.busy.get(pos, 0) + ds
    def spread(self, pos, lines, step=1):
        for ln in lines:
            self.at(pos, lambda S_, ln=ln: S_.G.a(ln))
            pos += step
        return pos
    def emit(self, loadtext, pre=None):
        G = self.G
        n = len(self.mf)
        first, last, order = {}, {}, []
        for i, (acc, A, B, z) in enumerate(self.mf):
            for k in (A, B):
                if k not in first:
                    first[k] = i; order.append(k)
                last[k] = i
        free = [self.avail.get(r, 0) for r in self.slots]
        sched = {}
        cnt = [self.busy.get(i, 0) for i in range(n + 1)]
        slot_of = {}
        prev = 0
        for k in order:
            s = min(range(len(free)), key=lambda j: free[j])
            ops = loadtext(k, self.slots[s])
            lo = max(self.gate.get(k[0:2] + (k[2] >> 2,), 0), free[s], prev)
            slot_of[k] = self.slots[s]
            for op in ops:
                p = max(lo, first[k] - self.lead)
                hi = max(p, first[k] - 4)
                q = min(range(p, hi + 1), key=lambda x: (cnt[x], x))
                p = min(q, first[k])
                assert p >= lo, (k, p, lo)
                cnt[p] += 1
                sched.setdefault(p, []).append((k, op))
                prev = lo = p
            free[s] = last[k] + 1
        self.nds = 0
        self.done = 0
        ready = {}
        issued = []
        if pre:
            for k, op in sched.get(0, []):
                if k[1] == "A": G.a(op); self.nds += 1; ready[k] = self.nds
            sched[0] = [e for e in sched.get(0, []) if e[0][1] != "A"]
            self.nds += pre()
        for i in range(n + 1):
            for fn in self.side.get(i, []):
                fn(self)
            for k, op in sched.get(i, []):
                G.a(op); self.nds += 1; ready[k] = self.nds
            issued.append(self.nds)
            if i == n: break
            acc, A, B, z = self.mf[i]
            nd = max(ready[A], ready[B])
            if nd > self.done and G.o.wbatch and i >= G.o.wbatch:
                nd = max(nd, issued[i - G.o.wbatch])
            self.need(nd)
            a_, b_ = slot_of[A], slot_of[B]
            c = "0" if z else f"v[{acc}:{acc+3}]"
            G.a(f"v_mfma_f32_16x16x32_bf16 v[{acc}:{acc+3}], v[{a_}:{a_+3}], v[{b_}:{b_+3}], {c}")
        self.stats = (n, sum(cnt), max(cnt), sum(1 for c in cnt if c > 1))
    def ds(self, text):
        self.G.a(text); self.nds += 1
        return self.nds
    def need(self, idx):
        if idx > self.done:
            out = min(self.nds - idx, 15)
            self.G.a(f"s_waitcnt lgkmcnt({out})")
            self.done = self.nds - out


cA, cB, cAX, cBX, cY, cYX, cSW, cSR, cFL, cONE, c128, cT, cF, cL4 = 1, 2, 3, 4, 5, 6, 7, 8, 9, 10, 11, 12, 14, 15


def c_stream(G, ts, pre=None):
    o = G.o
    ACC = 16
    PK = 48
    ACX = 56
    slots = [72 + 4 * i for i in range(14)]
    S = Stream(G, slots, o.lead)
    acc = lambda t: ACC + 4 * t
    S.nst = 0
    seen = set()
    def add(ph, ch, pairs, ys, accf):
        for y in ys:
            for (x, b) in pairs:
                r = accf(x + b)
                S.mfma(r, (ph, "A", x, y, ch), (ph, "B", b, y, ch), (r, ch) not in seen)
                seen.add((r, ch))
    def loadtext(k, r):
        ph, typ, i, y, ch = k
        if typ == "A":
            return [f"ds_read_b128 v[{r}:{r+3}], v{cAX if ch else cA} offset:{512*i + 64*y}"]
        off = 512 * (7 - i) + 64 * y
        v = cBX if ch else cB
        return [f"ds_read_b128 v[{r}:{r+3}], v{v} offset:{off}"]
    p1 = [(x, b) for x in range(4) for b in range(4)]
    p1.sort(key=lambda p: (max(p), p[0] + p[1]))
    p1only = list(p1)
    p2 = [(4, 0), (5, 0), (4, 1), (6, 0), (5, 1), (4, 2), (7, 0), (6, 1), (5, 2), (4, 3)]
    p3 = [(x, b) for (b, x) in p2]
    tiles = [0, 3, 4, 7] if ts == 0 else [1, 2, 5, 6]
    px = [(x, b) for x in range(4, 8) for b in range(4) if x + b in tiles] + \
         [(x, b) for x in range(4) for b in range(4) if x + b in tiles] + \
         [(x, b) for x in range(4) for b in range(4, 8) if x + b in tiles]
    assert len(px) == 18
    use = []
    for (x, b) in px:
        if x + b not in use: use.append(x + b)
    accx = lambda t: ACX + 4 * use.index(t)
    if o.merge: p1 = p2 + p1
    beg, end = {}, {}
    for ph in o.order:
        if ph == "2" and o.merge: continue
        beg[ph] = len(S.mf)
        if ph == "a": add(1, 0, p1, range(o.ya), acc)
        if ph == "1": add(1, 0, p1, range(o.ya if "a" in o.order else 0, 8), acc)
        if ph == "x": add(2, 1, px, range(2), accx)
        if ph == "2": add(3, 0, p2, range(8), acc)
        if ph == "3" and not o.split3: add(4, 0, p3, range(8), acc)
        if ph == "3" and o.split3:
            add(4, 0, [p for p in p3 if sum(p) < 6], range(8), acc)
            e3a = len(S.mf)
            add(6, 0, [p for p in p3 if sum(p) >= 6], range(8), acc)
        if ph == "5": add(5, 0, p2 + p3, range(8), acc)
        end[ph] = len(S.mf)
    e1, ex, e3 = end["1"], end["x"], len(S.mf)
    S.mf[e1 - 16:e1] = sorted(S.mf[e1 - 16:e1], key=lambda m: m[0])

    def check(pos, off, expected):
        st = {}
        def rd(S_):
            st["i"] = S_.ds(f"ds_read_b32 v{cT}, v{cFL} offset:{off}")
        def ck(S_):
            S_.need(st["i"])
            if o.iso or o.x_nock or {F_X: 'X', C_U0: 'S', F_U2: 'U', C_H: 'H'}[off] in o.nock: return
            D, C = G.lab("ck"), G.lab("ckc")
            G.a(f"v_readfirstlane_b32 s{sT0}, v{cT}")
            G.a(f"s_cmp_ge_u32 s{sT0}, {expected}")
            G.a(f"s_cbranch_scc0 {C}")
            G.a(f"{D}:")
            def cold():
                G.a(f"{C}:")
                poll_lds(G, cFL, off, expected, cT)
                G.a(f"s_branch {D}")
            G.cold.append(cold)
        S.at(max(pos - 5, 0), rd, ds=1); S.at(max(pos, 0), ck)
    def count(pos, off):
        def f(S_):
            G.a("s_mov_b64 exec, 1")
            S_.ds(f"ds_add_u32 v{cFL}, v{cONE} offset:{off}")
            G.a("s_mov_b64 exec, -1")
        S.at(pos, f, ds=1)
    def ystore1(t, pk):
        A, B = G.lab("ys"), G.lab("yd")
        S.nst += 1
        G.a(f"s_mov_b32 s{sT1}, {t*TILE_STEP}")
        G.a(f"s_cbranch_vccnz {A}")
        G.a(f"buffer_store_dwordx2 v[{pk}:{pk+1}], v{cY}, s[{sXY}:{sXY+3}], s{sT1} offen")
        G.a(f"{B}:")
        def cold():
            G.a(f"{A}:")
            G.a(f"buffer_store_dwordx2 v[{pk}:{pk+1}], v{cY}, s[{sXY}:{sXY+3}], s{sT1} offen sc1")
            G.a(f"s_branch {B}")
        G.cold.append(cold)
    Ld = o.lead + 1
    check(beg["x"] - o.xlead, F_X, 1)
    for h in (0, 1):
        S.gate[(2, "A", h)] = S.gate[(2, "B", h)] = beg["x"] - o.xlead
    if not o.h2early:
        check(beg["2"] - Ld, C_H, 4)
        S.gate[(3, "A", 1)] = beg["2"] - Ld
    if not o.u2early:
        check(beg["3"] - o.ulead, F_U2, 4)
        S.gate[(4, "B", 1)] = beg["3"] - o.ulead
    lastw = {t: max(i for i in range(e1) if S.mf[i][0] == acc(t)) for t in range(4)}
    reuse = beg["x"]
    p = 0
    for t in range(4):
        p = max(p, lastw[t] + 9)
        r = acc(t)
        p = S.spread(p, [f"v_cvt_pk_bf16_f32 v{PK+2*t}, v{r}, v{r+1}", f"v_cvt_pk_bf16_f32 v{PK+2*t+1}, v{r+2}, v{r+3}"])
    if o.y1dir:
        if o.merge: p = e3 - 30
        for t in range(4):
            S.at(p, lambda S_, t=t: ystore1(t, PK + 2 * t))
            p += 2
        if not o.merge:
            def y1flag(S_):
                G.a(f"s_sub_u32 s{sX1}, s{sEV}, {L_Y2 - L_Y1}\ns_waitcnt vmcnt(0)")
                signal(G, cF, c128, sX1, L_Y1, 2, 8, 16)
            S.at(p + o.y1ack, y1flag)
    for t in range(0 if o.y1dir else 4):
        def yw(S_, t=t):
            S_.last_yw = S_.ds(f"ds_write_b64 v{cYX}, v[{PK+2*t}:{PK+2*t+1}] offset:{2048*t}")
        S.at(p, yw, ds=1)
        p += 2
    if not o.y1dir:
        S.at(p + 4, lambda S_: S_.need(S_.last_yw))
        count(p + 4, C_Y1)
    S.at(e1, lambda S_: G.stamp(3, mid=3))
    p = ex + 8
    if not o.konly: check(p, C_U0, 4)
    for i in range(4):
        def pw(S_, i=i):
            S_.last_pw = S_.ds(f"ds_write_b128 v{cSW}, v[{accx(tiles[i])}:{accx(tiles[i])+3}] offset:{4096*i}")
        S.at(p + i, pw, ds=1)
    S.at(p + 8, lambda S_: S_.need(S_.last_pw))
    count(p + 8, C_P)
    for i in range(4):
        S.slots.append(ACX + 4 * i); S.avail[ACX + 4 * i] = p + 9
    S.at(end.get("3", ex + 80), lambda S_: G.stamp(4, mid=4))
    S.at(ex, lambda S_: G.stamp(5, mid=5))
    n = e3
    P2 = ACC + 8
    def cvt(t):
        r = acc(t)
        return [f"v_cvt_pk_bf16_f32 v{P2+2*(t-4)}, v{r}, v{r+1}", f"v_cvt_pk_bf16_f32 v{P2+2*(t-4)+1}, v{r+2}, v{r+3}"]
    nl = 10 * o.stag
    S.mf[n - nl:] = sorted(S.mf[n - nl:], key=lambda m: m[0])
    p, late = 0, []
    for t in (4, 5, 6, 7):
        lw = max(i for i in range(n) if S.mf[i][0] == acc(t))
        p = max(p, lw + 9)
        if p + 2 <= n:
            p = S.spread(p, cvt(t))
            S.at(p, lambda S_, t=t: ystore1(t, P2 + 2 * (t - 4)))
        else:
            late.append((t, n - 1 - lw))
    def tail(S_):
        G.stamp(6, mid=6, tl=3)
        states = 0
        for t, d in late:
            if d + states < 8:
                G.a(f"s_nop {8 - d - states - 1}"); states = 8 - d
            G.a("\n".join(cvt(t))); ystore1(t, P2 + 2 * (t - 4))
            states += 5
    S.at(n, tail)
    if o.ydata and o.ygo > 0: count(n - o.ygo, C_Y2)
    S.emit(loadtext, pre)
    if o.ydata and not o.ygo: lds_count(G, cFL, cONE, C_Y2)
    G.stamp(-1, tl=4)
    G.a("s_waitcnt vmcnt(0)")
    G.stamp(-1, tl=5)
    if o.ydata and o.ygo < 0: lds_count(G, cFL, cONE, C_Y2)
    signal(G, cF, c128, sEV, L_Y2, 2, 12, 16)
    finish(G)
    return S.stats


def gen(o):
    G = Gen(o)
    a = G.a
    nt = o.ld_nt
    K = NAME + "_kernel"
    assert o.y1dir or not o.qhold
    assert not o.konly
    GO2 = 8 if o.uxearly else 9
    GO3 = GO2 + (0 if o.h2early else 4)
    a(f"{K}:")
    a("s_cmp_ge_u32 s2, 256\ns_cbranch_scc1 L_exit")
    if o.stamps or o.dspan:
        a("s_memtime s[88:89]" if o.cyc else "s_memrealtime s[88:89]")
    a("s_load_dwordx16 s[16:31], s[0:1], 0")
    a("s_load_dwordx8 s[32:39], s[0:1], 64")
    a("s_load_dwordx4 s[40:43], s[0:1], 96")
    a("s_load_dwordx2 s[44:45], s[0:1], 112")
    if o.pfentry:
        a(f"s_getpc_b64 s[{sT0}:{sT1}]")
        a("L_pc:")
        a(f"s_bfe_u32 s{sT2}, s2, {(3<<16)|3}\ns_mul_i32 s{sT2}, s{sT2}, 24\nv_cmp_gt_u32 vcc, 16, v0\nv_add_u32 v2, s{sT2}, v0\ns_nop 0")
        a(f"v_cndmask_b32 v2, v2, v0, vcc\nv_lshlrev_b32 v2, 7, v2\nv_min_u32 v2, L_exit-L_pc, v2\nv_cmp_gt_u32 vcc, 40, v0\ns_and_saveexec_b64 s[{sT2}:{sT3}], vcc\ns_cbranch_execz L_pd")
        a(f"global_load_dword v17, v2, s[{sT0}:{sT1}]")
        a(f"L_pd:\ns_mov_b64 exec, s[{sT2}:{sT3}]")
    a("v_lshrrev_b32 v1, 6, v0")
    a(f"s_and_b32 s{sG}, s2, 7")
    a(f"v_readfirstlane_b32 s{sWV}, v1")
    a("v_and_b32 v0, 63, v0")
    a(f"s_lshr_b32 s{sR}, s2, 3\ns_lshr_b32 s{sH}, s{sG}, 2\ns_and_b32 s{sGQ}, s{sG}, 3")
    a(f"s_cmp_eq_u32 s{sWV}, {W_S}\ns_cbranch_scc1 L_Si")
    if o.cfirst: a(f"s_sub_u32 s46, s{sWV}, 6\ns_cmp_lt_u32 s46, 4\ns_cbranch_scc1 L_Ci")
    else: a(f"s_cmp_ge_u32 s{sWV}, {W_C}\ns_cbranch_scc1 L_Ci")

    vIN, vK3, vWo, vDo, vG, vL = 1, 2, 3, 4, 5, 6
    vFL, vONE, vX, vO1, vO2, vT, vF, vL4, v128, vRD = 7, 8, 9, 10, 11, 12, 14, 15, 124, 126
    WR, DR, KR, VR, QR = 16, 24, 26, 40, 48
    WF, KF, KS, PKU = 56, 72, 100, 116
    if o.cfirst: a(f"s_cmp_gt_u32 s{sWV}, 9\ns_cselect_b32 s{sT0}, 4, 0\ns_sub_u32 s{sE}, s{sWV}, s{sT0}")
    a(f"s_sub_u32 s{sE}, s{sE if o.cfirst else sWV}, 2\ns_cselect_b32 s{sE}, 8, s{sE}\ns_and_b32 s{sT0}, s{sE}, 4\ns_cselect_b64 vcc, -1, 0")
    a(f"s_lshl_b32 s{sT1}, s{sR}, 1\ns_and_b32 s{sT2}, s{sE}, 4\ns_lshl_b32 s{sT2}, s{sT2}, 4\ns_add_u32 s{sT1}, s{sT1}, s{sT2}")
    a(f"s_bfe_u32 s{sT2}, s{sE}, {(1<<16)|1}\ns_add_u32 s{sT1}, s{sT1}, s{sT2}")
    a(f"s_lshl_b32 s{sT0}, s{sGQ}, 1\ns_and_b32 s{sT3}, s{sE}, 1\ns_add_u32 s{sT0}, s{sT0}, s{sT3}")
    a(f"s_lshl_b32 s{sT2}, s{sGQ}, 5\ns_add_u32 s{sT2}, s{sT2}, s{sR}")
    a(f"v_lshrrev_b32 v{vK3}, 3, v0\nv_mul_u32_u24 v{vK3}, {RS_IN}, v{vK3}\nv_and_b32 v{vWo}, 7, v0\nv_lshl_add_u32 v{vK3}, v{vWo}, 4, v{vK3}")
    a(f"s_cmp_eq_u32 s{sE}, 8")
    a(f"s_cselect_b32 s46, 8, s{sT0}\ns_cselect_b32 s47, s{sT2}, s{sT1}")
    a(f"s_mul_i32 s{sT0}, s47, {16*RS_IN}\ns_lshl_b32 s{sT1}, s46, 7\ns_add_u32 s{sSIG}, s{sT0}, s{sT1}")
    a(f"v_add_u32 v{vIN}, s{sSIG}, v{vK3}")
    a(f"s_lshl_b32 s{sT2}, s46, 9")
    a(f"v_lshl_add_u32 v{vWo}, v0, 4, s{sT2}\nv_lshl_add_u32 v{vDo}, v0, 4, s{sT1}")
    a(f"v_add_u32 v{vK3}, {(-3*RS_IN) & 0xffffffff}, v{vIN}")
    G.srd(sK, None, TENS); G.srd(sV, None, TENS); G.srd(sW, None, 4608)
    a(f"s_mul_i32 s{sSTG}, s{sE}, {STG_SZ}\ns_add_u32 s{sSTG}, s{sSTG}, {U0}\ns_cmp_eq_u32 s{sE}, 8\ns_cselect_b32 s{sSTG}, {STGX}, s{sSTG}\ns_add_u32 s{sT0}, s{sSTG}, 1024")
    a(f"s_cmp_eq_u32 s{sH}, 0")
    a("s_waitcnt lgkmcnt(0)")
    G.stamp(-1, 1)
    a(f"s_cselect_b64 s[{sK}:{sK+1}], s[18:19], s[30:31]")
    a(f"s_cbranch_vccnz L_E2i")
    a(f"s_mov_b32 m0, s{sSTG}\ns_mov_b32 s{sT1}, {5*RS_IN}")
    a(f"buffer_load_dwordx4 v{vK3}, s[{sK}:{sK+3}], 0 offen {o.k_nt} lds")
    a(f"s_mov_b32 m0, s{sT0}\ns_cselect_b64 s[{sV}:{sV+1}], s[20:21], s[32:33]")
    a(f"buffer_load_dwordx4 v{vIN}, s[{sK}:{sK+3}], s{sT1} offen {o.k_nt} lds")
    a(f"s_cselect_b64 s[{sW}:{sW+1}], s[22:23], s[34:35]")
    a(f"s_cselect_b64 s[{sD}:{sD+1}], s[26:27], s[38:39]")
    a(f"s_cselect_b64 s[{sQ}:{sQ+1}], s[16:17], s[28:29]")
    a(f"s_cselect_b64 s[{sHH}:{sHH+1}], s[24:25], s[36:37]")
    if o.barpos == 2: a("s_barrier")
    a(f"s_add_u32 s{sT0}, s{sSTG}, 2048\ns_mov_b32 m0, s{sT0}\ns_mov_b32 s{sT1}, {13*RS_IN}\ns_mov_b64 exec, 0xffffff\ns_add_u32 s{sT0}, s{sSTG}, 4480")
    a(f"buffer_load_dwordx4 v{vIN}, s[{sK}:{sK+3}], s{sT1} offen {o.k_nt} lds")
    a(f"s_mov_b32 m0, s{sT0}\ns_mov_b32 exec_lo, -1\ns_add_u32 s{sT0}, s{sSTG}, 4992")
    a(f"buffer_load_dwordx4 v{vWo}, s[{sW}:{sW+3}], 0 offen lds")
    G.srd(sD, None, 1152)
    a(f"s_mov_b32 m0, s{sT0}\ns_mov_b32 exec_lo, 0xff\ns_add_u32 s{sT0}, s{sSTG}, 2432")
    a(f"buffer_load_dwordx4 v{vDo}, s[{sD}:{sD+3}], 0 offen lds")
    a(f"s_mov_b32 m0, s{sT0}\ns_mov_b64 exec, -1\ns_add_u32 s{sT0}, s{sSTG}, {2432+1024}")
    a(f"buffer_load_dwordx4 v{vIN}, s[{sV}:{sV+3}], 0 offen {nt} lds")
    a(f"s_mov_b32 m0, s{sT0}\ns_mov_b32 s{sT1}, {8*RS_IN}")
    a(f"buffer_load_dwordx4 v{vIN}, s[{sV}:{sV+3}], s{sT1} offen {nt} lds")
    G.stamp(-1, 2)
    if o.barpos != 2: a("s_barrier")
    a("s_branch L_Em")
    a("L_E2i:")
    a(f"s_cselect_b64 s[{sV}:{sV+1}], s[20:21], s[32:33]")
    a(f"s_cselect_b64 s[{sW}:{sW+1}], s[22:23], s[34:35]")
    a(f"s_cselect_b64 s[{sD}:{sD+1}], s[26:27], s[38:39]")
    a(f"s_cselect_b64 s[{sQ}:{sQ+1}], s[16:17], s[28:29]")
    a(f"s_cselect_b64 s[{sHH}:{sHH+1}], s[24:25], s[36:37]")
    a("s_barrier\ns_branch L_Em")

    cHA, cHB, cHB0, cPF, cZ, cU = 48, 49, 50, 51, 56, 60
    a("L_Ci:")
    if o.ebar2: a("s_barrier")
    if not o.cfirst: a(f"s_sub_u32 s46, s{sWV}, {W_C}")
    chan_of(G, 46, sT0)
    a(f"s_lshl_b32 s{sT0}, s{sT0}, 12")
    a(f"v_lshl_add_u32 v{cHA}, v0, 4, s{sT0}")
    inbox_of(G, 47, sSIG)
    G.srd(sHH, None, TENS)
    if o.prefill:
        G.srd(sOUT, None, OUTB)
        a(f"s_lshl_b32 s{sT0}, s46, {5 if o.u2early else 4}\nv_lshrrev_b32 v{cPF}, {1 if o.u2early else 2}, v0\nv_add_u32 v{cPF}, s{sT0}, v{cPF}")
        blk_addr(G, cPF, cHB, sSIG, RS_OUT, 47)
    a(f"s_cmp_eq_u32 s{sH}, 0")
    a("s_waitcnt lgkmcnt(0)" + ("" if o.ebar2 else "\ns_barrier"))
    G.stamp(-1, 1)
    a(f"s_cselect_b64 s[{sHH}:{sHH+1}], s[24:25], s[36:37]")
    xa_loads(G, 64, cHA, 0)
    xa_loads(G, 72, cHA, 1)
    if o.h2early:
        xa_loads(G, 112, cHA, 2)
        xa_loads(G, 120, cHA, 3)
    if o.prefill:
        a(f"s_mov_b64 s[{sOUT}:{sOUT+1}], s[{pOUT}:{pOUT+1}]")
        a(f"buffer_load_dword v{cPF}, v{cPF}, s[{sOUT}:{sOUT+3}], 0 offen {o.pf_nt}")
    G.stamp(-1, 2)
    a("s_branch L_Cm")

    sFL, sONE, s128, sT_, sF_, sL4, sZ, sHA, sHB, sHB0, sU, sU1, sP = 1, 2, 3, 4, 6, 7, 8, 12, 13, 14, 15, 16, 17
    a("L_Si:")
    if o.prefetch_code and not o.pfentry:
        a(f"s_getpc_b64 s[{sT0}:{sT1}]")
        a("L_pc:")
        a(f"s_and_b32 s{sT2}, s{sR}, 7\ns_mul_i32 s{sT2}, s{sT2}, 3072\nv_min_u32 v{sP}, 23, v0\nv_lshl_add_u32 v{sP}, v{sP}, 7, s{sT2}\nv_min_u32 v{sP}, L_exit-L_pc, v{sP}")
        a(f"global_load_dword v{sP}, v{sP}, s[{sT0}:{sT1}]")
    for i in range(4): a(f"v_mov_b32 v{sZ+i}, 0")
    a(f"v_lshlrev_b32 v{sL4}, 2, v0\nv_min_u32 v{sT_}, 60, v{sL4}\nv_add_u32 v{sT_}, {FL0}, v{sT_}\nds_write_b32 v{sT_}, v{sZ}")
    a(f"v_lshlrev_b32 v{s128}, 7, v0")
    a("s_waitcnt lgkmcnt(0)\ns_barrier")
    G.stamp(-1, 1)
    a(f"s_cmp_eq_u32 s{sH}, 0")
    a(f"s_cselect_b64 s[{sHH}:{sHH+1}], s[24:25], s[36:37]")
    a(f"s_cselect_b64 s[{sQ}:{sQ+1}], s[16:17], s[28:29]")
    ctl_srd(G)
    a(f"s_load_dwordx2 s[{sX1+1}:{sX1+2}], s[{sCT}:{sCT+1}], 0")
    a(f"buffer_load_dword v{sHB0}, v{s128}, s[{sCT}:{sCT+3}], s{sGB} offen")
    if o.pfux:
        a(f"s_add_u32 s{sK}, s{pWS}, {XU_OFF}\ns_addc_u32 s{sK+1}, s{pWS+1}, 0")
        G.srd(sK, None, 3 << 20)
        a(f"s_lshl_b32 s{sT0}, s{sGQ}, 5\ns_add_u32 s{sT0}, s{sT0}, s{sR}\ns_lshl_b32 s{sT0}, s{sT0}, 12\ns_lshl_b32 s{sT1}, s{sH}, {HSH}\ns_add_u32 s{sT0}, s{sT0}, s{sT1}")
        a(f"v_lshlrev_b32 v22, 6, v0\nbuffer_load_dword v22, v22, s[{sK}:{sK+3}], s{sT0} offen")
    G.stamp(-1, 2)
    if o.iso:
        a(f"v_mov_b32 v{sFL}, {FL0}\nv_mov_b32 v{sT_}, 2\nv_mov_b32 v{sT_+1}, 2\nds_write_b64 v{sFL}, v[{sT_}:{sT_+1}] offset:{F_N}\ns_waitcnt lgkmcnt(0)\ns_endpgm")
    a(f"v_mov_b32 v{sFL}, {FL0}\nv_mov_b32 v{sONE}, 1")
    a("s_waitcnt lgkmcnt(0)")
    a(f"s_and_b32 s{sN}, s{sX2}, 0xfffffff0\ns_add_u32 s{sN}, s{sN}, 0x9e3779b0\nv_mov_b32 v{sT_}, s{sN}")
    a(f"s_add_u32 s{sTAG}, s{sX3}, 1\ns_and_b32 s{sTAG}, s{sTAG}, 0xffff\ns_add_u32 s{sT0}, s{sTAG}, 0x10000\nv_mov_b32 v{sT_+1}, s{sT0}")
    a(f"ds_write_b64 v{sFL}, v[{sT_}:{sT_+1}] offset:{F_N}")
    G.stamp(1, -1)
    a(f"v_lshlrev_b32 v{sHA}, 4, v0")
    u_pad(G, 20, sZ, U0 + 4 * U_SZ)
    a(f"v_add_u32 v{sU1}, {XA0 + 4*XA_SZ}, v{sHA}")
    for p in range(4):
        a(f"ds_write_b128 v{sU1}, v[{sZ}:{sZ+3}] offset:{p*PLANE}")
    G.srd(sHH, None, TENS)
    misc_srd(G)
    a(f"s_add_u32 s{sK}, s{pWS}, {XU_OFF}\ns_addc_u32 s{sK+1}, s{pWS+1}, 0")
    G.srd(sK, None, 3 << 20)
    G.srd(sOUT, pOUT, OUTB)
    a(f"s_getreg_b32 s{sF}, hwreg(HW_REG_XCC_ID, 0, 4)\ns_add_u32 s{sF}, s{sF}, s{sN}\ns_add_u32 s{sF}, s{sF}, 1\nv_mov_b32 v{sF_}, s{sF}")
    xbox_of(G, sX3, sX2, sLR)
    a(f"s_add_u32 s{sT0}, s{sX2}, 512\ns_lshl_b32 s{sT0}, s{sT0}, 12")
    a(f"v_add_u32 v{sHA}, s{sT0}, v{sHA}")
    for q in range(4):
        xa_loads(G, 32 + 8 * q, sHA, q)
    if o.w1only: finish(G)
    a(f"v_lshrrev_b32 v{sHB}, 2, v0\nv_sub_u32 v{sHB}, 15, v{sHB}")
    blk_addr(G, sHB, sT_, sLR, 256, sX3)
    a(f"v_and_b32 v{sT_}, 3, v0\nv_lshl_add_u32 v{sHB}, v{sT_}, 4, v{sHB}")
    a(f"v_lshlrev_b32 v18, 3, v0\nv_add_u32 v18, {U0 + 4*U_SZ}, v18\ns_mov_b32 s47, 0x07060302\ns_setprio {o.sprio}")
    for q in range(4):
        a(f"s_waitcnt vmcnt({6-2*q})")
        xa_build(G, 32 + 8 * q, 96 + 12 * (q & 1), sU1, 384 + 1024 * q, q)
    G.stamp(-1, 3)
    poll_lds(G, sFL, C_GO, 4, sT_)
    G.stamp(2, 4, 1)
    def after():
        lds_count(G, sFL, sONE, C_GO)
        u_pad_write(G, 20, sZ)
        return 0
    if "s" in o.x_skip:
        lds_count(G, sFL, sONE, C_GO); a("s_endpgm")
    tagged_loads(G, 8, 96, sHB, sK, lambda k: ((7 - k) * 16 * 4096, 0), sT_, after)
    for k in range(8):
        a(f"v_perm_b32 v{64+2*k}, v{97+4*k}, v{96+4*k}, s47\nv_perm_b32 v{65+2*k}, v{99+4*k}, v{98+4*k}, s47")
        a(f"ds_write_b64 v18, v[{64+2*k}:{65+2*k}] offset:{512*k}\nds_write_b64 v18, v[{64+2*k}:{65+2*k}] offset:{512*k + UP1 - 8}")
    a("s_waitcnt lgkmcnt(0)")
    a(f"ds_write_b32 v{sFL}, v{sONE} offset:{F_X}")
    G.stamp(3, 6, 3)
    D = G.lab("epo")
    a(f"s_or_b32 s{sT0}, s{sGQ}, s{sR}\ns_cbranch_scc1 {D}")
    a(f"s_mov_b64 exec, 1\nv_mov_b32 v{sT_}, s{sN}\nv_mov_b32 v{sT_+1}, s{sTAG}\nbuffer_store_dwordx2 v[{sT_}:{sT_+1}], off, s[{sCT}:{sCT+3}], 0\ns_mov_b64 exec, -1")
    a(f"{D}:")
    if o.sqs:
        poll_lds(G, sFL, C_U1, 1, sT_, sleep=3)
        for e in range(o.sqs):
            a(f"s_lshl_b32 s{sT0}, s{sR}, 1\ns_add_u32 s{sT0}, s{sT0}, {e >> 1}\ns_mul_i32 s{sT0}, s{sT0}, {16*RS_IN}\ns_lshl_b32 s{sT1}, s{sGQ}, 8\ns_add_u32 s{sT0}, s{sT0}, s{sT1}\ns_add_u32 s{sT0}, s{sT0}, {128*(e & 1)}")
            sq_prefetch(G, sT0)
        a("s_waitcnt lgkmcnt(0)")
    finish(G)

    a("L_Em:")
    if o.w1only:
        a("s_waitcnt vmcnt(2)"); G.stamp(1, 4); a("s_waitcnt vmcnt(0)"); finish(G)
    if o.iso: a("s_waitcnt vmcnt(0)\ns_endpgm")
    a(f"s_setprio 1\ns_cmp_eq_u32 s{sE}, 8\ns_cbranch_scc0 L_Eh\ns_setprio 3")
    a("L_Eh:")
    G.stamp(-1, 3)
    vB1, vB2, vB3, vB4 = 42, 43, 44, 45
    vA1, vA2, vA3, vA4, vA5 = vK3, vWo, vDo, 125, 127
    QF, DF, YR, YF = KF, WF, 16, 24
    LX, LP, L2, LW, LZ = G.lab("ex"), G.lab("ep"), G.lab("e2"), G.lab("ew"), G.lab("ez")
    a(f"v_and_b32 v{vG}, 15, v0\nv_lshrrev_b32 v{vL}, 4, v0")
    a(f"v_mul_u32_u24 v{vIN}, {4*RS_IN}, v{vL}\nv_lshl_add_u32 v{vIN}, v{vG}, 3, v{vIN}\nv_add_u32 v{vIN}, s{sSIG}, v{vIN}")
    E2a = G.lab("e2a")
    a(f"s_cbranch_vccz {E2a}")
    a(f"s_sub_u32 s{sSTG}, s{sE}, 4\ns_mul_i32 s{sSTG}, s{sSTG}, {2432 if o.konly else 4480}\ns_add_u32 s{sSTG}, s{sSTG}, {YB0 if o.konly else SCR0}")
    G.srd(sD, None, 1152)
    a(f"s_lshl_b32 s{sT0}, s46, 9\nv_lshl_add_u32 v{vWo}, v{vG}, 5, s{sT0}\ns_lshl_b32 s{sT0}, s46, 7\nv_lshl_add_u32 v{vDo}, v{vG}, 3, s{sT0}")
    a(f"buffer_load_dwordx4 v[{WR}:{WR+3}], v{vWo}, s[{sW}:{sW+3}], 0 offen\nbuffer_load_dwordx4 v[{WR+4}:{WR+7}], v{vWo}, s[{sW}:{sW+3}], 0 offen offset:16")
    a(f"buffer_load_dwordx2 v[{DR}:{DR+1}], v{vDo}, s[{sD}:{sD+3}], 0 offen")
    a(f"{E2a}:")
    a(f"v_lshlrev_b32 v{vRD}, 9, v{vL}\nv_lshl_add_u32 v{vRD}, v{vG}, 3, v{vRD}\nv_add_u32 v{vRD}, s{sSTG}, v{vRD}")
    a(f"v_lshl_add_u32 v{vWo}, v{vG}, 5, s{sSTG}\nv_lshl_add_u32 v{vDo}, v{vG}, 3, s{sSTG}")
    G.srd(sQ, None, TENS); G.srd(sHH, None, TENS)
    G.srd(sOUT, pOUT, OUTB)
    ctl_srd(G)
    misc_srd(G)
    a(f"s_mov_b32 s{sLC}, s46\ns_lshl_b32 s{sROW0}, s47, 4")
    a(f"s_lshl_b32 s{sT1}, s{sLC}, 7\ns_mul_i32 s{sCOL}, s{sH}, 1152\ns_add_u32 s{sCOL}, s{sCOL}, s{sT1}")
    a(f"s_mul_i32 s{sT0}, s{sROW0}, {RS_OUT}\ns_add_u32 s{sT0}, s{sT0}, s{sCOL}")
    a(f"v_mul_u32_u24 v{vO1}, {4*RS_OUT}, v{vL}\nv_lshl_add_u32 v{vO1}, v{vG}, 3, v{vO1}\nv_add_u32 v{vO1}, s{sT0}, v{vO1}")
    a(f"v_add_u32 v{vO2}, {2*RS_OUT}, v{vO1}")
    a(f"s_lshl_b32 s{sT1}, s47, 12\ns_lshl_b32 s{sT2}, s{sH}, {HSH}\ns_add_u32 s{sT1}, s{sT1}, s{sT2}\ns_mov_b32 s{sT2}, {RS_OUT}")
    a(f"s_cmp_eq_u32 s{sE}, 8\ns_cselect_b32 s{sT0}, s{sT1}, s{sT0}\ns_cselect_b32 s{sT1}, 256, s{sT2}\ns_cselect_b32 s{sT2}, 6, 5")
    a(f"v_and_b32 v{vX}, 12, v{vG}\nv_add3_u32 v{vX}, v{vX}, v{vL}, s47\nv_and_b32 v{vX}, 15, v{vX}\nv_mul_u32_u24 v{vX}, s{sT1}, v{vX}")
    a(f"v_and_b32 v{vT}, 3, v{vG}\nv_lshlrev_b32 v{vT}, s{sT2}, v{vT}\nv_add3_u32 v{vX}, v{vX}, v{vT}, s{sT0}")
    a(f"v_mov_b32 v{vFL}, {FL0}\nv_mov_b32 v{vONE}, 1\nv_lshlrev_b32 v{vL4}, 3, v0\nv_lshlrev_b32 v{v128}, 9, v0")
    a(f"s_and_b32 s{sX3}, s{sE}, 3\ns_lshl_b32 s{sEV}, s{sR}, 2\ns_add_u32 s{sEV}, s{sEV}, s{sX3}\ns_lshl_b32 s{sEV}, s{sEV}, 2\ns_add_u32 s{sEV}, s{sEV}, s{sGB}")
    a(f"s_mov_b32 s47, 0xffff0000")
    if o.k2early: a(f"s_cbranch_vccnz {L2}")
    get_nonce(G, vFL, vT, vF)
    if not o.k2early: a(f"s_cbranch_vccnz {L2}")

    def unpack_w():
        for c in range(4):
            for j in range(4):
                src = WR + 2 * c + (j >> 1)
                a(f"v_lshlrev_b32 v{WF+4*j+c}, 16, v{src}" if j % 2 == 0 else f"v_and_b32 v{WF+4*j+c}, s47, v{src}")
    def first_phase(packed, wait_v, part=3):
        for i in range(7 if part & 1 else 0):
            for d in range(2):
                a(f"v_lshlrev_b32 v{KF+4*i+2*d}, 16, v{KR+2*i+d}")
                a(f"v_and_b32 v{KF+4*i+2*d+1}, s47, v{KR+2*i+d}")
        for j in ((3, 2, 1, 0) if part & 1 else ()):
            if j == 0: wait_v(0)
            for r in range(4):
                for d in range(2):
                    ks, w, k = KS + 4 * r + 2 * d, WF + 4 * j + 2 * d, KF + 4 * (3 + r - j) + 2 * d
                    if j == 3: pk(G, "mul", ks, k, w, force=packed)
                    else: pk(G, "fma", ks, k, w, ks, force=packed)
        if not part & 2: return
        wait_v(1)
        for r in range(4):
            for d in range(2):
                a(f"v_lshlrev_b32 v{KF+4*r+2*d}, 16, v{VR+2*r+d}")
                a(f"v_and_b32 v{KF+4*r+2*d+1}, s47, v{VR+2*r+d}")
        for r in range(4):
            for d in range(2):
                pk(G, "mul", KS + 4 * r + 2 * d, KS + 4 * r + 2 * d, KF + 4 * r + 2 * d, force=packed)
        regs = [PKU + 2 * (3 - j) for j in range(4)]
        for c in range(4):
            a(f"v_cvt_pk_bf16_f32 v{regs[c]}, v{KS+12+c}, v{KS+8+c}")
            a(f"v_cvt_pk_bf16_f32 v{regs[c]+1}, v{KS+4+c}, v{KS+c}")
        transpose4(G, regs)
    def skip_term(packed=True, part=3):
        for d in range(2 if part & 1 else 0):
            a(f"v_lshlrev_b32 v{DF+2*d}, 16, v{DR+d}\nv_and_b32 v{DF+2*d+1}, s47, v{DR+d}")
        for r in range(4 if part & 2 else 0):
            for d in range(2):
                pk(G, "mul", KS + 4 * r + 2 * d, KS + 4 * r + 2 * d, DF + 2 * d, force=packed)
    def qloads():
        for i in range(4):
            a(f"buffer_load_dwordx2 v[{QR+2*i}:{QR+2*i+1}], v{vIN}, s[{sQ}:{sQ+3}], 0 offen offset:{i*RS_IN} {nt}")
    def gate(nyoung):
        a(f"s_setprio {o.eprio}\ns_waitcnt vmcnt({nyoung})")
        G.stamp(1, tl=1)
        for r in range(4):
            for d in range(2):
                a(f"v_lshlrev_b32 v{QF+4*r+2*d}, 16, v{QR+2*r+d}\nv_and_b32 v{QF+4*r+2*d+1}, s47, v{QR+2*r+d}")
        for r in range(4):
            for d in range(2):
                pk(G, "mul", KS + 4 * r + 2 * d, KS + 4 * r + 2 * d, QF + 4 * r + 2 * d)
        G.stamp(4)
    def mode_stores(lines):
        A, B = G.lab("ms"), G.lab("md")
        a(f"s_cmp_eq_u32 s{sM}, 0\ns_cbranch_scc0 {A}")
        a("\n".join(lines))
        a(f"{B}:")
        def cold():
            a(f"{A}:")
            a("\n".join(l + " sc1" for l in lines))
            a(f"s_branch {B}")
        G.cold.append(cold)
    ustores = [f"buffer_store_dwordx4 v[{PKU}:{PKU+3}], v{vX}, s[{sXU}:{sXU+3}], 0 offen",
               f"buffer_store_dwordx4 v[{PKU+4}:{PKU+7}], v{vX}, s[{sXU}:{sXU+3}], 0 offen offset:16"]
    def last_phase(packed, line, cnt, mid_label=None):
        held = []
        a(f"s_lshl_b32 s{sT0}, s{sX3}, 9\ns_add_u32 s{sX2}, s{sT0}, s{sGB}\ns_add_u32 s{sX2}, s{sX2}, {line}")
        LG = G.lab("yg")
        if packed and o.ydata:
            L, F, C = G.lab("yl"), G.lab("yf"), G.lab("yc")
            a(f"s_cmp_eq_u32 s{sM}, 0\ns_cbranch_scc0 {F}")
            poll_lds(G, vFL, C_Y2, 4, vT, sleep=1)
            G.stamp(-1, tl=2)
            a(f"s_mov_b32 s{sCNT}, 0")
            a(f"{L}:")
            a(f"buffer_load_dwordx4 v[{YR}:{YR+3}], v{vX}, s[{sXY}:{sXY+3}], 0 offen sc1")
            a(f"buffer_load_dwordx4 v[{YR+4}:{YR+7}], v{vX}, s[{sXY}:{sXY+3}], 0 offen offset:16 sc1")
            a(f"s_add_u32 s{sCNT}, s{sCNT}, 1\ns_waitcnt vmcnt(1)")
            for g in range(4):
                if g == 2: a("s_waitcnt vmcnt(0)")
                a(f"v_xor_b32 v{YF+g}, v{YR+2*g}, v{PKU+2*g}\nv_bitop3_b32 v{YF+g}, v{YF+g}, v{YR+2*g+1}, v{PKU+2*g+1} bitop3:0xf6")
            a(f"v_min3_u32 v{YF}, v{YF}, v{YF+1}, v{YF+2}\nv_min_u32 v{YF}, v{YF}, v{YF+3}\nv_cmp_eq_u32 vcc, 0, v{YF}")
            a(f"s_cbranch_vccz {LG}")
            if o.ysleep: a(f"s_sleep {o.ysleep}")
            a(f"s_cmp_lt_u32 s{sCNT}, 6\ns_cbranch_scc1 {L}")
            a(f"{F}:")
        poll_line(G, vL4, sX2, 2, vT, (f"s{sDGO}", cnt), 128, sleep=(o.sleep if packed else 2))
        G.stamp(5)
        a(f"buffer_load_dwordx4 v[{YR}:{YR+3}], v{vX}, s[{sXY}:{sXY+3}], 0 offen sc1")
        a(f"buffer_load_dwordx4 v[{YR+4}:{YR+7}], v{vX}, s[{sXY}:{sXY+3}], 0 offen offset:16 sc1")
        a("s_waitcnt vmcnt(0)")
        if packed and o.dry: a("s_mov_b64 vcc, 0")
        a(f"{LG}:")
        if packed and o.defer: lds_count(G, vFL, vONE, C_R)
        G.stamp(6, tl=3)
        if packed and o.share3:
            a(f"s_branch {LZ}1")
            G.flush_cold()
            return
        if not packed: a(f"{LZ}1:")
        if packed and o.dry: a(f"{LZ}d:")
        if o.tl: a(f"s_mul_i32 s{STAMP_REGS[5]}, s{sCNT}, 100\ns_add_u32 s{STAMP_REGS[5]}, s{STAMP_REGS[5]}, s88")
        transpose4(G, [YR + 2 * j for j in range(4)])
        if mid_label: a(f"{mid_label}:")
        for c in range(4):
            for d in range(2):
                a(f"v_lshlrev_b32 v{YF+8*d+c}, 16, v{YR+2*c+d}\nv_and_b32 v{YF+8*d+4+c}, s47, v{YR+2*c+d}")
        for r in range(4):
            for d in range(2):
                ks, q, y = KS + 4 * r + 2 * d, QF + 4 * r + 2 * d, YF + 4 * r + 2 * d
                pk(G, "fma", y, q, y, ks, force=packed)
            for d in range(2):
                y = YF + 4 * r + 2 * d
                a(f"v_cvt_pk_bf16_f32 v{YR+2*r+d}, v{y}, v{y+1}")
            st = f"buffer_store_dwordx2 v[{YR+2*r}:{YR+2*r+1}], v{vO1 if r < 2 else vO2}, s[{sOUT}:{sOUT+3}], 0 offen offset:{(r&1)*RS_OUT} {o.out_flag}"
            if packed and o.dry: held.append(st)
            elif packed or not o.defer: a(st)
            else: held.append(st)
        G.stamp(-1, tl=4)
        if packed and o.dry:
            a(f"s_cbranch_vccnz {LZ}r")
            a("\n".join(held)); held = []
        if held:
            poll_lds(G, vFL, C_R, 4, vT, sleep=1)
            a("\n".join(held))
        finish(G)

    a("s_waitcnt vmcnt(2)")
    G.stamp(-1, 4)
    a(f"ds_read_b128 v[{WR}:{WR+3}], v{vWo} offset:4480\nds_read_b128 v[{WR+4}:{WR+7}], v{vWo} offset:4496")
    for i in range(7):
        a(f"ds_read_b64 v[{KR+2*i}:{KR+2*i+1}], v{vRD} offset:{128*i}")
    a(f"ds_read_b64 v[{DR}:{DR+1}], v{vDo} offset:4992")
    a("s_waitcnt lgkmcnt(8)")
    unpack_w()
    a("s_waitcnt lgkmcnt(0)")
    def wait_v(k):
        if k == 0:
            a("s_waitcnt vmcnt(0)")
            G.stamp(-1, 5)
            for i in range(4):
                a(f"ds_read_b64 v[{VR+2*i}:{VR+2*i+1}], v{vRD} offset:{2432 + 128*i}")
        else:
            a("s_waitcnt lgkmcnt(0)")
    first_phase(True, wait_v)
    a(f"s_cmp_eq_u32 s{sE}, 8\ns_cbranch_scc1 {LX}")
    a("\n".join(ustores))
    skip_term()
    a(f"{LP}:")
    a("s_waitcnt vmcnt(0)")
    signal(G, vF, v128, sEV, L_U1, 2, 4, YR)
    G.stamp(3, 6)
    chan_of(G, sE, sT0)
    a(f"s_lshl_b32 s{sT0}, s{sT0}, 12\nv_lshl_add_u32 v{vA3}, v0, 4, s{sT0}")
    a(f"s_mul_i32 s{sT0}, s{sE}, {XA_SZ}\nv_lshl_add_u32 v{vRD}, v0, 4, s{sT0}")
    inbox_of(G, sX1, sX2)
    for k in range(2):
        a(f"v_lshrrev_b32 v{vA1 if k == 0 else vA2}, 3, v0" + (f"\nv_add_u32 v{vA2}, 8, v{vA2}" if k else ""))
        blk_addr(G, vA1 if k == 0 else vA2, vT, sX2, RS_OUT, sX1)
    a(f"v_and_b32 v{vT}, 7, v0\nv_lshl_add_u32 v{vA1}, v{vT}, 4, v{vA1}\nv_lshl_add_u32 v{vA2}, v{vT}, 4, v{vA2}")
    a(f"s_lshl_b32 s{sT0}, s{sE}, 4\ns_add_u32 s{sT0}, s{sT0}, 64\nv_lshrrev_b32 v{vB4}, 2, v0\nv_add_u32 v{vB4}, s{sT0}, v{vB4}")
    blk_addr(G, vB4, vT, sX2, RS_OUT, sX1)
    if o.coop2:
        uc_setup(G, vA4, vA5, 40, vT, sE, sX2, sX1, 1)
    else:
        a(f"s_lshl_b32 s{sT0}, s{sE}, 5\ns_add_u32 s{sX1}, s{sX1}, s{sT0}")
        u_src(G, vA4, vT, sX2, sX1)
        a(f"s_mul_i32 s{sT0}, s{sE}, {U_SZ}\ns_add_u32 s{sT0}, s{sT0}, {U0}\nv_lshl_add_u32 v{vL}, v0, 4, s{sT0}\nv_add_u32 v{vA5}, {UP1 - 8}, v{vL}")
    a(f"s_lshl_b32 s{sT0}, s{sE}, 11\ns_add_u32 s{sT0}, s{sT0}, {YB0}\nv_lshl_add_u32 v{vG}, v0, 4, s{sT0}\ns_mul_i32 s{sX1}, s{sE}, {TILE_STEP}")
    a(f"s_add_u32 s{sWMY}, s{pWS}, {XY_OFF}\ns_addc_u32 s{sWMY+1}, s{pWS+1}, 0")
    G.srd(sWMY, None, 3 << 20)
    a(f"s_lshl_b32 s{sT0}, s{sGQ}, 5\ns_add_u32 s{sT0}, s{sT0}, s{sR}\ns_lshr_b32 s{sT0}, s{sT0}, 1\ns_lshl_b32 s{sX4}, s{sH}, {HSH}")
    a(f"v_lshrrev_b32 v{vB1}, 3, v0\nv_add_u32 v{vT}, s{sT0}, v{vB1}\nv_and_b32 v{vT}, 7, v{vT}\ns_and_b32 s{sT0}, s{sT0}, 56\nv_or_b32 v{vT}, s{sT0}, v{vT}")
    a(f"v_lshl_add_u32 v{vB1}, v{vB1}, 6, v{vT}\nv_lshlrev_b32 v{vB1}, 7, v{vB1}\nv_and_b32 v{vT}, 7, v0\nv_lshl_add_u32 v{vB1}, v{vT}, 4, v{vB1}\nv_add_u32 v{vB1}, s{sX4}, v{vB1}")
    a(f"s_lshl_b32 s{sT0}, s{sX3}, 12\ns_add_u32 s{sT0}, s{sT0}, {SCR0}\nv_lshl_add_u32 v{vB2}, v0, 4, s{sT0}\nv_mov_b32 v{vB3}, s{sTAG}")
    a(f"s_mov_b32 s{sT0}, 0x7430\ns_mov_b32 s{sT1}, 0x6521\ns_and_b32 s{sT2}, s{sR}, 1\ns_cselect_b32 s{sT0}, s{sT1}, s{sT0}")
    a(f"s_lshl_b32 s{sT1}, s{sX3}, 2\ns_lshr_b32 s{sT0}, s{sT0}, s{sT1}\ns_and_b32 s{sT0}, s{sT0}, 7\ns_lshl_b32 s{sX4}, s{sT0}, 16")
    def scalar_prefill(first, n):
        inbox_of(G, sT0, sT1)
        if isinstance(first, int): a(f"s_add_u32 s{sT0}, s{sT0}, {first*16*RS_OUT}")
        else: a(f"s_mul_i32 s{sT2}, {first}, {16*RS_OUT}\ns_add_u32 s{sT0}, s{sT0}, s{sT2}")
        a(f"s_add_u32 s{sK}, s{pOUT}, s{sT0}\ns_addc_u32 s{sK+1}, s{pOUT+1}, 0\ns_add_u32 s{sK+2}, s{sK}, 64\ns_addc_u32 s{sK+3}, s{sK+1}, 0\ns_mov_b32 s{sT3}, 0")
        L = G.lab("sp")
        a(f"{L}:")
        for i in range(2):
            a(f"s_add_u32 s{sT2}, s{sT1}, s{sT3}\ns_and_b32 s{sT2}, s{sT2}, 15\ns_lshl4_add_u32 s{sT2}, s{sT3}, s{sT2}\ns_mul_i32 s{sV+2+i}, s{sT2}, {RS_OUT}\ns_add_u32 s{sT3}, s{sT3}, 1")
            a(f"s_load_dword s{sV}, s[{sK}:{sK+1}], s{sV+2+i}\ns_load_dword s{sV+1}, s[{sK+2}:{sK+3}], s{sV+2+i}")
        a(f"s_cmp_lt_u32 s{sT3}, {n}\ns_cbranch_scc1 {L}")
    if o.spf2 == 1:
        a(f"s_lshl_b32 s{sLR}, s{sE}, 4\ns_add_u32 s{sLR}, s{sLR}, 64")
        scalar_prefill(f"s{sLR}", 16)
    def hook(L):
        R = G.lab("rp")
        a(f"s_cmp_gt_u32 s{sX2}, s{sM}\ns_cbranch_scc1 {R}")
        def cold():
            a(f"{R}:")
            to_mode1(G, vF)
            a("\n".join(l + " sc1" for l in ustores))
            a(f"s_branch {LP}")
        G.cold.append(cold)
    poll_lds(G, vFL, C_GO, 9, vT, pair=sX2, hook=hook)
    if 0 < o.hgate < 5: poll_lds(G, vFL, C_U0, o.hgate, vT)
    if o.hgate >= 5: poll_lds(G, vFL, C_GO, 9 + o.hgate - 4, vT)
    if o.pfirst: a(f"buffer_load_dword v{vB4}, v{vB4}, s[{sOUT}:{sOUT+3}], 0 offen {o.pf_nt}")
    if not o.h2early:
        xa_loads(G, KR, vA3, 2)
        xa_loads(G, KR + 8, vA3, 3)
    if not o.pfirst and not o.spf2: a(f"buffer_load_dword v{vB4}, v{vB4}, s[{sOUT}:{sOUT+3}], 0 offen {o.pf_nt}")
    if o.pfyx: a(f"buffer_load_dword v46, v{vB1}, s[{sWMY}:{sWMY+3}], s{sX4} offen")
    if o.q1w2: qloads()
    if o.qw2:
        lds_count(G, vFL, vONE, C_GO)
        poll_lds(G, vFL, C_GO, 13, vT)
        qloads()
    if "1" in o.x_skip: a("s_endpgm")
    G.stamp(-1, mid=1)
    a(f"s_setprio {o.hiprio}\ns_add_u32 s{sEV}, s{sEV}, {L_Y1}\ns_lshl_b32 s{sT0}, s{sE}, 9\ns_add_u32 s{sX2}, s{sT0}, s{sGB}\ns_add_u32 s{sX2}, s{sX2}, {L_U2}")
    if not o.h2early:
        ny = (0 if o.pfirst or o.spf2 else 1) + (1 if o.pfyx else 0) + (4 if o.q1w2 or o.qw2 else 0)
        a(f"s_waitcnt vmcnt({2+ny})")
        xa_build(G, KR, WF, vRD, XA0 + 384 + 2048, 2, plain=True)
        a(f"s_waitcnt vmcnt({ny})")
        xa_build(G, KR + 8, KF, vRD, XA0 + 384 + 3072, 3, plain=True)
        a("s_waitcnt lgkmcnt(0)")
        lds_count(G, vFL, vONE, C_H)
    if not o.seq2: G.stamp(-1, mid=2)
    YX = KF
    yxstore = f"buffer_store_dwordx4 v[{YX}:{YX+3}], v{vB1}, s[{sWMY}:{sWMY+3}], s{sX4} offen sc1"
    def reduce():
        poll_lds(G, vFL, C_P, 4, vT, sleep=2)
        r = WF
        for i in range(4):
            a(f"ds_read_b128 v[{r+4*i}:{r+4*i+3}], v{vB2} offset:{1024*i}")
        a("s_waitcnt lgkmcnt(2)")
        for d in (0, 2): pk(G, "add", r + d, r + d, r + 4 + d)
        a("s_waitcnt lgkmcnt(0)")
        for d in (0, 2): pk(G, "add", r + 8 + d, r + 8 + d, r + 12 + d)
        for d in (0, 2): pk(G, "add", r + d, r + d, r + 8 + d)
        a(f"v_cvt_pk_bf16_f32 v{r+4}, v{r}, v{r+1}\nv_cvt_pk_bf16_f32 v{r+5}, v{r+2}, v{r+3}")
        for d in (0, 1):
            a(f"v_lshl_or_b32 v{YX+2*d}, v{r+4+d}, 16, v{vB3}\nv_and_or_b32 v{YX+2*d+1}, v{r+4+d}, s47, v{vB3}")
        G.stamp(-1, mid=3)
    def carry():
        if o.y1dir: return
        poll_lds(G, vFL, C_Y1, 4, vT, sleep=2)
        a(f"ds_read_b128 v[{YR}:{YR+3}], v{vG}\nds_read_b128 v[{YR+4}:{YR+7}], v{vG} offset:1024\ns_waitcnt lgkmcnt(0)")
        mode_stores([f"buffer_store_dwordx4 v[{YR}:{YR+3}], v{vA1}, s[{sXY}:{sXY+3}], s{sX1} offen",
                     f"buffer_store_dwordx4 v[{YR+4}:{YR+7}], v{vA2}, s[{sXY}:{sXY+3}], s{sX1} offen"])
        if o.seq2: G.stamp(-1, mid=2)
        a("s_waitcnt vmcnt(0)")
        signal(G, vF, v128, sEV, L_Y1, 2, 8, YR)
    def u2duty():
        poll_line(G, vL4, sX2, 2, vT, (f"s{sDGO}", 16), 128, sleep=1)
        G.stamp(-1, mid=4)
        if o.coop2: uc_loads(G, 28, vA4, vA5)
        else: u_loads(G, KR + 2, vA4, (1, 0))
        a(f"s_waitcnt vmcnt(1)")
        if o.coop2: uc_write(G, 28, 40, 0)
        else: u_write(G, KR + 2, vL, vA5, 1)
        a(f"s_waitcnt vmcnt(0)")
        if o.coop2: uc_write(G, 32, 40, 1)
        else: u_write(G, KR + 6, vL, vA5, 0)
        if not o.qw2 and not o.redlate and not o.yxearly: a(yxstore)
        a("s_waitcnt lgkmcnt(0)")
        lds_count(G, vFL, vONE, F_U2)
        G.stamp(-1, mid=5, tl=2)
    def yxdone():
        a("s_waitcnt vmcnt(0)")
        lds_count(G, vFL, vONE, C_YX)
    if o.seq2:
        reduce(); carry(); u2duty(); qloads()
        a("s_waitcnt vmcnt(4)")
        lds_count(G, vFL, vONE, C_YX)
    elif o.qw2 and o.redlate: u2duty(); reduce(); a(yxstore); yxdone(); carry()
    elif o.qw2: reduce(); a(yxstore); yxdone(); u2duty(); carry()
    elif o.redlate:
        u2duty(); reduce(); a(yxstore)
        if o.qhold: lds_count(G, vFL, vONE, C_Y1)
        if not o.q1w2: qloads()
        a(f"s_waitcnt vmcnt({0 if o.q1w2 else 4})")
        lds_count(G, vFL, vONE, C_YX)
        carry()
    elif o.yxearly:
        reduce(); a(yxstore); u2duty()
        if not o.q1w2: qloads()
        carry()
    else:
        reduce(); u2duty()
        if not o.q1w2: qloads()
        a(f"s_waitcnt vmcnt({0 if o.q1w2 else 4})")
        lds_count(G, vFL, vONE, C_YX)
        carry()
    gate(0)
    G.stamp(-1, mid=6)
    last_phase(False, L_Y2 if o.merge else L_Y1, 12 if o.merge else 8, f"{LZ}2")

    a(f"{L2}:")
    a(f"v_lshrrev_b32 v{vA2}, 3, v0\nv_mul_u32_u24 v{vA2}, {RS_IN}, v{vA2}\nv_and_b32 v{vT}, 7, v0\nv_lshl_add_u32 v{vA2}, v{vT}, 4, v{vA2}\nv_add_u32 v{vA2}, s{sSIG}, v{vA2}")
    a(f"v_add_u32 v{vA1}, {(-3*RS_IN) & 0xffffffff}, v{vA2}")
    a(f"s_add_u32 s{sEV}, s{sEV}, {L_U2}")
    if o.k2early:
        a(f"s_mov_b32 m0, s{sSTG}\ns_add_u32 s{sT0}, s{sSTG}, 1024\ns_mov_b32 s{sT1}, {5*RS_IN}")
        a(f"buffer_load_dwordx4 v{vA1}, s[{sK}:{sK+3}], 0 offen {o.k_nt} lds")
        a(f"s_mov_b32 m0, s{sT0}\ns_add_u32 s{sT0}, s{sSTG}, 2048")
        a(f"buffer_load_dwordx4 v{vA2}, s[{sK}:{sK+3}], s{sT1} offen {o.k_nt} lds")
        a(f"s_mov_b32 m0, s{sT0}\ns_mov_b32 s{sT1}, {13*RS_IN}\ns_mov_b64 exec, 0xffffff")
        a(f"buffer_load_dwordx4 v{vA2}, s[{sK}:{sK+3}], s{sT1} offen {o.k_nt} lds")
        a("s_mov_b64 exec, -1\ns_setprio 0\ns_waitcnt vmcnt(3)")
        unpack_w()
        a("s_waitcnt vmcnt(0)")
        for i in range(7):
            a(f"ds_read_b64 v[{KR+2*i}:{KR+2*i+1}], v{vRD} offset:{128*i}")
        a("s_waitcnt lgkmcnt(0)")
        lds_count(G, vFL, vONE, C_U0)
        first_phase(False, lambda k: None, part=1)
        skip_term(False, 1)
        if o.dry: a(f"s_mov_b64 vcc, -1\ns_branch {LZ}d\n{LZ}r:")
        get_nonce(G, vFL, vT, vF)
        G.stamp(-1, mid=2)
        poll_lds(G, vFL, C_GO, o.e2lvl, vT, pair=sX2)
        adopt_mode(G, sX2, vF)
        for i in range(4):
            a(f"buffer_load_dwordx2 v[{VR+2*i}:{VR+2*i+1}], v{vIN}, s[{sV}:{sV+3}], 0 offen offset:{i*RS_IN} {nt}")
        lds_count(G, vFL, vONE, C_GO)
        G.stamp(-1, mid=1)
        if o.qw2 and o.q2now:
            poll_lds(G, vFL, C_GO, 13, vT)
            qloads()
        a(f"s_setprio {o.hiprio}\ns_waitcnt vmcnt({4 if o.qw2 and o.q2now else 0})")
        if o.qw2 and not o.q2now: qloads()
        G.stamp(-1, mid=3)
        first_phase(False, lambda k: None, part=2)
    else:
        a("s_waitcnt vmcnt(0)")
        unpack_w()
        if o.konly: poll_lds(G, vFL, C_U1, 1, vT, sleep=2)
        if "2" in o.x_skip:
            poll_lds(G, vFL, C_GO, 5, vT); lds_count(G, vFL, vONE, C_GO); a("s_endpgm")
        poll_lds(G, vFL, C_GO, o.e2lvl, vT, pair=sX2)
        adopt_mode(G, sX2, vF)
        a(f"s_mov_b32 m0, s{sSTG}\ns_add_u32 s{sT0}, s{sSTG}, 1024\ns_mov_b32 s{sT1}, {5*RS_IN}")
        a(f"buffer_load_dwordx4 v{vA1}, s[{sK}:{sK+3}], 0 offen {o.k_nt} lds")
        a(f"s_mov_b32 m0, s{sT0}\ns_add_u32 s{sT0}, s{sSTG}, 2048")
        a(f"buffer_load_dwordx4 v{vA2}, s[{sK}:{sK+3}], s{sT1} offen {o.k_nt} lds")
        a(f"s_mov_b32 m0, s{sT0}\ns_mov_b32 s{sT1}, {13*RS_IN}\ns_mov_b64 exec, 0xffffff\ns_add_u32 s{sT0}, s{sSTG}, 2432")
        a(f"buffer_load_dwordx4 v{vA2}, s[{sK}:{sK+3}], s{sT1} offen {o.k_nt} lds")
        if o.konly:
            a("s_mov_b64 exec, -1")
            for i in range(4):
                a(f"buffer_load_dwordx2 v[{VR+2*i}:{VR+2*i+1}], v{vIN}, s[{sV}:{sV+3}], 0 offen offset:{i*RS_IN} {nt}")
        else:
            a(f"s_mov_b32 m0, s{sT0}\ns_mov_b64 exec, -1\ns_add_u32 s{sT0}, s{sSTG}, {2432+1024}")
            a(f"buffer_load_dwordx4 v{vA2}, s[{sV}:{sV+3}], 0 offen {nt} lds")
            a(f"s_mov_b32 m0, s{sT0}\ns_mov_b32 s{sT1}, {8*RS_IN}")
            a(f"buffer_load_dwordx4 v{vA2}, s[{sV}:{sV+3}], s{sT1} offen {nt} lds")
        lds_count(G, vFL, vONE, C_GO)
        G.stamp(-1, mid=1)
        a(f"s_setprio {o.hiprio}\ns_waitcnt vmcnt({4 if o.konly else 2})")
        if o.hgate >= 5: lds_count(G, vFL, vONE, C_GO)
        G.stamp(-1, mid=3)
        for i in range(7):
            a(f"ds_read_b64 v[{KR+2*i}:{KR+2*i+1}], v{vRD} offset:{128*i}")
        a("s_waitcnt lgkmcnt(0)")
        def wait_v2(k):
            if o.konly:
                if k: a("s_waitcnt vmcnt(0)")
                return
            wait_v(k)
            if k == 0 and o.qw2: qloads()
            if k: lds_count(G, vFL, vONE, C_U0)
        first_phase(False, wait_v2)
    G.stamp(2, mid=4)
    mode_stores(ustores)
    skip_term(False, 2 if o.k2early else 3)
    a("s_waitcnt vmcnt(0)")
    signal(G, vF, v128, sEV, L_U2, 2, 16, YR)
    G.stamp(3, mid=5)
    lds_count(G, vFL, vONE, C_U1)
    if o.sq2: sq_prefetch(G, sSIG)
    if not o.qw2:
        poll_lds(G, vFL, C_Y1 if o.qhold else F_U2, 5 if o.yxearly else 4, vT, sleep=2)
        qloads()
    gate(0)
    G.stamp(-1, mid=6)
    last_phase(True, L_Y2, 12)
    a(f"{LX}:")
    a(f"s_add_u32 s{sXU}, s{pWS}, {XU_OFF}\ns_addc_u32 s{sXU+1}, s{pWS+1}, 0\ns_add_u32 s{sXY}, s{pWS}, {XY_OFF}\ns_addc_u32 s{sXY+1}, s{pWS+1}, 0")
    a(f"v_and_b32 v{vT}, 4095, v{vX}\nv_lshrrev_b32 v{vT}, 1, v{vT}\nv_add_u32 v{vT}, s{sSTG}, v{vT}")
    a(f"ds_write_b128 v{vT}, v[{PKU}:{PKU+3}]\nds_write_b128 v{vT}, v[{PKU+4}:{PKU+7}] offset:16")
    a(f"v_lshl_add_u32 v{vT}, v0, 3, s{sSTG}")
    for k in range(4):
        a(f"ds_read_b64 v[{KF+2*k}:{KF+2*k+1}], v{vT} offset:{512*k}")
    a(f"v_and_b32 v{vG}, 0xfffff000, v{vX}\nv_lshl_add_u32 v{vG}, v0, 4, v{vG}\nv_mov_b32 v{vK3}, s{sTAG}")
    for k in range(4):
        a(f"s_waitcnt lgkmcnt({3-k})")
        for d in (0, 1):
            a(f"v_lshl_or_b32 v{QR-8+4*k+2*d}, v{KF+2*k+d}, 16, v{vK3}\nv_and_or_b32 v{QR-8+4*k+2*d+1}, v{KF+2*k+d}, s47, v{vK3}")
        a(f"buffer_store_dwordx4 v[{QR-8+4*k}:{QR-8+4*k+3}], v{vG}, s[{sXU}:{sXU+3}], 0 offen offset:{1024*k} sc1")
    if o.konly: lds_count(G, vFL, vONE, C_U1)
    G.stamp(3, 6)
    skip_term()
    a(f"s_lshr_b32 s{sT0}, s{sROW0}, 5\ns_lshl_b32 s{sT1}, s{sT0}, 13\ns_lshl_b32 s{sT2}, s{sH}, {HSH}\ns_add_u32 s{sT1}, s{sT1}, s{sT2}")
    a(f"s_bfe_u32 s{sT2}, s{sROW0}, {(1<<16)|4}\ns_lshl_b32 s{sT2}, s{sT2}, 6\ns_add_u32 s{sT1}, s{sT1}, s{sT2}")
    a(f"v_lshrrev_b32 v{vX}, 2, v0")
    a(f"v_add_u32 v{vT}, s{sT0}, v{vX}\nv_and_b32 v{vT}, 7, v{vT}\nv_and_b32 v{vX}, 8, v{vX}\nv_or_b32 v{vX}, v{vX}, v{vT}\nv_lshl_add_u32 v{vX}, v{vX}, 7, s{sT1}")
    a(f"v_and_b32 v{vT}, 3, v0\nv_lshl_add_u32 v{vX}, v{vT}, 4, v{vX}")
    a(f"v_lshlrev_b32 v{vA1}, 3, v0\nv_add_u32 v{vA1}, {XT0}, v{vA1}")
    a(f"v_and_b32 v{vA2}, 15, v0\nv_lshlrev_b32 v{vA2}, 7, v{vA2}\nv_lshrrev_b32 v{vT}, 4, v0\nv_lshl_add_u32 v{vA2}, v{vT}, 3, v{vA2}\nv_add_u32 v{vA2}, {XT0}, v{vA2}")
    if o.spf2 == 2: scalar_prefill(64, 64)
    if o.sqx:
        poll_lds(G, vFL, C_U1, 1, vT, sleep=3)
        sq_prefetch(G, sSIG)
    if "x" in o.x_skip: a("s_endpgm")
    if o.qw2: poll_lds(G, vFL, C_GO, 13, vT, sleep=3)
    else: poll_lds(G, vFL, C_Y1 if o.qhold else F_U2, 4, vT, sleep=3)
    if not o.yxearly:
        qloads()
        poll_lds(G, vFL, C_YX, 4, vT, sleep=2)
    G.stamp(5, mid=3, tl=2)
    tagged_loads(G, 4, 24, vX, sXY, lambda k: (0, 2048 * k) if k < 2 else (4096, 2048 * (k - 2)), vT, after=(lambda: (lds_count(G, vFL, vONE, F_U2), qloads(), 4)[2]) if o.yxearly else None)
    a(f"s_mov_b32 s{sT0}, 0x07060302")
    G.stamp(-1, mid=4, tl=3)
    for k in range(4):
        a(f"v_perm_b32 v{YR+2*k}, v{25+4*k}, v{24+4*k}, s{sT0}\nv_perm_b32 v{YR+2*k+1}, v{27+4*k}, v{26+4*k}, s{sT0}")
        a(f"ds_write_b64 v{vA1}, v[{YR+2*k}:{YR+2*k+1}] offset:{512*k}")
    for c in range(4):
        a(f"ds_read_b64 v[{YR+2*c}:{YR+2*c+1}], v{vA2} offset:{32*c}")
    gate(0)
    a(f"s_waitcnt lgkmcnt(0)\ns_branch {LZ}2")
    G.flush_cold()

    a("L_Cm:")
    if o.w1only:
        a("s_waitcnt vmcnt(1)"); G.stamp(1, 4); a("s_waitcnt vmcnt(0)"); finish(G)
    a(f"s_setprio {o.cprio}")
    G.stamp(1, 3)
    ctl_srd(G)
    misc_srd(G)
    a(f"s_mov_b32 s{sJ}, s46\ns_mov_b32 s{sCOL}, s47")
    a(f"s_mul_i32 s{sX2}, s{sJ}, {XA_SZ}\ns_mul_i32 s{sX3}, s{sJ}, {U_SZ}\ns_add_u32 s{sX3}, s{sX3}, {U0}")
    for i in range(4): a(f"v_mov_b32 v{cZ+i}, 0")
    a(f"v_lshl_add_u32 v{cHA}, v0, 4, s{sX2}")
    for p in range(4):
        a(f"ds_write_b128 v{cHA}, v[{cZ}:{cZ+3}] offset:{XA0 + p*PLANE}")
    a(f"v_lshl_add_u32 v{cHB}, v0, 4, s{sX3}\nv_add_u32 v{cHB0}, {UP1 - 8 + 2048}, v{cHB}")
    u_pad(G, 62, cZ, f"s{sX3}")
    a(f"v_and_b32 v{cT}, 3, v0\nv_mul_u32_u24 v{cA}, {PLANE}, v{cT}")
    a(f"v_bfe_u32 v{cB}, v0, 2, 2\nv_lshl_add_u32 v{cA}, v{cB}, 7, v{cA}")
    a(f"v_lshrrev_b32 v{cB}, 4, v0\nv_lshl_add_u32 v{cA}, v{cB}, 4, v{cA}")
    a(f"s_lshl_b32 s{sT0}, s{sJ}, 7")
    a(f"s_add_u32 s{sT1}, s{sT0}, {XA0 + 4*XA_SZ}\nv_add_u32 v{cAX}, s{sT1}, v{cA}\nv_add_u32 v{cA}, s{sX2}, v{cA}")
    a(f"v_lshlrev_b32 v{cB}, 4, v{cB}\nv_and_b32 v{cBX}, 15, v0\nv_lshlrev_b32 v{cBX}, 3, v{cBX}\nv_sub_u32 v{cB}, v{cB}, v{cBX}\nv_add_u32 v{cB}, 120, v{cB}")
    a(f"v_and_b32 v{cBX}, 1, v0\nv_xor_b32 v{cBX}, 1, v{cBX}\nv_mul_u32_u24 v{cBX}, {UP1 - 8}, v{cBX}\nv_add_u32 v{cB}, v{cB}, v{cBX}")
    a(f"s_add_u32 s{sT1}, s{sT0}, {U0 + 4*U_SZ}\nv_add_u32 v{cBX}, s{sT1}, v{cB}\nv_add_u32 v{cB}, s{sX3}, v{cB}")
    a(f"s_and_b32 s{sTS}, s{sR}, 1\ns_lshl_b32 s{sT2}, s{sJ}, 5\ns_add_u32 s{sCOL}, s{sCOL}, s{sT2}")
    a(f"v_lshrrev_b32 v{cY}, 2, v0")
    blk_addr(G, cY, cU, sSIG, RS_OUT, sCOL)
    a(f"v_lshl_add_u32 v{cY}, v{cT}, 3, v{cY}")
    a(f"v_lshrrev_b32 v{cYX}, 2, v0\nv_lshlrev_b32 v{cYX}, 7, v{cYX}\nv_lshl_add_u32 v{cYX}, v{cT}, 3, v{cYX}\ns_lshl_b32 s{sT2}, s{sJ}, 5\ns_add_u32 s{sT2}, s{sT2}, {YB0}\nv_add_u32 v{cYX}, s{sT2}, v{cYX}")
    a(f"s_lshl_b32 s{sT0}, s{sJ}, 10\ns_add_u32 s{sT0}, s{sT0}, {SCR0}\nv_lshl_add_u32 v{cSW}, v0, 4, s{sT0}")
    a(f"v_mov_b32 v{cFL}, {FL0}\nv_mov_b32 v{cONE}, 1\nv_lshlrev_b32 v{cL4}, 3, v0\nv_lshlrev_b32 v{c128}, 9, v0")
    a(f"s_lshl_b32 s{sEV}, s{sR}, 2\ns_add_u32 s{sEV}, s{sEV}, s{sJ}\ns_lshl_b32 s{sEV}, s{sEV}, 2\ns_add_u32 s{sEV}, s{sEV}, s{sGB}\ns_add_u32 s{sEV}, s{sEV}, {L_Y2}")
    if o.coop1: uc_setup(G, cU, cU + 1, 52, cT, sJ, sSIG, 47, 0)
    else: u_src(G, cU, cT, sSIG, sCOL)
    a(f"s_lshl_b32 s{sX4}, s{sJ}, 9\ns_add_u32 s{sX4}, s{sX4}, s{sGB}\ns_add_u32 s{sX4}, s{sX4}, {L_U1}")
    npf = 1 if o.prefill else 0
    if o.h2early: npf += 4
    a(f"s_waitcnt vmcnt({2+npf})")
    G.stamp(-1, 4)
    xa_build(G, 64, 80, cHA, XA0 + 384, 0)
    a(f"s_waitcnt vmcnt({npf})")
    xa_build(G, 72, 16, cHA, XA0 + 384 + 1024, 1)
    if o.h2early:
        a(f"s_waitcnt vmcnt({npf-2})")
        xa_build(G, 112, 80, cHA, XA0 + 384 + 2048, 2)
        a(f"s_waitcnt vmcnt({npf-4})")
        xa_build(G, 120, 16, cHA, XA0 + 384 + 3072, 3)
    get_nonce(G, cFL, cT, cF)
    G.stamp(-1, -1)
    def detect(R):
        SW, NX = G.lab("dsw"), G.lab("dnx")
        a("s_mov_b64 exec, -1")
        a(f"ds_read_b32 v{cT}, v{cFL} offset:{F_M}\ns_waitcnt lgkmcnt(0)\nv_readfirstlane_b32 s{sT0}, v{cT}")
        a(f"s_cmp_eq_u32 s{sT0}, 0\ns_cbranch_scc0 {SW}")
        a(f"s_cmp_eq_u32 s{sJ}, 0\ns_cbranch_scc0 {NX}")
        a(f"s_sub_u32 s{sT2}, s{sF}, s{sN}\ns_sub_u32 s{sT2}, s{sT2}, 1\ns_mul_i32 s{sT3}, s{sT2}, s{sT2}\ns_lshl_b32 s{sT3}, s{sT3}, 16")
        a(f"s_lshl_b32 s{sT2}, s{sT2}, 8\ns_add_u32 s{sT2}, s{sT2}, s{sT3}\ns_add_u32 s{sT2}, s{sT2}, 1\ns_lshl_b32 s{sT3}, s{sT2}, 5")
        a(f"s_cmp_eq_u32 s{sCNT}, 64\ns_cselect_b32 s{sT2}, s{sT2}, 0")
        a(f"s_mov_b64 exec, 1\nv_mov_b32 v{cT}, s{sT2}")
        a(f"buffer_atomic_add v{cT}, off, s[{sDG}:{sDG+3}], s{sDGO} sc0 sc1")
        a("s_waitcnt vmcnt(0)")
        a(f"v_readfirstlane_b32 s{sT0}, v{cT}\ns_mov_b64 exec, -1\ns_add_u32 s{sT0}, s{sT0}, s{sT2}")
        if not o.force_mode1:
            a(f"s_cmp_eq_u32 s{sT0}, s{sT3}\ns_cbranch_scc1 {NX}")
        a(f"s_and_b32 s{sT0}, s{sT0}, 0xff\ns_cmp_ge_u32 s{sT0}, 32\ns_cbranch_scc0 {NX}")
        a(f"ds_write_b32 v{cFL}, v{cONE} offset:{F_M}")
        a(f"{SW}:")
        to_mode1(G, cF)
        a(f"s_add_u32 s{sX4}, s{sX4}, {UOFF}\ns_mov_b32 s{sLR}, s{sN}")
        a(f"{NX}:")
    if o.force_mode1:
        a(f"s_add_u32 s{sF}, s{sF}, 0")
    if not o.iso:
        if o.force_mode1:
            a(f"s_xor_b32 s{sLR}, s{sF}, 0x40000000")
        poll_line(G, cL4, sX4, 2, 80, (f"s{sDGO}", 4), 128, sleep=0, detect=detect, scmp=(sLR if o.force_mode1 else sF))
    G.stamp(-1, 5)
    if o.coop1: uc_loads(G, 64, cU, cU + 1)
    else: u_loads(G, 64, cU, (3, 2))
    lds_count(G, cFL, cONE, C_GO)
    u_pad_write(G, 62, cZ)
    a(f"s_cmp_lg_u32 s{sM}, 0\ns_cselect_b64 vcc, -1, 0")
    def pre():
        if o.coop1:
            a("s_waitcnt vmcnt(1)")
            uc_write(G, 64, 52, 0)
            a("s_waitcnt vmcnt(0)")
            uc_write(G, 68, 52, 1)
            a("s_waitcnt lgkmcnt(0)")
            lds_count(G, cFL, cONE, F_YX)
            poll_lds(G, cFL, F_YX, 4, cT, sleep=0)
            G.stamp(2, 6, 2, 2)
            return 0
        a("s_waitcnt vmcnt(1)")
        u_write(G, 64, cHB, cHB0, 3)
        a("s_waitcnt vmcnt(0)")
        u_write(G, 68, cHB, cHB0, 2)
        G.stamp(2, 6, 2, 2)
        return 4
    if not o.apre: pre()
    a(f"s_cmp_eq_u32 s{sTS}, 0")
    a("s_cbranch_scc0 L_C1")
    st0 = c_stream(G, 0, pre if o.apre else None)
    a("L_C1:")
    st1 = c_stream(G, 1, pre if o.apre else None)
    a("L_exit:")
    a("s_endpgm")

    head = open("cdna_kernels/" + NAME + ".s.ref").read().split("\n")
    hdr = [l for l in head if l.startswith("; Kernarg") or l.startswith(";   offset")]
    out = hdr + [f"; @launch grid=(256,1,1) block=(896,1,1) lds={LDS_SZ}",
                 '.amdgcn_target "amdgcn-amd-amdhsa--gfx950"', ".text", f".globl {K}", ".p2align 8", f".type {K},@function"]
    out += G.L
    out += ['.section .rodata,"a"', ".p2align 6", f".amdhsa_kernel {K}",
            "  .amdhsa_next_free_vgpr 128", "  .amdhsa_next_free_sgpr 102", "  .amdhsa_accum_offset 128",
            "  .amdhsa_group_segment_fixed_size 0", "  .amdhsa_kernarg_size 120", "  .amdhsa_user_sgpr_count 2",
            "  .amdhsa_user_sgpr_kernarg_segment_ptr 1", "  .amdhsa_system_sgpr_workgroup_id_x 1",
            "  .amdhsa_float_denorm_mode_32 3", ".end_amdhsa_kernel", ""]
    print("stream stats (mfma, ds, max/gap, gaps>1):", st0, st1, file=sys.stderr)
    return "\n".join(out)


if __name__ == "__main__":
    ap = argparse.ArgumentParser()
    ap.add_argument("-o", default="cdna_kernels/" + NAME + ".s")
    ap.add_argument("opts", nargs="*")
    args = ap.parse_args()
    o = Opt()
    for kv in args.opts:
        k, v = kv.split("=", 1)
        cur = getattr(o, k)
        setattr(o, k, (v not in ("0", "False", "")) if isinstance(cur, bool) else type(cur)(v))
    open(args.o, "w").write(gen(o))
```

```python
import sys, argparse

NAME = "concat_heads__ssm_conv_h3__ssm_conv_h3__prompt"

RS_IN = 1152
RS_OUT = 2304
TENS = 2359296
OUTB = 4718592
PLANE = 4640
XA_SZ = 4 * PLANE
UP1 = 4224
U_SZ = 2 * UP1 + 32
XA0 = 0
U0 = 5 * XA_SZ
STG_SZ = 5120
STGX = U0 + 5 * U_SZ
YB0 = STGX
XT0 = YB0 + 8192
SCR0 = XT0 + 2048
FL0 = SCR0 + 16384 + 1536
LDS_SZ = FL0 + 64
F_N, F_V, C_GO, F_M, C_U0, C_U1, C_R, C_H, F_X, F_U2, F_YX, C_P, C_Y1, C_Y2, C_YX = [4 * i for i in range(15)]
CT_OFF = 17 << 20
L_U1, L_U2, L_Y1, L_Y2, L_S = 0, 2048, 4096, 6144, 8192
HSH = 21
XU_OFF, XY_OFF = 16 << 20, (16 << 20) + (1 << 19)
UOFF = 16384
GSTRIDE = 32768
TILE_STEP = 256 * RS_OUT
CAP_G = 1 << 15
CAP_L = 1 << 17
W_S, W_C = 0, 10


DOC = """
;
"""


class Opt:
    stamps = False
    only07 = False
    force_mode1 = False
    ld_nt = "nt"
    out_flag = ""
    lead = 12
    prefetch_code = True
    prefill = True
    sleep = 1
    cyc = False
    iso = False
    dspan = False
    early = False
    order = "ax123"
    ya = 6
    uxearly = True
    pfx = False
    kvfirst = True
    seq2 = False
    uxlate = 0
    y1data = False
    y1q = False
    udata = False
    utry = 8
    word = 0
    spf2 = 0
    sq2 = False
    sqx = False
    sqs = 0
    hgate = 0
    pfirst = False
    cfirst = False
    q2now = True
    share3 = False
    dry = False
    pfentry = True
    ebar2 = 1
    barpos = 7
    tl = False
    qhold = False
    coop1 = True
    coop2 = True
    k2early = False
    konly = False
    q1w2 = False
    stag = 2
    ydata = True
    ygo = -1
    ysleep = 1
    pfyx = False
    pfux = False
    ulead = 7
    xlead = 9
    yxearly = False
    e2lvl = 5
    y1dir = True
    merge = False
    y1ack = 45
    lsleep = 0
    x_skip = ""
    nock = ""
    wbatch = 8
    apre = True
    qw2 = False
    redlate = False
    u2first = True
    x_noaux = 0
    split3 = False
    defer = False
    golate = False
    y1wait = 25
    y1pos = 90
    w3 = False
    w1only = False
    noh = False
    nohalo = False
    h2early = False
    u2early = False
    mid = False
    hiprio = 3
    x_noh2 = False
    x_nogate = False
    x_nou2 = False
    x_nock = False
    x_noq = False
    k_nt = "nt"
    h_nt = "nt"
    yxack = True
    cprio = 2
    eprio = 0
    sprio = 3
    nopk = True
    tl_fl = "sc1"
    noq = False
    pf_nt = ""
    dma_fl = "sc1"
    win = True


STAMP_REGS = [88, 90, 92, 94, 96, 98, 36, 38]


class Gen:
    def __init__(self, o):
        self.o = o
        self.L = []
        self.uid = 0
        self.cold = []
    def a(self, s):
        for ln in s.split("\n"):
            self.L.append("    " + ln.strip() if not ln.strip().endswith(":") else ln.strip())
    def flush_cold(self):
        while self.cold:
            c, self.cold = self.cold, []
            for fn in c: fn()
    def lab(self, base):
        self.uid += 1
        return f"L_{base}_{self.uid}"
    def srd(self, d, lo, nrec):
        if lo is not None and lo != d:
            self.a(f"s_mov_b64 s[{d}:{d+1}], s[{lo}:{lo+1}]")
        self.a(f"s_mov_b32 s{d+2}, {nrec}\ns_mov_b32 s{d+3}, 0x00020000")
    def stamp(self, i, early=None, mid=None, tl=None):
        if self.o.tl and i != 7: i = -1 if tl is None else tl
        if self.o.early: i = -1 if early is None else early
        if self.o.mid and i != 7: i = -1 if mid is None else mid
        if self.o.only07 and i != 7: i = -1
        if (self.o.stamps or self.o.dspan) and i >= 0:
            r = STAMP_REGS[i]
            self.a(f"{'s_memtime' if self.o.cyc else 's_memrealtime'} s[{r}:{r+1}]")


sWV, sG, sR, sH, sGQ = 3, 4, 5, 6, 7
sT0, sT1, sT2, sT3 = 8, 9, 10, 11
sM, sEV, sCNT, sSIG = 12, 13, 14, 15
pOUT, pDBG, pWS = 40, 42, 44
sK, sV, sQ, sW, sD, sXU, sXY, sOUT, sCT, sHH = 48, 52, 56, 60, 64, 68, 72, 76, 80, 84
sDG = 60
sROW0, sLC, sCOL, sLR, sCHJ, sX1, sX2, sX3, sX4, sF, sN = 16, 17, 18, 19, 20, 21, 22, 23, 24, 26, 27
sWMY, sTS, sGB, sDGO, sJ = 28, 32, 33, 34, 35
sTAG = 25
sE, sSTG = 100, 101


def poll_line(G, vl, soff, w, vt, cnt, n, sleep=None, scmp=sF, detect=None):
    L, D, C, R = G.lab("pg"), G.lab("pgd"), G.lab("pgc"), G.lab("pgr")
    G.a(f"s_mov_b32 s{sCNT}, 0")
    G.a(f"{L}:")
    G.a(f"buffer_load_dwordx{w} v[{vt}:{vt+w-1}], v{vl}, s[{sCT}:{sCT+3}], s{soff} offen sc1")
    G.a(f"s_add_u32 s{sCNT}, s{sCNT}, 1")
    G.a("s_waitcnt vmcnt(0)")
    G.a(f"v_xor_b32 v{vt}, s{scmp}, v{vt}")
    for k in range(1, w):
        G.a(f"v_bitop3_b32 v{vt}, v{vt}, v{vt+k}, s{scmp} bitop3:0xf6")
    G.a(f"v_cmp_ne_u32 vcc, 0, v{vt}")
    G.a(f"s_cbranch_vccz {D}")
    sl = G.o.sleep if sleep is None else sleep
    if sl:
        G.a(f"s_sleep {sl}")
    G.a(f"s_and_b32 s{sT0}, s{sCNT}, 63\ns_cbranch_scc1 {L}")
    G.a(f"s_branch {C}")
    G.a(f"{D}:")
    def cold():
        G.a(f"{C}:")
        R0 = G.lab("pgx") if detect else R
        G.a(f"s_cmp_eq_u32 s{sM}, 0\ns_cbranch_scc1 {R0}")
        G.a(f"s_mov_b64 exec, 1\nv_mov_b32 v{vt}, 0")
        G.a(f"buffer_atomic_add v{vt}, off, s[{sDG}:{sDG+3}], {cnt[0]} offset:{cnt[1]} sc0 sc1")
        G.a(f"s_waitcnt vmcnt(0)")
        G.a(f"v_readfirstlane_b32 s{sT0}, v{vt}\ns_mov_b64 exec, -1")
        G.a(f"s_cmp_ge_u32 s{sT0}, {n}\ns_cbranch_scc1 {D}")
        G.a(f"{R}:")
        G.a(f"s_cmp_lt_u32 s{sCNT}, {CAP_G}\ns_cbranch_scc1 {L}\ns_branch {D}")
        if detect:
            G.a(f"{R0}:")
            detect(R)
            G.a(f"s_branch {R}")
    G.cold.append(cold)


def poll_lds(G, vfl, off, expected, vt, sleep=1, pair=None, hook=None):
    L, D = G.lab("pl"), G.lab("pld")
    G.a(f"s_mov_b32 s{sCNT}, 0")
    G.a(f"{L}:")
    if pair is None:
        G.a(f"ds_read_b32 v{vt}, v{vfl} offset:{off}")
    else:
        G.a(f"ds_read_b64 v[{vt}:{vt+1}], v{vfl} offset:{off}")
    G.a(f"s_add_u32 s{sCNT}, s{sCNT}, 1")
    G.a("s_waitcnt lgkmcnt(0)")
    G.a(f"v_readfirstlane_b32 s{sT0}, v{vt}")
    if pair is not None:
        G.a(f"v_readfirstlane_b32 s{pair}, v{vt+1}")
    if hook: hook(L)
    G.a(f"s_cmp_ge_u32 s{sT0}, {expected}")
    G.a(f"s_cbranch_scc1 {D}")
    if sleep: G.a(f"s_sleep {max(sleep, G.o.lsleep)}")
    G.a(f"s_cmp_lt_u32 s{sCNT}, {CAP_L}")
    G.a(f"s_cbranch_scc1 {L}")
    G.a(f"{D}:")


def get_nonce(G, vfl, vt, vf):
    L, D = G.lab("gn"), G.lab("gnd")
    G.a(f"s_getreg_b32 s{sF}, hwreg(HW_REG_XCC_ID, 0, 4)\ns_mov_b32 s{sCNT}, 0")
    G.a(f"{L}:")
    G.a(f"ds_read_b64 v[{vt}:{vt+1}], v{vfl} offset:{F_N}")
    G.a(f"s_add_u32 s{sCNT}, s{sCNT}, 1")
    G.a("s_waitcnt lgkmcnt(0)")
    G.a(f"v_readfirstlane_b32 s{sTAG}, v{vt+1}")
    G.a(f"v_readfirstlane_b32 s{sN}, v{vt}")
    G.a(f"s_cmp_ge_u32 s{sTAG}, 1")
    G.a(f"s_cbranch_scc1 {D}")
    G.a("s_sleep 1")
    G.a(f"s_cmp_lt_u32 s{sCNT}, {CAP_L}")
    G.a(f"s_cbranch_scc1 {L}")
    G.a(f"{D}:")
    G.a(f"s_add_u32 s{sF}, s{sF}, s{sN}\ns_add_u32 s{sF}, s{sF}, 1\nv_mov_b32 v{vf}, s{sF}\ns_and_b32 s{sTAG}, s{sTAG}, 0xffff")


def to_mode1(G, vf):
    G.a(f"s_mov_b32 s{sM}, 1\ns_mov_b32 s{sF}, s{sN}\nv_mov_b32 v{vf}, s{sN}")
    G.a(f"s_add_u32 s{sGB}, s{sGB}, {UOFF}")
    G.a(f"s_mov_b64 s[{sXU}:{sXU+1}], s[{pWS}:{pWS+1}]")
    G.a(f"s_add_u32 s{sXY}, s{pWS}, {OUTB}\ns_addc_u32 s{sXY+1}, s{pWS+1}, 0")


def adopt_mode(G, sm, vf):
    A, B = G.lab("am"), G.lab("amb")
    G.a(f"s_cmp_gt_u32 s{sm}, s{sM}\ns_cbranch_scc1 {A}")
    G.a(f"{B}:")
    def cold():
        G.a(f"{A}:")
        to_mode1(G, vf)
        G.a(f"s_branch {B}")
    G.cold.append(cold)


def signal(G, vf, vrep, sslot, line, w, cnt, vt):
    A, B = G.lab("ma"), G.lab("mb")
    G.a(f"s_mov_b64 exec, 15")
    G.a(f"s_cmp_eq_u32 s{sM}, 0\ns_cbranch_scc0 {A}")
    G.a(f"buffer_store_dword v{vf}, v{vrep}, s[{sCT}:{sCT+3}], s{sslot} offen")
    G.a(f"{B}:")
    G.a("s_mov_b64 exec, -1")
    def cold():
        G.a(f"{A}:")
        G.a(f"s_mov_b64 exec, 1\nv_mov_b32 v{vt}, 1")
        G.a(f"buffer_atomic_add v{vt}, off, s[{sDG}:{sDG+3}], s{sDGO} offset:{cnt} sc0 sc1")
        G.a("s_waitcnt vmcnt(0)")
        G.a(f"v_readfirstlane_b32 s{sT0}, v{vt}")
        G.a(f"s_cmp_eq_u32 s{sT0}, {64*w-1}\ns_cbranch_scc0 {B}")
        G.a(f"s_mov_b64 exec, -1\ns_add_u32 s{sT1}, s{sGB}, {line}")
        G.a(f"v_lshlrev_b32 v{vt+4}, 4, v0")
        for k in range(4): G.a(f"v_mov_b32 v{vt+k}, v{vf}")
        for fl in (" sc1", ""):
            for k in range(w):
                G.a(f"buffer_store_dwordx4 v[{vt}:{vt+3}], v{vt+4}, s[{sCT}:{sCT+3}], s{sT1} offen offset:{1024*k}{fl}")
        G.a(f"s_branch {B}")
    G.cold.append(cold)


def tagged_loads(G, n, r0, vaddr, srd, offs, vt, after=None):
    L, D, C = G.lab("tl"), G.lab("tld"), G.lab("tlc")
    def loads():
        for k in range(n):
            so, io = offs(k)
            if so: G.a(f"s_mov_b32 s{sT1}, {so}")
            G.a(f"buffer_load_dwordx4 v[{r0+4*k}:{r0+4*k+3}], v{vaddr}, s[{srd}:{srd+3}], {'s%d' % sT1 if so else 0} offen offset:{io} {G.o.tl_fl}")
    G.a(f"s_mov_b32 s{sCNT}, 0")
    loads()
    nyoung = after() if after else 0
    G.a(f"s_waitcnt vmcnt({nyoung})")
    if after: G.stamp(-1, 5, 2)
    G.a(f"{L}:")
    G.a(f"v_xor_b32 v{vt}, s{sTAG}, v{r0}")
    for k in range(1, 4 * n):
        G.a(f"v_bitop3_b32 v{vt}, v{vt}, v{r0+k}, s{sTAG} bitop3:0xf6")
    G.a(f"v_and_b32 v{vt}, 0xffff, v{vt}")
    G.a(f"v_cmp_ne_u32 vcc, 0, v{vt}")
    G.a(f"s_cbranch_vccnz {C}")
    G.a(f"{D}:")
    def cold():
        G.a(f"{C}:")
        G.a(f"s_add_u32 s{sCNT}, s{sCNT}, 1\ns_cmp_lt_u32 s{sCNT}, {CAP_G}\ns_cbranch_scc0 {D}")
        R = G.lab("tlr")
        G.a(f"s_and_b32 s{sT0}, s{sCNT}, 63\ns_cbranch_scc1 {R}\nbuffer_inv sc1\n{R}:")
        G.a("s_sleep 2")
        loads()
        G.a(f"s_waitcnt vmcnt(0)\ns_branch {L}")
    G.cold.append(cold)


def ctl_srd(G):
    G.a(f"s_lshl_b32 s{sGB}, s{sH}, {HSH}\ns_add_u32 s{sGB}, s{sGB}, {CT_OFF}\ns_add_u32 s{sCT}, s{pWS}, s{sGB}\ns_addc_u32 s{sCT+1}, s{pWS+1}, 0")
    G.srd(sCT, None, 5 * GSTRIDE)
    G.a(f"s_add_u32 s{sGB}, s{sGQ}, 1\ns_lshl_b32 s{sGB}, s{sGB}, 15")


def misc_srd(G):
    G.srd(sDG, pDBG, 256)
    G.a(f"s_mul_i32 s{sDGO}, s{sGQ}, 20\ns_lshl_b32 s{sT0}, s{sH}, 7\ns_add_u32 s{sDGO}, s{sDGO}, s{sT0}\ns_add_u32 s{sDGO}, s{sDGO}, 8")
    G.srd(sXU, pOUT, OUTB)
    G.srd(sXY, pOUT, OUTB)
    G.a(f"s_mov_b32 s{sM}, 0")


def chan_of(G, sj, dst):
    G.a(f"s_and_b32 s{sT1}, s{sR}, 12\ns_add_u32 s{sT1}, s{sT1}, s{sj}\ns_lshl_b32 s{sT1}, s{sT1}, 2\ns_and_b32 s{sT2}, s{sR}, 3\ns_add_u32 s{sT1}, s{sT1}, s{sT2}")
    G.a(f"s_lshr_b32 s{sT2}, s{sR}, 4\ns_lshl_b32 s{sT3}, s{sGQ}, 1\ns_add_u32 s{sT2}, s{sT2}, s{sT3}\ns_lshl_b32 s{sT2}, s{sT2}, 6\ns_add_u32 s{dst}, s{sT1}, s{sT2}")


def inbox_of(G, dst, slr):
    G.a(f"s_lshr_b32 s{sT2}, s{sR}, 4\ns_lshl_b32 s{sT3}, s{sGQ}, 1\ns_add_u32 s{sT2}, s{sT2}, s{sT3}\ns_lshl_b32 s{sT2}, s{sT2}, 7")
    G.a(f"s_mul_i32 s{dst}, s{sH}, 1152\ns_add_u32 s{dst}, s{dst}, s{sT2}\ns_and_b32 s{slr}, s{sR}, 15")


def xbox_of(G, dst, se, slr):
    G.a(f"s_lshl_b32 s{se}, s{sGQ}, 5\ns_add_u32 s{se}, s{se}, s{sR}\ns_lshr_b32 s{se}, s{se}, 1")
    G.a(f"s_lshr_b32 s{sT1}, s{se}, 4\ns_lshl_b32 s{sT1}, s{sT1}, 2\ns_and_b32 s{sT2}, s{se}, 3\ns_add_u32 s{slr}, s{sT1}, s{sT2}")
    G.a(f"s_bfe_u32 s{sT1}, s{se}, {(2<<16)|2}\ns_lshl_b32 s{sT1}, s{sT1}, 6")
    G.a(f"s_lshl_b32 s{sT2}, s{sH}, {HSH}\ns_add_u32 s{dst}, s{sT1}, s{sT2}")


def blk_addr(G, vd, vt, slr, rowb, scol):
    G.a(f"v_add_u32 v{vt}, s{slr}, v{vd}\nv_and_b32 v{vt}, 15, v{vt}\nv_lshl_add_u32 v{vd}, v{vd}, 4, v{vt}")
    G.a(f"v_mul_u32_u24 v{vd}, {rowb}, v{vd}\nv_add_u32 v{vd}, s{scol}, v{vd}")


def xa_loads(G, b, va, q):
    nt = G.o.h_nt
    if G.o.noh: return
    G.a(f"buffer_load_dwordx4 v[{b+2}:{b+5}], v{va}, s[{sHH}:{sHH+3}], 0 offen offset:{1024*q} {nt}")
    if q:
        G.a(f"s_mov_b64 exec, 1\nbuffer_load_dwordx2 v[{b}:{b+1}], v{va}, s[{sHH}:{sHH+3}], 0 offen offset:{1024*q-8} {nt}\ns_mov_b64 exec, -1")


def xa_build(G, b, t, vdst, off, q, plain=False):
    w = lambda i: b + 2 + i
    bc = "" if q else " bound_ctrl:0"
    G.a(f"v_mov_b32_dpp v{b}, v{w(2)} wave_shr:1 row_mask:0xf bank_mask:0xf{bc}")
    G.a(f"v_mov_b32_dpp v{b+1}, v{w(3)} wave_shr:1 row_mask:0xf bank_mask:0xf{bc}")
    G.a(f"ds_write_b128 v{vdst}, v[{b+2}:{b+5}] offset:{off + 3*PLANE}")
    for i in range(4):
        G.a(f"v_alignbit_b32 v{t+i}, v{w(i-1)}, v{w(i-2)}, 16")
    G.a(f"ds_write_b128 v{vdst}, v[{t}:{t+3}] offset:{off}")
    for i in range(4):
        G.a(f"v_alignbit_b32 v{t+4+i}, v{w(i)}, v{w(i-1)}, 16")
    G.a(f"ds_write_b128 v{vdst}, v[{t+4}:{t+7}] offset:{off + 2*PLANE}")
    if plain:
        for i in range(4): G.a(f"v_mov_b32 v{t+8+i}, v{w(i-1)}")
    else:
        G.a(f"v_pk_mov_b32 v[{t+8}:{t+9}], v[{b}:{b+1}], v[{b+2}:{b+3}] op_sel:[1,0]")
        G.a(f"v_pk_mov_b32 v[{t+10}:{t+11}], v[{b+2}:{b+3}], v[{b+4}:{b+5}] op_sel:[1,0]")
    G.a(f"ds_write_b128 v{vdst}, v[{t+8}:{t+11}] offset:{off + PLANE}")


def transpose4(G, regs):
    G.a("s_nop 1")
    for j in (0, 1):
        for d in (0, 1):
            G.a(f"v_permlane32_swap_b32 v{regs[j]+d}, v{regs[j+2]+d}")
    G.a("s_nop 1")
    for j in (0, 2):
        for d in (0, 1):
            G.a(f"v_permlane16_swap_b32 v{regs[j]+d}, v{regs[j+1]+d}")


def u_src(G, vd, vt, slr, scol):
    G.a(f"v_lshrrev_b32 v{vd}, 1, v0\nv_sub_u32 v{vd}, 31, v{vd}")
    blk_addr(G, vd, vt, slr, RS_OUT, scol)
    G.a(f"v_and_b32 v{vt}, 1, v0\nv_lshl_add_u32 v{vd}, v{vt}, 4, v{vd}")


def u_loads(G, r, vsrc, qs):
    for k, q in enumerate(qs):
        G.a(f"s_mov_b32 s{sT1}, {(3-q)*32*16*RS_OUT}")
        G.a(f"buffer_load_dwordx4 v[{r+4*k}:{r+4*k+3}], v{vsrc}, s[{sXU}:{sXU+3}], s{sT1} offen {G.o.dma_fl}")


def u_write(G, r, vdst, vdst1, q):
    G.a(f"ds_write_b128 v{vdst}, v[{r}:{r+3}] offset:{1024*q}")
    G.a(f"ds_write2_b64 v{vdst1}, v[{r}:{r+1}], v[{r+2}:{r+3}] offset0:{128*q if q < 2 else 128*(q-2)} offset1:{(128*q if q < 2 else 128*(q-2))+1}")


def uc_setup(G, va, vb, vd, vt, sj, slr, scol, half):
    G.a(f"s_lshl_b32 s{sT0}, s{sj}, 4\ns_sub_u32 s{sT0}, {63 + 64*half}, s{sT0}\nv_lshrrev_b32 v{vd}, 3, v0\nv_sub_u32 v{va}, s{sT0}, v{vd}\nv_add_u32 v{vb}, -8, v{va}")
    blk_addr(G, va, vt, slr, RS_OUT, scol)
    blk_addr(G, vb, vt, slr, RS_OUT, scol)
    G.a(f"v_and_b32 v{vt}, 7, v0\nv_lshl_add_u32 v{va}, v{vt}, 4, v{va}\nv_lshl_add_u32 v{vb}, v{vt}, 4, v{vb}")
    G.a(f"s_lshl_b32 s{sT0}, s{sj}, 9\ns_add_u32 s{sT0}, s{sT0}, {U0 + 2048*(1-half)}\nv_lshl_add_u32 v{vd}, v{vd}, 5, s{sT0}")
    G.a(f"v_lshrrev_b32 v{vt}, 1, v{vt}\nv_mul_u32_u24 v{vt}, {U_SZ}, v{vt}\nv_add_u32 v{vd}, v{vd}, v{vt}\nv_and_b32 v{vt}, 1, v0\nv_lshl_add_u32 v{vd}, v{vt}, 4, v{vd}")
    G.a(f"v_add_u32 v{vd+1}, {UP1 - 8}, v{vd}")


def uc_loads(G, r, va, vb):
    for k, v in enumerate((va, vb)):
        G.a(f"buffer_load_dwordx4 v[{r+4*k}:{r+4*k+3}], v{v}, s[{sXU}:{sXU+3}], 0 offen {G.o.dma_fl}")


def uc_write(G, r, vd, k):
    G.a(f"ds_write_b128 v{vd}, v[{r}:{r+3}] offset:{256*k}")
    G.a(f"ds_write2_b64 v{vd+1}, v[{r}:{r+1}], v[{r+2}:{r+3}] offset0:{32*k} offset1:{32*k+1}")


def u_pad(G, vt, vz, subase):
    G.a(f"v_lshlrev_b32 v{vt}, 3, v0\nv_cmp_lt_u32 vcc, 14, v0\nv_add_u32 v{vt}, {subase}, v{vt}\nv_add_u32 v{vt+1}, 4096, v{vt}")
    G.a(f"v_cndmask_b32 v{vt}, v{vt}, v{vt+1}, vcc")


def u_pad_write(G, vt, vz):
    G.a(f"s_mov_b32 exec_hi, 0\nds_write_b64 v{vt}, v[{vz}:{vz+1}] offset:4096\ns_mov_b32 exec_hi, -1")


def pk(G, op, d, x, y, z=None, force=False):
    if G.o.nopk and not force:
        for i in (0, 1):
            G.a(f"v_{op}_f32 v{d+i}, v{x+i}, v{y+i}" + (f", v{z+i}" if z is not None else ""))
    else:
        G.a(f"v_pk_{op}_f32 v[{d}:{d+1}], v[{x}:{x+1}], v[{y}:{y+1}]" + (f", v[{z}:{z+1}]" if z is not None else ""))


def sq_prefetch(G, soff):
    G.a(f"s_add_u32 s{sK}, s{sQ}, s{soff}\ns_addc_u32 s{sK+1}, s{sQ+1}, 0")
    for i in range(16):
        G.a(f"s_load_dword s{sV}, s[{sK}:{sK+1}], {i*RS_IN}\ns_load_dword s{sV+1}, s[{sK}:{sK+1}], {i*RS_IN+64}")


def lds_count(G, vfl, vone, off):
    G.a(f"s_mov_b64 exec, 1\nds_add_u32 v{vfl}, v{vone} offset:{off}\ns_mov_b64 exec, -1")


def finish(G):
    if G.o.dspan:
        G.a("s_waitcnt vmcnt(0)")
        G.stamp(7, 7)
        G.srd(sK, pDBG, 256)
        D = G.lab("ds")
        G.a(f"s_waitcnt lgkmcnt(0)\ns_and_b32 s{sT0}, s2, 0x78\ns_cbranch_scc1 {D}")
        G.a(f"s_cmp_eq_u32 s{sWV}, 10\ns_cselect_b32 s{sT1}, 0, 32\ns_cselect_b32 s{sT0}, 1, 0\ns_cmp_eq_u32 s{sWV}, 9\ns_cselect_b32 s{sT0}, 1, s{sT0}\ns_cmp_eq_u32 s{sT0}, 1\ns_cbranch_scc0 {D}")
        G.a("s_not_b32 s90, s88")
        G.a("s_mov_b64 exec, 1")
        for i in range(8):
            G.a(f"v_mov_b32 v8, s{STAMP_REGS[i]}\nbuffer_atomic_umax v8, off, s[{sK}:{sK+3}], s{sT1} offset:{4*i} sc1")
        G.a(f"{D}:")
        G.a("s_endpgm")
        G.flush_cold()
        return
    if G.o.stamps:
        G.a("s_waitcnt vmcnt(0)")
        G.stamp(7, 7)
        G.a(f"s_add_u32 s{sT2}, s{pWS}, {64<<20}\ns_addc_u32 s{sT3}, s{pWS+1}, 0")
        G.srd(sK, sT2, 1 << 20)
        G.a(f"s_lshl_b32 s{sT0}, s2, 4\ns_add_u32 s{sT0}, s{sT0}, s{sWV}\ns_lshl_b32 s{sT0}, s{sT0}, 5")
        G.a("s_waitcnt lgkmcnt(0)")
        for i in range(8):
            G.a(f"v_mov_b32 v{8+i}, s{STAMP_REGS[i]}")
        G.a("s_mov_b64 exec, 1")
        G.a(f"buffer_store_dwordx4 v[8:11], off, s[{sK}:{sK+3}], s{sT0}")
        G.a(f"buffer_store_dwordx4 v[12:15], off, s[{sK}:{sK+3}], s{sT0} offset:16")
    G.a("s_endpgm")
    G.flush_cold()


class Stream:
    def __init__(self, G, slots, lead):
        self.G, self.slots, self.lead = G, slots, lead
        self.mf = []
        self.side = {}
        self.busy = {}
        self.avail = {}
        self.gate = {}
    def mfma(self, acc, A, B, zero):
        self.mf.append((acc, A, B, zero))
    def at(self, pos, fn, ds=0):
        self.side.setdefault(pos, []).append(fn)
        self.busy[pos] = self.busy.get(pos, 0) + ds
    def spread(self, pos, lines, step=1):
        for ln in lines:
            self.at(pos, lambda S_, ln=ln: S_.G.a(ln))
            pos += step
        return pos
    def emit(self, loadtext, pre=None):
        G = self.G
        n = len(self.mf)
        first, last, order = {}, {}, []
        for i, (acc, A, B, z) in enumerate(self.mf):
            for k in (A, B):
                if k not in first:
                    first[k] = i; order.append(k)
                last[k] = i
        free = [self.avail.get(r, 0) for r in self.slots]
        sched = {}
        cnt = [self.busy.get(i, 0) for i in range(n + 1)]
        slot_of = {}
        prev = 0
        for k in order:
            s = min(range(len(free)), key=lambda j: free[j])
            ops = loadtext(k, self.slots[s])
            lo = max(self.gate.get(k[0:2] + (k[2] >> 2,), 0), free[s], prev)
            slot_of[k] = self.slots[s]
            for op in ops:
                p = max(lo, first[k] - self.lead)
                hi = max(p, first[k] - 4)
                q = min(range(p, hi + 1), key=lambda x: (cnt[x], x))
                p = min(q, first[k])
                assert p >= lo, (k, p, lo)
                cnt[p] += 1
                sched.setdefault(p, []).append((k, op))
                prev = lo = p
            free[s] = last[k] + 1
        self.nds = 0
        self.done = 0
        ready = {}
        issued = []
        if pre:
            for k, op in sched.get(0, []):
                if k[1] == "A": G.a(op); self.nds += 1; ready[k] = self.nds
            sched[0] = [e for e in sched.get(0, []) if e[0][1] != "A"]
            self.nds += pre()
        for i in range(n + 1):
            for fn in self.side.get(i, []):
                fn(self)
            for k, op in sched.get(i, []):
                G.a(op); self.nds += 1; ready[k] = self.nds
            issued.append(self.nds)
            if i == n: break
            acc, A, B, z = self.mf[i]
            nd = max(ready[A], ready[B])
            if nd > self.done and G.o.wbatch and i >= G.o.wbatch:
                nd = max(nd, issued[i - G.o.wbatch])
            self.need(nd)
            a_, b_ = slot_of[A], slot_of[B]
            c = "0" if z else f"v[{acc}:{acc+3}]"
            G.a(f"v_mfma_f32_16x16x32_bf16 v[{acc}:{acc+3}], v[{a_}:{a_+3}], v[{b_}:{b_+3}], {c}")
        self.stats = (n, sum(cnt), max(cnt), sum(1 for c in cnt if c > 1))
    def ds(self, text):
        self.G.a(text); self.nds += 1
        return self.nds
    def need(self, idx):
        if idx > self.done:
            out = min(self.nds - idx, 15)
            self.G.a(f"s_waitcnt lgkmcnt({out})")
            self.done = self.nds - out


cA, cB, cAX, cBX, cY, cYX, cSW, cSR, cFL, cONE, c128, cT, cF, cL4 = 1, 2, 3, 4, 5, 6, 7, 8, 9, 10, 11, 12, 14, 15


def c_stream(G, ts, pre=None):
    o = G.o
    ACC = 16
    PK = 48
    ACX = 56
    slots = [72 + 4 * i for i in range(14)]
    S = Stream(G, slots, o.lead)
    acc = lambda t: ACC + 4 * t
    S.nst = 0
    seen = set()
    def add(ph, ch, pairs, ys, accf):
        for y in ys:
            for (x, b) in pairs:
                r = accf(x + b)
                S.mfma(r, (ph, "A", x, y, ch), (ph, "B", b, y, ch), (r, ch) not in seen)
                seen.add((r, ch))
    def loadtext(k, r):
        ph, typ, i, y, ch = k
        if typ == "A":
            return [f"ds_read_b128 v[{r}:{r+3}], v{cAX if ch else cA} offset:{512*i + 64*y}"]
        off = 512 * (7 - i) + 64 * y
        v = cBX if ch else cB
        return [f"ds_read_b128 v[{r}:{r+3}], v{v} offset:{off}"]
    p1 = [(x, b) for x in range(4) for b in range(4)]
    p1.sort(key=lambda p: (max(p), p[0] + p[1]))
    p1only = list(p1)
    p2 = [(4, 0), (5, 0), (4, 1), (6, 0), (5, 1), (4, 2), (7, 0), (6, 1), (5, 2), (4, 3)]
    p3 = [(x, b) for (b, x) in p2]
    tiles = [0, 3, 4, 7] if ts == 0 else [1, 2, 5, 6]
    px = [(x, b) for x in range(4, 8) for b in range(4) if x + b in tiles] + \
         [(x, b) for x in range(4) for b in range(4) if x + b in tiles] + \
         [(x, b) for x in range(4) for b in range(4, 8) if x + b in tiles]
    assert len(px) == 18
    use = []
    for (x, b) in px:
        if x + b not in use: use.append(x + b)
    accx = lambda t: ACX + 4 * use.index(t)
    if o.merge: p1 = p2 + p1
    beg, end = {}, {}
    for ph in o.order:
        if ph == "2" and o.merge: continue
        beg[ph] = len(S.mf)
        if ph == "a": add(1, 0, p1, range(o.ya), acc)
        if ph == "1": add(1, 0, p1, range(o.ya if "a" in o.order else 0, 8), acc)
        if ph == "x": add(2, 1, px, range(2), accx)
        if ph == "2": add(3, 0, p2, range(8), acc)
        if ph == "3" and not o.split3: add(4, 0, p3, range(8), acc)
        if ph == "3" and o.split3:
            add(4, 0, [p for p in p3 if sum(p) < 6], range(8), acc)
            e3a = len(S.mf)
            add(6, 0, [p for p in p3 if sum(p) >= 6], range(8), acc)
        if ph == "5": add(5, 0, p2 + p3, range(8), acc)
        end[ph] = len(S.mf)
    e1, ex, e3 = end["1"], end["x"], len(S.mf)
    S.mf[e1 - 16:e1] = sorted(S.mf[e1 - 16:e1], key=lambda m: m[0])

    def check(pos, off, expected):
        st = {}
        def rd(S_):
            st["i"] = S_.ds(f"ds_read_b32 v{cT}, v{cFL} offset:{off}")
        def ck(S_):
            S_.need(st["i"])
            if o.iso or o.x_nock or {F_X: 'X', C_U0: 'S', F_U2: 'U', C_H: 'H'}[off] in o.nock: return
            D, C = G.lab("ck"), G.lab("ckc")
            G.a(f"v_readfirstlane_b32 s{sT0}, v{cT}")
            G.a(f"s_cmp_ge_u32 s{sT0}, {expected}")
            G.a(f"s_cbranch_scc0 {C}")
            G.a(f"{D}:")
            def cold():
                G.a(f"{C}:")
                poll_lds(G, cFL, off, expected, cT)
                G.a(f"s_branch {D}")
            G.cold.append(cold)
        S.at(max(pos - 5, 0), rd, ds=1); S.at(max(pos, 0), ck)
    def count(pos, off):
        def f(S_):
            G.a("s_mov_b64 exec, 1")
            S_.ds(f"ds_add_u32 v{cFL}, v{cONE} offset:{off}")
            G.a("s_mov_b64 exec, -1")
        S.at(pos, f, ds=1)
    def ystore1(t, pk):
        A, B = G.lab("ys"), G.lab("yd")
        S.nst += 1
        G.a(f"s_mov_b32 s{sT1}, {t*TILE_STEP}")
        G.a(f"s_cbranch_vccnz {A}")
        G.a(f"buffer_store_dwordx2 v[{pk}:{pk+1}], v{cY}, s[{sXY}:{sXY+3}], s{sT1} offen")
        G.a(f"{B}:")
        def cold():
            G.a(f"{A}:")
            G.a(f"buffer_store_dwordx2 v[{pk}:{pk+1}], v{cY}, s[{sXY}:{sXY+3}], s{sT1} offen sc1")
            G.a(f"s_branch {B}")
        G.cold.append(cold)
    Ld = o.lead + 1
    check(beg["x"] - o.xlead, F_X, 1)
    for h in (0, 1):
        S.gate[(2, "A", h)] = S.gate[(2, "B", h)] = beg["x"] - o.xlead
    if not o.h2early:
        check(beg["2"] - Ld, C_H, 4)
        S.gate[(3, "A", 1)] = beg["2"] - Ld
    if not o.u2early:
        check(beg["3"] - o.ulead, F_U2, 4)
        S.gate[(4, "B", 1)] = beg["3"] - o.ulead
    lastw = {t: max(i for i in range(e1) if S.mf[i][0] == acc(t)) for t in range(4)}
    reuse = beg["x"]
    p = 0
    for t in range(4):
        p = max(p, lastw[t] + 9)
        r = acc(t)
        p = S.spread(p, [f"v_cvt_pk_bf16_f32 v{PK+2*t}, v{r}, v{r+1}", f"v_cvt_pk_bf16_f32 v{PK+2*t+1}, v{r+2}, v{r+3}"])
    if o.y1dir:
        if o.merge: p = e3 - 30
        for t in range(4):
            S.at(p, lambda S_, t=t: ystore1(t, PK + 2 * t))
            p += 2
        if not o.merge:
            def y1flag(S_):
                G.a(f"s_sub_u32 s{sX1}, s{sEV}, {L_Y2 - L_Y1}\ns_waitcnt vmcnt(0)")
                signal(G, cF, c128, sX1, L_Y1, 2, 8, 16)
            S.at(p + o.y1ack, y1flag)
    for t in range(0 if o.y1dir else 4):
        def yw(S_, t=t):
            S_.last_yw = S_.ds(f"ds_write_b64 v{cYX}, v[{PK+2*t}:{PK+2*t+1}] offset:{2048*t}")
        S.at(p, yw, ds=1)
        p += 2
    if not o.y1dir:
        S.at(p + 4, lambda S_: S_.need(S_.last_yw))
        count(p + 4, C_Y1)
    S.at(e1, lambda S_: G.stamp(3, mid=3))
    p = ex + 8
    if not o.konly: check(p, C_U0, 4)
    for i in range(4):
        def pw(S_, i=i):
            S_.last_pw = S_.ds(f"ds_write_b128 v{cSW}, v[{accx(tiles[i])}:{accx(tiles[i])+3}] offset:{4096*i}")
        S.at(p + i, pw, ds=1)
    S.at(p + 8, lambda S_: S_.need(S_.last_pw))
    count(p + 8, C_P)
    for i in range(4):
        S.slots.append(ACX + 4 * i); S.avail[ACX + 4 * i] = p + 9
    S.at(end.get("3", ex + 80), lambda S_: G.stamp(4, mid=4))
    S.at(ex, lambda S_: G.stamp(5, mid=5))
    n = e3
    P2 = ACC + 8
    def cvt(t):
        r = acc(t)
        return [f"v_cvt_pk_bf16_f32 v{P2+2*(t-4)}, v{r}, v{r+1}", f"v_cvt_pk_bf16_f32 v{P2+2*(t-4)+1}, v{r+2}, v{r+3}"]
    nl = 10 * o.stag
    S.mf[n - nl:] = sorted(S.mf[n - nl:], key=lambda m: m[0])
    p, late = 0, []
    for t in (4, 5, 6, 7):
        lw = max(i for i in range(n) if S.mf[i][0] == acc(t))
        p = max(p, lw + 9)
        if p + 2 <= n:
            p = S.spread(p, cvt(t))
            S.at(p, lambda S_, t=t: ystore1(t, P2 + 2 * (t - 4)))
        else:
            late.append((t, n - 1 - lw))
    def tail(S_):
        G.stamp(6, mid=6, tl=3)
        states = 0
        for t, d in late:
            if d + states < 8:
                G.a(f"s_nop {8 - d - states - 1}"); states = 8 - d
            G.a("\n".join(cvt(t))); ystore1(t, P2 + 2 * (t - 4))
            states += 5
    S.at(n, tail)
    if o.ydata and o.ygo > 0: count(n - o.ygo, C_Y2)
    S.emit(loadtext, pre)
    if o.ydata and not o.ygo: lds_count(G, cFL, cONE, C_Y2)
    G.stamp(-1, tl=4)
    G.a("s_waitcnt vmcnt(0)")
    G.stamp(-1, tl=5)
    if o.ydata and o.ygo < 0: lds_count(G, cFL, cONE, C_Y2)
    signal(G, cF, c128, sEV, L_Y2, 2, 12, 16)
    finish(G)
    return S.stats


def gen(o):
    G = Gen(o)
    a = G.a
    nt = o.ld_nt
    K = NAME + "_kernel"
    assert o.y1dir or not o.qhold
    assert not o.konly
    GO2 = 8 if o.uxearly else 9
    GO3 = GO2 + (0 if o.h2early else 4)
    a(f"{K}:")
    a("s_cmp_ge_u32 s2, 256\ns_cbranch_scc1 L_exit")
    if o.stamps or o.dspan:
        a("s_memtime s[88:89]" if o.cyc else "s_memrealtime s[88:89]")
    a("s_load_dwordx16 s[16:31], s[0:1], 0")
    a("s_load_dwordx8 s[32:39], s[0:1], 64")
    a("s_load_dwordx4 s[40:43], s[0:1], 96")
    a("s_load_dwordx2 s[44:45], s[0:1], 112")
    if o.pfentry:
        a(f"s_getpc_b64 s[{sT0}:{sT1}]")
        a("L_pc:")
        a(f"s_bfe_u32 s{sT2}, s2, {(3<<16)|3}\ns_mul_i32 s{sT2}, s{sT2}, 24\nv_cmp_gt_u32 vcc, 16, v0\nv_add_u32 v2, s{sT2}, v0\ns_nop 0")
        a(f"v_cndmask_b32 v2, v2, v0, vcc\nv_lshlrev_b32 v2, 7, v2\nv_min_u32 v2, L_exit-L_pc, v2\nv_cmp_gt_u32 vcc, 40, v0\ns_and_saveexec_b64 s[{sT2}:{sT3}], vcc\ns_cbranch_execz L_pd")
        a(f"global_load_dword v17, v2, s[{sT0}:{sT1}]")
        a(f"L_pd:\ns_mov_b64 exec, s[{sT2}:{sT3}]")
    a("v_lshrrev_b32 v1, 6, v0")
    a(f"s_and_b32 s{sG}, s2, 7")
    a(f"v_readfirstlane_b32 s{sWV}, v1")
    a("v_and_b32 v0, 63, v0")
    a(f"s_lshr_b32 s{sR}, s2, 3\ns_lshr_b32 s{sH}, s{sG}, 2\ns_and_b32 s{sGQ}, s{sG}, 3")
    a(f"s_cmp_eq_u32 s{sWV}, {W_S}\ns_cbranch_scc1 L_Si")
    if o.cfirst: a(f"s_sub_u32 s46, s{sWV}, 6\ns_cmp_lt_u32 s46, 4\ns_cbranch_scc1 L_Ci")
    else: a(f"s_cmp_ge_u32 s{sWV}, {W_C}\ns_cbranch_scc1 L_Ci")

    vIN, vK3, vWo, vDo, vG, vL = 1, 2, 3, 4, 5, 6
    vFL, vONE, vX, vO1, vO2, vT, vF, vL4, v128, vRD = 7, 8, 9, 10, 11, 12, 14, 15, 124, 126
    WR, DR, KR, VR, QR = 16, 24, 26, 40, 48
    WF, KF, KS, PKU = 56, 72, 100, 116
    if o.cfirst: a(f"s_cmp_gt_u32 s{sWV}, 9\ns_cselect_b32 s{sT0}, 4, 0\ns_sub_u32 s{sE}, s{sWV}, s{sT0}")
    a(f"s_sub_u32 s{sE}, s{sE if o.cfirst else sWV}, 2\ns_cselect_b32 s{sE}, 8, s{sE}\ns_and_b32 s{sT0}, s{sE}, 4\ns_cselect_b64 vcc, -1, 0")
    a(f"s_lshl_b32 s{sT1}, s{sR}, 1\ns_and_b32 s{sT2}, s{sE}, 4\ns_lshl_b32 s{sT2}, s{sT2}, 4\ns_add_u32 s{sT1}, s{sT1}, s{sT2}")
    a(f"s_bfe_u32 s{sT2}, s{sE}, {(1<<16)|1}\ns_add_u32 s{sT1}, s{sT1}, s{sT2}")
    a(f"s_lshl_b32 s{sT0}, s{sGQ}, 1\ns_and_b32 s{sT3}, s{sE}, 1\ns_add_u32 s{sT0}, s{sT0}, s{sT3}")
    a(f"s_lshl_b32 s{sT2}, s{sGQ}, 5\ns_add_u32 s{sT2}, s{sT2}, s{sR}")
    a(f"v_lshrrev_b32 v{vK3}, 3, v0\nv_mul_u32_u24 v{vK3}, {RS_IN}, v{vK3}\nv_and_b32 v{vWo}, 7, v0\nv_lshl_add_u32 v{vK3}, v{vWo}, 4, v{vK3}")
    a(f"s_cmp_eq_u32 s{sE}, 8")
    a(f"s_cselect_b32 s46, 8, s{sT0}\ns_cselect_b32 s47, s{sT2}, s{sT1}")
    a(f"s_mul_i32 s{sT0}, s47, {16*RS_IN}\ns_lshl_b32 s{sT1}, s46, 7\ns_add_u32 s{sSIG}, s{sT0}, s{sT1}")
    a(f"v_add_u32 v{vIN}, s{sSIG}, v{vK3}")
    a(f"s_lshl_b32 s{sT2}, s46, 9")
    a(f"v_lshl_add_u32 v{vWo}, v0, 4, s{sT2}\nv_lshl_add_u32 v{vDo}, v0, 4, s{sT1}")
    a(f"v_add_u32 v{vK3}, {(-3*RS_IN) & 0xffffffff}, v{vIN}")
    G.srd(sK, None, TENS); G.srd(sV, None, TENS); G.srd(sW, None, 4608)
    a(f"s_mul_i32 s{sSTG}, s{sE}, {STG_SZ}\ns_add_u32 s{sSTG}, s{sSTG}, {U0}\ns_cmp_eq_u32 s{sE}, 8\ns_cselect_b32 s{sSTG}, {STGX}, s{sSTG}\ns_add_u32 s{sT0}, s{sSTG}, 1024")
    a(f"s_cmp_eq_u32 s{sH}, 0")
    a("s_waitcnt lgkmcnt(0)")
    G.stamp(-1, 1)
    a(f"s_cselect_b64 s[{sK}:{sK+1}], s[18:19], s[30:31]")
    a(f"s_cbranch_vccnz L_E2i")
    a(f"s_mov_b32 m0, s{sSTG}\ns_mov_b32 s{sT1}, {5*RS_IN}")
    a(f"buffer_load_dwordx4 v{vK3}, s[{sK}:{sK+3}], 0 offen {o.k_nt} lds")
    a(f"s_mov_b32 m0, s{sT0}\ns_cselect_b64 s[{sV}:{sV+1}], s[20:21], s[32:33]")
    a(f"buffer_load_dwordx4 v{vIN}, s[{sK}:{sK+3}], s{sT1} offen {o.k_nt} lds")
    a(f"s_cselect_b64 s[{sW}:{sW+1}], s[22:23], s[34:35]")
    a(f"s_cselect_b64 s[{sD}:{sD+1}], s[26:27], s[38:39]")
    a(f"s_cselect_b64 s[{sQ}:{sQ+1}], s[16:17], s[28:29]")
    a(f"s_cselect_b64 s[{sHH}:{sHH+1}], s[24:25], s[36:37]")
    if o.barpos == 2: a("s_barrier")
    a(f"s_add_u32 s{sT0}, s{sSTG}, 2048\ns_mov_b32 m0, s{sT0}\ns_mov_b32 s{sT1}, {13*RS_IN}\ns_mov_b64 exec, 0xffffff\ns_add_u32 s{sT0}, s{sSTG}, 4480")
    a(f"buffer_load_dwordx4 v{vIN}, s[{sK}:{sK+3}], s{sT1} offen {o.k_nt} lds")
    a(f"s_mov_b32 m0, s{sT0}\ns_mov_b32 exec_lo, -1\ns_add_u32 s{sT0}, s{sSTG}, 4992")
    a(f"buffer_load_dwordx4 v{vWo}, s[{sW}:{sW+3}], 0 offen lds")
    G.srd(sD, None, 1152)
    a(f"s_mov_b32 m0, s{sT0}\ns_mov_b32 exec_lo, 0xff\ns_add_u32 s{sT0}, s{sSTG}, 2432")
    a(f"buffer_load_dwordx4 v{vDo}, s[{sD}:{sD+3}], 0 offen lds")
    a(f"s_mov_b32 m0, s{sT0}\ns_mov_b64 exec, -1\ns_add_u32 s{sT0}, s{sSTG}, {2432+1024}")
    a(f"buffer_load_dwordx4 v{vIN}, s[{sV}:{sV+3}], 0 offen {nt} lds")
    a(f"s_mov_b32 m0, s{sT0}\ns_mov_b32 s{sT1}, {8*RS_IN}")
    a(f"buffer_load_dwordx4 v{vIN}, s[{sV}:{sV+3}], s{sT1} offen {nt} lds")
    G.stamp(-1, 2)
    if o.barpos != 2: a("s_barrier")
    a("s_branch L_Em")
    a("L_E2i:")
    a(f"s_cselect_b64 s[{sV}:{sV+1}], s[20:21], s[32:33]")
    a(f"s_cselect_b64 s[{sW}:{sW+1}], s[22:23], s[34:35]")
    a(f"s_cselect_b64 s[{sD}:{sD+1}], s[26:27], s[38:39]")
    a(f"s_cselect_b64 s[{sQ}:{sQ+1}], s[16:17], s[28:29]")
    a(f"s_cselect_b64 s[{sHH}:{sHH+1}], s[24:25], s[36:37]")
    a("s_barrier\ns_branch L_Em")

    cHA, cHB, cHB0, cPF, cZ, cU = 48, 49, 50, 51, 56, 60
    a("L_Ci:")
    if o.ebar2: a("s_barrier")
    if not o.cfirst: a(f"s_sub_u32 s46, s{sWV}, {W_C}")
    chan_of(G, 46, sT0)
    a(f"s_lshl_b32 s{sT0}, s{sT0}, 12")
    a(f"v_lshl_add_u32 v{cHA}, v0, 4, s{sT0}")
    inbox_of(G, 47, sSIG)
    G.srd(sHH, None, TENS)
    if o.prefill:
        G.srd(sOUT, None, OUTB)
        a(f"s_lshl_b32 s{sT0}, s46, {5 if o.u2early else 4}\nv_lshrrev_b32 v{cPF}, {1 if o.u2early else 2}, v0\nv_add_u32 v{cPF}, s{sT0}, v{cPF}")
        blk_addr(G, cPF, cHB, sSIG, RS_OUT, 47)
    a(f"s_cmp_eq_u32 s{sH}, 0")
    a("s_waitcnt lgkmcnt(0)" + ("" if o.ebar2 else "\ns_barrier"))
    G.stamp(-1, 1)
    a(f"s_cselect_b64 s[{sHH}:{sHH+1}], s[24:25], s[36:37]")
    xa_loads(G, 64, cHA, 0)
    xa_loads(G, 72, cHA, 1)
    if o.h2early:
        xa_loads(G, 112, cHA, 2)
        xa_loads(G, 120, cHA, 3)
    if o.prefill:
        a(f"s_mov_b64 s[{sOUT}:{sOUT+1}], s[{pOUT}:{pOUT+1}]")
        a(f"buffer_load_dword v{cPF}, v{cPF}, s[{sOUT}:{sOUT+3}], 0 offen {o.pf_nt}")
    G.stamp(-1, 2)
    a("s_branch L_Cm")

    sFL, sONE, s128, sT_, sF_, sL4, sZ, sHA, sHB, sHB0, sU, sU1, sP = 1, 2, 3, 4, 6, 7, 8, 12, 13, 14, 15, 16, 17
    a("L_Si:")
    if o.prefetch_code and not o.pfentry:
        a(f"s_getpc_b64 s[{sT0}:{sT1}]")
        a("L_pc:")
        a(f"s_and_b32 s{sT2}, s{sR}, 7\ns_mul_i32 s{sT2}, s{sT2}, 3072\nv_min_u32 v{sP}, 23, v0\nv_lshl_add_u32 v{sP}, v{sP}, 7, s{sT2}\nv_min_u32 v{sP}, L_exit-L_pc, v{sP}")
        a(f"global_load_dword v{sP}, v{sP}, s[{sT0}:{sT1}]")
    for i in range(4): a(f"v_mov_b32 v{sZ+i}, 0")
    a(f"v_lshlrev_b32 v{sL4}, 2, v0\nv_min_u32 v{sT_}, 60, v{sL4}\nv_add_u32 v{sT_}, {FL0}, v{sT_}\nds_write_b32 v{sT_}, v{sZ}")
    a(f"v_lshlrev_b32 v{s128}, 7, v0")
    a("s_waitcnt lgkmcnt(0)\ns_barrier")
    G.stamp(-1, 1)
    a(f"s_cmp_eq_u32 s{sH}, 0")
    a(f"s_cselect_b64 s[{sHH}:{sHH+1}], s[24:25], s[36:37]")
    a(f"s_cselect_b64 s[{sQ}:{sQ+1}], s[16:17], s[28:29]")
    ctl_srd(G)
    a(f"s_load_dwordx2 s[{sX1+1}:{sX1+2}], s[{sCT}:{sCT+1}], 0")
    a(f"buffer_load_dword v{sHB0}, v{s128}, s[{sCT}:{sCT+3}], s{sGB} offen")
    if o.udata: a(f"v_and_b32 v23, 0x780, v{s128}\nv_add_u32 v23, {L_S}, v23\nbuffer_load_dword v23, v23, s[{sCT}:{sCT+3}], s{sGB} offen")
    if o.pfux:
        a(f"s_add_u32 s{sK}, s{pWS}, {XU_OFF}\ns_addc_u32 s{sK+1}, s{pWS+1}, 0")
        G.srd(sK, None, 3 << 20)
        a(f"s_lshl_b32 s{sT0}, s{sGQ}, 5\ns_add_u32 s{sT0}, s{sT0}, s{sR}\ns_lshl_b32 s{sT0}, s{sT0}, 12\ns_lshl_b32 s{sT1}, s{sH}, {HSH}\ns_add_u32 s{sT0}, s{sT0}, s{sT1}")
        a(f"v_lshlrev_b32 v22, 6, v0\nbuffer_load_dword v22, v22, s[{sK}:{sK+3}], s{sT0} offen")
    G.stamp(-1, 2)
    if o.iso:
        a(f"v_mov_b32 v{sFL}, {FL0}\nv_mov_b32 v{sT_}, 2\nv_mov_b32 v{sT_+1}, 2\nds_write_b64 v{sFL}, v[{sT_}:{sT_+1}] offset:{F_N}\ns_waitcnt lgkmcnt(0)\ns_endpgm")
    a(f"v_mov_b32 v{sFL}, {FL0}\nv_mov_b32 v{sONE}, 1")
    a("s_waitcnt lgkmcnt(0)")
    a(f"s_and_b32 s{sN}, s{sX2}, 0xfffffff0\ns_add_u32 s{sN}, s{sN}, 0x9e3779b0\nv_mov_b32 v{sT_}, s{sN}")
    a(f"s_add_u32 s{sTAG}, s{sX3}, 1\ns_and_b32 s{sTAG}, s{sTAG}, 0xffff\ns_add_u32 s{sT0}, s{sTAG}, 0x10000\nv_mov_b32 v{sT_+1}, s{sT0}")
    a(f"ds_write_b64 v{sFL}, v[{sT_}:{sT_+1}] offset:{F_N}")
    G.stamp(1, -1)
    a(f"v_lshlrev_b32 v{sHA}, 4, v0")
    u_pad(G, 20, sZ, U0 + 4 * U_SZ)
    a(f"v_add_u32 v{sU1}, {XA0 + 4*XA_SZ}, v{sHA}")
    for p in range(4):
        a(f"ds_write_b128 v{sU1}, v[{sZ}:{sZ+3}] offset:{p*PLANE}")
    G.srd(sHH, None, TENS)
    misc_srd(G)
    a(f"s_add_u32 s{sK}, s{pWS}, {XU_OFF}\ns_addc_u32 s{sK+1}, s{pWS+1}, 0")
    G.srd(sK, None, 3 << 20)
    G.srd(sOUT, pOUT, OUTB)
    a(f"s_getreg_b32 s{sF}, hwreg(HW_REG_XCC_ID, 0, 4)\ns_add_u32 s{sF}, s{sF}, s{sN}\ns_add_u32 s{sF}, s{sF}, 1\nv_mov_b32 v{sF_}, s{sF}")
    xbox_of(G, sX3, sX2, sLR)
    a(f"s_add_u32 s{sT0}, s{sX2}, 512\ns_lshl_b32 s{sT0}, s{sT0}, 12")
    a(f"v_add_u32 v{sHA}, s{sT0}, v{sHA}")
    for q in range(4):
        xa_loads(G, 32 + 8 * q, sHA, q)
    if o.w1only: finish(G)
    a(f"v_lshrrev_b32 v{sHB}, 2, v0\nv_sub_u32 v{sHB}, 15, v{sHB}")
    blk_addr(G, sHB, sT_, sLR, 256, sX3)
    a(f"v_and_b32 v{sT_}, 3, v0\nv_lshl_add_u32 v{sHB}, v{sT_}, 4, v{sHB}")
    a(f"v_lshlrev_b32 v18, 3, v0\nv_add_u32 v18, {U0 + 4*U_SZ}, v18\ns_mov_b32 s47, 0x07060302\ns_setprio {o.sprio}")
    for q in range(4):
        a(f"s_waitcnt vmcnt({6-2*q})")
        xa_build(G, 32 + 8 * q, 96 + 12 * (q & 1), sU1, 384 + 1024 * q, q)
    G.stamp(-1, 3)
    poll_lds(G, sFL, C_GO, 4, sT_)
    G.stamp(2, 4, 1)
    def after():
        lds_count(G, sFL, sONE, C_GO)
        u_pad_write(G, 20, sZ)
        return 0
    if "s" in o.x_skip:
        lds_count(G, sFL, sONE, C_GO); a("s_endpgm")
    tagged_loads(G, 8, 96, sHB, sK, lambda k: ((7 - k) * 16 * 4096, 0), sT_, after)
    for k in range(8):
        a(f"v_perm_b32 v{64+2*k}, v{97+4*k}, v{96+4*k}, s47\nv_perm_b32 v{65+2*k}, v{99+4*k}, v{98+4*k}, s47")
        a(f"ds_write_b64 v18, v[{64+2*k}:{65+2*k}] offset:{512*k}\nds_write_b64 v18, v[{64+2*k}:{65+2*k}] offset:{512*k + UP1 - 8}")
    a("s_waitcnt lgkmcnt(0)")
    a(f"ds_write_b32 v{sFL}, v{sONE} offset:{F_X}")
    G.stamp(3, 6, 3)
    D = G.lab("epo")
    a(f"s_or_b32 s{sT0}, s{sGQ}, s{sR}\ns_cbranch_scc1 {D}")
    a(f"s_mov_b64 exec, 1\nv_mov_b32 v{sT_}, s{sN}\nv_mov_b32 v{sT_+1}, s{sTAG}\nbuffer_store_dwordx2 v[{sT_}:{sT_+1}], off, s[{sCT}:{sCT+3}], 0\ns_mov_b64 exec, -1")
    a(f"{D}:")
    if o.sqs:
        poll_lds(G, sFL, C_U1, 1, sT_, sleep=3)
        for e in range(o.sqs):
            a(f"s_lshl_b32 s{sT0}, s{sR}, 1\ns_add_u32 s{sT0}, s{sT0}, {e >> 1}\ns_mul_i32 s{sT0}, s{sT0}, {16*RS_IN}\ns_lshl_b32 s{sT1}, s{sGQ}, 8\ns_add_u32 s{sT0}, s{sT0}, s{sT1}\ns_add_u32 s{sT0}, s{sT0}, {128*(e & 1)}")
            sq_prefetch(G, sT0)
        a("s_waitcnt lgkmcnt(0)")
    finish(G)

    a("L_Em:")
    if o.w1only:
        a("s_waitcnt vmcnt(2)"); G.stamp(1, 4); a("s_waitcnt vmcnt(0)"); finish(G)
    if o.iso: a("s_waitcnt vmcnt(0)\ns_endpgm")
    a(f"s_setprio 1\ns_cmp_eq_u32 s{sE}, 8\ns_cbranch_scc0 L_Eh\ns_setprio 3")
    a("L_Eh:")
    G.stamp(-1, 3)
    vB1, vB2, vB3, vB4 = 42, 43, 44, 45
    vA1, vA2, vA3, vA4, vA5 = vK3, vWo, vDo, 125, 127
    QF, DF, YR, YF = KF, WF, 16, 24
    LX, LP, L2, LW, LZ = G.lab("ex"), G.lab("ep"), G.lab("e2"), G.lab("ew"), G.lab("ez")
    a(f"v_and_b32 v{vG}, 15, v0\nv_lshrrev_b32 v{vL}, 4, v0")
    a(f"v_mul_u32_u24 v{vIN}, {4*RS_IN}, v{vL}\nv_lshl_add_u32 v{vIN}, v{vG}, 3, v{vIN}\nv_add_u32 v{vIN}, s{sSIG}, v{vIN}")
    E2a = G.lab("e2a")
    a(f"s_cbranch_vccz {E2a}")
    a(f"s_sub_u32 s{sSTG}, s{sE}, 4\ns_mul_i32 s{sSTG}, s{sSTG}, {2432 if o.konly else 4480}\ns_add_u32 s{sSTG}, s{sSTG}, {YB0 if o.konly else SCR0}")
    G.srd(sD, None, 1152)
    a(f"s_lshl_b32 s{sT0}, s46, 9\nv_lshl_add_u32 v{vWo}, v{vG}, 5, s{sT0}\ns_lshl_b32 s{sT0}, s46, 7\nv_lshl_add_u32 v{vDo}, v{vG}, 3, s{sT0}")
    a(f"buffer_load_dwordx4 v[{WR}:{WR+3}], v{vWo}, s[{sW}:{sW+3}], 0 offen\nbuffer_load_dwordx4 v[{WR+4}:{WR+7}], v{vWo}, s[{sW}:{sW+3}], 0 offen offset:16")
    a(f"buffer_load_dwordx2 v[{DR}:{DR+1}], v{vDo}, s[{sD}:{sD+3}], 0 offen")
    a(f"{E2a}:")
    a(f"v_lshlrev_b32 v{vRD}, 9, v{vL}\nv_lshl_add_u32 v{vRD}, v{vG}, 3, v{vRD}\nv_add_u32 v{vRD}, s{sSTG}, v{vRD}")
    a(f"v_lshl_add_u32 v{vWo}, v{vG}, 5, s{sSTG}\nv_lshl_add_u32 v{vDo}, v{vG}, 3, s{sSTG}")
    G.srd(sQ, None, TENS); G.srd(sHH, None, TENS)
    G.srd(sOUT, pOUT, OUTB)
    ctl_srd(G)
    misc_srd(G)
    a(f"s_mov_b32 s{sLC}, s46\ns_lshl_b32 s{sROW0}, s47, 4")
    a(f"s_lshl_b32 s{sT1}, s{sLC}, 7\ns_mul_i32 s{sCOL}, s{sH}, 1152\ns_add_u32 s{sCOL}, s{sCOL}, s{sT1}")
    a(f"s_mul_i32 s{sT0}, s{sROW0}, {RS_OUT}\ns_add_u32 s{sT0}, s{sT0}, s{sCOL}")
    a(f"v_mul_u32_u24 v{vO1}, {4*RS_OUT}, v{vL}\nv_lshl_add_u32 v{vO1}, v{vG}, 3, v{vO1}\nv_add_u32 v{vO1}, s{sT0}, v{vO1}")
    a(f"v_add_u32 v{vO2}, {2*RS_OUT}, v{vO1}")
    a(f"s_lshl_b32 s{sT1}, s47, 12\ns_lshl_b32 s{sT2}, s{sH}, {HSH}\ns_add_u32 s{sT1}, s{sT1}, s{sT2}\ns_mov_b32 s{sT2}, {RS_OUT}")
    a(f"s_cmp_eq_u32 s{sE}, 8\ns_cselect_b32 s{sT0}, s{sT1}, s{sT0}\ns_cselect_b32 s{sT1}, 256, s{sT2}\ns_cselect_b32 s{sT2}, 6, 5")
    a(f"v_and_b32 v{vX}, 12, v{vG}\nv_add3_u32 v{vX}, v{vX}, v{vL}, s47\nv_and_b32 v{vX}, 15, v{vX}\nv_mul_u32_u24 v{vX}, s{sT1}, v{vX}")
    a(f"v_and_b32 v{vT}, 3, v{vG}\nv_lshlrev_b32 v{vT}, s{sT2}, v{vT}\nv_add3_u32 v{vX}, v{vX}, v{vT}, s{sT0}")
    a(f"v_mov_b32 v{vFL}, {FL0}\nv_mov_b32 v{vONE}, 1\nv_lshlrev_b32 v{vL4}, 3, v0\nv_lshlrev_b32 v{v128}, 9, v0")
    a(f"s_and_b32 s{sX3}, s{sE}, 3\ns_lshl_b32 s{sEV}, s{sR}, 2\ns_add_u32 s{sEV}, s{sEV}, s{sX3}\ns_lshl_b32 s{sEV}, s{sEV}, 2\ns_add_u32 s{sEV}, s{sEV}, s{sGB}")
    a(f"s_mov_b32 s47, 0xffff0000")
    if o.k2early: a(f"s_cbranch_vccnz {L2}")
    get_nonce(G, vFL, vT, vF)
    if not o.k2early: a(f"s_cbranch_vccnz {L2}")

    def unpack_w():
        for c in range(4):
            for j in range(4):
                src = WR + 2 * c + (j >> 1)
                a(f"v_lshlrev_b32 v{WF+4*j+c}, 16, v{src}" if j % 2 == 0 else f"v_and_b32 v{WF+4*j+c}, s47, v{src}")
    def first_phase(packed, wait_v, part=3):
        for i in range(7 if part & 1 else 0):
            for d in range(2):
                a(f"v_lshlrev_b32 v{KF+4*i+2*d}, 16, v{KR+2*i+d}")
                a(f"v_and_b32 v{KF+4*i+2*d+1}, s47, v{KR+2*i+d}")
        for j in ((3, 2, 1, 0) if part & 1 else ()):
            if j == 0: wait_v(0)
            for r in range(4):
                for d in range(2):
                    ks, w, k = KS + 4 * r + 2 * d, WF + 4 * j + 2 * d, KF + 4 * (3 + r - j) + 2 * d
                    if j == 3: pk(G, "mul", ks, k, w, force=packed)
                    else: pk(G, "fma", ks, k, w, ks, force=packed)
        if not part & 2: return
        wait_v(1)
        for r in range(4):
            for d in range(2):
                a(f"v_lshlrev_b32 v{KF+4*r+2*d}, 16, v{VR+2*r+d}")
                a(f"v_and_b32 v{KF+4*r+2*d+1}, s47, v{VR+2*r+d}")
        for r in range(4):
            for d in range(2):
                pk(G, "mul", KS + 4 * r + 2 * d, KS + 4 * r + 2 * d, KF + 4 * r + 2 * d, force=packed)
        regs = [PKU + 2 * (3 - j) for j in range(4)]
        for c in range(4):
            a(f"v_cvt_pk_bf16_f32 v{regs[c]}, v{KS+12+c}, v{KS+8+c}")
            a(f"v_cvt_pk_bf16_f32 v{regs[c]+1}, v{KS+4+c}, v{KS+c}")
        transpose4(G, regs)
    def skip_term(packed=True, part=3):
        for d in range(2 if part & 1 else 0):
            a(f"v_lshlrev_b32 v{DF+2*d}, 16, v{DR+d}\nv_and_b32 v{DF+2*d+1}, s47, v{DR+d}")
        for r in range(4 if part & 2 else 0):
            for d in range(2):
                pk(G, "mul", KS + 4 * r + 2 * d, KS + 4 * r + 2 * d, DF + 2 * d, force=packed)
    def qloads():
        for i in range(4):
            a(f"buffer_load_dwordx2 v[{QR+2*i}:{QR+2*i+1}], v{vIN}, s[{sQ}:{sQ+3}], 0 offen offset:{i*RS_IN} {nt}")
    def gate(nyoung):
        a(f"s_setprio {o.eprio}\ns_waitcnt vmcnt({nyoung})")
        G.stamp(1, tl=1)
        for r in range(4):
            for d in range(2):
                a(f"v_lshlrev_b32 v{QF+4*r+2*d}, 16, v{QR+2*r+d}\nv_and_b32 v{QF+4*r+2*d+1}, s47, v{QR+2*r+d}")
        for r in range(4):
            for d in range(2):
                pk(G, "mul", KS + 4 * r + 2 * d, KS + 4 * r + 2 * d, QF + 4 * r + 2 * d)
        G.stamp(4)
    def mode_stores(lines):
        A, B = G.lab("ms"), G.lab("md")
        a(f"s_cmp_eq_u32 s{sM}, 0\ns_cbranch_scc0 {A}")
        a("\n".join(lines))
        a(f"{B}:")
        def cold():
            a(f"{A}:")
            a("\n".join(l + " sc1" for l in lines))
            a(f"s_branch {B}")
        G.cold.append(cold)
    ustores = [f"buffer_store_dwordx4 v[{PKU}:{PKU+3}], v{vX}, s[{sXU}:{sXU+3}], 0 offen",
               f"buffer_store_dwordx4 v[{PKU+4}:{PKU+7}], v{vX}, s[{sXU}:{sXU+3}], 0 offen offset:16"]
    def last_phase(packed, line, cnt, mid_label=None):
        held = []
        a(f"s_lshl_b32 s{sT0}, s{sX3}, 9\ns_add_u32 s{sX2}, s{sT0}, s{sGB}\ns_add_u32 s{sX2}, s{sX2}, {line}")
        LG = G.lab("yg")
        if (packed or o.y1data) and o.ydata:
            L, F, C = G.lab("yl"), G.lab("yf"), G.lab("yc")
            a(f"s_cmp_eq_u32 s{sM}, 0\ns_cbranch_scc0 {F}")
            if packed: poll_lds(G, vFL, C_Y2, 4, vT, sleep=1)
            G.stamp(-1, tl=2)
            a(f"s_mov_b32 s{sCNT}, 0")
            a(f"{L}:")
            a(f"buffer_load_dwordx4 v[{YR}:{YR+3}], v{vX}, s[{sXY}:{sXY+3}], 0 offen sc1")
            a(f"buffer_load_dwordx4 v[{YR+4}:{YR+7}], v{vX}, s[{sXY}:{sXY+3}], 0 offen offset:16 sc1")
            a(f"s_add_u32 s{sCNT}, s{sCNT}, 1\ns_waitcnt vmcnt(1)")
            for g in range(4):
                if g == 2: a("s_waitcnt vmcnt(0)")
                a(f"v_xor_b32 v{YF+g}, v{YR+2*g}, v{PKU+2*g}\nv_bitop3_b32 v{YF+g}, v{YF+g}, v{YR+2*g+1}, v{PKU+2*g+1} bitop3:0xf6")
            a(f"v_min3_u32 v{YF}, v{YF}, v{YF+1}, v{YF+2}\nv_min_u32 v{YF}, v{YF}, v{YF+3}\nv_cmp_eq_u32 vcc, 0, v{YF}")
            a(f"s_cbranch_vccz {LG}")
            if o.ysleep: a(f"s_sleep {o.ysleep}")
            a(f"s_cmp_lt_u32 s{sCNT}, 6\ns_cbranch_scc1 {L}")
            a(f"{F}:")
        poll_line(G, vL4, sX2, 2, vT, (f"s{sDGO}", cnt), 128, sleep=(o.sleep if packed else 2))
        G.stamp(5)
        a(f"buffer_load_dwordx4 v[{YR}:{YR+3}], v{vX}, s[{sXY}:{sXY+3}], 0 offen sc1")
        a(f"buffer_load_dwordx4 v[{YR+4}:{YR+7}], v{vX}, s[{sXY}:{sXY+3}], 0 offen offset:16 sc1")
        a("s_waitcnt vmcnt(0)")
        if packed and o.dry: a("s_mov_b64 vcc, 0")
        a(f"{LG}:")
        if packed and o.defer: lds_count(G, vFL, vONE, C_R)
        G.stamp(6, tl=3)
        if packed and o.share3:
            a(f"s_branch {LZ}1")
            G.flush_cold()
            return
        if not packed: a(f"{LZ}1:")
        if packed and o.dry: a(f"{LZ}d:")
        if o.tl: a(f"s_mul_i32 s{STAMP_REGS[5]}, s{sCNT}, 100\ns_add_u32 s{STAMP_REGS[5]}, s{STAMP_REGS[5]}, s88")
        transpose4(G, [YR + 2 * j for j in range(4)])
        if mid_label: a(f"{mid_label}:")
        for c in range(4):
            for d in range(2):
                a(f"v_lshlrev_b32 v{YF+8*d+c}, 16, v{YR+2*c+d}\nv_and_b32 v{YF+8*d+4+c}, s47, v{YR+2*c+d}")
        for r in range(4):
            for d in range(2):
                ks, q, y = KS + 4 * r + 2 * d, QF + 4 * r + 2 * d, YF + 4 * r + 2 * d
                pk(G, "fma", y, q, y, ks, force=packed)
            for d in range(2):
                y = YF + 4 * r + 2 * d
                a(f"v_cvt_pk_bf16_f32 v{YR+2*r+d}, v{y}, v{y+1}")
            st = f"buffer_store_dwordx2 v[{YR+2*r}:{YR+2*r+1}], v{vO1 if r < 2 else vO2}, s[{sOUT}:{sOUT+3}], 0 offen offset:{(r&1)*RS_OUT} {o.out_flag}"
            if packed and o.dry: held.append(st)
            elif packed or not o.defer: a(st)
            else: held.append(st)
        G.stamp(-1, tl=4)
        if packed and o.dry:
            a(f"s_cbranch_vccnz {LZ}r")
            a("\n".join(held)); held = []
        if held:
            poll_lds(G, vFL, C_R, 4, vT, sleep=1)
            a("\n".join(held))
        finish(G)

    a("s_waitcnt vmcnt(2)")
    G.stamp(-1, 4)
    a(f"ds_read_b128 v[{WR}:{WR+3}], v{vWo} offset:4480\nds_read_b128 v[{WR+4}:{WR+7}], v{vWo} offset:4496")
    for i in range(7):
        a(f"ds_read_b64 v[{KR+2*i}:{KR+2*i+1}], v{vRD} offset:{128*i}")
    a(f"ds_read_b64 v[{DR}:{DR+1}], v{vDo} offset:4992")
    a("s_waitcnt lgkmcnt(8)")
    unpack_w()
    a("s_waitcnt lgkmcnt(0)")
    def wait_v(k):
        if k == 0:
            a("s_waitcnt vmcnt(0)")
            G.stamp(-1, 5)
            for i in range(4):
                a(f"ds_read_b64 v[{VR+2*i}:{VR+2*i+1}], v{vRD} offset:{2432 + 128*i}")
        else:
            a("s_waitcnt lgkmcnt(0)")
    first_phase(True, wait_v)
    a(f"s_cmp_eq_u32 s{sE}, 8\ns_cbranch_scc1 {LX}")
    a("\n".join(ustores))
    skip_term()
    a(f"{LP}:")
    a("s_waitcnt vmcnt(0)")
    signal(G, vF, v128, sEV, L_U1, 2, 4, YR)
    if o.uxlate == 1: lds_count(G, vFL, vONE, C_R)
    G.stamp(3, 6)
    chan_of(G, sE, sT0)
    a(f"s_lshl_b32 s{sT0}, s{sT0}, 12\nv_lshl_add_u32 v{vA3}, v0, 4, s{sT0}")
    a(f"s_mul_i32 s{sT0}, s{sE}, {XA_SZ}\nv_lshl_add_u32 v{vRD}, v0, 4, s{sT0}")
    inbox_of(G, sX1, sX2)
    for k in range(2):
        a(f"v_lshrrev_b32 v{vA1 if k == 0 else vA2}, 3, v0" + (f"\nv_add_u32 v{vA2}, 8, v{vA2}" if k else ""))
        blk_addr(G, vA1 if k == 0 else vA2, vT, sX2, RS_OUT, sX1)
    a(f"v_and_b32 v{vT}, 7, v0\nv_lshl_add_u32 v{vA1}, v{vT}, 4, v{vA1}\nv_lshl_add_u32 v{vA2}, v{vT}, 4, v{vA2}")
    a(f"s_lshl_b32 s{sT0}, s{sE}, 4\ns_add_u32 s{sT0}, s{sT0}, 64\nv_lshrrev_b32 v{vB4}, 2, v0\nv_add_u32 v{vB4}, s{sT0}, v{vB4}")
    blk_addr(G, vB4, vT, sX2, RS_OUT, sX1)
    if o.coop2:
        uc_setup(G, vA4, vA5, 40, vT, sE, sX2, sX1, 1)
    else:
        a(f"s_lshl_b32 s{sT0}, s{sE}, 5\ns_add_u32 s{sX1}, s{sX1}, s{sT0}")
        u_src(G, vA4, vT, sX2, sX1)
        a(f"s_mul_i32 s{sT0}, s{sE}, {U_SZ}\ns_add_u32 s{sT0}, s{sT0}, {U0}\nv_lshl_add_u32 v{vL}, v0, 4, s{sT0}\nv_add_u32 v{vA5}, {UP1 - 8}, v{vL}")
    a(f"s_lshl_b32 s{sT0}, s{sE}, 11\ns_add_u32 s{sT0}, s{sT0}, {YB0}\nv_lshl_add_u32 v{vG}, v0, 4, s{sT0}\ns_mul_i32 s{sX1}, s{sE}, {TILE_STEP}")
    a(f"s_add_u32 s{sWMY}, s{pWS}, {XY_OFF}\ns_addc_u32 s{sWMY+1}, s{pWS+1}, 0")
    G.srd(sWMY, None, 3 << 20)
    a(f"s_lshl_b32 s{sT0}, s{sGQ}, 5\ns_add_u32 s{sT0}, s{sT0}, s{sR}\ns_lshr_b32 s{sT0}, s{sT0}, 1\ns_lshl_b32 s{sX4}, s{sH}, {HSH}")
    a(f"v_lshrrev_b32 v{vB1}, 3, v0\nv_add_u32 v{vT}, s{sT0}, v{vB1}\nv_and_b32 v{vT}, 7, v{vT}\ns_and_b32 s{sT0}, s{sT0}, 56\nv_or_b32 v{vT}, s{sT0}, v{vT}")
    a(f"v_lshl_add_u32 v{vB1}, v{vB1}, 6, v{vT}\nv_lshlrev_b32 v{vB1}, 7, v{vB1}\nv_and_b32 v{vT}, 7, v0\nv_lshl_add_u32 v{vB1}, v{vT}, 4, v{vB1}\nv_add_u32 v{vB1}, s{sX4}, v{vB1}")
    a(f"s_lshl_b32 s{sT0}, s{sX3}, 12\ns_add_u32 s{sT0}, s{sT0}, {SCR0}\nv_lshl_add_u32 v{vB2}, v0, 4, s{sT0}\nv_mov_b32 v{vB3}, s{sTAG}")
    a(f"s_mov_b32 s{sT0}, 0x7430\ns_mov_b32 s{sT1}, 0x6521\ns_and_b32 s{sT2}, s{sR}, 1\ns_cselect_b32 s{sT0}, s{sT1}, s{sT0}")
    a(f"s_lshl_b32 s{sT1}, s{sX3}, 2\ns_lshr_b32 s{sT0}, s{sT0}, s{sT1}\ns_and_b32 s{sT0}, s{sT0}, 7\ns_lshl_b32 s{sX4}, s{sT0}, 16")
    def scalar_prefill(first, n):
        inbox_of(G, sT0, sT1)
        if isinstance(first, int): a(f"s_add_u32 s{sT0}, s{sT0}, {first*16*RS_OUT}")
        else: a(f"s_mul_i32 s{sT2}, {first}, {16*RS_OUT}\ns_add_u32 s{sT0}, s{sT0}, s{sT2}")
        a(f"s_add_u32 s{sK}, s{pOUT}, s{sT0}\ns_addc_u32 s{sK+1}, s{pOUT+1}, 0\ns_add_u32 s{sK+2}, s{sK}, 64\ns_addc_u32 s{sK+3}, s{sK+1}, 0\ns_mov_b32 s{sT3}, 0")
        L = G.lab("sp")
        a(f"{L}:")
        for i in range(2):
            a(f"s_add_u32 s{sT2}, s{sT1}, s{sT3}\ns_and_b32 s{sT2}, s{sT2}, 15\ns_lshl4_add_u32 s{sT2}, s{sT3}, s{sT2}\ns_mul_i32 s{sV+2+i}, s{sT2}, {RS_OUT}\ns_add_u32 s{sT3}, s{sT3}, 1")
            a(f"s_load_dword s{sV}, s[{sK}:{sK+1}], s{sV+2+i}\ns_load_dword s{sV+1}, s[{sK+2}:{sK+3}], s{sV+2+i}")
        a(f"s_cmp_lt_u32 s{sT3}, {n}\ns_cbranch_scc1 {L}")
    if o.spf2 == 1:
        a(f"s_lshl_b32 s{sLR}, s{sE}, 4\ns_add_u32 s{sLR}, s{sLR}, 64")
        scalar_prefill(f"s{sLR}", 16)
    def hook(L):
        R = G.lab("rp")
        a(f"s_cmp_gt_u32 s{sX2}, s{sM}\ns_cbranch_scc1 {R}")
        def cold():
            a(f"{R}:")
            to_mode1(G, vF)
            a("\n".join(l + " sc1" for l in ustores))
            a(f"s_branch {LP}")
        G.cold.append(cold)
    poll_lds(G, vFL, C_GO, 9 if o.word == 0 else 5, vT, pair=sX2, hook=hook)
    if 0 < o.hgate < 5: poll_lds(G, vFL, C_U0, o.hgate, vT)
    if o.hgate >= 5: poll_lds(G, vFL, C_GO, 9 + o.hgate - 4, vT)
    if o.pfirst: a(f"buffer_load_dword v{vB4}, v{vB4}, s[{sOUT}:{sOUT+3}], 0 offen {o.pf_nt}")
    if not o.h2early:
        xa_loads(G, KR, vA3, 2)
        xa_loads(G, KR + 8, vA3, 3)
    if o.word:
        lds_count(G, vFL, vONE, C_GO)
        poll_lds(G, vFL, C_GO, 13, vT)
    if not o.pfirst and not o.spf2: a(f"buffer_load_dword v{vB4}, v{vB4}, s[{sOUT}:{sOUT+3}], 0 offen {o.pf_nt}")
    if o.udata:
        a(f"s_lshl_b32 s{sT0}, s{sE}, 9\ns_add_u32 s{sT0}, s{sT0}, s{sGB}\ns_add_u32 s{sT0}, s{sT0}, {L_S}")
        a(f"buffer_load_dwordx2 v[46:47], v{vL4}, s[{sCT}:{sCT+3}], s{sT0} offen sc1")
    assert not (o.udata and (o.pfyx or o.defer or o.h2early))
    if o.pfyx: a(f"buffer_load_dword v46, v{vB1}, s[{sWMY}:{sWMY+3}], s{sX4} offen")
    if o.q1w2: qloads()
    if o.qw2:
        lds_count(G, vFL, vONE, C_GO)
        poll_lds(G, vFL, C_GO, 13, vT)
        qloads()
    if "1" in o.x_skip: a("s_endpgm")
    G.stamp(-1, mid=1)
    a(f"s_setprio {o.hiprio}\ns_add_u32 s{sEV}, s{sEV}, {L_Y1}\ns_lshl_b32 s{sT0}, s{sE}, 9\ns_add_u32 s{sX2}, s{sT0}, s{sGB}\ns_add_u32 s{sX2}, s{sX2}, {L_U2}")
    if not o.h2early:
        ny = (0 if o.pfirst or o.spf2 else 1) + (1 if o.pfyx or o.udata else 0) + (4 if o.q1w2 or o.qw2 else 0)
        a(f"s_waitcnt vmcnt({2+ny})")
        xa_build(G, KR, WF, vRD, XA0 + 384 + 2048, 2, plain=True)
        a(f"s_waitcnt vmcnt({ny})")
        xa_build(G, KR + 8, KF, vRD, XA0 + 384 + 3072, 3, plain=True)
        a("s_waitcnt lgkmcnt(0)")
        lds_count(G, vFL, vONE, C_H)
    if not o.seq2: G.stamp(-1, mid=2)
    if o.udata:
        a(f"s_waitcnt vmcnt(0)\nv_xor_b32 v46, s{sF}, v46\nv_bitop3_b32 v46, v46, v47, s{sF} bitop3:0xf6\nv_cmp_ne_u32 vcc, 0, v46")
        a(f"s_cmp_eq_u64 vcc, 0\ns_cselect_b32 s{sLR}, 1, 0\ns_cmp_eq_u32 s{sM}, 0\ns_cselect_b32 s{sLR}, s{sLR}, 0")
    YX = KF
    yxstore = f"buffer_store_dwordx4 v[{YX}:{YX+3}], v{vB1}, s[{sWMY}:{sWMY+3}], s{sX4} offen sc1"
    def reduce():
        poll_lds(G, vFL, C_P, 4, vT, sleep=2)
        r = WF
        for i in range(4):
            a(f"ds_read_b128 v[{r+4*i}:{r+4*i+3}], v{vB2} offset:{1024*i}")
        a("s_waitcnt lgkmcnt(2)")
        for d in (0, 2): pk(G, "add", r + d, r + d, r + 4 + d)
        a("s_waitcnt lgkmcnt(0)")
        for d in (0, 2): pk(G, "add", r + 8 + d, r + 8 + d, r + 12 + d)
        for d in (0, 2): pk(G, "add", r + d, r + d, r + 8 + d)
        a(f"v_cvt_pk_bf16_f32 v{r+4}, v{r}, v{r+1}\nv_cvt_pk_bf16_f32 v{r+5}, v{r+2}, v{r+3}")
        for d in (0, 1):
            a(f"v_lshl_or_b32 v{YX+2*d}, v{r+4+d}, 16, v{vB3}\nv_and_or_b32 v{YX+2*d+1}, v{r+4+d}, s47, v{vB3}")
        G.stamp(-1, mid=3)
    def carry():
        if o.y1dir: return
        poll_lds(G, vFL, C_Y1, 4, vT, sleep=2)
        a(f"ds_read_b128 v[{YR}:{YR+3}], v{vG}\nds_read_b128 v[{YR+4}:{YR+7}], v{vG} offset:1024\ns_waitcnt lgkmcnt(0)")
        mode_stores([f"buffer_store_dwordx4 v[{YR}:{YR+3}], v{vA1}, s[{sXY}:{sXY+3}], s{sX1} offen",
                     f"buffer_store_dwordx4 v[{YR+4}:{YR+7}], v{vA2}, s[{sXY}:{sXY+3}], s{sX1} offen"])
        if o.seq2: G.stamp(-1, mid=2)
        a("s_waitcnt vmcnt(0)")
        signal(G, vF, v128, sEV, L_Y1, 2, 8, YR)
    def u2duty():
        LU = G.lab("ug")
        if o.udata:
            L, F = G.lab("ul"), G.lab("uf")
            a(f"s_cmp_eq_u32 s{sLR}, 0\ns_cbranch_scc1 {F}")
            poll_lds(G, vFL, C_R, 4, vT, sleep=1)
            a(f"s_mov_b32 s{sCNT}, 0")
            a(f"{L}:")
            uc_loads(G, 28, vA4, vA5)
            a(f"s_add_u32 s{sCNT}, s{sCNT}, 1\ns_waitcnt vmcnt(1)")
            a(f"v_bitop3_b32 v{vT}, v28, v29, v30 bitop3:0x80\nv_and_b32 v{vT}, v{vT}, v31\ns_waitcnt vmcnt(0)")
            a(f"v_bitop3_b32 v{vT+1}, v32, v33, v34 bitop3:0x80\nv_and_b32 v{vT+1}, v{vT+1}, v35\nv_max_u32 v{vT}, v{vT}, v{vT+1}\nv_cmp_eq_u32 vcc, -1, v{vT}")
            a(f"s_cbranch_vccz {LU}")
            a(f"s_sleep 1\ns_cmp_lt_u32 s{sCNT}, {o.utry}\ns_cbranch_scc1 {L}")
            a(f"{F}:")
        poll_line(G, vL4, sX2, 2, vT, (f"s{sDGO}", 16), 128, sleep=1)
        if o.coop2: uc_loads(G, 28, vA4, vA5)
        else: u_loads(G, KR + 2, vA4, (1, 0))
        a(f"{LU}:")
        G.stamp(-1, mid=4)
        a(f"s_waitcnt vmcnt(1)")
        if o.coop2: uc_write(G, 28, 40, 0)
        else: u_write(G, KR + 2, vL, vA5, 1)
        a(f"s_waitcnt vmcnt(0)")
        if o.coop2: uc_write(G, 32, 40, 1)
        else: u_write(G, KR + 6, vL, vA5, 0)
        if not o.qw2 and not o.redlate and not o.yxearly: a(yxstore)
        a("s_waitcnt lgkmcnt(0)")
        lds_count(G, vFL, vONE, F_U2)
        G.stamp(-1, mid=5, tl=2)
    def yxdone():
        a("s_waitcnt vmcnt(0)")
        lds_count(G, vFL, vONE, C_YX)
    if o.seq2:
        reduce(); carry(); u2duty(); qloads()
        a("s_waitcnt vmcnt(4)")
        lds_count(G, vFL, vONE, C_YX)
    elif o.qw2 and o.redlate: u2duty(); reduce(); a(yxstore); yxdone(); carry()
    elif o.qw2: reduce(); a(yxstore); yxdone(); u2duty(); carry()
    elif o.redlate:
        u2duty(); reduce(); a(yxstore)
        if o.qhold: lds_count(G, vFL, vONE, C_Y1)
        if not o.q1w2: qloads()
        a(f"s_waitcnt vmcnt({0 if o.q1w2 else 4})")
        lds_count(G, vFL, vONE, C_YX)
        carry()
    elif o.yxearly:
        reduce(); a(yxstore); u2duty()
        if not o.q1w2: qloads()
        carry()
    else:
        reduce(); u2duty()
        if not o.q1w2: qloads()
        a(f"s_waitcnt vmcnt({0 if o.q1w2 else 4})")
        lds_count(G, vFL, vONE, C_YX)
        carry()
    gate(0)
    G.stamp(-1, mid=6)
    last_phase(False, L_Y2 if o.merge else L_Y1, 12 if o.merge else 8, f"{LZ}2")

    a(f"{L2}:")
    a(f"v_lshrrev_b32 v{vA2}, 3, v0\nv_mul_u32_u24 v{vA2}, {RS_IN}, v{vA2}\nv_and_b32 v{vT}, 7, v0\nv_lshl_add_u32 v{vA2}, v{vT}, 4, v{vA2}\nv_add_u32 v{vA2}, s{sSIG}, v{vA2}")
    a(f"v_add_u32 v{vA1}, {(-3*RS_IN) & 0xffffffff}, v{vA2}")
    if o.udata:
        for k in range(4): a(f"v_mov_b32 v{PKU+k}, -1")
        a(f"buffer_store_dwordx4 v[{PKU}:{PKU+3}], v{vX}, s[{sXU}:{sXU+3}], 0 offen\nbuffer_store_dwordx4 v[{PKU}:{PKU+3}], v{vX}, s[{sXU}:{sXU+3}], 0 offen offset:16")
        a(f"s_add_u32 s{sX1}, s{sEV}, {L_S}\ns_waitcnt vmcnt(0)\ns_mov_b64 exec, 15")
        a(f"buffer_store_dword v{vF}, v{v128}, s[{sCT}:{sCT+3}], s{sX1} offen\ns_mov_b64 exec, -1")
    a(f"s_add_u32 s{sEV}, s{sEV}, {L_U2}")
    if o.k2early:
        a(f"s_mov_b32 m0, s{sSTG}\ns_add_u32 s{sT0}, s{sSTG}, 1024\ns_mov_b32 s{sT1}, {5*RS_IN}")
        a(f"buffer_load_dwordx4 v{vA1}, s[{sK}:{sK+3}], 0 offen {o.k_nt} lds")
        a(f"s_mov_b32 m0, s{sT0}\ns_add_u32 s{sT0}, s{sSTG}, 2048")
        a(f"buffer_load_dwordx4 v{vA2}, s[{sK}:{sK+3}], s{sT1} offen {o.k_nt} lds")
        a(f"s_mov_b32 m0, s{sT0}\ns_mov_b32 s{sT1}, {13*RS_IN}\ns_mov_b64 exec, 0xffffff")
        a(f"buffer_load_dwordx4 v{vA2}, s[{sK}:{sK+3}], s{sT1} offen {o.k_nt} lds")
        a("s_mov_b64 exec, -1\ns_setprio 0\ns_waitcnt vmcnt(3)")
        unpack_w()
        a("s_waitcnt vmcnt(0)")
        for i in range(7):
            a(f"ds_read_b64 v[{KR+2*i}:{KR+2*i+1}], v{vRD} offset:{128*i}")
        a("s_waitcnt lgkmcnt(0)")
        lds_count(G, vFL, vONE, C_U0)
        first_phase(False, lambda k: None, part=1)
        skip_term(False, 1)
        if o.dry: a(f"s_mov_b64 vcc, -1\ns_branch {LZ}d\n{LZ}r:")
        get_nonce(G, vFL, vT, vF)
        G.stamp(-1, mid=2)
        poll_lds(G, vFL, C_GO, 9 if o.word == 2 else o.e2lvl, vT, pair=sX2)
        adopt_mode(G, sX2, vF)
        for i in range(4):
            a(f"buffer_load_dwordx2 v[{VR+2*i}:{VR+2*i+1}], v{vIN}, s[{sV}:{sV+3}], 0 offen offset:{i*RS_IN} {nt}")
        lds_count(G, vFL, vONE, C_GO)
        G.stamp(-1, mid=1)
        if o.qw2 and o.q2now:
            poll_lds(G, vFL, C_GO, 13, vT)
            qloads()
        a(f"s_setprio {o.hiprio}\ns_waitcnt vmcnt({4 if o.qw2 and o.q2now else 0})")
        if o.qw2 and not o.q2now: qloads()
        G.stamp(-1, mid=3)
        first_phase(False, lambda k: None, part=2)
    else:
        a("s_waitcnt vmcnt(0)")
        unpack_w()
        if o.konly: poll_lds(G, vFL, C_U1, 1, vT, sleep=2)
        if "2" in o.x_skip:
            poll_lds(G, vFL, C_GO, 5, vT); lds_count(G, vFL, vONE, C_GO); a("s_endpgm")
        poll_lds(G, vFL, C_GO, 9 if o.word == 2 else o.e2lvl, vT, pair=sX2)
        adopt_mode(G, sX2, vF)
        a(f"s_mov_b32 m0, s{sSTG}\ns_add_u32 s{sT0}, s{sSTG}, 1024\ns_mov_b32 s{sT1}, {5*RS_IN}")
        a(f"buffer_load_dwordx4 v{vA1}, s[{sK}:{sK+3}], 0 offen {o.k_nt} lds")
        a(f"s_mov_b32 m0, s{sT0}\ns_add_u32 s{sT0}, s{sSTG}, 2048")
        a(f"buffer_load_dwordx4 v{vA2}, s[{sK}:{sK+3}], s{sT1} offen {o.k_nt} lds")
        a(f"s_mov_b32 m0, s{sT0}\ns_mov_b32 s{sT1}, {13*RS_IN}\ns_mov_b64 exec, 0xffffff\ns_add_u32 s{sT0}, s{sSTG}, 2432")
        a(f"buffer_load_dwordx4 v{vA2}, s[{sK}:{sK+3}], s{sT1} offen {o.k_nt} lds")
        if o.konly:
            a("s_mov_b64 exec, -1")
            for i in range(4):
                a(f"buffer_load_dwordx2 v[{VR+2*i}:{VR+2*i+1}], v{vIN}, s[{sV}:{sV+3}], 0 offen offset:{i*RS_IN} {nt}")
        else:
            a(f"s_mov_b32 m0, s{sT0}\ns_mov_b64 exec, -1\ns_add_u32 s{sT0}, s{sSTG}, {2432+1024}")
            a(f"buffer_load_dwordx4 v{vA2}, s[{sV}:{sV+3}], 0 offen {nt} lds")
            a(f"s_mov_b32 m0, s{sT0}\ns_mov_b32 s{sT1}, {8*RS_IN}")
            a(f"buffer_load_dwordx4 v{vA2}, s[{sV}:{sV+3}], s{sT1} offen {nt} lds")
        lds_count(G, vFL, vONE, C_GO)
        G.stamp(-1, mid=1)
        a(f"s_setprio {o.hiprio}\ns_waitcnt vmcnt({4 if o.konly else 2})")
        if o.hgate >= 5: lds_count(G, vFL, vONE, C_GO)
        G.stamp(-1, mid=3)
        for i in range(7):
            a(f"ds_read_b64 v[{KR+2*i}:{KR+2*i+1}], v{vRD} offset:{128*i}")
        a("s_waitcnt lgkmcnt(0)")
        def wait_v2(k):
            if o.konly:
                if k: a("s_waitcnt vmcnt(0)")
                return
            wait_v(k)
            if k == 0 and o.qw2: qloads()
            if k: lds_count(G, vFL, vONE, C_U0)
        first_phase(False, wait_v2)
    G.stamp(2, mid=4)
    mode_stores(ustores)
    if o.udata: lds_count(G, vFL, vONE, C_R)
    skip_term(False, 2 if o.k2early else 3)
    a("s_waitcnt vmcnt(0)")
    signal(G, vF, v128, sEV, L_U2, 2, 16, YR)
    G.stamp(3, mid=5)
    lds_count(G, vFL, vONE, C_U1)
    if o.sq2: sq_prefetch(G, sSIG)
    if not o.qw2:
        poll_lds(G, vFL, C_Y1 if o.qhold else F_U2, 5 if o.yxearly else 4, vT, sleep=2)
        qloads()
    gate(0)
    G.stamp(-1, mid=6)
    last_phase(True, L_Y2, 12)
    a(f"{LX}:")
    a(f"s_add_u32 s{sXU}, s{pWS}, {XU_OFF}\ns_addc_u32 s{sXU+1}, s{pWS+1}, 0\ns_add_u32 s{sXY}, s{pWS}, {XY_OFF}\ns_addc_u32 s{sXY+1}, s{pWS+1}, 0")
    a(f"v_and_b32 v{vT}, 4095, v{vX}\nv_lshrrev_b32 v{vT}, 1, v{vT}\nv_add_u32 v{vT}, s{sSTG}, v{vT}")
    a(f"ds_write_b128 v{vT}, v[{PKU}:{PKU+3}]\nds_write_b128 v{vT}, v[{PKU+4}:{PKU+7}] offset:16")
    a(f"v_lshl_add_u32 v{vT}, v0, 3, s{sSTG}")
    for k in range(4):
        a(f"ds_read_b64 v[{KF+2*k}:{KF+2*k+1}], v{vT} offset:{512*k}")
    a(f"v_and_b32 v{vG}, 0xfffff000, v{vX}\nv_lshl_add_u32 v{vG}, v0, 4, v{vG}\nv_mov_b32 v{vK3}, s{sTAG}")
    for k in range(4):
        a(f"s_waitcnt lgkmcnt({3-k})")
        for d in (0, 1):
            a(f"v_lshl_or_b32 v{QR-8+4*k+2*d}, v{KF+2*k+d}, 16, v{vK3}\nv_and_or_b32 v{QR-8+4*k+2*d+1}, v{KF+2*k+d}, s47, v{vK3}")
        if not o.uxlate: a(f"buffer_store_dwordx4 v[{QR-8+4*k}:{QR-8+4*k+3}], v{vG}, s[{sXU}:{sXU+3}], 0 offen offset:{1024*k} sc1")
    if o.uxlate:
        poll_lds(G, vFL, C_GO if o.uxlate == 2 else C_R, 4, vT, sleep=1)
        for k in range(4):
            a(f"buffer_store_dwordx4 v[{QR-8+4*k}:{QR-8+4*k+3}], v{vG}, s[{sXU}:{sXU+3}], 0 offen offset:{1024*k} sc1")
    if o.konly: lds_count(G, vFL, vONE, C_U1)
    G.stamp(3, 6)
    skip_term()
    a(f"s_lshr_b32 s{sT0}, s{sROW0}, 5\ns_lshl_b32 s{sT1}, s{sT0}, 13\ns_lshl_b32 s{sT2}, s{sH}, {HSH}\ns_add_u32 s{sT1}, s{sT1}, s{sT2}")
    a(f"s_bfe_u32 s{sT2}, s{sROW0}, {(1<<16)|4}\ns_lshl_b32 s{sT2}, s{sT2}, 6\ns_add_u32 s{sT1}, s{sT1}, s{sT2}")
    a(f"v_lshrrev_b32 v{vX}, 2, v0")
    a(f"v_add_u32 v{vT}, s{sT0}, v{vX}\nv_and_b32 v{vT}, 7, v{vT}\nv_and_b32 v{vX}, 8, v{vX}\nv_or_b32 v{vX}, v{vX}, v{vT}\nv_lshl_add_u32 v{vX}, v{vX}, 7, s{sT1}")
    a(f"v_and_b32 v{vT}, 3, v0\nv_lshl_add_u32 v{vX}, v{vT}, 4, v{vX}")
    a(f"v_lshlrev_b32 v{vA1}, 3, v0\nv_add_u32 v{vA1}, {XT0}, v{vA1}")
    a(f"v_and_b32 v{vA2}, 15, v0\nv_lshlrev_b32 v{vA2}, 7, v{vA2}\nv_lshrrev_b32 v{vT}, 4, v0\nv_lshl_add_u32 v{vA2}, v{vT}, 3, v{vA2}\nv_add_u32 v{vA2}, {XT0}, v{vA2}")
    if o.spf2 == 2: scalar_prefill(64, 64)
    if o.sqx:
        poll_lds(G, vFL, C_U1, 1, vT, sleep=3)
        sq_prefetch(G, sSIG)
    if "x" in o.x_skip: a("s_endpgm")
    if o.qw2: poll_lds(G, vFL, C_GO, 13, vT, sleep=3)
    else: poll_lds(G, vFL, C_Y1 if o.qhold else F_U2, 4, vT, sleep=3)
    if not o.yxearly:
        qloads()
        poll_lds(G, vFL, C_YX, 4, vT, sleep=2)
    G.stamp(5, mid=3, tl=2)
    tagged_loads(G, 4, 24, vX, sXY, lambda k: (0, 2048 * k) if k < 2 else (4096, 2048 * (k - 2)), vT, after=(lambda: (lds_count(G, vFL, vONE, F_U2), qloads(), 4)[2]) if o.yxearly else None)
    a(f"s_mov_b32 s{sT0}, 0x07060302")
    G.stamp(-1, mid=4, tl=3)
    for k in range(4):
        a(f"v_perm_b32 v{YR+2*k}, v{25+4*k}, v{24+4*k}, s{sT0}\nv_perm_b32 v{YR+2*k+1}, v{27+4*k}, v{26+4*k}, s{sT0}")
        a(f"ds_write_b64 v{vA1}, v[{YR+2*k}:{YR+2*k+1}] offset:{512*k}")
    for c in range(4):
        a(f"ds_read_b64 v[{YR+2*c}:{YR+2*c+1}], v{vA2} offset:{32*c}")
    gate(0)
    a(f"s_waitcnt lgkmcnt(0)\ns_branch {LZ}2")
    G.flush_cold()

    a("L_Cm:")
    if o.w1only:
        a("s_waitcnt vmcnt(1)"); G.stamp(1, 4); a("s_waitcnt vmcnt(0)"); finish(G)
    a(f"s_setprio {o.cprio}")
    G.stamp(1, 3)
    ctl_srd(G)
    misc_srd(G)
    a(f"s_mov_b32 s{sJ}, s46\ns_mov_b32 s{sCOL}, s47")
    a(f"s_mul_i32 s{sX2}, s{sJ}, {XA_SZ}\ns_mul_i32 s{sX3}, s{sJ}, {U_SZ}\ns_add_u32 s{sX3}, s{sX3}, {U0}")
    for i in range(4): a(f"v_mov_b32 v{cZ+i}, 0")
    a(f"v_lshl_add_u32 v{cHA}, v0, 4, s{sX2}")
    for p in range(4):
        a(f"ds_write_b128 v{cHA}, v[{cZ}:{cZ+3}] offset:{XA0 + p*PLANE}")
    a(f"v_lshl_add_u32 v{cHB}, v0, 4, s{sX3}\nv_add_u32 v{cHB0}, {UP1 - 8 + 2048}, v{cHB}")
    u_pad(G, 62, cZ, f"s{sX3}")
    a(f"v_and_b32 v{cT}, 3, v0\nv_mul_u32_u24 v{cA}, {PLANE}, v{cT}")
    a(f"v_bfe_u32 v{cB}, v0, 2, 2\nv_lshl_add_u32 v{cA}, v{cB}, 7, v{cA}")
    a(f"v_lshrrev_b32 v{cB}, 4, v0\nv_lshl_add_u32 v{cA}, v{cB}, 4, v{cA}")
    a(f"s_lshl_b32 s{sT0}, s{sJ}, 7")
    a(f"s_add_u32 s{sT1}, s{sT0}, {XA0 + 4*XA_SZ}\nv_add_u32 v{cAX}, s{sT1}, v{cA}\nv_add_u32 v{cA}, s{sX2}, v{cA}")
    a(f"v_lshlrev_b32 v{cB}, 4, v{cB}\nv_and_b32 v{cBX}, 15, v0\nv_lshlrev_b32 v{cBX}, 3, v{cBX}\nv_sub_u32 v{cB}, v{cB}, v{cBX}\nv_add_u32 v{cB}, 120, v{cB}")
    a(f"v_and_b32 v{cBX}, 1, v0\nv_xor_b32 v{cBX}, 1, v{cBX}\nv_mul_u32_u24 v{cBX}, {UP1 - 8}, v{cBX}\nv_add_u32 v{cB}, v{cB}, v{cBX}")
    a(f"s_add_u32 s{sT1}, s{sT0}, {U0 + 4*U_SZ}\nv_add_u32 v{cBX}, s{sT1}, v{cB}\nv_add_u32 v{cB}, s{sX3}, v{cB}")
    a(f"s_and_b32 s{sTS}, s{sR}, 1\ns_lshl_b32 s{sT2}, s{sJ}, 5\ns_add_u32 s{sCOL}, s{sCOL}, s{sT2}")
    a(f"v_lshrrev_b32 v{cY}, 2, v0")
    blk_addr(G, cY, cU, sSIG, RS_OUT, sCOL)
    a(f"v_lshl_add_u32 v{cY}, v{cT}, 3, v{cY}")
    a(f"v_lshrrev_b32 v{cYX}, 2, v0\nv_lshlrev_b32 v{cYX}, 7, v{cYX}\nv_lshl_add_u32 v{cYX}, v{cT}, 3, v{cYX}\ns_lshl_b32 s{sT2}, s{sJ}, 5\ns_add_u32 s{sT2}, s{sT2}, {YB0}\nv_add_u32 v{cYX}, s{sT2}, v{cYX}")
    a(f"s_lshl_b32 s{sT0}, s{sJ}, 10\ns_add_u32 s{sT0}, s{sT0}, {SCR0}\nv_lshl_add_u32 v{cSW}, v0, 4, s{sT0}")
    a(f"v_mov_b32 v{cFL}, {FL0}\nv_mov_b32 v{cONE}, 1\nv_lshlrev_b32 v{cL4}, 3, v0\nv_lshlrev_b32 v{c128}, 9, v0")
    a(f"s_lshl_b32 s{sEV}, s{sR}, 2\ns_add_u32 s{sEV}, s{sEV}, s{sJ}\ns_lshl_b32 s{sEV}, s{sEV}, 2\ns_add_u32 s{sEV}, s{sEV}, s{sGB}\ns_add_u32 s{sEV}, s{sEV}, {L_Y2}")
    if o.coop1: uc_setup(G, cU, cU + 1, 52, cT, sJ, sSIG, 47, 0)
    else: u_src(G, cU, cT, sSIG, sCOL)
    a(f"s_lshl_b32 s{sX4}, s{sJ}, 9\ns_add_u32 s{sX4}, s{sX4}, s{sGB}\ns_add_u32 s{sX4}, s{sX4}, {L_U1}")
    npf = 1 if o.prefill else 0
    if o.h2early: npf += 4
    a(f"s_waitcnt vmcnt({2+npf})")
    G.stamp(-1, 4)
    xa_build(G, 64, 80, cHA, XA0 + 384, 0)
    a(f"s_waitcnt vmcnt({npf})")
    xa_build(G, 72, 16, cHA, XA0 + 384 + 1024, 1)
    if o.h2early:
        a(f"s_waitcnt vmcnt({npf-2})")
        xa_build(G, 112, 80, cHA, XA0 + 384 + 2048, 2)
        a(f"s_waitcnt vmcnt({npf-4})")
        xa_build(G, 120, 16, cHA, XA0 + 384 + 3072, 3)
    get_nonce(G, cFL, cT, cF)
    G.stamp(-1, -1)
    def detect(R):
        SW, NX = G.lab("dsw"), G.lab("dnx")
        a("s_mov_b64 exec, -1")
        a(f"ds_read_b32 v{cT}, v{cFL} offset:{F_M}\ns_waitcnt lgkmcnt(0)\nv_readfirstlane_b32 s{sT0}, v{cT}")
        a(f"s_cmp_eq_u32 s{sT0}, 0\ns_cbranch_scc0 {SW}")
        a(f"s_cmp_eq_u32 s{sJ}, 0\ns_cbranch_scc0 {NX}")
        a(f"s_sub_u32 s{sT2}, s{sF}, s{sN}\ns_sub_u32 s{sT2}, s{sT2}, 1\ns_mul_i32 s{sT3}, s{sT2}, s{sT2}\ns_lshl_b32 s{sT3}, s{sT3}, 16")
        a(f"s_lshl_b32 s{sT2}, s{sT2}, 8\ns_add_u32 s{sT2}, s{sT2}, s{sT3}\ns_add_u32 s{sT2}, s{sT2}, 1\ns_lshl_b32 s{sT3}, s{sT2}, 5")
        a(f"s_cmp_eq_u32 s{sCNT}, 64\ns_cselect_b32 s{sT2}, s{sT2}, 0")
        a(f"s_mov_b64 exec, 1\nv_mov_b32 v{cT}, s{sT2}")
        a(f"buffer_atomic_add v{cT}, off, s[{sDG}:{sDG+3}], s{sDGO} sc0 sc1")
        a("s_waitcnt vmcnt(0)")
        a(f"v_readfirstlane_b32 s{sT0}, v{cT}\ns_mov_b64 exec, -1\ns_add_u32 s{sT0}, s{sT0}, s{sT2}")
        if not o.force_mode1:
            a(f"s_cmp_eq_u32 s{sT0}, s{sT3}\ns_cbranch_scc1 {NX}")
        a(f"s_and_b32 s{sT0}, s{sT0}, 0xff\ns_cmp_ge_u32 s{sT0}, 32\ns_cbranch_scc0 {NX}")
        a(f"ds_write_b32 v{cFL}, v{cONE} offset:{F_M}")
        a(f"{SW}:")
        to_mode1(G, cF)
        a(f"s_add_u32 s{sX4}, s{sX4}, {UOFF}\ns_mov_b32 s{sLR}, s{sN}")
        a(f"{NX}:")
    if o.force_mode1:
        a(f"s_add_u32 s{sF}, s{sF}, 0")
    if not o.iso:
        if o.force_mode1:
            a(f"s_xor_b32 s{sLR}, s{sF}, 0x40000000")
        poll_line(G, cL4, sX4, 2, 80, (f"s{sDGO}", 4), 128, sleep=0, detect=detect, scmp=(sLR if o.force_mode1 else sF))
    G.stamp(-1, 5)
    if o.coop1: uc_loads(G, 64, cU, cU + 1)
    else: u_loads(G, 64, cU, (3, 2))
    lds_count(G, cFL, cONE, C_GO)
    u_pad_write(G, 62, cZ)
    a(f"s_cmp_lg_u32 s{sM}, 0\ns_cselect_b64 vcc, -1, 0")
    def pre():
        if o.coop1:
            a("s_waitcnt vmcnt(1)")
            uc_write(G, 64, 52, 0)
            a("s_waitcnt vmcnt(0)")
            uc_write(G, 68, 52, 1)
            a("s_waitcnt lgkmcnt(0)")
            lds_count(G, cFL, cONE, F_YX)
            poll_lds(G, cFL, F_YX, 4, cT, sleep=0)
            G.stamp(2, 6, 2, 2)
            return 0
        a("s_waitcnt vmcnt(1)")
        u_write(G, 64, cHB, cHB0, 3)
        a("s_waitcnt vmcnt(0)")
        u_write(G, 68, cHB, cHB0, 2)
        G.stamp(2, 6, 2, 2)
        return 4
    if not o.apre: pre()
    a(f"s_cmp_eq_u32 s{sTS}, 0")
    a("s_cbranch_scc0 L_C1")
    st0 = c_stream(G, 0, pre if o.apre else None)
    a("L_C1:")
    st1 = c_stream(G, 1, pre if o.apre else None)
    a("L_exit:")
    a("s_endpgm")

    head = open("cdna_kernels/" + NAME + ".s.ref").read().split("\n")
    hdr = [l for l in head if l.startswith("; Kernarg") or l.startswith(";   offset")]
    hdr += DOC.strip("\n").split("\n")
    out = hdr + [f"; @launch grid=(256,1,1) block=(896,1,1) lds={LDS_SZ}",
                 '.amdgcn_target "amdgcn-amd-amdhsa--gfx950"', ".text", f".globl {K}", ".p2align 8", f".type {K},@function"]
    out += G.L
    out += ['.section .rodata,"a"', ".p2align 6", f".amdhsa_kernel {K}",
            "  .amdhsa_next_free_vgpr 128", "  .amdhsa_next_free_sgpr 102", "  .amdhsa_accum_offset 128",
            "  .amdhsa_group_segment_fixed_size 0", "  .amdhsa_kernarg_size 120", "  .amdhsa_user_sgpr_count 2",
            "  .amdhsa_user_sgpr_kernarg_segment_ptr 1", "  .amdhsa_system_sgpr_workgroup_id_x 1",
            "  .amdhsa_float_denorm_mode_32 3", ".end_amdhsa_kernel", ""]
    print("stream stats (mfma, ds, max/gap, gaps>1):", st0, st1, file=sys.stderr)
    return "\n".join(out)


if __name__ == "__main__":
    ap = argparse.ArgumentParser()
    ap.add_argument("-o", default="cdna_kernels/" + NAME + ".s")
    ap.add_argument("opts", nargs="*")
    args = ap.parse_args()
    o = Opt()
    for kv in args.opts:
        k, v = kv.split("=", 1)
        cur = getattr(o, k)
        setattr(o, k, (v not in ("0", "False", "")) if isinstance(cur, bool) else type(cur)(v))
    open(args.o, "w").write(gen(o))
```

```python
import sys, argparse

NAME = "concat_heads__ssm_conv_h3__ssm_conv_h3__prompt"

RS_IN = 1152
RS_OUT = 2304
TENS = 2359296
OUTB = 4718592
PLANE = 4640
XA_SZ = 4 * PLANE
UP1 = 4224
U_SZ = 2 * UP1 + 32
XA0 = 0
U0 = 5 * XA_SZ
STG_SZ = 5120
STGX = U0 + 5 * U_SZ
YB0 = STGX
XT0 = YB0 + 8192
SCR0 = XT0 + 2048
FL0 = SCR0 + 16384 + 1536
LDS_SZ = FL0 + 64
F_N, F_V, C_GO, F_M, C_U0, C_U1, C_R, C_H, F_X, F_U2, F_YX, C_P, C_Y1, C_Y2, C_YX = [4 * i for i in range(15)]
CT_OFF = 17 << 20
L_U1, L_U2, L_Y1, L_Y2, L_S = 0, 2048, 4096, 6144, 8192
HSH = 21
XU_OFF, XY_OFF = 16 << 20, (16 << 20) + (1 << 19)
UOFF = 16384
GSTRIDE = 32768
TILE_STEP = 256 * RS_OUT
CAP_G = 1 << 15
CAP_L = 1 << 17
W_S, W_C = 0, 10


DOC = """
;
"""


class Opt:
    stamps = False
    only07 = False
    force_mode1 = False
    ld_nt = "nt"
    out_flag = ""
    lead = 12
    prefetch_code = True
    prefill = True
    sleep = 1
    cyc = False
    iso = False
    dspan = False
    early = False
    order = "ax123"
    ya = 5
    uxearly = True
    pfx = False
    kvfirst = True
    seq2 = False
    xsplit = False
    sred = False
    uxlate = 0
    y1data = False
    y1q = False
    udata = False
    utry = 8
    word = 0
    spf2 = 0
    sq2 = False
    sqx = False
    sqs = 0
    hgate = 0
    pfirst = False
    cfirst = False
    q2now = True
    share3 = False
    dry = False
    pfentry = True
    ebar2 = 1
    barpos = 7
    tl = False
    qhold = False
    coop1 = True
    coop2 = True
    k2early = False
    konly = False
    q1w2 = False
    stag = 2
    ydata = True
    ygo = -1
    ysleep = 1
    pfyx = False
    pfux = False
    ulead = 7
    xlead = 6
    yxearly = False
    e2lvl = 5
    y1dir = True
    merge = False
    y1ack = 45
    lsleep = 0
    x_skip = ""
    nock = ""
    wbatch = 8
    apre = True
    qw2 = False
    redlate = False
    u2first = True
    x_noaux = 0
    split3 = False
    defer = False
    golate = False
    y1wait = 25
    y1pos = 90
    w3 = False
    w1only = False
    noh = False
    nohalo = False
    h2early = True
    u2early = False
    mid = False
    hiprio = 3
    x_noh2 = False
    x_nogate = False
    x_nou2 = False
    x_nock = False
    x_noq = False
    k_nt = "nt"
    h_nt = "nt"
    yxack = True
    cprio = 2
    eprio = 0
    sprio = 3
    nopk = True
    tl_fl = "sc1"
    noq = False
    pf_nt = ""
    dma_fl = "sc1"
    win = True


STAMP_REGS = [88, 90, 92, 94, 96, 98, 36, 38]


class Gen:
    def __init__(self, o):
        self.o = o
        self.L = []
        self.uid = 0
        self.cold = []
    def a(self, s):
        for ln in s.split("\n"):
            self.L.append("    " + ln.strip() if not ln.strip().endswith(":") else ln.strip())
    def flush_cold(self):
        while self.cold:
            c, self.cold = self.cold, []
            for fn in c: fn()
    def lab(self, base):
        self.uid += 1
        return f"L_{base}_{self.uid}"
    def srd(self, d, lo, nrec):
        if lo is not None and lo != d:
            self.a(f"s_mov_b64 s[{d}:{d+1}], s[{lo}:{lo+1}]")
        self.a(f"s_mov_b32 s{d+2}, {nrec}\ns_mov_b32 s{d+3}, 0x00020000")
    def stamp(self, i, early=None, mid=None, tl=None):
        if self.o.tl and i != 7: i = -1 if tl is None else tl
        if self.o.early: i = -1 if early is None else early
        if self.o.mid and i != 7: i = -1 if mid is None else mid
        if self.o.only07 and i != 7: i = -1
        if (self.o.stamps or self.o.dspan) and i >= 0:
            r = STAMP_REGS[i]
            self.a(f"{'s_memtime' if self.o.cyc else 's_memrealtime'} s[{r}:{r+1}]")


sWV, sG, sR, sH, sGQ = 3, 4, 5, 6, 7
sT0, sT1, sT2, sT3 = 8, 9, 10, 11
sM, sEV, sCNT, sSIG = 12, 13, 14, 15
pOUT, pDBG, pWS = 40, 42, 44
sK, sV, sQ, sW, sD, sXU, sXY, sOUT, sCT, sHH = 48, 52, 56, 60, 64, 68, 72, 76, 80, 84
sDG = 60
sROW0, sLC, sCOL, sLR, sCHJ, sX1, sX2, sX3, sX4, sF, sN = 16, 17, 18, 19, 20, 21, 22, 23, 24, 26, 27
sWMY, sTS, sGB, sDGO, sJ = 28, 32, 33, 34, 35
sTAG = 25
sE, sSTG = 100, 101


def poll_line(G, vl, soff, w, vt, cnt, n, sleep=None, scmp=sF, detect=None):
    L, D, C, R = G.lab("pg"), G.lab("pgd"), G.lab("pgc"), G.lab("pgr")
    G.a(f"s_mov_b32 s{sCNT}, 0")
    G.a(f"{L}:")
    G.a(f"buffer_load_dwordx{w} v[{vt}:{vt+w-1}], v{vl}, s[{sCT}:{sCT+3}], s{soff} offen sc1")
    G.a(f"s_add_u32 s{sCNT}, s{sCNT}, 1")
    G.a("s_waitcnt vmcnt(0)")
    G.a(f"v_xor_b32 v{vt}, s{scmp}, v{vt}")
    for k in range(1, w):
        G.a(f"v_bitop3_b32 v{vt}, v{vt}, v{vt+k}, s{scmp} bitop3:0xf6")
    G.a(f"v_cmp_ne_u32 vcc, 0, v{vt}")
    G.a(f"s_cbranch_vccz {D}")
    sl = G.o.sleep if sleep is None else sleep
    if sl:
        G.a(f"s_sleep {sl}")
    G.a(f"s_and_b32 s{sT0}, s{sCNT}, 63\ns_cbranch_scc1 {L}")
    G.a(f"s_branch {C}")
    G.a(f"{D}:")
    def cold():
        G.a(f"{C}:")
        R0 = G.lab("pgx") if detect else R
        G.a(f"s_cmp_eq_u32 s{sM}, 0\ns_cbranch_scc1 {R0}")
        G.a(f"s_mov_b64 exec, 1\nv_mov_b32 v{vt}, 0")
        G.a(f"buffer_atomic_add v{vt}, off, s[{sDG}:{sDG+3}], {cnt[0]} offset:{cnt[1]} sc0 sc1")
        G.a(f"s_waitcnt vmcnt(0)")
        G.a(f"v_readfirstlane_b32 s{sT0}, v{vt}\ns_mov_b64 exec, -1")
        G.a(f"s_cmp_ge_u32 s{sT0}, {n}\ns_cbranch_scc1 {D}")
        G.a(f"{R}:")
        G.a(f"s_cmp_lt_u32 s{sCNT}, {CAP_G}\ns_cbranch_scc1 {L}\ns_branch {D}")
        if detect:
            G.a(f"{R0}:")
            detect(R)
            G.a(f"s_branch {R}")
    G.cold.append(cold)


def poll_lds(G, vfl, off, expected, vt, sleep=1, pair=None, hook=None):
    L, D = G.lab("pl"), G.lab("pld")
    G.a(f"s_mov_b32 s{sCNT}, 0")
    G.a(f"{L}:")
    if pair is None:
        G.a(f"ds_read_b32 v{vt}, v{vfl} offset:{off}")
    else:
        G.a(f"ds_read_b64 v[{vt}:{vt+1}], v{vfl} offset:{off}")
    G.a(f"s_add_u32 s{sCNT}, s{sCNT}, 1")
    G.a("s_waitcnt lgkmcnt(0)")
    G.a(f"v_readfirstlane_b32 s{sT0}, v{vt}")
    if pair is not None:
        G.a(f"v_readfirstlane_b32 s{pair}, v{vt+1}")
    if hook: hook(L)
    G.a(f"s_cmp_ge_u32 s{sT0}, {expected}")
    G.a(f"s_cbranch_scc1 {D}")
    if sleep: G.a(f"s_sleep {max(sleep, G.o.lsleep)}")
    G.a(f"s_cmp_lt_u32 s{sCNT}, {CAP_L}")
    G.a(f"s_cbranch_scc1 {L}")
    G.a(f"{D}:")


def get_nonce(G, vfl, vt, vf):
    L, D = G.lab("gn"), G.lab("gnd")
    G.a(f"s_getreg_b32 s{sF}, hwreg(HW_REG_XCC_ID, 0, 4)\ns_mov_b32 s{sCNT}, 0")
    G.a(f"{L}:")
    G.a(f"ds_read_b64 v[{vt}:{vt+1}], v{vfl} offset:{F_N}")
    G.a(f"s_add_u32 s{sCNT}, s{sCNT}, 1")
    G.a("s_waitcnt lgkmcnt(0)")
    G.a(f"v_readfirstlane_b32 s{sTAG}, v{vt+1}")
    G.a(f"v_readfirstlane_b32 s{sN}, v{vt}")
    G.a(f"s_cmp_ge_u32 s{sTAG}, 1")
    G.a(f"s_cbranch_scc1 {D}")
    G.a("s_sleep 1")
    G.a(f"s_cmp_lt_u32 s{sCNT}, {CAP_L}")
    G.a(f"s_cbranch_scc1 {L}")
    G.a(f"{D}:")
    G.a(f"s_add_u32 s{sF}, s{sF}, s{sN}\ns_add_u32 s{sF}, s{sF}, 1\nv_mov_b32 v{vf}, s{sF}\ns_and_b32 s{sTAG}, s{sTAG}, 0xffff")


def to_mode1(G, vf):
    G.a(f"s_mov_b32 s{sM}, 1\ns_mov_b32 s{sF}, s{sN}\nv_mov_b32 v{vf}, s{sN}")
    G.a(f"s_add_u32 s{sGB}, s{sGB}, {UOFF}")
    G.a(f"s_mov_b64 s[{sXU}:{sXU+1}], s[{pWS}:{pWS+1}]")
    G.a(f"s_add_u32 s{sXY}, s{pWS}, {OUTB}\ns_addc_u32 s{sXY+1}, s{pWS+1}, 0")


def adopt_mode(G, sm, vf):
    A, B = G.lab("am"), G.lab("amb")
    G.a(f"s_cmp_gt_u32 s{sm}, s{sM}\ns_cbranch_scc1 {A}")
    G.a(f"{B}:")
    def cold():
        G.a(f"{A}:")
        to_mode1(G, vf)
        G.a(f"s_branch {B}")
    G.cold.append(cold)


def signal(G, vf, vrep, sslot, line, w, cnt, vt):
    A, B = G.lab("ma"), G.lab("mb")
    G.a(f"s_mov_b64 exec, 15")
    G.a(f"s_cmp_eq_u32 s{sM}, 0\ns_cbranch_scc0 {A}")
    G.a(f"buffer_store_dword v{vf}, v{vrep}, s[{sCT}:{sCT+3}], s{sslot} offen")
    G.a(f"{B}:")
    G.a("s_mov_b64 exec, -1")
    def cold():
        G.a(f"{A}:")
        G.a(f"s_mov_b64 exec, 1\nv_mov_b32 v{vt}, 1")
        G.a(f"buffer_atomic_add v{vt}, off, s[{sDG}:{sDG+3}], s{sDGO} offset:{cnt} sc0 sc1")
        G.a("s_waitcnt vmcnt(0)")
        G.a(f"v_readfirstlane_b32 s{sT0}, v{vt}")
        G.a(f"s_cmp_eq_u32 s{sT0}, {64*w-1}\ns_cbranch_scc0 {B}")
        G.a(f"s_mov_b64 exec, -1\ns_add_u32 s{sT1}, s{sGB}, {line}")
        G.a(f"v_lshlrev_b32 v{vt+4}, 4, v0")
        for k in range(4): G.a(f"v_mov_b32 v{vt+k}, v{vf}")
        for fl in (" sc1", ""):
            for k in range(w):
                G.a(f"buffer_store_dwordx4 v[{vt}:{vt+3}], v{vt+4}, s[{sCT}:{sCT+3}], s{sT1} offen offset:{1024*k}{fl}")
        G.a(f"s_branch {B}")
    G.cold.append(cold)


def tagged_loads(G, n, r0, vaddr, srd, offs, vt, after=None):
    L, D, C = G.lab("tl"), G.lab("tld"), G.lab("tlc")
    def loads():
        for k in range(n):
            so, io = offs(k)
            if so: G.a(f"s_mov_b32 s{sT1}, {so}")
            G.a(f"buffer_load_dwordx4 v[{r0+4*k}:{r0+4*k+3}], v{vaddr}, s[{srd}:{srd+3}], {'s%d' % sT1 if so else 0} offen offset:{io} {G.o.tl_fl}")
    G.a(f"s_mov_b32 s{sCNT}, 0")
    loads()
    nyoung = after() if after else 0
    G.a(f"s_waitcnt vmcnt({nyoung})")
    if after: G.stamp(-1, 5, 2)
    G.a(f"{L}:")
    G.a(f"v_xor_b32 v{vt}, s{sTAG}, v{r0}")
    for k in range(1, 4 * n):
        G.a(f"v_bitop3_b32 v{vt}, v{vt}, v{r0+k}, s{sTAG} bitop3:0xf6")
    G.a(f"v_and_b32 v{vt}, 0xffff, v{vt}")
    G.a(f"v_cmp_ne_u32 vcc, 0, v{vt}")
    G.a(f"s_cbranch_vccnz {C}")
    G.a(f"{D}:")
    def cold():
        G.a(f"{C}:")
        G.a(f"s_add_u32 s{sCNT}, s{sCNT}, 1\ns_cmp_lt_u32 s{sCNT}, {CAP_G}\ns_cbranch_scc0 {D}")
        R = G.lab("tlr")
        G.a(f"s_and_b32 s{sT0}, s{sCNT}, 63\ns_cbranch_scc1 {R}\nbuffer_inv sc1\n{R}:")
        G.a("s_sleep 2")
        loads()
        G.a(f"s_waitcnt vmcnt(0)\ns_branch {L}")
    G.cold.append(cold)


def ctl_srd(G):
    G.a(f"s_lshl_b32 s{sGB}, s{sH}, {HSH}\ns_add_u32 s{sGB}, s{sGB}, {CT_OFF}\ns_add_u32 s{sCT}, s{pWS}, s{sGB}\ns_addc_u32 s{sCT+1}, s{pWS+1}, 0")
    G.srd(sCT, None, 5 * GSTRIDE)
    G.a(f"s_add_u32 s{sGB}, s{sGQ}, 1\ns_lshl_b32 s{sGB}, s{sGB}, 15")


def misc_srd(G):
    G.srd(sDG, pDBG, 256)
    G.a(f"s_mul_i32 s{sDGO}, s{sGQ}, 20\ns_lshl_b32 s{sT0}, s{sH}, 7\ns_add_u32 s{sDGO}, s{sDGO}, s{sT0}\ns_add_u32 s{sDGO}, s{sDGO}, 8")
    G.srd(sXU, pOUT, OUTB)
    G.srd(sXY, pOUT, OUTB)
    G.a(f"s_mov_b32 s{sM}, 0")


def chan_of(G, sj, dst):
    G.a(f"s_and_b32 s{sT1}, s{sR}, 12\ns_add_u32 s{sT1}, s{sT1}, s{sj}\ns_lshl_b32 s{sT1}, s{sT1}, 2\ns_and_b32 s{sT2}, s{sR}, 3\ns_add_u32 s{sT1}, s{sT1}, s{sT2}")
    G.a(f"s_lshr_b32 s{sT2}, s{sR}, 4\ns_lshl_b32 s{sT3}, s{sGQ}, 1\ns_add_u32 s{sT2}, s{sT2}, s{sT3}\ns_lshl_b32 s{sT2}, s{sT2}, 6\ns_add_u32 s{dst}, s{sT1}, s{sT2}")


def inbox_of(G, dst, slr):
    G.a(f"s_lshr_b32 s{sT2}, s{sR}, 4\ns_lshl_b32 s{sT3}, s{sGQ}, 1\ns_add_u32 s{sT2}, s{sT2}, s{sT3}\ns_lshl_b32 s{sT2}, s{sT2}, 7")
    G.a(f"s_mul_i32 s{dst}, s{sH}, 1152\ns_add_u32 s{dst}, s{dst}, s{sT2}\ns_and_b32 s{slr}, s{sR}, 15")


def xbox_of(G, dst, se, slr):
    G.a(f"s_lshl_b32 s{se}, s{sGQ}, 5\ns_add_u32 s{se}, s{se}, s{sR}\ns_lshr_b32 s{se}, s{se}, 1")
    G.a(f"s_lshr_b32 s{sT1}, s{se}, 4\ns_lshl_b32 s{sT1}, s{sT1}, 2\ns_and_b32 s{sT2}, s{se}, 3\ns_add_u32 s{slr}, s{sT1}, s{sT2}")
    G.a(f"s_bfe_u32 s{sT1}, s{se}, {(2<<16)|2}\ns_lshl_b32 s{sT1}, s{sT1}, 6")
    G.a(f"s_lshl_b32 s{sT2}, s{sH}, {HSH}\ns_add_u32 s{dst}, s{sT1}, s{sT2}")


def blk_addr(G, vd, vt, slr, rowb, scol):
    G.a(f"v_add_u32 v{vt}, s{slr}, v{vd}\nv_and_b32 v{vt}, 15, v{vt}\nv_lshl_add_u32 v{vd}, v{vd}, 4, v{vt}")
    G.a(f"v_mul_u32_u24 v{vd}, {rowb}, v{vd}\nv_add_u32 v{vd}, s{scol}, v{vd}")


def xa_loads(G, b, va, q):
    nt = G.o.h_nt
    if G.o.noh: return
    G.a(f"buffer_load_dwordx4 v[{b+2}:{b+5}], v{va}, s[{sHH}:{sHH+3}], 0 offen offset:{1024*q} {nt}")
    if q:
        G.a(f"s_mov_b64 exec, 1\nbuffer_load_dwordx2 v[{b}:{b+1}], v{va}, s[{sHH}:{sHH+3}], 0 offen offset:{1024*q-8} {nt}\ns_mov_b64 exec, -1")


def xa_build(G, b, t, vdst, off, q, plain=False):
    w = lambda i: b + 2 + i
    bc = "" if q else " bound_ctrl:0"
    G.a(f"v_mov_b32_dpp v{b}, v{w(2)} wave_shr:1 row_mask:0xf bank_mask:0xf{bc}")
    G.a(f"v_mov_b32_dpp v{b+1}, v{w(3)} wave_shr:1 row_mask:0xf bank_mask:0xf{bc}")
    G.a(f"ds_write_b128 v{vdst}, v[{b+2}:{b+5}] offset:{off + 3*PLANE}")
    for i in range(4):
        G.a(f"v_alignbit_b32 v{t+i}, v{w(i-1)}, v{w(i-2)}, 16")
    G.a(f"ds_write_b128 v{vdst}, v[{t}:{t+3}] offset:{off}")
    for i in range(4):
        G.a(f"v_alignbit_b32 v{t+4+i}, v{w(i)}, v{w(i-1)}, 16")
    G.a(f"ds_write_b128 v{vdst}, v[{t+4}:{t+7}] offset:{off + 2*PLANE}")
    if plain:
        for i in range(4): G.a(f"v_mov_b32 v{t+8+i}, v{w(i-1)}")
    else:
        G.a(f"v_pk_mov_b32 v[{t+8}:{t+9}], v[{b}:{b+1}], v[{b+2}:{b+3}] op_sel:[1,0]")
        G.a(f"v_pk_mov_b32 v[{t+10}:{t+11}], v[{b+2}:{b+3}], v[{b+4}:{b+5}] op_sel:[1,0]")
    G.a(f"ds_write_b128 v{vdst}, v[{t+8}:{t+11}] offset:{off + PLANE}")


def transpose4(G, regs):
    G.a("s_nop 1")
    for j in (0, 1):
        for d in (0, 1):
            G.a(f"v_permlane32_swap_b32 v{regs[j]+d}, v{regs[j+2]+d}")
    G.a("s_nop 1")
    for j in (0, 2):
        for d in (0, 1):
            G.a(f"v_permlane16_swap_b32 v{regs[j]+d}, v{regs[j+1]+d}")


def u_src(G, vd, vt, slr, scol):
    G.a(f"v_lshrrev_b32 v{vd}, 1, v0\nv_sub_u32 v{vd}, 31, v{vd}")
    blk_addr(G, vd, vt, slr, RS_OUT, scol)
    G.a(f"v_and_b32 v{vt}, 1, v0\nv_lshl_add_u32 v{vd}, v{vt}, 4, v{vd}")


def u_loads(G, r, vsrc, qs):
    for k, q in enumerate(qs):
        G.a(f"s_mov_b32 s{sT1}, {(3-q)*32*16*RS_OUT}")
        G.a(f"buffer_load_dwordx4 v[{r+4*k}:{r+4*k+3}], v{vsrc}, s[{sXU}:{sXU+3}], s{sT1} offen {G.o.dma_fl}")


def u_write(G, r, vdst, vdst1, q):
    G.a(f"ds_write_b128 v{vdst}, v[{r}:{r+3}] offset:{1024*q}")
    G.a(f"ds_write2_b64 v{vdst1}, v[{r}:{r+1}], v[{r+2}:{r+3}] offset0:{128*q if q < 2 else 128*(q-2)} offset1:{(128*q if q < 2 else 128*(q-2))+1}")


def uc_setup(G, va, vb, vd, vt, sj, slr, scol, half):
    G.a(f"s_lshl_b32 s{sT0}, s{sj}, 4\ns_sub_u32 s{sT0}, {63 + 64*half}, s{sT0}\nv_lshrrev_b32 v{vd}, 3, v0\nv_sub_u32 v{va}, s{sT0}, v{vd}\nv_add_u32 v{vb}, -8, v{va}")
    blk_addr(G, va, vt, slr, RS_OUT, scol)
    blk_addr(G, vb, vt, slr, RS_OUT, scol)
    G.a(f"v_and_b32 v{vt}, 7, v0\nv_lshl_add_u32 v{va}, v{vt}, 4, v{va}\nv_lshl_add_u32 v{vb}, v{vt}, 4, v{vb}")
    G.a(f"s_lshl_b32 s{sT0}, s{sj}, 9\ns_add_u32 s{sT0}, s{sT0}, {U0 + 2048*(1-half)}\nv_lshl_add_u32 v{vd}, v{vd}, 5, s{sT0}")
    G.a(f"v_lshrrev_b32 v{vt}, 1, v{vt}\nv_mul_u32_u24 v{vt}, {U_SZ}, v{vt}\nv_add_u32 v{vd}, v{vd}, v{vt}\nv_and_b32 v{vt}, 1, v0\nv_lshl_add_u32 v{vd}, v{vt}, 4, v{vd}")
    G.a(f"v_add_u32 v{vd+1}, {UP1 - 8}, v{vd}")


def uc_loads(G, r, va, vb):
    for k, v in enumerate((va, vb)):
        G.a(f"buffer_load_dwordx4 v[{r+4*k}:{r+4*k+3}], v{v}, s[{sXU}:{sXU+3}], 0 offen {G.o.dma_fl}")


def uc_write(G, r, vd, k):
    G.a(f"ds_write_b128 v{vd}, v[{r}:{r+3}] offset:{256*k}")
    G.a(f"ds_write2_b64 v{vd+1}, v[{r}:{r+1}], v[{r+2}:{r+3}] offset0:{32*k} offset1:{32*k+1}")


def u_pad(G, vt, vz, subase):
    G.a(f"v_lshlrev_b32 v{vt}, 3, v0\nv_cmp_lt_u32 vcc, 14, v0\nv_add_u32 v{vt}, {subase}, v{vt}\nv_add_u32 v{vt+1}, 4096, v{vt}")
    G.a(f"v_cndmask_b32 v{vt}, v{vt}, v{vt+1}, vcc")


def u_pad_write(G, vt, vz):
    G.a(f"s_mov_b32 exec_hi, 0\nds_write_b64 v{vt}, v[{vz}:{vz+1}] offset:4096\ns_mov_b32 exec_hi, -1")


def pk(G, op, d, x, y, z=None, force=False):
    if G.o.nopk and not force:
        for i in (0, 1):
            G.a(f"v_{op}_f32 v{d+i}, v{x+i}, v{y+i}" + (f", v{z+i}" if z is not None else ""))
    else:
        G.a(f"v_pk_{op}_f32 v[{d}:{d+1}], v[{x}:{x+1}], v[{y}:{y+1}]" + (f", v[{z}:{z+1}]" if z is not None else ""))


def sq_prefetch(G, soff):
    G.a(f"s_add_u32 s{sK}, s{sQ}, s{soff}\ns_addc_u32 s{sK+1}, s{sQ+1}, 0")
    for i in range(16):
        G.a(f"s_load_dword s{sV}, s[{sK}:{sK+1}], {i*RS_IN}\ns_load_dword s{sV+1}, s[{sK}:{sK+1}], {i*RS_IN+64}")


def lds_count(G, vfl, vone, off):
    G.a(f"s_mov_b64 exec, 1\nds_add_u32 v{vfl}, v{vone} offset:{off}\ns_mov_b64 exec, -1")


def finish(G):
    if G.o.dspan:
        G.a("s_waitcnt vmcnt(0)")
        G.stamp(7, 7)
        G.srd(sK, pDBG, 256)
        D = G.lab("ds")
        G.a(f"s_waitcnt lgkmcnt(0)\ns_and_b32 s{sT0}, s2, 0x78\ns_cbranch_scc1 {D}")
        G.a(f"s_cmp_eq_u32 s{sWV}, 10\ns_cselect_b32 s{sT1}, 0, 32\ns_cselect_b32 s{sT0}, 1, 0\ns_cmp_eq_u32 s{sWV}, 9\ns_cselect_b32 s{sT0}, 1, s{sT0}\ns_cmp_eq_u32 s{sT0}, 1\ns_cbranch_scc0 {D}")
        G.a("s_not_b32 s90, s88")
        G.a("s_mov_b64 exec, 1")
        for i in range(8):
            G.a(f"v_mov_b32 v8, s{STAMP_REGS[i]}\nbuffer_atomic_umax v8, off, s[{sK}:{sK+3}], s{sT1} offset:{4*i} sc1")
        G.a(f"{D}:")
        G.a("s_endpgm")
        G.flush_cold()
        return
    if G.o.stamps:
        G.a("s_waitcnt vmcnt(0)")
        G.stamp(7, 7)
        G.a(f"s_add_u32 s{sT2}, s{pWS}, {64<<20}\ns_addc_u32 s{sT3}, s{pWS+1}, 0")
        G.srd(sK, sT2, 1 << 20)
        G.a(f"s_lshl_b32 s{sT0}, s2, 4\ns_add_u32 s{sT0}, s{sT0}, s{sWV}\ns_lshl_b32 s{sT0}, s{sT0}, 5")
        G.a("s_waitcnt lgkmcnt(0)")
        for i in range(8):
            G.a(f"v_mov_b32 v{8+i}, s{STAMP_REGS[i]}")
        G.a("s_mov_b64 exec, 1")
        G.a(f"buffer_store_dwordx4 v[8:11], off, s[{sK}:{sK+3}], s{sT0}")
        G.a(f"buffer_store_dwordx4 v[12:15], off, s[{sK}:{sK+3}], s{sT0} offset:16")
    G.a("s_endpgm")
    G.flush_cold()


class Stream:
    def __init__(self, G, slots, lead):
        self.G, self.slots, self.lead = G, slots, lead
        self.mf = []
        self.side = {}
        self.busy = {}
        self.avail = {}
        self.gate = {}
    def mfma(self, acc, A, B, zero):
        self.mf.append((acc, A, B, zero))
    def at(self, pos, fn, ds=0):
        self.side.setdefault(pos, []).append(fn)
        self.busy[pos] = self.busy.get(pos, 0) + ds
    def spread(self, pos, lines, step=1):
        for ln in lines:
            self.at(pos, lambda S_, ln=ln: S_.G.a(ln))
            pos += step
        return pos
    def emit(self, loadtext, pre=None):
        G = self.G
        n = len(self.mf)
        first, last, order = {}, {}, []
        for i, (acc, A, B, z) in enumerate(self.mf):
            for k in (A, B):
                if k not in first:
                    first[k] = i; order.append(k)
                last[k] = i
        free = [self.avail.get(r, 0) for r in self.slots]
        sched = {}
        cnt = [self.busy.get(i, 0) for i in range(n + 1)]
        slot_of = {}
        prev = 0
        for k in order:
            s = min(range(len(free)), key=lambda j: free[j])
            ops = loadtext(k, self.slots[s])
            lo = max(self.gate.get(k[0:2] + (k[2] >> 2,), 0), free[s], prev)
            slot_of[k] = self.slots[s]
            for op in ops:
                p = max(lo, first[k] - self.lead)
                hi = max(p, first[k] - 4)
                q = min(range(p, hi + 1), key=lambda x: (cnt[x], x))
                p = min(q, first[k])
                assert p >= lo, (k, p, lo)
                cnt[p] += 1
                sched.setdefault(p, []).append((k, op))
                prev = lo = p
            free[s] = last[k] + 1
        self.nds = 0
        self.done = 0
        ready = {}
        issued = []
        if pre:
            for k, op in sched.get(0, []):
                if k[1] == "A": G.a(op); self.nds += 1; ready[k] = self.nds
            sched[0] = [e for e in sched.get(0, []) if e[0][1] != "A"]
            self.nds += pre()
        for i in range(n + 1):
            for fn in self.side.get(i, []):
                fn(self)
            for k, op in sched.get(i, []):
                G.a(op); self.nds += 1; ready[k] = self.nds
            issued.append(self.nds)
            if i == n: break
            acc, A, B, z = self.mf[i]
            nd = max(ready[A], ready[B])
            if nd > self.done and G.o.wbatch and i >= G.o.wbatch:
                nd = max(nd, issued[i - G.o.wbatch])
            self.need(nd)
            a_, b_ = slot_of[A], slot_of[B]
            c = "0" if z else f"v[{acc}:{acc+3}]"
            G.a(f"v_mfma_f32_16x16x32_bf16 v[{acc}:{acc+3}], v[{a_}:{a_+3}], v[{b_}:{b_+3}], {c}")
        self.stats = (n, sum(cnt), max(cnt), sum(1 for c in cnt if c > 1))
    def ds(self, text):
        self.G.a(text); self.nds += 1
        return self.nds
    def need(self, idx):
        if idx > self.done:
            out = min(self.nds - idx, 15)
            self.G.a(f"s_waitcnt lgkmcnt({out})")
            self.done = self.nds - out


cA, cB, cAX, cBX, cY, cYX, cSW, cSR, cFL, cONE, c128, cT, cF, cL4 = 1, 2, 3, 4, 5, 6, 7, 8, 9, 10, 11, 12, 14, 15


def c_stream(G, ts, pre=None):
    o = G.o
    ACC = 16
    PK = 48
    ACX = 56
    slots = [72 + 4 * i for i in range(14)]
    S = Stream(G, slots, o.lead)
    acc = lambda t: ACC + 4 * t
    S.nst = 0
    seen = set()
    def add(ph, ch, pairs, ys, accf):
        for y in ys:
            for (x, b) in pairs:
                r = accf(x + b)
                S.mfma(r, (ph, "A", x, y, ch), (ph, "B", b, y, ch), (r, ch) not in seen)
                seen.add((r, ch))
    def loadtext(k, r):
        ph, typ, i, y, ch = k
        if typ == "A":
            return [f"ds_read_b128 v[{r}:{r+3}], v{cAX if ch else cA} offset:{512*i + 64*y}"]
        off = 512 * (7 - i) + 64 * y
        v = cBX if ch else cB
        return [f"ds_read_b128 v[{r}:{r+3}], v{v} offset:{off}"]
    p1 = [(x, b) for x in range(4) for b in range(4)]
    p1.sort(key=lambda p: (max(p), p[0] + p[1]))
    p1only = list(p1)
    p2 = [(4, 0), (5, 0), (4, 1), (6, 0), (5, 1), (4, 2), (7, 0), (6, 1), (5, 2), (4, 3)]
    p3 = [(x, b) for (b, x) in p2]
    tiles = [0, 3, 4, 7] if ts == 0 else [1, 2, 5, 6]
    px = [(x, b) for x in range(4, 8) for b in range(4) if x + b in tiles] + \
         [(x, b) for x in range(4) for b in range(4) if x + b in tiles] + \
         [(x, b) for x in range(4) for b in range(4, 8) if x + b in tiles]
    assert len(px) == 18
    use = []
    for (x, b) in px:
        if x + b not in use: use.append(x + b)
    accx = lambda t: ACX + 4 * use.index(t)
    if o.merge: p1 = p2 + p1
    beg, end = {}, {}
    for ph in o.order:
        if ph == "2" and o.merge: continue
        beg[ph] = len(S.mf)
        if ph == "a": add(1, 0, p1, range(o.ya), acc)
        if ph == "1": add(1, 0, p1, range(o.ya if "a" in o.order else 0, 8), acc)
        if ph == "x": add(2, 1, px, range(2), accx)
        if ph == "2": add(3, 0, p2, range(8), acc)
        if ph == "3" and not o.split3: add(4, 0, p3, range(8), acc)
        if ph == "3" and o.split3:
            add(4, 0, [p for p in p3 if sum(p) < 6], range(8), acc)
            e3a = len(S.mf)
            add(6, 0, [p for p in p3 if sum(p) >= 6], range(8), acc)
        if ph == "5": add(5, 0, p2 + p3, range(8), acc)
        end[ph] = len(S.mf)
    e1, ex, e3 = end["1"], end["x"], len(S.mf)
    S.mf[e1 - 16:e1] = sorted(S.mf[e1 - 16:e1], key=lambda m: m[0])

    def check(pos, off, expected):
        st = {}
        def rd(S_):
            st["i"] = S_.ds(f"ds_read_b32 v{cT}, v{cFL} offset:{off}")
        def ck(S_):
            S_.need(st["i"])
            if o.iso or o.x_nock or {F_X: 'X', C_U0: 'S', F_U2: 'U', C_H: 'H'}[off] in o.nock: return
            D, C = G.lab("ck"), G.lab("ckc")
            G.a(f"v_readfirstlane_b32 s{sT0}, v{cT}")
            G.a(f"s_cmp_ge_u32 s{sT0}, {expected}")
            G.a(f"s_cbranch_scc0 {C}")
            G.a(f"{D}:")
            def cold():
                G.a(f"{C}:")
                poll_lds(G, cFL, off, expected, cT)
                G.a(f"s_branch {D}")
            G.cold.append(cold)
        S.at(max(pos - 5, 0), rd, ds=1); S.at(max(pos, 0), ck)
    def count(pos, off):
        def f(S_):
            G.a("s_mov_b64 exec, 1")
            S_.ds(f"ds_add_u32 v{cFL}, v{cONE} offset:{off}")
            G.a("s_mov_b64 exec, -1")
        S.at(pos, f, ds=1)
    def ystore1(t, pk):
        A, B = G.lab("ys"), G.lab("yd")
        S.nst += 1
        G.a(f"s_mov_b32 s{sT1}, {t*TILE_STEP}")
        G.a(f"s_cbranch_vccnz {A}")
        G.a(f"buffer_store_dwordx2 v[{pk}:{pk+1}], v{cY}, s[{sXY}:{sXY+3}], s{sT1} offen")
        G.a(f"{B}:")
        def cold():
            G.a(f"{A}:")
            G.a(f"buffer_store_dwordx2 v[{pk}:{pk+1}], v{cY}, s[{sXY}:{sXY+3}], s{sT1} offen sc1")
            G.a(f"s_branch {B}")
        G.cold.append(cold)
    Ld = o.lead + 1
    check(beg["x"] - o.xlead, F_X, 2 if o.xsplit else 1)
    for h in (0, 1):
        S.gate[(2, "A", h)] = S.gate[(2, "B", h)] = beg["x"] - o.xlead
    if not o.h2early:
        check(beg["2"] - Ld, C_H, 4)
        S.gate[(3, "A", 1)] = beg["2"] - Ld
    if not o.u2early:
        check(beg["3"] - o.ulead, F_U2, 4)
        S.gate[(4, "B", 1)] = beg["3"] - o.ulead
    lastw = {t: max(i for i in range(e1) if S.mf[i][0] == acc(t)) for t in range(4)}
    reuse = beg["x"]
    p = 0
    for t in range(4):
        p = max(p, lastw[t] + 9)
        r = acc(t)
        p = S.spread(p, [f"v_cvt_pk_bf16_f32 v{PK+2*t}, v{r}, v{r+1}", f"v_cvt_pk_bf16_f32 v{PK+2*t+1}, v{r+2}, v{r+3}"])
    if o.y1dir:
        if o.merge: p = e3 - 30
        for t in range(4):
            S.at(p, lambda S_, t=t: ystore1(t, PK + 2 * t))
            p += 2
        if not o.merge:
            def y1flag(S_):
                G.a(f"s_sub_u32 s{sX1}, s{sEV}, {L_Y2 - L_Y1}\ns_waitcnt vmcnt(0)")
                signal(G, cF, c128, sX1, L_Y1, 2, 8, 16)
            S.at(p + o.y1ack, y1flag)
    for t in range(0 if o.y1dir else 4):
        def yw(S_, t=t):
            S_.last_yw = S_.ds(f"ds_write_b64 v{cYX}, v[{PK+2*t}:{PK+2*t+1}] offset:{2048*t}")
        S.at(p, yw, ds=1)
        p += 2
    if not o.y1dir:
        S.at(p + 4, lambda S_: S_.need(S_.last_yw))
        count(p + 4, C_Y1)
    S.at(e1, lambda S_: G.stamp(3, mid=3))
    p = ex + 8
    if not o.konly: check(p, C_U0, 4)
    for i in range(4):
        def pw(S_, i=i):
            S_.last_pw = S_.ds(f"ds_write_b128 v{cSW}, v[{accx(tiles[i])}:{accx(tiles[i])+3}] offset:{4096*i}")
        S.at(p + i, pw, ds=1)
    S.at(p + 8, lambda S_: S_.need(S_.last_pw))
    count(p + 8, C_P)
    for i in range(4):
        S.slots.append(ACX + 4 * i); S.avail[ACX + 4 * i] = p + 9
    S.at(end.get("3", ex + 80), lambda S_: G.stamp(4, mid=4))
    S.at(ex, lambda S_: G.stamp(5, mid=5))
    n = e3
    P2 = ACC + 8
    def cvt(t):
        r = acc(t)
        return [f"v_cvt_pk_bf16_f32 v{P2+2*(t-4)}, v{r}, v{r+1}", f"v_cvt_pk_bf16_f32 v{P2+2*(t-4)+1}, v{r+2}, v{r+3}"]
    nl = 10 * o.stag
    S.mf[n - nl:] = sorted(S.mf[n - nl:], key=lambda m: m[0])
    p, late = 0, []
    for t in (4, 5, 6, 7):
        lw = max(i for i in range(n) if S.mf[i][0] == acc(t))
        p = max(p, lw + 9)
        if p + 2 <= n:
            p = S.spread(p, cvt(t))
            S.at(p, lambda S_, t=t: ystore1(t, P2 + 2 * (t - 4)))
        else:
            late.append((t, n - 1 - lw))
    def tail(S_):
        G.stamp(6, mid=6, tl=3)
        states = 0
        for t, d in late:
            if d + states < 8:
                G.a(f"s_nop {8 - d - states - 1}"); states = 8 - d
            G.a("\n".join(cvt(t))); ystore1(t, P2 + 2 * (t - 4))
            states += 5
    S.at(n, tail)
    if o.ydata and o.ygo > 0: count(n - o.ygo, C_Y2)
    S.emit(loadtext, pre)
    if o.ydata and not o.ygo: lds_count(G, cFL, cONE, C_Y2)
    G.stamp(-1, tl=4)
    G.a("s_waitcnt vmcnt(0)")
    G.stamp(-1, tl=5)
    if o.ydata and o.ygo < 0: lds_count(G, cFL, cONE, C_Y2)
    signal(G, cF, c128, sEV, L_Y2, 2, 12, 16)
    finish(G)
    return S.stats


def gen(o):
    G = Gen(o)
    a = G.a
    nt = o.ld_nt
    K = NAME + "_kernel"
    assert o.y1dir or not o.qhold
    GO2 = 8 if o.uxearly else 9
    GO3 = GO2 + (0 if o.h2early else 4)
    a(f"{K}:")
    a("s_cmp_ge_u32 s2, 256\ns_cbranch_scc1 L_exit")
    if o.stamps or o.dspan:
        a("s_memtime s[88:89]" if o.cyc else "s_memrealtime s[88:89]")
    a("s_load_dwordx16 s[16:31], s[0:1], 0")
    a("s_load_dwordx8 s[32:39], s[0:1], 64")
    a("s_load_dwordx4 s[40:43], s[0:1], 96")
    a("s_load_dwordx2 s[44:45], s[0:1], 112")
    if o.pfentry:
        a(f"s_getpc_b64 s[{sT0}:{sT1}]")
        a("L_pc:")
        a(f"s_bfe_u32 s{sT2}, s2, {(3<<16)|3}\ns_mul_i32 s{sT2}, s{sT2}, 24\nv_cmp_gt_u32 vcc, 16, v0\nv_add_u32 v2, s{sT2}, v0\ns_nop 0")
        a(f"v_cndmask_b32 v2, v2, v0, vcc\nv_lshlrev_b32 v2, 7, v2\nv_min_u32 v2, L_exit-L_pc, v2\nv_cmp_gt_u32 vcc, 40, v0\ns_and_saveexec_b64 s[{sT2}:{sT3}], vcc\ns_cbranch_execz L_pd")
        a(f"global_load_dword v17, v2, s[{sT0}:{sT1}]")
        a(f"L_pd:\ns_mov_b64 exec, s[{sT2}:{sT3}]")
    a("v_lshrrev_b32 v1, 6, v0")
    a(f"s_and_b32 s{sG}, s2, 7")
    a(f"v_readfirstlane_b32 s{sWV}, v1")
    a("v_and_b32 v0, 63, v0")
    a(f"s_lshr_b32 s{sR}, s2, 3\ns_lshr_b32 s{sH}, s{sG}, 2\ns_and_b32 s{sGQ}, s{sG}, 3")
    a(f"s_cmp_eq_u32 s{sWV}, {W_S}\ns_cbranch_scc1 L_Si")
    if o.cfirst: a(f"s_sub_u32 s46, s{sWV}, 6\ns_cmp_lt_u32 s46, 4\ns_cbranch_scc1 L_Ci")
    else: a(f"s_cmp_ge_u32 s{sWV}, {W_C}\ns_cbranch_scc1 L_Ci")

    vIN, vK3, vWo, vDo, vG, vL = 1, 2, 3, 4, 5, 6
    vFL, vONE, vX, vO1, vO2, vT, vF, vL4, v128, vRD = 7, 8, 9, 10, 11, 12, 14, 15, 124, 126
    WR, DR, KR, VR, QR = 16, 24, 26, 40, 48
    WF, KF, KS, PKU = 56, 72, 100, 116
    if o.cfirst: a(f"s_cmp_gt_u32 s{sWV}, 9\ns_cselect_b32 s{sT0}, 4, 0\ns_sub_u32 s{sE}, s{sWV}, s{sT0}")
    a(f"s_sub_u32 s{sE}, s{sE if o.cfirst else sWV}, 2\ns_cselect_b32 s{sE}, 8, s{sE}\ns_and_b32 s{sT0}, s{sE}, 4\ns_cselect_b64 vcc, -1, 0")
    a(f"s_lshl_b32 s{sT1}, s{sR}, 1\ns_and_b32 s{sT2}, s{sE}, 4\ns_lshl_b32 s{sT2}, s{sT2}, 4\ns_add_u32 s{sT1}, s{sT1}, s{sT2}")
    a(f"s_bfe_u32 s{sT2}, s{sE}, {(1<<16)|1}\ns_add_u32 s{sT1}, s{sT1}, s{sT2}")
    a(f"s_lshl_b32 s{sT0}, s{sGQ}, 1\ns_and_b32 s{sT3}, s{sE}, 1\ns_add_u32 s{sT0}, s{sT0}, s{sT3}")
    a(f"s_lshl_b32 s{sT2}, s{sGQ}, 5\ns_add_u32 s{sT2}, s{sT2}, s{sR}")
    a(f"v_lshrrev_b32 v{vK3}, 3, v0\nv_mul_u32_u24 v{vK3}, {RS_IN}, v{vK3}\nv_and_b32 v{vWo}, 7, v0\nv_lshl_add_u32 v{vK3}, v{vWo}, 4, v{vK3}")
    a(f"s_cmp_eq_u32 s{sE}, 8")
    a(f"s_cselect_b32 s46, 8, s{sT0}\ns_cselect_b32 s47, s{sT2}, s{sT1}")
    a(f"s_mul_i32 s{sT0}, s47, {16*RS_IN}\ns_lshl_b32 s{sT1}, s46, 7\ns_add_u32 s{sSIG}, s{sT0}, s{sT1}")
    a(f"v_add_u32 v{vIN}, s{sSIG}, v{vK3}")
    a(f"s_lshl_b32 s{sT2}, s46, 9")
    a(f"v_lshl_add_u32 v{vWo}, v0, 4, s{sT2}\nv_lshl_add_u32 v{vDo}, v0, 4, s{sT1}")
    a(f"v_add_u32 v{vK3}, {(-3*RS_IN) & 0xffffffff}, v{vIN}")
    G.srd(sK, None, TENS); G.srd(sV, None, TENS); G.srd(sW, None, 4608)
    a(f"s_mul_i32 s{sSTG}, s{sE}, {STG_SZ}\ns_add_u32 s{sSTG}, s{sSTG}, {U0}\ns_cmp_eq_u32 s{sE}, 8\ns_cselect_b32 s{sSTG}, {STGX}, s{sSTG}\ns_add_u32 s{sT0}, s{sSTG}, 1024")
    a(f"s_cmp_eq_u32 s{sH}, 0")
    a("s_waitcnt lgkmcnt(0)")
    G.stamp(-1, 1)
    a(f"s_cselect_b64 s[{sK}:{sK+1}], s[18:19], s[30:31]")
    a(f"s_cbranch_vccnz L_E2i")
    a(f"s_mov_b32 m0, s{sSTG}\ns_mov_b32 s{sT1}, {5*RS_IN}")
    a(f"buffer_load_dwordx4 v{vK3}, s[{sK}:{sK+3}], 0 offen {o.k_nt} lds")
    a(f"s_mov_b32 m0, s{sT0}\ns_cselect_b64 s[{sV}:{sV+1}], s[20:21], s[32:33]")
    a(f"buffer_load_dwordx4 v{vIN}, s[{sK}:{sK+3}], s{sT1} offen {o.k_nt} lds")
    a(f"s_cselect_b64 s[{sW}:{sW+1}], s[22:23], s[34:35]")
    a(f"s_cselect_b64 s[{sD}:{sD+1}], s[26:27], s[38:39]")
    a(f"s_cselect_b64 s[{sQ}:{sQ+1}], s[16:17], s[28:29]")
    a(f"s_cselect_b64 s[{sHH}:{sHH+1}], s[24:25], s[36:37]")
    if o.barpos == 2: a("s_barrier")
    a(f"s_add_u32 s{sT0}, s{sSTG}, 2048\ns_mov_b32 m0, s{sT0}\ns_mov_b32 s{sT1}, {13*RS_IN}\ns_mov_b64 exec, 0xffffff\ns_add_u32 s{sT0}, s{sSTG}, 4480")
    a(f"buffer_load_dwordx4 v{vIN}, s[{sK}:{sK+3}], s{sT1} offen {o.k_nt} lds")
    a(f"s_mov_b32 m0, s{sT0}\ns_mov_b32 exec_lo, -1\ns_add_u32 s{sT0}, s{sSTG}, 4992")
    a(f"buffer_load_dwordx4 v{vWo}, s[{sW}:{sW+3}], 0 offen lds")
    G.srd(sD, None, 1152)
    a(f"s_mov_b32 m0, s{sT0}\ns_mov_b32 exec_lo, 0xff\ns_add_u32 s{sT0}, s{sSTG}, 2432")
    a(f"buffer_load_dwordx4 v{vDo}, s[{sD}:{sD+3}], 0 offen lds")
    a(f"s_mov_b32 m0, s{sT0}\ns_mov_b64 exec, -1\ns_add_u32 s{sT0}, s{sSTG}, {2432+1024}")
    a(f"buffer_load_dwordx4 v{vIN}, s[{sV}:{sV+3}], 0 offen {nt} lds")
    a(f"s_mov_b32 m0, s{sT0}\ns_mov_b32 s{sT1}, {8*RS_IN}")
    a(f"buffer_load_dwordx4 v{vIN}, s[{sV}:{sV+3}], s{sT1} offen {nt} lds")
    G.stamp(-1, 2)
    if o.barpos != 2: a("s_barrier")
    a("s_branch L_Em")
    a("L_E2i:")
    a(f"s_cselect_b64 s[{sV}:{sV+1}], s[20:21], s[32:33]")
    a(f"s_cselect_b64 s[{sW}:{sW+1}], s[22:23], s[34:35]")
    a(f"s_cselect_b64 s[{sD}:{sD+1}], s[26:27], s[38:39]")
    a(f"s_cselect_b64 s[{sQ}:{sQ+1}], s[16:17], s[28:29]")
    a(f"s_cselect_b64 s[{sHH}:{sHH+1}], s[24:25], s[36:37]")
    a("s_barrier\ns_branch L_Em")

    cHA, cHB, cHB0, cPF, cZ, cU = 48, 49, 50, 51, 56, 60
    a("L_Ci:")
    if o.ebar2: a("s_barrier")
    if not o.cfirst: a(f"s_sub_u32 s46, s{sWV}, {W_C}")
    chan_of(G, 46, sT0)
    a(f"s_lshl_b32 s{sT0}, s{sT0}, 12")
    a(f"v_lshl_add_u32 v{cHA}, v0, 4, s{sT0}")
    inbox_of(G, 47, sSIG)
    G.srd(sHH, None, TENS)
    if o.prefill:
        G.srd(sOUT, None, OUTB)
        a(f"s_lshl_b32 s{sT0}, s46, {5 if o.u2early else 4}\nv_lshrrev_b32 v{cPF}, {1 if o.u2early else 2}, v0\nv_add_u32 v{cPF}, s{sT0}, v{cPF}")
        blk_addr(G, cPF, cHB, sSIG, RS_OUT, 47)
    a(f"s_cmp_eq_u32 s{sH}, 0")
    a("s_waitcnt lgkmcnt(0)" + ("" if o.ebar2 else "\ns_barrier"))
    G.stamp(-1, 1)
    a(f"s_cselect_b64 s[{sHH}:{sHH+1}], s[24:25], s[36:37]")
    xa_loads(G, 64, cHA, 0)
    xa_loads(G, 72, cHA, 1)
    if o.h2early:
        xa_loads(G, 112, cHA, 2)
        xa_loads(G, 120, cHA, 3)
    if o.prefill:
        a(f"s_mov_b64 s[{sOUT}:{sOUT+1}], s[{pOUT}:{pOUT+1}]")
        a(f"buffer_load_dword v{cPF}, v{cPF}, s[{sOUT}:{sOUT+3}], 0 offen {o.pf_nt}")
    G.stamp(-1, 2)
    a("s_branch L_Cm")

    sFL, sONE, s128, sT_, sF_, sL4, sZ, sHA, sHB, sHB0, sU, sU1, sP = 1, 2, 3, 4, 6, 7, 8, 12, 13, 14, 15, 16, 17
    a("L_Si:")
    if o.prefetch_code and not o.pfentry:
        a(f"s_getpc_b64 s[{sT0}:{sT1}]")
        a("L_pc:")
        a(f"s_and_b32 s{sT2}, s{sR}, 7\ns_mul_i32 s{sT2}, s{sT2}, 3072\nv_min_u32 v{sP}, 23, v0\nv_lshl_add_u32 v{sP}, v{sP}, 7, s{sT2}\nv_min_u32 v{sP}, L_exit-L_pc, v{sP}")
        a(f"global_load_dword v{sP}, v{sP}, s[{sT0}:{sT1}]")
    for i in range(4): a(f"v_mov_b32 v{sZ+i}, 0")
    a(f"v_lshlrev_b32 v{sL4}, 2, v0\nv_min_u32 v{sT_}, 60, v{sL4}\nv_add_u32 v{sT_}, {FL0}, v{sT_}\nds_write_b32 v{sT_}, v{sZ}")
    a(f"v_lshlrev_b32 v{s128}, 7, v0")
    a("s_waitcnt lgkmcnt(0)\ns_barrier")
    G.stamp(-1, 1)
    a(f"s_cmp_eq_u32 s{sH}, 0")
    a(f"s_cselect_b64 s[{sHH}:{sHH+1}], s[24:25], s[36:37]")
    a(f"s_cselect_b64 s[{sQ}:{sQ+1}], s[16:17], s[28:29]")
    ctl_srd(G)
    a(f"s_load_dwordx2 s[{sX1+1}:{sX1+2}], s[{sCT}:{sCT+1}], 0")
    a(f"buffer_load_dword v{sHB0}, v{s128}, s[{sCT}:{sCT+3}], s{sGB} offen")
    if o.udata: a(f"v_and_b32 v23, 0x780, v{s128}\nv_add_u32 v23, {L_S}, v23\nbuffer_load_dword v23, v23, s[{sCT}:{sCT+3}], s{sGB} offen")
    if o.pfux:
        a(f"s_add_u32 s{sK}, s{pWS}, {XU_OFF}\ns_addc_u32 s{sK+1}, s{pWS+1}, 0")
        G.srd(sK, None, 3 << 20)
        a(f"s_lshl_b32 s{sT0}, s{sGQ}, 5\ns_add_u32 s{sT0}, s{sT0}, s{sR}\ns_lshl_b32 s{sT0}, s{sT0}, 12\ns_lshl_b32 s{sT1}, s{sH}, {HSH}\ns_add_u32 s{sT0}, s{sT0}, s{sT1}")
        a(f"v_lshlrev_b32 v22, 6, v0\nbuffer_load_dword v22, v22, s[{sK}:{sK+3}], s{sT0} offen")
    G.stamp(-1, 2)
    if o.iso:
        a(f"v_mov_b32 v{sFL}, {FL0}\nv_mov_b32 v{sT_}, 2\nv_mov_b32 v{sT_+1}, 2\nds_write_b64 v{sFL}, v[{sT_}:{sT_+1}] offset:{F_N}\ns_waitcnt lgkmcnt(0)\ns_endpgm")
    a(f"v_mov_b32 v{sFL}, {FL0}\nv_mov_b32 v{sONE}, 1")
    a("s_waitcnt lgkmcnt(0)")
    a(f"s_and_b32 s{sN}, s{sX2}, 0xfffffff0\ns_add_u32 s{sN}, s{sN}, 0x9e3779b0\nv_mov_b32 v{sT_}, s{sN}")
    a(f"s_add_u32 s{sTAG}, s{sX3}, 1\ns_and_b32 s{sTAG}, s{sTAG}, 0xffff\ns_add_u32 s{sT0}, s{sTAG}, 0x10000\nv_mov_b32 v{sT_+1}, s{sT0}")
    a(f"ds_write_b64 v{sFL}, v[{sT_}:{sT_+1}] offset:{F_N}")
    G.stamp(1, -1)
    a(f"v_lshlrev_b32 v{sHA}, 4, v0")
    u_pad(G, 20, sZ, U0 + 4 * U_SZ)
    a(f"v_add_u32 v{sU1}, {XA0 + 4*XA_SZ}, v{sHA}")
    for p in range(4):
        a(f"ds_write_b128 v{sU1}, v[{sZ}:{sZ+3}] offset:{p*PLANE}")
    G.srd(sHH, None, TENS)
    misc_srd(G)
    a(f"s_add_u32 s{sK}, s{pWS}, {XU_OFF}\ns_addc_u32 s{sK+1}, s{pWS+1}, 0")
    G.srd(sK, None, 3 << 20)
    G.srd(sOUT, pOUT, OUTB)
    a(f"s_getreg_b32 s{sF}, hwreg(HW_REG_XCC_ID, 0, 4)\ns_add_u32 s{sF}, s{sF}, s{sN}\ns_add_u32 s{sF}, s{sF}, 1\nv_mov_b32 v{sF_}, s{sF}")
    xbox_of(G, sX3, sX2, sLR)
    a(f"s_add_u32 s{sT0}, s{sX2}, 512\ns_lshl_b32 s{sT0}, s{sT0}, 12")
    a(f"v_add_u32 v{sHA}, s{sT0}, v{sHA}")
    for q in range(4):
        xa_loads(G, 32 + 8 * q, sHA, q)
    if o.w1only: finish(G)
    a(f"v_lshrrev_b32 v{sHB}, 2, v0\nv_sub_u32 v{sHB}, 15, v{sHB}")
    blk_addr(G, sHB, sT_, sLR, 256, sX3)
    a(f"v_and_b32 v{sT_}, 3, v0\nv_lshl_add_u32 v{sHB}, v{sT_}, 4, v{sHB}")
    a(f"v_lshlrev_b32 v18, 3, v0\nv_add_u32 v18, {U0 + 4*U_SZ}, v18\ns_mov_b32 s47, 0x07060302\ns_setprio {o.sprio}")
    for q in range(4):
        a(f"s_waitcnt vmcnt({6-2*q})")
        xa_build(G, 32 + 8 * q, 96 + 12 * (q & 1), sU1, 384 + 1024 * q, q)
    G.stamp(-1, 3)
    poll_lds(G, sFL, C_GO, 4, sT_)
    G.stamp(2, 4, 1)
    def after():
        lds_count(G, sFL, sONE, C_GO)
        u_pad_write(G, 20, sZ)
        return 0
    if "s" in o.x_skip:
        lds_count(G, sFL, sONE, C_GO); a("s_endpgm")
    nS = 4 if o.xsplit else 8
    tagged_loads(G, nS, 96, sHB, sK, lambda k: ((7 - k) * 16 * 4096, 0), sT_, after)
    for k in range(nS):
        a(f"v_perm_b32 v{64+2*k}, v{97+4*k}, v{96+4*k}, s47\nv_perm_b32 v{65+2*k}, v{99+4*k}, v{98+4*k}, s47")
        a(f"ds_write_b64 v18, v[{64+2*k}:{65+2*k}] offset:{512*k}\nds_write_b64 v18, v[{64+2*k}:{65+2*k}] offset:{512*k + UP1 - 8}")
    a("s_waitcnt lgkmcnt(0)")
    lds_count(G, sFL, sONE, F_X)
    G.stamp(3, 6, 3)
    D = G.lab("epo")
    a(f"s_or_b32 s{sT0}, s{sGQ}, s{sR}\ns_cbranch_scc1 {D}")
    if o.xsplit: poll_lds(G, sFL, F_X, 2, sT_)
    a(f"s_mov_b64 exec, 1\nv_mov_b32 v{sT_}, s{sN}\nv_mov_b32 v{sT_+1}, s{sTAG}\nbuffer_store_dwordx2 v[{sT_}:{sT_+1}], off, s[{sCT}:{sCT+3}], 0\ns_mov_b64 exec, -1")
    a(f"{D}:")
    if o.sred:
        a(f"s_add_u32 s{sWMY}, s{pWS}, {XY_OFF}\ns_addc_u32 s{sWMY+1}, s{pWS+1}, 0")
        G.srd(sWMY, None, 3 << 20)
        a(f"s_lshl_b32 s{sT0}, s{sGQ}, 5\ns_add_u32 s{sT0}, s{sT0}, s{sR}\ns_lshr_b32 s{sT0}, s{sT0}, 1\ns_lshl_b32 s{sX4}, s{sH}, {HSH}")
        a(f"v_lshrrev_b32 v{sHA}, 3, v0\nv_add_u32 v{sT_}, s{sT0}, v{sHA}\nv_and_b32 v{sT_}, 7, v{sT_}\ns_and_b32 s{sT0}, s{sT0}, 56\nv_or_b32 v{sT_}, s{sT0}, v{sT_}")
        a(f"v_lshl_add_u32 v{sHA}, v{sHA}, 6, v{sT_}\nv_lshlrev_b32 v{sHA}, 7, v{sHA}\nv_and_b32 v{sT_}, 7, v0\nv_lshl_add_u32 v{sHA}, v{sT_}, 4, v{sHA}\nv_add_u32 v{sHA}, s{sX4}, v{sHA}")
        a(f"v_lshlrev_b32 v{sHB}, 4, v0\nv_add_u32 v{sHB}, {SCR0}, v{sHB}\nv_mov_b32 v19, s{sTAG}\ns_mov_b32 s47, 0xffff0000\nv_mov_b32 v21, 4")
        a(f"s_and_b32 s{sT0}, s{sR}, 1\ns_lshl_b32 s{sX1}, s{sT0}, 16\ns_sub_u32 s{sX2}, {3<<16}, s{sX1}\ns_add_u32 s{sX3}, s{sX1}, {4<<16}\ns_add_u32 s{sX4}, s{sX2}, {4<<16}")
        so = [sX1, sX2, sX3, sX4]
        if o.pfyx:
            for i in range(4): a(f"buffer_load_dword v20, v{sHA}, s[{sWMY}:{sWMY+3}], s{so[i]} offen")
        poll_lds(G, sFL, C_P, 4, sT_, sleep=2)
        for i in range(12):
            a(f"ds_read_b128 v[{32+4*i}:{35+4*i}], v{sHB} offset:{1024*i}")
        for i in range(4):
            if i == 1:
                for k in range(12, 16):
                    a(f"ds_read_b128 v[{32+4*k}:{35+4*k}], v{sHB} offset:{1024*k}")
            a(f"s_waitcnt lgkmcnt({[8, 8, 4, 0][i]})")
            r = 32 + 16 * i
            for d in (0, 2): pk(G, "add", r + d, r + d, r + 4 + d)
            for d in (0, 2): pk(G, "add", r + 8 + d, r + 8 + d, r + 12 + d)
            for d in (0, 2): pk(G, "add", r + d, r + d, r + 8 + d)
            a(f"v_cvt_pk_bf16_f32 v{r+4}, v{r}, v{r+1}\nv_cvt_pk_bf16_f32 v{r+5}, v{r+2}, v{r+3}")
            for d in (0, 1):
                a(f"v_lshl_or_b32 v{r+2*d}, v{r+4+d}, 16, v19\nv_and_or_b32 v{r+2*d+1}, v{r+4+d}, s47, v19")
        G.stamp(4, mid=4, tl=4)
        poll_lds(G, sFL, F_U2, 4, sT_, sleep=1)
        for i in range(4):
            a(f"buffer_store_dwordx4 v[{32+16*i}:{35+16*i}], v{sHA}, s[{sWMY}:{sWMY+3}], s{so[i]} offen sc1")
        lds_count(G, sFL, sONE, F_U2)
        G.stamp(5, mid=5, tl=5)
        a("s_waitcnt vmcnt(0)")
        lds_count(G, sFL, 21, C_YX)
    if o.sqs:
        poll_lds(G, sFL, C_U1, 1, sT_, sleep=3)
        for e in range(o.sqs):
            a(f"s_lshl_b32 s{sT0}, s{sR}, 1\ns_add_u32 s{sT0}, s{sT0}, {e >> 1}\ns_mul_i32 s{sT0}, s{sT0}, {16*RS_IN}\ns_lshl_b32 s{sT1}, s{sGQ}, 8\ns_add_u32 s{sT0}, s{sT0}, s{sT1}\ns_add_u32 s{sT0}, s{sT0}, {128*(e & 1)}")
            sq_prefetch(G, sT0)
        a("s_waitcnt lgkmcnt(0)")
    finish(G)

    a("L_Em:")
    if o.w1only:
        a("s_waitcnt vmcnt(2)"); G.stamp(1, 4); a("s_waitcnt vmcnt(0)"); finish(G)
    if o.iso: a("s_waitcnt vmcnt(0)\ns_endpgm")
    a(f"s_setprio 1\ns_cmp_eq_u32 s{sE}, 8\ns_cbranch_scc0 L_Eh\ns_setprio 3")
    a("L_Eh:")
    G.stamp(-1, 3)
    vB1, vB2, vB3, vB4 = 42, 43, 44, 45
    vA1, vA2, vA3, vA4, vA5 = vK3, vWo, vDo, 125, 127
    QF, DF, YR, YF = KF, WF, 16, 24
    LX, LP, L2, LW, LZ = G.lab("ex"), G.lab("ep"), G.lab("e2"), G.lab("ew"), G.lab("ez")
    a(f"v_and_b32 v{vG}, 15, v0\nv_lshrrev_b32 v{vL}, 4, v0")
    a(f"v_mul_u32_u24 v{vIN}, {4*RS_IN}, v{vL}\nv_lshl_add_u32 v{vIN}, v{vG}, 3, v{vIN}\nv_add_u32 v{vIN}, s{sSIG}, v{vIN}")
    E2a = G.lab("e2a")
    a(f"s_cbranch_vccz {E2a}")
    a(f"s_sub_u32 s{sSTG}, s{sE}, 4\ns_mul_i32 s{sSTG}, s{sSTG}, {2432 if o.konly else 4480}\ns_add_u32 s{sSTG}, s{sSTG}, {YB0 if o.konly else SCR0}")
    G.srd(sD, None, 1152)
    a(f"s_lshl_b32 s{sT0}, s46, 9\nv_lshl_add_u32 v{vWo}, v{vG}, 5, s{sT0}\ns_lshl_b32 s{sT0}, s46, 7\nv_lshl_add_u32 v{vDo}, v{vG}, 3, s{sT0}")
    a(f"buffer_load_dwordx4 v[{WR}:{WR+3}], v{vWo}, s[{sW}:{sW+3}], 0 offen\nbuffer_load_dwordx4 v[{WR+4}:{WR+7}], v{vWo}, s[{sW}:{sW+3}], 0 offen offset:16")
    a(f"buffer_load_dwordx2 v[{DR}:{DR+1}], v{vDo}, s[{sD}:{sD+3}], 0 offen")
    a(f"{E2a}:")
    a(f"v_lshlrev_b32 v{vRD}, 9, v{vL}\nv_lshl_add_u32 v{vRD}, v{vG}, 3, v{vRD}\nv_add_u32 v{vRD}, s{sSTG}, v{vRD}")
    a(f"v_lshl_add_u32 v{vWo}, v{vG}, 5, s{sSTG}\nv_lshl_add_u32 v{vDo}, v{vG}, 3, s{sSTG}")
    G.srd(sQ, None, TENS); G.srd(sHH, None, TENS)
    G.srd(sOUT, pOUT, OUTB)
    ctl_srd(G)
    misc_srd(G)
    a(f"s_mov_b32 s{sLC}, s46\ns_lshl_b32 s{sROW0}, s47, 4")
    a(f"s_lshl_b32 s{sT1}, s{sLC}, 7\ns_mul_i32 s{sCOL}, s{sH}, 1152\ns_add_u32 s{sCOL}, s{sCOL}, s{sT1}")
    a(f"s_mul_i32 s{sT0}, s{sROW0}, {RS_OUT}\ns_add_u32 s{sT0}, s{sT0}, s{sCOL}")
    a(f"v_mul_u32_u24 v{vO1}, {4*RS_OUT}, v{vL}\nv_lshl_add_u32 v{vO1}, v{vG}, 3, v{vO1}\nv_add_u32 v{vO1}, s{sT0}, v{vO1}")
    a(f"v_add_u32 v{vO2}, {2*RS_OUT}, v{vO1}")
    a(f"s_lshl_b32 s{sT1}, s47, 12\ns_lshl_b32 s{sT2}, s{sH}, {HSH}\ns_add_u32 s{sT1}, s{sT1}, s{sT2}\ns_mov_b32 s{sT2}, {RS_OUT}")
    a(f"s_cmp_eq_u32 s{sE}, 8\ns_cselect_b32 s{sT0}, s{sT1}, s{sT0}\ns_cselect_b32 s{sT1}, 256, s{sT2}\ns_cselect_b32 s{sT2}, 6, 5")
    a(f"v_and_b32 v{vX}, 12, v{vG}\nv_add3_u32 v{vX}, v{vX}, v{vL}, s47\nv_and_b32 v{vX}, 15, v{vX}\nv_mul_u32_u24 v{vX}, s{sT1}, v{vX}")
    a(f"v_and_b32 v{vT}, 3, v{vG}\nv_lshlrev_b32 v{vT}, s{sT2}, v{vT}\nv_add3_u32 v{vX}, v{vX}, v{vT}, s{sT0}")
    a(f"v_mov_b32 v{vFL}, {FL0}\nv_mov_b32 v{vONE}, 1\nv_lshlrev_b32 v{vL4}, 3, v0\nv_lshlrev_b32 v{v128}, 9, v0")
    a(f"s_and_b32 s{sX3}, s{sE}, 3\ns_lshl_b32 s{sEV}, s{sR}, 2\ns_add_u32 s{sEV}, s{sEV}, s{sX3}\ns_lshl_b32 s{sEV}, s{sEV}, 2\ns_add_u32 s{sEV}, s{sEV}, s{sGB}")
    a(f"s_mov_b32 s47, 0xffff0000")
    if o.k2early: a(f"s_cbranch_vccnz {L2}")
    get_nonce(G, vFL, vT, vF)
    if not o.k2early: a(f"s_cbranch_vccnz {L2}")

    def unpack_w():
        for c in range(4):
            for j in range(4):
                src = WR + 2 * c + (j >> 1)
                a(f"v_lshlrev_b32 v{WF+4*j+c}, 16, v{src}" if j % 2 == 0 else f"v_and_b32 v{WF+4*j+c}, s47, v{src}")
    def first_phase(packed, wait_v, part=3):
        for i in range(7 if part & 1 else 0):
            for d in range(2):
                a(f"v_lshlrev_b32 v{KF+4*i+2*d}, 16, v{KR+2*i+d}")
                a(f"v_and_b32 v{KF+4*i+2*d+1}, s47, v{KR+2*i+d}")
        for j in ((3, 2, 1, 0) if part & 1 else ()):
            if j == 0: wait_v(0)
            for r in range(4):
                for d in range(2):
                    ks, w, k = KS + 4 * r + 2 * d, WF + 4 * j + 2 * d, KF + 4 * (3 + r - j) + 2 * d
                    if j == 3: pk(G, "mul", ks, k, w, force=packed)
                    else: pk(G, "fma", ks, k, w, ks, force=packed)
        if not part & 2: return
        wait_v(1)
        for r in range(4):
            for d in range(2):
                a(f"v_lshlrev_b32 v{KF+4*r+2*d}, 16, v{VR+2*r+d}")
                a(f"v_and_b32 v{KF+4*r+2*d+1}, s47, v{VR+2*r+d}")
        for r in range(4):
            for d in range(2):
                pk(G, "mul", KS + 4 * r + 2 * d, KS + 4 * r + 2 * d, KF + 4 * r + 2 * d, force=packed)
        regs = [PKU + 2 * (3 - j) for j in range(4)]
        for c in range(4):
            a(f"v_cvt_pk_bf16_f32 v{regs[c]}, v{KS+12+c}, v{KS+8+c}")
            a(f"v_cvt_pk_bf16_f32 v{regs[c]+1}, v{KS+4+c}, v{KS+c}")
        transpose4(G, regs)
    def skip_term(packed=True, part=3):
        for d in range(2 if part & 1 else 0):
            a(f"v_lshlrev_b32 v{DF+2*d}, 16, v{DR+d}\nv_and_b32 v{DF+2*d+1}, s47, v{DR+d}")
        for r in range(4 if part & 2 else 0):
            for d in range(2):
                pk(G, "mul", KS + 4 * r + 2 * d, KS + 4 * r + 2 * d, DF + 2 * d, force=packed)
    def qloads():
        for i in range(4):
            a(f"buffer_load_dwordx2 v[{QR+2*i}:{QR+2*i+1}], v{vIN}, s[{sQ}:{sQ+3}], 0 offen offset:{i*RS_IN} {nt}")
    def gate(nyoung):
        a(f"s_setprio {o.eprio}\ns_waitcnt vmcnt({nyoung})")
        G.stamp(1, tl=1)
        for r in range(4):
            for d in range(2):
                a(f"v_lshlrev_b32 v{QF+4*r+2*d}, 16, v{QR+2*r+d}\nv_and_b32 v{QF+4*r+2*d+1}, s47, v{QR+2*r+d}")
        for r in range(4):
            for d in range(2):
                pk(G, "mul", KS + 4 * r + 2 * d, KS + 4 * r + 2 * d, QF + 4 * r + 2 * d)
        G.stamp(4)
    def mode_stores(lines):
        A, B = G.lab("ms"), G.lab("md")
        a(f"s_cmp_eq_u32 s{sM}, 0\ns_cbranch_scc0 {A}")
        a("\n".join(lines))
        a(f"{B}:")
        def cold():
            a(f"{A}:")
            a("\n".join(l + " sc1" for l in lines))
            a(f"s_branch {B}")
        G.cold.append(cold)
    ustores = [f"buffer_store_dwordx4 v[{PKU}:{PKU+3}], v{vX}, s[{sXU}:{sXU+3}], 0 offen",
               f"buffer_store_dwordx4 v[{PKU+4}:{PKU+7}], v{vX}, s[{sXU}:{sXU+3}], 0 offen offset:16"]
    def last_phase(packed, line, cnt, mid_label=None):
        held = []
        a(f"s_lshl_b32 s{sT0}, s{sX3}, 9\ns_add_u32 s{sX2}, s{sT0}, s{sGB}\ns_add_u32 s{sX2}, s{sX2}, {line}")
        LG = G.lab("yg")
        if (packed or o.y1data) and o.ydata:
            L, F, C = G.lab("yl"), G.lab("yf"), G.lab("yc")
            a(f"s_cmp_eq_u32 s{sM}, 0\ns_cbranch_scc0 {F}")
            if packed: poll_lds(G, vFL, C_Y2, 4, vT, sleep=1)
            G.stamp(-1, tl=2)
            a(f"s_mov_b32 s{sCNT}, 0")
            a(f"{L}:")
            a(f"buffer_load_dwordx4 v[{YR}:{YR+3}], v{vX}, s[{sXY}:{sXY+3}], 0 offen sc1")
            a(f"buffer_load_dwordx4 v[{YR+4}:{YR+7}], v{vX}, s[{sXY}:{sXY+3}], 0 offen offset:16 sc1")
            a(f"s_add_u32 s{sCNT}, s{sCNT}, 1\ns_waitcnt vmcnt(1)")
            for g in range(4):
                if g == 2: a("s_waitcnt vmcnt(0)")
                a(f"v_xor_b32 v{YF+g}, v{YR+2*g}, v{PKU+2*g}\nv_bitop3_b32 v{YF+g}, v{YF+g}, v{YR+2*g+1}, v{PKU+2*g+1} bitop3:0xf6")
            a(f"v_min3_u32 v{YF}, v{YF}, v{YF+1}, v{YF+2}\nv_min_u32 v{YF}, v{YF}, v{YF+3}\nv_cmp_eq_u32 vcc, 0, v{YF}")
            a(f"s_cbranch_vccz {LG}")
            if o.ysleep: a(f"s_sleep {o.ysleep}")
            a(f"s_cmp_lt_u32 s{sCNT}, 6\ns_cbranch_scc1 {L}")
            a(f"{F}:")
        poll_line(G, vL4, sX2, 2, vT, (f"s{sDGO}", cnt), 128, sleep=(o.sleep if packed else 2))
        G.stamp(5)
        a(f"buffer_load_dwordx4 v[{YR}:{YR+3}], v{vX}, s[{sXY}:{sXY+3}], 0 offen sc1")
        a(f"buffer_load_dwordx4 v[{YR+4}:{YR+7}], v{vX}, s[{sXY}:{sXY+3}], 0 offen offset:16 sc1")
        a("s_waitcnt vmcnt(0)")
        if packed and o.dry: a("s_mov_b64 vcc, 0")
        a(f"{LG}:")
        if packed and o.defer: lds_count(G, vFL, vONE, C_R)
        G.stamp(6, tl=3)
        if packed and o.share3:
            a(f"s_branch {LZ}1")
            G.flush_cold()
            return
        if not packed: a(f"{LZ}1:")
        if packed and o.dry: a(f"{LZ}d:")
        if o.tl: a(f"s_mul_i32 s{STAMP_REGS[5]}, s{sCNT}, 100\ns_add_u32 s{STAMP_REGS[5]}, s{STAMP_REGS[5]}, s88")
        transpose4(G, [YR + 2 * j for j in range(4)])
        if mid_label: a(f"{mid_label}:")
        for c in range(4):
            for d in range(2):
                a(f"v_lshlrev_b32 v{YF+8*d+c}, 16, v{YR+2*c+d}\nv_and_b32 v{YF+8*d+4+c}, s47, v{YR+2*c+d}")
        for r in range(4):
            for d in range(2):
                ks, q, y = KS + 4 * r + 2 * d, QF + 4 * r + 2 * d, YF + 4 * r + 2 * d
                pk(G, "fma", y, q, y, ks, force=packed)
            for d in range(2):
                y = YF + 4 * r + 2 * d
                a(f"v_cvt_pk_bf16_f32 v{YR+2*r+d}, v{y}, v{y+1}")
            st = f"buffer_store_dwordx2 v[{YR+2*r}:{YR+2*r+1}], v{vO1 if r < 2 else vO2}, s[{sOUT}:{sOUT+3}], 0 offen offset:{(r&1)*RS_OUT} {o.out_flag}"
            if packed and o.dry: held.append(st)
            elif packed or not o.defer: a(st)
            else: held.append(st)
        G.stamp(-1, tl=4)
        if packed and o.dry:
            a(f"s_cbranch_vccnz {LZ}r")
            a("\n".join(held)); held = []
        if held:
            poll_lds(G, vFL, C_R, 4, vT, sleep=1)
            a("\n".join(held))
        finish(G)

    a("s_waitcnt vmcnt(2)")
    G.stamp(-1, 4)
    a(f"ds_read_b128 v[{WR}:{WR+3}], v{vWo} offset:4480\nds_read_b128 v[{WR+4}:{WR+7}], v{vWo} offset:4496")
    for i in range(7):
        a(f"ds_read_b64 v[{KR+2*i}:{KR+2*i+1}], v{vRD} offset:{128*i}")
    a(f"ds_read_b64 v[{DR}:{DR+1}], v{vDo} offset:4992")
    a("s_waitcnt lgkmcnt(8)")
    unpack_w()
    a("s_waitcnt lgkmcnt(0)")
    def wait_v(k):
        if k == 0:
            a("s_waitcnt vmcnt(0)")
            G.stamp(-1, 5)
            for i in range(4):
                a(f"ds_read_b64 v[{VR+2*i}:{VR+2*i+1}], v{vRD} offset:{2432 + 128*i}")
        else:
            a("s_waitcnt lgkmcnt(0)")
    first_phase(True, wait_v)
    a(f"s_cmp_eq_u32 s{sE}, 8\ns_cbranch_scc1 {LX}")
    a("\n".join(ustores))
    skip_term()
    a(f"{LP}:")
    a("s_waitcnt vmcnt(0)")
    signal(G, vF, v128, sEV, L_U1, 2, 4, YR)
    if o.uxlate == 1: lds_count(G, vFL, vONE, C_R)
    G.stamp(3, 6)
    chan_of(G, sE, sT0)
    a(f"s_lshl_b32 s{sT0}, s{sT0}, 12\nv_lshl_add_u32 v{vA3}, v0, 4, s{sT0}")
    a(f"s_mul_i32 s{sT0}, s{sE}, {XA_SZ}\nv_lshl_add_u32 v{vRD}, v0, 4, s{sT0}")
    inbox_of(G, sX1, sX2)
    for k in range(2):
        a(f"v_lshrrev_b32 v{vA1 if k == 0 else vA2}, 3, v0" + (f"\nv_add_u32 v{vA2}, 8, v{vA2}" if k else ""))
        blk_addr(G, vA1 if k == 0 else vA2, vT, sX2, RS_OUT, sX1)
    a(f"v_and_b32 v{vT}, 7, v0\nv_lshl_add_u32 v{vA1}, v{vT}, 4, v{vA1}\nv_lshl_add_u32 v{vA2}, v{vT}, 4, v{vA2}")
    a(f"s_lshl_b32 s{sT0}, s{sE}, 4\ns_add_u32 s{sT0}, s{sT0}, 64\nv_lshrrev_b32 v{vB4}, 2, v0\nv_add_u32 v{vB4}, s{sT0}, v{vB4}")
    blk_addr(G, vB4, vT, sX2, RS_OUT, sX1)
    if o.coop2:
        uc_setup(G, vA4, vA5, 40, vT, sE, sX2, sX1, 1)
    else:
        a(f"s_lshl_b32 s{sT0}, s{sE}, 5\ns_add_u32 s{sX1}, s{sX1}, s{sT0}")
        u_src(G, vA4, vT, sX2, sX1)
        a(f"s_mul_i32 s{sT0}, s{sE}, {U_SZ}\ns_add_u32 s{sT0}, s{sT0}, {U0}\nv_lshl_add_u32 v{vL}, v0, 4, s{sT0}\nv_add_u32 v{vA5}, {UP1 - 8}, v{vL}")
    a(f"s_lshl_b32 s{sT0}, s{sE}, 11\ns_add_u32 s{sT0}, s{sT0}, {YB0}\nv_lshl_add_u32 v{vG}, v0, 4, s{sT0}\ns_mul_i32 s{sX1}, s{sE}, {TILE_STEP}")
    a(f"s_add_u32 s{sWMY}, s{pWS}, {XY_OFF}\ns_addc_u32 s{sWMY+1}, s{pWS+1}, 0")
    G.srd(sWMY, None, 3 << 20)
    a(f"s_lshl_b32 s{sT0}, s{sGQ}, 5\ns_add_u32 s{sT0}, s{sT0}, s{sR}\ns_lshr_b32 s{sT0}, s{sT0}, 1\ns_lshl_b32 s{sX4}, s{sH}, {HSH}")
    a(f"v_lshrrev_b32 v{vB1}, 3, v0\nv_add_u32 v{vT}, s{sT0}, v{vB1}\nv_and_b32 v{vT}, 7, v{vT}\ns_and_b32 s{sT0}, s{sT0}, 56\nv_or_b32 v{vT}, s{sT0}, v{vT}")
    a(f"v_lshl_add_u32 v{vB1}, v{vB1}, 6, v{vT}\nv_lshlrev_b32 v{vB1}, 7, v{vB1}\nv_and_b32 v{vT}, 7, v0\nv_lshl_add_u32 v{vB1}, v{vT}, 4, v{vB1}\nv_add_u32 v{vB1}, s{sX4}, v{vB1}")
    a(f"s_lshl_b32 s{sT0}, s{sX3}, 12\ns_add_u32 s{sT0}, s{sT0}, {SCR0}\nv_lshl_add_u32 v{vB2}, v0, 4, s{sT0}\nv_mov_b32 v{vB3}, s{sTAG}")
    a(f"s_mov_b32 s{sT0}, 0x7430\ns_mov_b32 s{sT1}, 0x6521\ns_and_b32 s{sT2}, s{sR}, 1\ns_cselect_b32 s{sT0}, s{sT1}, s{sT0}")
    a(f"s_lshl_b32 s{sT1}, s{sX3}, 2\ns_lshr_b32 s{sT0}, s{sT0}, s{sT1}\ns_and_b32 s{sT0}, s{sT0}, 7\ns_lshl_b32 s{sX4}, s{sT0}, 16")
    def scalar_prefill(first, n):
        inbox_of(G, sT0, sT1)
        if isinstance(first, int): a(f"s_add_u32 s{sT0}, s{sT0}, {first*16*RS_OUT}")
        else: a(f"s_mul_i32 s{sT2}, {first}, {16*RS_OUT}\ns_add_u32 s{sT0}, s{sT0}, s{sT2}")
        a(f"s_add_u32 s{sK}, s{pOUT}, s{sT0}\ns_addc_u32 s{sK+1}, s{pOUT+1}, 0\ns_add_u32 s{sK+2}, s{sK}, 64\ns_addc_u32 s{sK+3}, s{sK+1}, 0\ns_mov_b32 s{sT3}, 0")
        L = G.lab("sp")
        a(f"{L}:")
        for i in range(2):
            a(f"s_add_u32 s{sT2}, s{sT1}, s{sT3}\ns_and_b32 s{sT2}, s{sT2}, 15\ns_lshl4_add_u32 s{sT2}, s{sT3}, s{sT2}\ns_mul_i32 s{sV+2+i}, s{sT2}, {RS_OUT}\ns_add_u32 s{sT3}, s{sT3}, 1")
            a(f"s_load_dword s{sV}, s[{sK}:{sK+1}], s{sV+2+i}\ns_load_dword s{sV+1}, s[{sK+2}:{sK+3}], s{sV+2+i}")
        a(f"s_cmp_lt_u32 s{sT3}, {n}\ns_cbranch_scc1 {L}")
    if o.spf2 == 1:
        a(f"s_lshl_b32 s{sLR}, s{sE}, 4\ns_add_u32 s{sLR}, s{sLR}, 64")
        scalar_prefill(f"s{sLR}", 16)
    def hook(L):
        R = G.lab("rp")
        a(f"s_cmp_gt_u32 s{sX2}, s{sM}\ns_cbranch_scc1 {R}")
        def cold():
            a(f"{R}:")
            to_mode1(G, vF)
            a("\n".join(l + " sc1" for l in ustores))
            a(f"s_branch {LP}")
        G.cold.append(cold)
    poll_lds(G, vFL, C_GO, (9 if o.word == 0 else 5) + (1 if o.xsplit else 0), vT, pair=sX2, hook=hook)
    if 0 < o.hgate < 5: poll_lds(G, vFL, C_U0, o.hgate, vT)
    if o.hgate >= 5: poll_lds(G, vFL, C_GO, 9 + o.hgate - 4, vT)
    if o.pfirst: a(f"buffer_load_dword v{vB4}, v{vB4}, s[{sOUT}:{sOUT+3}], 0 offen {o.pf_nt}")
    if not o.h2early:
        xa_loads(G, KR, vA3, 2)
        xa_loads(G, KR + 8, vA3, 3)
    if o.word:
        lds_count(G, vFL, vONE, C_GO)
        poll_lds(G, vFL, C_GO, 13, vT)
    if not o.pfirst and not o.spf2: a(f"buffer_load_dword v{vB4}, v{vB4}, s[{sOUT}:{sOUT+3}], 0 offen {o.pf_nt}")
    if o.udata:
        a(f"s_lshl_b32 s{sT0}, s{sE}, 9\ns_add_u32 s{sT0}, s{sT0}, s{sGB}\ns_add_u32 s{sT0}, s{sT0}, {L_S}")
        a(f"buffer_load_dwordx2 v[46:47], v{vL4}, s[{sCT}:{sCT+3}], s{sT0} offen sc1")
    assert not (o.udata and (o.pfyx or o.defer or o.h2early))
    if o.pfyx and not o.sred: a(f"buffer_load_dword v46, v{vB1}, s[{sWMY}:{sWMY+3}], s{sX4} offen")
    if o.q1w2: qloads()
    if o.qw2:
        lds_count(G, vFL, vONE, C_GO)
        poll_lds(G, vFL, C_GO, 13, vT)
        qloads()
    if "1" in o.x_skip: a("s_endpgm")
    G.stamp(-1, mid=1)
    a(f"s_setprio {o.hiprio}\ns_add_u32 s{sEV}, s{sEV}, {L_Y1}\ns_lshl_b32 s{sT0}, s{sE}, 9\ns_add_u32 s{sX2}, s{sT0}, s{sGB}\ns_add_u32 s{sX2}, s{sX2}, {L_U2}")
    if not o.h2early:
        ny = (0 if o.pfirst or o.spf2 else 1) + (1 if o.pfyx or o.udata else 0) + (4 if o.q1w2 or o.qw2 else 0)
        a(f"s_waitcnt vmcnt({2+ny})")
        xa_build(G, KR, WF, vRD, XA0 + 384 + 2048, 2, plain=True)
        a(f"s_waitcnt vmcnt({ny})")
        xa_build(G, KR + 8, KF, vRD, XA0 + 384 + 3072, 3, plain=True)
        a("s_waitcnt lgkmcnt(0)")
        lds_count(G, vFL, vONE, C_H)
    if not o.seq2: G.stamp(-1, mid=2)
    if o.udata:
        a(f"s_waitcnt vmcnt(0)\nv_xor_b32 v46, s{sF}, v46\nv_bitop3_b32 v46, v46, v47, s{sF} bitop3:0xf6\nv_cmp_ne_u32 vcc, 0, v46")
        a(f"s_cmp_eq_u64 vcc, 0\ns_cselect_b32 s{sLR}, 1, 0\ns_cmp_eq_u32 s{sM}, 0\ns_cselect_b32 s{sLR}, s{sLR}, 0")
    YX = KF
    yxstore = f"buffer_store_dwordx4 v[{YX}:{YX+3}], v{vB1}, s[{sWMY}:{sWMY+3}], s{sX4} offen sc1"
    def reduce():
        poll_lds(G, vFL, C_P, 4, vT, sleep=2)
        r = WF
        for i in range(4):
            a(f"ds_read_b128 v[{r+4*i}:{r+4*i+3}], v{vB2} offset:{1024*i}")
        a("s_waitcnt lgkmcnt(2)")
        for d in (0, 2): pk(G, "add", r + d, r + d, r + 4 + d)
        a("s_waitcnt lgkmcnt(0)")
        for d in (0, 2): pk(G, "add", r + 8 + d, r + 8 + d, r + 12 + d)
        for d in (0, 2): pk(G, "add", r + d, r + d, r + 8 + d)
        a(f"v_cvt_pk_bf16_f32 v{r+4}, v{r}, v{r+1}\nv_cvt_pk_bf16_f32 v{r+5}, v{r+2}, v{r+3}")
        for d in (0, 1):
            a(f"v_lshl_or_b32 v{YX+2*d}, v{r+4+d}, 16, v{vB3}\nv_and_or_b32 v{YX+2*d+1}, v{r+4+d}, s47, v{vB3}")
        G.stamp(-1, mid=3)
    def carry():
        if o.y1dir: return
        poll_lds(G, vFL, C_Y1, 4, vT, sleep=2)
        a(f"ds_read_b128 v[{YR}:{YR+3}], v{vG}\nds_read_b128 v[{YR+4}:{YR+7}], v{vG} offset:1024\ns_waitcnt lgkmcnt(0)")
        mode_stores([f"buffer_store_dwordx4 v[{YR}:{YR+3}], v{vA1}, s[{sXY}:{sXY+3}], s{sX1} offen",
                     f"buffer_store_dwordx4 v[{YR+4}:{YR+7}], v{vA2}, s[{sXY}:{sXY+3}], s{sX1} offen"])
        if o.seq2: G.stamp(-1, mid=2)
        a("s_waitcnt vmcnt(0)")
        signal(G, vF, v128, sEV, L_Y1, 2, 8, YR)
    def u2duty():
        LU = G.lab("ug")
        if o.udata:
            L, F = G.lab("ul"), G.lab("uf")
            a(f"s_cmp_eq_u32 s{sLR}, 0\ns_cbranch_scc1 {F}")
            poll_lds(G, vFL, C_R, 4, vT, sleep=1)
            a(f"s_mov_b32 s{sCNT}, 0")
            a(f"{L}:")
            uc_loads(G, 28, vA4, vA5)
            a(f"s_add_u32 s{sCNT}, s{sCNT}, 1\ns_waitcnt vmcnt(1)")
            a(f"v_bitop3_b32 v{vT}, v28, v29, v30 bitop3:0x80\nv_and_b32 v{vT}, v{vT}, v31\ns_waitcnt vmcnt(0)")
            a(f"v_bitop3_b32 v{vT+1}, v32, v33, v34 bitop3:0x80\nv_and_b32 v{vT+1}, v{vT+1}, v35\nv_max_u32 v{vT}, v{vT}, v{vT+1}\nv_cmp_eq_u32 vcc, -1, v{vT}")
            a(f"s_cbranch_vccz {LU}")
            a(f"s_sleep 1\ns_cmp_lt_u32 s{sCNT}, {o.utry}\ns_cbranch_scc1 {L}")
            a(f"{F}:")
        poll_line(G, vL4, sX2, 2, vT, (f"s{sDGO}", 16), 128, sleep=1)
        if o.coop2: uc_loads(G, 28, vA4, vA5)
        else: u_loads(G, KR + 2, vA4, (1, 0))
        a(f"{LU}:")
        G.stamp(-1, mid=4)
        a(f"s_waitcnt vmcnt(1)")
        if o.coop2: uc_write(G, 28, 40, 0)
        else: u_write(G, KR + 2, vL, vA5, 1)
        a(f"s_waitcnt vmcnt(0)")
        if o.coop2: uc_write(G, 32, 40, 1)
        else: u_write(G, KR + 6, vL, vA5, 0)
        if not o.qw2 and not o.redlate and not o.yxearly and not o.sred: a(yxstore)
        a("s_waitcnt lgkmcnt(0)")
        lds_count(G, vFL, vONE, F_U2)
        G.stamp(-1, mid=5, tl=2)
    def yxdone():
        a("s_waitcnt vmcnt(0)")
        lds_count(G, vFL, vONE, C_YX)
    if o.sred:
        u2duty()
        poll_lds(G, vFL, F_U2, 5, vT, sleep=1)
        qloads()
    elif o.seq2:
        reduce(); carry(); u2duty(); qloads()
        a("s_waitcnt vmcnt(4)")
        lds_count(G, vFL, vONE, C_YX)
    elif o.qw2 and o.redlate: u2duty(); reduce(); a(yxstore); yxdone(); carry()
    elif o.qw2: reduce(); a(yxstore); yxdone(); u2duty(); carry()
    elif o.redlate:
        u2duty(); reduce(); a(yxstore)
        if o.qhold: lds_count(G, vFL, vONE, C_Y1)
        if not o.q1w2: qloads()
        a(f"s_waitcnt vmcnt({0 if o.q1w2 else 4})")
        lds_count(G, vFL, vONE, C_YX)
        carry()
    elif o.yxearly:
        reduce(); a(yxstore); u2duty()
        if not o.q1w2: qloads()
        carry()
    else:
        reduce(); u2duty()
        if not o.q1w2: qloads()
        a(f"s_waitcnt vmcnt({0 if o.q1w2 else 4})")
        lds_count(G, vFL, vONE, C_YX)
        carry()
    gate(0)
    G.stamp(-1, mid=6)
    last_phase(False, L_Y2 if o.merge else L_Y1, 12 if o.merge else 8, f"{LZ}2")

    a(f"{L2}:")
    a(f"v_lshrrev_b32 v{vA2}, 3, v0\nv_mul_u32_u24 v{vA2}, {RS_IN}, v{vA2}\nv_and_b32 v{vT}, 7, v0\nv_lshl_add_u32 v{vA2}, v{vT}, 4, v{vA2}\nv_add_u32 v{vA2}, s{sSIG}, v{vA2}")
    a(f"v_add_u32 v{vA1}, {(-3*RS_IN) & 0xffffffff}, v{vA2}")
    if o.udata:
        for k in range(4): a(f"v_mov_b32 v{PKU+k}, -1")
        a(f"buffer_store_dwordx4 v[{PKU}:{PKU+3}], v{vX}, s[{sXU}:{sXU+3}], 0 offen\nbuffer_store_dwordx4 v[{PKU}:{PKU+3}], v{vX}, s[{sXU}:{sXU+3}], 0 offen offset:16")
        a(f"s_add_u32 s{sX1}, s{sEV}, {L_S}\ns_waitcnt vmcnt(0)\ns_mov_b64 exec, 15")
        a(f"buffer_store_dword v{vF}, v{v128}, s[{sCT}:{sCT+3}], s{sX1} offen\ns_mov_b64 exec, -1")
    a(f"s_add_u32 s{sEV}, s{sEV}, {L_U2}")
    if o.k2early:
        a(f"s_mov_b32 m0, s{sSTG}\ns_add_u32 s{sT0}, s{sSTG}, 1024\ns_mov_b32 s{sT1}, {5*RS_IN}")
        a(f"buffer_load_dwordx4 v{vA1}, s[{sK}:{sK+3}], 0 offen {o.k_nt} lds")
        a(f"s_mov_b32 m0, s{sT0}\ns_add_u32 s{sT0}, s{sSTG}, 2048")
        a(f"buffer_load_dwordx4 v{vA2}, s[{sK}:{sK+3}], s{sT1} offen {o.k_nt} lds")
        a(f"s_mov_b32 m0, s{sT0}\ns_mov_b32 s{sT1}, {13*RS_IN}\ns_mov_b64 exec, 0xffffff")
        a(f"buffer_load_dwordx4 v{vA2}, s[{sK}:{sK+3}], s{sT1} offen {o.k_nt} lds")
        a("s_mov_b64 exec, -1\ns_setprio 0\ns_waitcnt vmcnt(3)")
        unpack_w()
        a("s_waitcnt vmcnt(0)")
        for i in range(7):
            a(f"ds_read_b64 v[{KR+2*i}:{KR+2*i+1}], v{vRD} offset:{128*i}")
        a("s_waitcnt lgkmcnt(0)")
        lds_count(G, vFL, vONE, C_U0)
        first_phase(False, lambda k: None, part=1)
        skip_term(False, 1)
        if o.dry: a(f"s_mov_b64 vcc, -1\ns_branch {LZ}d\n{LZ}r:")
        get_nonce(G, vFL, vT, vF)
        G.stamp(-1, mid=2)
        poll_lds(G, vFL, C_GO, 9 if o.word == 2 else o.e2lvl + (1 if o.xsplit else 0), vT, pair=sX2)
        adopt_mode(G, sX2, vF)
        for i in range(4):
            a(f"buffer_load_dwordx2 v[{VR+2*i}:{VR+2*i+1}], v{vIN}, s[{sV}:{sV+3}], 0 offen offset:{i*RS_IN} {nt}")
        lds_count(G, vFL, vONE, C_GO)
        G.stamp(-1, mid=1)
        if o.qw2 and o.q2now:
            poll_lds(G, vFL, C_GO, 13, vT)
            qloads()
        a(f"s_setprio {o.hiprio}\ns_waitcnt vmcnt({4 if o.qw2 and o.q2now else 0})")
        if o.qw2 and not o.q2now: qloads()
        G.stamp(-1, mid=3)
        first_phase(False, lambda k: None, part=2)
    else:
        a("s_waitcnt vmcnt(0)")
        unpack_w()
        if o.konly: poll_lds(G, vFL, C_U1, 1, vT, sleep=2)
        if "2" in o.x_skip:
            poll_lds(G, vFL, C_GO, 5, vT); lds_count(G, vFL, vONE, C_GO); a("s_endpgm")
        poll_lds(G, vFL, C_GO, 9 if o.word == 2 else o.e2lvl + (1 if o.xsplit else 0), vT, pair=sX2)
        adopt_mode(G, sX2, vF)
        a(f"s_mov_b32 m0, s{sSTG}\ns_add_u32 s{sT0}, s{sSTG}, 1024\ns_mov_b32 s{sT1}, {5*RS_IN}")
        a(f"buffer_load_dwordx4 v{vA1}, s[{sK}:{sK+3}], 0 offen {o.k_nt} lds")
        a(f"s_mov_b32 m0, s{sT0}\ns_add_u32 s{sT0}, s{sSTG}, 2048")
        a(f"buffer_load_dwordx4 v{vA2}, s[{sK}:{sK+3}], s{sT1} offen {o.k_nt} lds")
        a(f"s_mov_b32 m0, s{sT0}\ns_mov_b32 s{sT1}, {13*RS_IN}\ns_mov_b64 exec, 0xffffff\ns_add_u32 s{sT0}, s{sSTG}, 2432")
        a(f"buffer_load_dwordx4 v{vA2}, s[{sK}:{sK+3}], s{sT1} offen {o.k_nt} lds")
        if o.konly:
            a("s_mov_b64 exec, -1")
            for i in range(4):
                a(f"buffer_load_dwordx2 v[{VR+2*i}:{VR+2*i+1}], v{vIN}, s[{sV}:{sV+3}], 0 offen offset:{i*RS_IN} {nt}")
        else:
            a(f"s_mov_b32 m0, s{sT0}\ns_mov_b64 exec, -1\ns_add_u32 s{sT0}, s{sSTG}, {2432+1024}")
            a(f"buffer_load_dwordx4 v{vA2}, s[{sV}:{sV+3}], 0 offen {nt} lds")
            a(f"s_mov_b32 m0, s{sT0}\ns_mov_b32 s{sT1}, {8*RS_IN}")
            a(f"buffer_load_dwordx4 v{vA2}, s[{sV}:{sV+3}], s{sT1} offen {nt} lds")
        lds_count(G, vFL, vONE, C_GO)
        G.stamp(-1, mid=1)
        a(f"s_setprio {o.hiprio}\ns_waitcnt vmcnt({4 if o.konly else 2})")
        if o.hgate >= 5: lds_count(G, vFL, vONE, C_GO)
        G.stamp(-1, mid=3)
        for i in range(7):
            a(f"ds_read_b64 v[{KR+2*i}:{KR+2*i+1}], v{vRD} offset:{128*i}")
        a("s_waitcnt lgkmcnt(0)")
        def wait_v2(k):
            if o.konly:
                if k: a("s_waitcnt vmcnt(0)")
                return
            wait_v(k)
            if k == 0 and o.qw2: qloads()
            if k: lds_count(G, vFL, vONE, C_U0)
        first_phase(False, wait_v2)
    G.stamp(2, mid=4)
    mode_stores(ustores)
    if o.udata: lds_count(G, vFL, vONE, C_R)
    skip_term(False, 2 if o.k2early else 3)
    a("s_waitcnt vmcnt(0)")
    signal(G, vF, v128, sEV, L_U2, 2, 16, YR)
    G.stamp(3, mid=5)
    lds_count(G, vFL, vONE, C_U1)
    if o.sq2: sq_prefetch(G, sSIG)
    if not o.qw2:
        poll_lds(G, vFL, C_Y1 if o.qhold else F_U2, 5 if o.yxearly or o.sred else 4, vT, sleep=2)
        qloads()
    gate(0)
    G.stamp(-1, mid=6)
    last_phase(True, L_Y2, 12)
    a(f"{LX}:")
    a(f"s_add_u32 s{sXU}, s{pWS}, {XU_OFF}\ns_addc_u32 s{sXU+1}, s{pWS+1}, 0\ns_add_u32 s{sXY}, s{pWS}, {XY_OFF}\ns_addc_u32 s{sXY+1}, s{pWS+1}, 0")
    a(f"v_and_b32 v{vT}, 4095, v{vX}\nv_lshrrev_b32 v{vT}, 1, v{vT}\nv_add_u32 v{vT}, s{sSTG}, v{vT}")
    a(f"ds_write_b128 v{vT}, v[{PKU}:{PKU+3}]\nds_write_b128 v{vT}, v[{PKU+4}:{PKU+7}] offset:16")
    a(f"v_lshl_add_u32 v{vT}, v0, 3, s{sSTG}")
    for k in range(4):
        a(f"ds_read_b64 v[{KF+2*k}:{KF+2*k+1}], v{vT} offset:{512*k}")
    a(f"v_and_b32 v{vG}, 0xfffff000, v{vX}\nv_lshl_add_u32 v{vG}, v0, 4, v{vG}\nv_mov_b32 v{vK3}, s{sTAG}")
    for k in range(4):
        a(f"s_waitcnt lgkmcnt({3-k})")
        for d in (0, 1):
            a(f"v_lshl_or_b32 v{QR-8+4*k+2*d}, v{KF+2*k+d}, 16, v{vK3}\nv_and_or_b32 v{QR-8+4*k+2*d+1}, v{KF+2*k+d}, s47, v{vK3}")
        if not o.uxlate: a(f"buffer_store_dwordx4 v[{QR-8+4*k}:{QR-8+4*k+3}], v{vG}, s[{sXU}:{sXU+3}], 0 offen offset:{1024*k} sc1")
    if o.uxlate:
        poll_lds(G, vFL, C_GO if o.uxlate == 2 else C_R, 4, vT, sleep=1)
        for k in range(4):
            a(f"buffer_store_dwordx4 v[{QR-8+4*k}:{QR-8+4*k+3}], v{vG}, s[{sXU}:{sXU+3}], 0 offen offset:{1024*k} sc1")
    if o.konly: lds_count(G, vFL, vONE, C_U1)
    G.stamp(3, 6)
    skip_term()
    a(f"s_lshr_b32 s{sT0}, s{sROW0}, 5\ns_lshl_b32 s{sT1}, s{sT0}, 13\ns_lshl_b32 s{sT2}, s{sH}, {HSH}\ns_add_u32 s{sT1}, s{sT1}, s{sT2}")
    a(f"s_bfe_u32 s{sT2}, s{sROW0}, {(1<<16)|4}\ns_lshl_b32 s{sT2}, s{sT2}, 6\ns_add_u32 s{sT1}, s{sT1}, s{sT2}")
    a(f"v_lshrrev_b32 v{vX}, 2, v0")
    a(f"v_add_u32 v{vT}, s{sT0}, v{vX}\nv_and_b32 v{vT}, 7, v{vT}\nv_and_b32 v{vX}, 8, v{vX}\nv_or_b32 v{vX}, v{vX}, v{vT}\nv_lshl_add_u32 v{vX}, v{vX}, 7, s{sT1}")
    a(f"v_and_b32 v{vT}, 3, v0\nv_lshl_add_u32 v{vX}, v{vT}, 4, v{vX}")
    a(f"v_lshlrev_b32 v{vA1}, 3, v0\nv_add_u32 v{vA1}, {XT0}, v{vA1}")
    a(f"v_and_b32 v{vA2}, 15, v0\nv_lshlrev_b32 v{vA2}, 7, v{vA2}\nv_lshrrev_b32 v{vT}, 4, v0\nv_lshl_add_u32 v{vA2}, v{vT}, 3, v{vA2}\nv_add_u32 v{vA2}, {XT0}, v{vA2}")
    if o.xsplit:
        xbox_of(G, sX1, sT0, sX2)
        a(f"v_lshrrev_b32 v{vG}, 2, v0\nv_sub_u32 v{vG}, 15, v{vG}")
        blk_addr(G, vG, vT, sX2, 256, sX1)
        a(f"v_and_b32 v{vT}, 3, v0\nv_lshl_add_u32 v{vG}, v{vT}, 4, v{vG}\nv_lshlrev_b32 v{vRD}, 3, v0\nv_add_u32 v{vRD}, {U0 + 4*U_SZ}, v{vRD}\ns_mov_b32 s{sX1}, 0x07060302")
        poll_lds(G, vFL, C_GO, 4, vT)
        tagged_loads(G, 4, 24, vG, sXU, lambda k: ((3 - k) * 16 * 4096, 0), vT, after=lambda: (lds_count(G, vFL, vONE, C_GO), 0)[1])
        for k in range(4):
            a(f"v_perm_b32 v{KF+2*k}, v{25+4*k}, v{24+4*k}, s{sX1}\nv_perm_b32 v{KF+2*k+1}, v{27+4*k}, v{26+4*k}, s{sX1}")
            a(f"ds_write_b64 v{vRD}, v[{KF+2*k}:{KF+2*k+1}] offset:{512*(k+4)}\nds_write_b64 v{vRD}, v[{KF+2*k}:{KF+2*k+1}] offset:{512*(k+4) + UP1 - 8}")
        a("s_waitcnt lgkmcnt(0)")
        lds_count(G, vFL, vONE, F_X)
    if o.spf2 == 2: scalar_prefill(64, 64)
    if o.sqx:
        poll_lds(G, vFL, C_U1, 1, vT, sleep=3)
        sq_prefetch(G, sSIG)
    if "x" in o.x_skip: a("s_endpgm")
    if o.qw2: poll_lds(G, vFL, C_GO, 13, vT, sleep=3)
    else: poll_lds(G, vFL, C_Y1 if o.qhold else F_U2, 5 if o.sred else 4, vT, sleep=3)
    if not o.yxearly:
        qloads()
        poll_lds(G, vFL, C_YX, 4, vT, sleep=2)
    G.stamp(5, mid=3, tl=2)
    tagged_loads(G, 4, 24, vX, sXY, lambda k: (0, 2048 * k) if k < 2 else (4096, 2048 * (k - 2)), vT, after=(lambda: (lds_count(G, vFL, vONE, F_U2), qloads(), 4)[2]) if o.yxearly else None)
    a(f"s_mov_b32 s{sT0}, 0x07060302")
    G.stamp(-1, mid=4, tl=3)
    for k in range(4):
        a(f"v_perm_b32 v{YR+2*k}, v{25+4*k}, v{24+4*k}, s{sT0}\nv_perm_b32 v{YR+2*k+1}, v{27+4*k}, v{26+4*k}, s{sT0}")
        a(f"ds_write_b64 v{vA1}, v[{YR+2*k}:{YR+2*k+1}] offset:{512*k}")
    for c in range(4):
        a(f"ds_read_b64 v[{YR+2*c}:{YR+2*c+1}], v{vA2} offset:{32*c}")
    gate(0)
    a(f"s_waitcnt lgkmcnt(0)\ns_branch {LZ}2")
    G.flush_cold()

    a("L_Cm:")
    if o.w1only:
        a("s_waitcnt vmcnt(1)"); G.stamp(1, 4); a("s_waitcnt vmcnt(0)"); finish(G)
    a(f"s_setprio {o.cprio}")
    G.stamp(1, 3)
    ctl_srd(G)
    misc_srd(G)
    a(f"s_mov_b32 s{sJ}, s46\ns_mov_b32 s{sCOL}, s47")
    a(f"s_mul_i32 s{sX2}, s{sJ}, {XA_SZ}\ns_mul_i32 s{sX3}, s{sJ}, {U_SZ}\ns_add_u32 s{sX3}, s{sX3}, {U0}")
    for i in range(4): a(f"v_mov_b32 v{cZ+i}, 0")
    a(f"v_lshl_add_u32 v{cHA}, v0, 4, s{sX2}")
    for p in range(4):
        a(f"ds_write_b128 v{cHA}, v[{cZ}:{cZ+3}] offset:{XA0 + p*PLANE}")
    a(f"v_lshl_add_u32 v{cHB}, v0, 4, s{sX3}\nv_add_u32 v{cHB0}, {UP1 - 8 + 2048}, v{cHB}")
    u_pad(G, 62, cZ, f"s{sX3}")
    a(f"v_and_b32 v{cT}, 3, v0\nv_mul_u32_u24 v{cA}, {PLANE}, v{cT}")
    a(f"v_bfe_u32 v{cB}, v0, 2, 2\nv_lshl_add_u32 v{cA}, v{cB}, 7, v{cA}")
    a(f"v_lshrrev_b32 v{cB}, 4, v0\nv_lshl_add_u32 v{cA}, v{cB}, 4, v{cA}")
    a(f"s_lshl_b32 s{sT0}, s{sJ}, 7")
    a(f"s_add_u32 s{sT1}, s{sT0}, {XA0 + 4*XA_SZ}\nv_add_u32 v{cAX}, s{sT1}, v{cA}\nv_add_u32 v{cA}, s{sX2}, v{cA}")
    a(f"v_lshlrev_b32 v{cB}, 4, v{cB}\nv_and_b32 v{cBX}, 15, v0\nv_lshlrev_b32 v{cBX}, 3, v{cBX}\nv_sub_u32 v{cB}, v{cB}, v{cBX}\nv_add_u32 v{cB}, 120, v{cB}")
    a(f"v_and_b32 v{cBX}, 1, v0\nv_xor_b32 v{cBX}, 1, v{cBX}\nv_mul_u32_u24 v{cBX}, {UP1 - 8}, v{cBX}\nv_add_u32 v{cB}, v{cB}, v{cBX}")
    a(f"s_add_u32 s{sT1}, s{sT0}, {U0 + 4*U_SZ}\nv_add_u32 v{cBX}, s{sT1}, v{cB}\nv_add_u32 v{cB}, s{sX3}, v{cB}")
    a(f"s_and_b32 s{sTS}, s{sR}, 1\ns_lshl_b32 s{sT2}, s{sJ}, 5\ns_add_u32 s{sCOL}, s{sCOL}, s{sT2}")
    a(f"v_lshrrev_b32 v{cY}, 2, v0")
    blk_addr(G, cY, cU, sSIG, RS_OUT, sCOL)
    a(f"v_lshl_add_u32 v{cY}, v{cT}, 3, v{cY}")
    a(f"v_lshrrev_b32 v{cYX}, 2, v0\nv_lshlrev_b32 v{cYX}, 7, v{cYX}\nv_lshl_add_u32 v{cYX}, v{cT}, 3, v{cYX}\ns_lshl_b32 s{sT2}, s{sJ}, 5\ns_add_u32 s{sT2}, s{sT2}, {YB0}\nv_add_u32 v{cYX}, s{sT2}, v{cYX}")
    a(f"s_lshl_b32 s{sT0}, s{sJ}, 10\ns_add_u32 s{sT0}, s{sT0}, {SCR0}\nv_lshl_add_u32 v{cSW}, v0, 4, s{sT0}")
    a(f"v_mov_b32 v{cFL}, {FL0}\nv_mov_b32 v{cONE}, 1\nv_lshlrev_b32 v{cL4}, 3, v0\nv_lshlrev_b32 v{c128}, 9, v0")
    a(f"s_lshl_b32 s{sEV}, s{sR}, 2\ns_add_u32 s{sEV}, s{sEV}, s{sJ}\ns_lshl_b32 s{sEV}, s{sEV}, 2\ns_add_u32 s{sEV}, s{sEV}, s{sGB}\ns_add_u32 s{sEV}, s{sEV}, {L_Y2}")
    if o.coop1: uc_setup(G, cU, cU + 1, 52, cT, sJ, sSIG, 47, 0)
    else: u_src(G, cU, cT, sSIG, sCOL)
    a(f"s_lshl_b32 s{sX4}, s{sJ}, 9\ns_add_u32 s{sX4}, s{sX4}, s{sGB}\ns_add_u32 s{sX4}, s{sX4}, {L_U1}")
    npf = 1 if o.prefill else 0
    if o.h2early: npf += 4
    a(f"s_waitcnt vmcnt({2+npf})")
    G.stamp(-1, 4)
    xa_build(G, 64, 80, cHA, XA0 + 384, 0)
    a(f"s_waitcnt vmcnt({npf})")
    xa_build(G, 72, 16, cHA, XA0 + 384 + 1024, 1)
    if o.h2early:
        a(f"s_waitcnt vmcnt({npf-2})")
        xa_build(G, 112, 80, cHA, XA0 + 384 + 2048, 2)
        a(f"s_waitcnt vmcnt({npf-4})")
        xa_build(G, 120, 16, cHA, XA0 + 384 + 3072, 3)
    get_nonce(G, cFL, cT, cF)
    G.stamp(-1, -1)
    def detect(R):
        SW, NX = G.lab("dsw"), G.lab("dnx")
        a("s_mov_b64 exec, -1")
        a(f"ds_read_b32 v{cT}, v{cFL} offset:{F_M}\ns_waitcnt lgkmcnt(0)\nv_readfirstlane_b32 s{sT0}, v{cT}")
        a(f"s_cmp_eq_u32 s{sT0}, 0\ns_cbranch_scc0 {SW}")
        a(f"s_cmp_eq_u32 s{sJ}, 0\ns_cbranch_scc0 {NX}")
        a(f"s_sub_u32 s{sT2}, s{sF}, s{sN}\ns_sub_u32 s{sT2}, s{sT2}, 1\ns_mul_i32 s{sT3}, s{sT2}, s{sT2}\ns_lshl_b32 s{sT3}, s{sT3}, 16")
        a(f"s_lshl_b32 s{sT2}, s{sT2}, 8\ns_add_u32 s{sT2}, s{sT2}, s{sT3}\ns_add_u32 s{sT2}, s{sT2}, 1\ns_lshl_b32 s{sT3}, s{sT2}, 5")
        a(f"s_cmp_eq_u32 s{sCNT}, 64\ns_cselect_b32 s{sT2}, s{sT2}, 0")
        a(f"s_mov_b64 exec, 1\nv_mov_b32 v{cT}, s{sT2}")
        a(f"buffer_atomic_add v{cT}, off, s[{sDG}:{sDG+3}], s{sDGO} sc0 sc1")
        a("s_waitcnt vmcnt(0)")
        a(f"v_readfirstlane_b32 s{sT0}, v{cT}\ns_mov_b64 exec, -1\ns_add_u32 s{sT0}, s{sT0}, s{sT2}")
        if not o.force_mode1:
            a(f"s_cmp_eq_u32 s{sT0}, s{sT3}\ns_cbranch_scc1 {NX}")
        a(f"s_and_b32 s{sT0}, s{sT0}, 0xff\ns_cmp_ge_u32 s{sT0}, 32\ns_cbranch_scc0 {NX}")
        a(f"ds_write_b32 v{cFL}, v{cONE} offset:{F_M}")
        a(f"{SW}:")
        to_mode1(G, cF)
        a(f"s_add_u32 s{sX4}, s{sX4}, {UOFF}\ns_mov_b32 s{sLR}, s{sN}")
        a(f"{NX}:")
    if o.force_mode1:
        a(f"s_add_u32 s{sF}, s{sF}, 0")
    if not o.iso:
        if o.force_mode1:
            a(f"s_xor_b32 s{sLR}, s{sF}, 0x40000000")
        poll_line(G, cL4, sX4, 2, 80, (f"s{sDGO}", 4), 128, sleep=0, detect=detect, scmp=(sLR if o.force_mode1 else sF))
    G.stamp(-1, 5)
    if o.coop1: uc_loads(G, 64, cU, cU + 1)
    else: u_loads(G, 64, cU, (3, 2))
    lds_count(G, cFL, cONE, C_GO)
    u_pad_write(G, 62, cZ)
    a(f"s_cmp_lg_u32 s{sM}, 0\ns_cselect_b64 vcc, -1, 0")
    def pre():
        if o.coop1:
            a("s_waitcnt vmcnt(1)")
            uc_write(G, 64, 52, 0)
            a("s_waitcnt vmcnt(0)")
            uc_write(G, 68, 52, 1)
            a("s_waitcnt lgkmcnt(0)")
            lds_count(G, cFL, cONE, F_YX)
            poll_lds(G, cFL, F_YX, 4, cT, sleep=0)
            G.stamp(2, 6, 2, 2)
            return 0
        a("s_waitcnt vmcnt(1)")
        u_write(G, 64, cHB, cHB0, 3)
        a("s_waitcnt vmcnt(0)")
        u_write(G, 68, cHB, cHB0, 2)
        G.stamp(2, 6, 2, 2)
        return 4
    if not o.apre: pre()
    a(f"s_cmp_eq_u32 s{sTS}, 0")
    a("s_cbranch_scc0 L_C1")
    st0 = c_stream(G, 0, pre if o.apre else None)
    a("L_C1:")
    st1 = c_stream(G, 1, pre if o.apre else None)
    a("L_exit:")
    a("s_endpgm")

    head = open("cdna_kernels/" + NAME + ".s.ref").read().split("\n")
    hdr = [l for l in head if l.startswith("; Kernarg") or l.startswith(";   offset")]
    hdr += DOC.strip("\n").split("\n")
    out = hdr + [f"; @launch grid=(256,1,1) block=(896,1,1) lds={LDS_SZ}",
                 '.amdgcn_target "amdgcn-amd-amdhsa--gfx950"', ".text", f".globl {K}", ".p2align 8", f".type {K},@function"]
    out += G.L
    out += ['.section .rodata,"a"', ".p2align 6", f".amdhsa_kernel {K}",
            "  .amdhsa_next_free_vgpr 128", "  .amdhsa_next_free_sgpr 102", "  .amdhsa_accum_offset 128",
            "  .amdhsa_group_segment_fixed_size 0", "  .amdhsa_kernarg_size 120", "  .amdhsa_user_sgpr_count 2",
            "  .amdhsa_user_sgpr_kernarg_segment_ptr 1", "  .amdhsa_system_sgpr_workgroup_id_x 1",
            "  .amdhsa_float_denorm_mode_32 3", ".end_amdhsa_kernel", ""]
    print("stream stats (mfma, ds, max/gap, gaps>1):", st0, st1, file=sys.stderr)
    return "\n".join(out)


if __name__ == "__main__":
    ap = argparse.ArgumentParser()
    ap.add_argument("-o", default="cdna_kernels/" + NAME + ".s")
    ap.add_argument("opts", nargs="*")
    args = ap.parse_args()
    o = Opt()
    for kv in args.opts:
        k, v = kv.split("=", 1)
        cur = getattr(o, k)
        setattr(o, k, (v not in ("0", "False", "")) if isinstance(cur, bool) else type(cur)(v))
    open(args.o, "w").write(gen(o))
```

```python
import sys, argparse

NAME = "concat_heads__ssm_conv_h3__ssm_conv_h3__prompt"

RS_IN = 1152
RS_OUT = 2304
TENS = 2359296
OUTB = 4718592
PLANE = 4640
XA_SZ = 4 * PLANE
UP1 = 4224
U_SZ = 2 * UP1 + 32
XA0 = 0
U0 = 5 * XA_SZ
STG_SZ = 5120
STGX = U0 + 5 * U_SZ
YB0 = STGX
XT0 = YB0 + 8192
SCR0 = XT0 + 2048
FL0 = SCR0 + 16384 + 1536
LDS_SZ = FL0 + 64
F_N, F_V, C_GO, F_M, C_U0, C_U1, C_R, C_H, F_X, F_U2, F_YX, C_P, C_Y1, C_Y2, C_YX = [4 * i for i in range(15)]
CT_OFF = 17 << 20
L_U1, L_U2, L_Y1, L_Y2, L_S = 0, 2048, 4096, 6144, 8192
HSH = 21
XU_OFF, XY_OFF = 16 << 20, (16 << 20) + (1 << 19)
UOFF = 16384
GSTRIDE = 32768
TILE_STEP = 256 * RS_OUT
CAP_G = 1 << 15
CAP_L = 1 << 17
W_S, W_C = 0, 10


DOC = """
;
"""


class Opt:
    stamps = False
    only07 = False
    force_mode1 = False
    ld_nt = "nt"
    out_flag = ""
    lead = 12
    prefetch_code = True
    prefill = True
    sleep = 1
    cyc = False
    iso = False
    dspan = False
    early = False
    order = "ax123"
    ya = 6
    uxearly = True
    pfx = False
    kvfirst = True
    seq2 = False
    pord = "-"
    swapab = False
    csleep = 0
    usleep = 1
    cgate = False
    ugate = False
    y1shift = 0
    y1step = 2
    e2dir = False
    xsplit = False
    sred = False
    uxlate = 0
    y1data = False
    y1q = False
    udata = False
    utry = 8
    word = 0
    spf2 = 0
    sq2 = False
    sqx = False
    sqs = 0
    hgate = 0
    pfirst = False
    cfirst = True
    q2now = True
    share3 = False
    dry = False
    pfentry = True
    ebar2 = 1
    barpos = 7
    tl = False
    qhold = False
    coop1 = True
    coop2 = True
    k2early = False
    konly = False
    q1w2 = False
    stag = 2
    ydata = True
    ygo = -1
    ysleep = 1
    pfyx = False
    pfux = False
    ulead = 7
    xlead = 6
    yxearly = False
    e2lvl = 5
    y1dir = True
    merge = False
    y1ack = 30
    lsleep = 0
    x_skip = ""
    nock = ""
    wbatch = 8
    apre = True
    qw2 = False
    redlate = False
    u2first = True
    x_noaux = 0
    split3 = False
    defer = False
    golate = False
    y1wait = 25
    y1pos = 90
    w3 = False
    w1only = False
    noh = False
    nohalo = False
    h2early = True
    u2early = False
    mid = False
    hiprio = 3
    x_noh2 = False
    x_nogate = False
    x_nou2 = False
    x_nock = False
    x_noq = False
    k_nt = "nt"
    h_nt = "nt"
    yxack = True
    cprio = 2
    eprio = 0
    sprio = 3
    nopk = True
    tl_fl = "sc1"
    noq = False
    pf_nt = ""
    dma_fl = "sc1"
    win = True


STAMP_REGS = [88, 90, 92, 94, 96, 98, 36, 38]


class Gen:
    def __init__(self, o):
        self.o = o
        self.L = []
        self.uid = 0
        self.cold = []
    def a(self, s):
        for ln in s.split("\n"):
            self.L.append("    " + ln.strip() if not ln.strip().endswith(":") else ln.strip())
    def flush_cold(self):
        while self.cold:
            c, self.cold = self.cold, []
            for fn in c: fn()
    def lab(self, base):
        self.uid += 1
        return f"L_{base}_{self.uid}"
    def srd(self, d, lo, nrec):
        if lo is not None and lo != d:
            self.a(f"s_mov_b64 s[{d}:{d+1}], s[{lo}:{lo+1}]")
        self.a(f"s_mov_b32 s{d+2}, {nrec}\ns_mov_b32 s{d+3}, 0x00020000")
    def stamp(self, i, early=None, mid=None, tl=None):
        if self.o.tl and i != 7: i = -1 if tl is None else tl
        if self.o.early: i = -1 if early is None else early
        if self.o.mid and i != 7: i = -1 if mid is None else mid
        if self.o.only07 and i != 7: i = -1
        if (self.o.stamps or self.o.dspan) and i >= 0:
            r = STAMP_REGS[i]
            self.a(f"{'s_memtime' if self.o.cyc else 's_memrealtime'} s[{r}:{r+1}]")


sWV, sG, sR, sH, sGQ = 3, 4, 5, 6, 7
sT0, sT1, sT2, sT3 = 8, 9, 10, 11
sM, sEV, sCNT, sSIG = 12, 13, 14, 15
pOUT, pDBG, pWS = 40, 42, 44
sK, sV, sQ, sW, sD, sXU, sXY, sOUT, sCT, sHH = 48, 52, 56, 60, 64, 68, 72, 76, 80, 84
sDG = 60
sROW0, sLC, sCOL, sLR, sCHJ, sX1, sX2, sX3, sX4, sF, sN = 16, 17, 18, 19, 20, 21, 22, 23, 24, 26, 27
sWMY, sTS, sGB, sDGO, sJ = 28, 32, 33, 34, 35
sTAG = 25
sE, sSTG = 100, 101


def poll_line(G, vl, soff, w, vt, cnt, n, sleep=None, scmp=sF, detect=None):
    L, D, C, R = G.lab("pg"), G.lab("pgd"), G.lab("pgc"), G.lab("pgr")
    G.a(f"s_mov_b32 s{sCNT}, 0")
    G.a(f"{L}:")
    G.a(f"buffer_load_dwordx{w} v[{vt}:{vt+w-1}], v{vl}, s[{sCT}:{sCT+3}], s{soff} offen sc1")
    G.a(f"s_add_u32 s{sCNT}, s{sCNT}, 1")
    G.a("s_waitcnt vmcnt(0)")
    G.a(f"v_xor_b32 v{vt}, s{scmp}, v{vt}")
    for k in range(1, w):
        G.a(f"v_bitop3_b32 v{vt}, v{vt}, v{vt+k}, s{scmp} bitop3:0xf6")
    G.a(f"v_cmp_ne_u32 vcc, 0, v{vt}")
    G.a(f"s_cbranch_vccz {D}")
    sl = G.o.sleep if sleep is None else sleep
    if sl:
        G.a(f"s_sleep {sl}")
    G.a(f"s_and_b32 s{sT0}, s{sCNT}, 63\ns_cbranch_scc1 {L}")
    G.a(f"s_branch {C}")
    G.a(f"{D}:")
    def cold():
        G.a(f"{C}:")
        R0 = G.lab("pgx") if detect else R
        G.a(f"s_cmp_eq_u32 s{sM}, 0\ns_cbranch_scc1 {R0}")
        G.a(f"s_mov_b64 exec, 1\nv_mov_b32 v{vt}, 0")
        G.a(f"buffer_atomic_add v{vt}, off, s[{sDG}:{sDG+3}], {cnt[0]} offset:{cnt[1]} sc0 sc1")
        G.a(f"s_waitcnt vmcnt(0)")
        G.a(f"v_readfirstlane_b32 s{sT0}, v{vt}\ns_mov_b64 exec, -1")
        G.a(f"s_cmp_ge_u32 s{sT0}, {n}\ns_cbranch_scc1 {D}")
        G.a(f"{R}:")
        G.a(f"s_cmp_lt_u32 s{sCNT}, {CAP_G}\ns_cbranch_scc1 {L}\ns_branch {D}")
        if detect:
            G.a(f"{R0}:")
            detect(R)
            G.a(f"s_branch {R}")
    G.cold.append(cold)


def poll_lds(G, vfl, off, expected, vt, sleep=1, pair=None, hook=None):
    L, D = G.lab("pl"), G.lab("pld")
    G.a(f"s_mov_b32 s{sCNT}, 0")
    G.a(f"{L}:")
    if pair is None:
        G.a(f"ds_read_b32 v{vt}, v{vfl} offset:{off}")
    else:
        G.a(f"ds_read_b64 v[{vt}:{vt+1}], v{vfl} offset:{off}")
    G.a(f"s_add_u32 s{sCNT}, s{sCNT}, 1")
    G.a("s_waitcnt lgkmcnt(0)")
    G.a(f"v_readfirstlane_b32 s{sT0}, v{vt}")
    if pair is not None:
        G.a(f"v_readfirstlane_b32 s{pair}, v{vt+1}")
    if hook: hook(L)
    G.a(f"s_cmp_ge_u32 s{sT0}, {expected}")
    G.a(f"s_cbranch_scc1 {D}")
    if sleep: G.a(f"s_sleep {max(sleep, G.o.lsleep)}")
    G.a(f"s_cmp_lt_u32 s{sCNT}, {CAP_L}")
    G.a(f"s_cbranch_scc1 {L}")
    G.a(f"{D}:")


def get_nonce(G, vfl, vt, vf):
    L, D = G.lab("gn"), G.lab("gnd")
    G.a(f"s_getreg_b32 s{sF}, hwreg(HW_REG_XCC_ID, 0, 4)\ns_mov_b32 s{sCNT}, 0")
    G.a(f"{L}:")
    G.a(f"ds_read_b64 v[{vt}:{vt+1}], v{vfl} offset:{F_N}")
    G.a(f"s_add_u32 s{sCNT}, s{sCNT}, 1")
    G.a("s_waitcnt lgkmcnt(0)")
    G.a(f"v_readfirstlane_b32 s{sTAG}, v{vt+1}")
    G.a(f"v_readfirstlane_b32 s{sN}, v{vt}")
    G.a(f"s_cmp_ge_u32 s{sTAG}, 1")
    G.a(f"s_cbranch_scc1 {D}")
    G.a("s_sleep 1")
    G.a(f"s_cmp_lt_u32 s{sCNT}, {CAP_L}")
    G.a(f"s_cbranch_scc1 {L}")
    G.a(f"{D}:")
    G.a(f"s_add_u32 s{sF}, s{sF}, s{sN}\ns_add_u32 s{sF}, s{sF}, 1\nv_mov_b32 v{vf}, s{sF}\ns_and_b32 s{sTAG}, s{sTAG}, 0xffff")


def to_mode1(G, vf):
    G.a(f"s_mov_b32 s{sM}, 1\ns_mov_b32 s{sF}, s{sN}\nv_mov_b32 v{vf}, s{sN}")
    G.a(f"s_add_u32 s{sGB}, s{sGB}, {UOFF}")
    G.a(f"s_mov_b64 s[{sXU}:{sXU+1}], s[{pWS}:{pWS+1}]")
    G.a(f"s_add_u32 s{sXY}, s{pWS}, {OUTB}\ns_addc_u32 s{sXY+1}, s{pWS+1}, 0")


def adopt_mode(G, sm, vf):
    A, B = G.lab("am"), G.lab("amb")
    G.a(f"s_cmp_gt_u32 s{sm}, s{sM}\ns_cbranch_scc1 {A}")
    G.a(f"{B}:")
    def cold():
        G.a(f"{A}:")
        to_mode1(G, vf)
        G.a(f"s_branch {B}")
    G.cold.append(cold)


def signal(G, vf, vrep, sslot, line, w, cnt, vt):
    A, B = G.lab("ma"), G.lab("mb")
    G.a(f"s_mov_b64 exec, 15")
    G.a(f"s_cmp_eq_u32 s{sM}, 0\ns_cbranch_scc0 {A}")
    G.a(f"buffer_store_dword v{vf}, v{vrep}, s[{sCT}:{sCT+3}], s{sslot} offen")
    G.a(f"{B}:")
    G.a("s_mov_b64 exec, -1")
    def cold():
        G.a(f"{A}:")
        G.a(f"s_mov_b64 exec, 1\nv_mov_b32 v{vt}, 1")
        G.a(f"buffer_atomic_add v{vt}, off, s[{sDG}:{sDG+3}], s{sDGO} offset:{cnt} sc0 sc1")
        G.a("s_waitcnt vmcnt(0)")
        G.a(f"v_readfirstlane_b32 s{sT0}, v{vt}")
        G.a(f"s_cmp_eq_u32 s{sT0}, {64*w-1}\ns_cbranch_scc0 {B}")
        G.a(f"s_mov_b64 exec, -1\ns_add_u32 s{sT1}, s{sGB}, {line}")
        G.a(f"v_lshlrev_b32 v{vt+4}, 4, v0")
        for k in range(4): G.a(f"v_mov_b32 v{vt+k}, v{vf}")
        for fl in (" sc1", ""):
            for k in range(w):
                G.a(f"buffer_store_dwordx4 v[{vt}:{vt+3}], v{vt+4}, s[{sCT}:{sCT+3}], s{sT1} offen offset:{1024*k}{fl}")
        G.a(f"s_branch {B}")
    G.cold.append(cold)


def tagged_loads(G, n, r0, vaddr, srd, offs, vt, after=None):
    L, D, C = G.lab("tl"), G.lab("tld"), G.lab("tlc")
    def loads():
        for k in range(n):
            so, io = offs(k)
            if so: G.a(f"s_mov_b32 s{sT1}, {so}")
            G.a(f"buffer_load_dwordx4 v[{r0+4*k}:{r0+4*k+3}], v{vaddr}, s[{srd}:{srd+3}], {'s%d' % sT1 if so else 0} offen offset:{io} {G.o.tl_fl}")
    G.a(f"s_mov_b32 s{sCNT}, 0")
    loads()
    nyoung = after() if after else 0
    G.a(f"s_waitcnt vmcnt({nyoung})")
    if after: G.stamp(-1, 5, 2)
    G.a(f"{L}:")
    G.a(f"v_xor_b32 v{vt}, s{sTAG}, v{r0}")
    for k in range(1, 4 * n):
        G.a(f"v_bitop3_b32 v{vt}, v{vt}, v{r0+k}, s{sTAG} bitop3:0xf6")
    G.a(f"v_and_b32 v{vt}, 0xffff, v{vt}")
    G.a(f"v_cmp_ne_u32 vcc, 0, v{vt}")
    G.a(f"s_cbranch_vccnz {C}")
    G.a(f"{D}:")
    def cold():
        G.a(f"{C}:")
        G.a(f"s_add_u32 s{sCNT}, s{sCNT}, 1\ns_cmp_lt_u32 s{sCNT}, {CAP_G}\ns_cbranch_scc0 {D}")
        R = G.lab("tlr")
        G.a(f"s_and_b32 s{sT0}, s{sCNT}, 63\ns_cbranch_scc1 {R}\nbuffer_inv sc1\n{R}:")
        G.a("s_sleep 2")
        loads()
        G.a(f"s_waitcnt vmcnt(0)\ns_branch {L}")
    G.cold.append(cold)


def ctl_srd(G):
    G.a(f"s_lshl_b32 s{sGB}, s{sH}, {HSH}\ns_add_u32 s{sGB}, s{sGB}, {CT_OFF}\ns_add_u32 s{sCT}, s{pWS}, s{sGB}\ns_addc_u32 s{sCT+1}, s{pWS+1}, 0")
    G.srd(sCT, None, 5 * GSTRIDE)
    G.a(f"s_add_u32 s{sGB}, s{sGQ}, 1\ns_lshl_b32 s{sGB}, s{sGB}, 15")


def misc_srd(G):
    G.srd(sDG, pDBG, 256)
    G.a(f"s_mul_i32 s{sDGO}, s{sGQ}, 20\ns_lshl_b32 s{sT0}, s{sH}, 7\ns_add_u32 s{sDGO}, s{sDGO}, s{sT0}\ns_add_u32 s{sDGO}, s{sDGO}, 8")
    G.srd(sXU, pOUT, OUTB)
    G.srd(sXY, pOUT, OUTB)
    G.a(f"s_mov_b32 s{sM}, 0")


def chan_of(G, sj, dst):
    G.a(f"s_and_b32 s{sT1}, s{sR}, 12\ns_add_u32 s{sT1}, s{sT1}, s{sj}\ns_lshl_b32 s{sT1}, s{sT1}, 2\ns_and_b32 s{sT2}, s{sR}, 3\ns_add_u32 s{sT1}, s{sT1}, s{sT2}")
    G.a(f"s_lshr_b32 s{sT2}, s{sR}, 4\ns_lshl_b32 s{sT3}, s{sGQ}, 1\ns_add_u32 s{sT2}, s{sT2}, s{sT3}\ns_lshl_b32 s{sT2}, s{sT2}, 6\ns_add_u32 s{dst}, s{sT1}, s{sT2}")


def inbox_of(G, dst, slr):
    G.a(f"s_lshr_b32 s{sT2}, s{sR}, 4\ns_lshl_b32 s{sT3}, s{sGQ}, 1\ns_add_u32 s{sT2}, s{sT2}, s{sT3}\ns_lshl_b32 s{sT2}, s{sT2}, 7")
    G.a(f"s_mul_i32 s{dst}, s{sH}, 1152\ns_add_u32 s{dst}, s{dst}, s{sT2}\ns_and_b32 s{slr}, s{sR}, 15")


def xbox_of(G, dst, se, slr):
    G.a(f"s_lshl_b32 s{se}, s{sGQ}, 5\ns_add_u32 s{se}, s{se}, s{sR}\ns_lshr_b32 s{se}, s{se}, 1")
    G.a(f"s_lshr_b32 s{sT1}, s{se}, 4\ns_lshl_b32 s{sT1}, s{sT1}, 2\ns_and_b32 s{sT2}, s{se}, 3\ns_add_u32 s{slr}, s{sT1}, s{sT2}")
    G.a(f"s_bfe_u32 s{sT1}, s{se}, {(2<<16)|2}\ns_lshl_b32 s{sT1}, s{sT1}, 6")
    G.a(f"s_lshl_b32 s{sT2}, s{sH}, {HSH}\ns_add_u32 s{dst}, s{sT1}, s{sT2}")


def blk_addr(G, vd, vt, slr, rowb, scol):
    G.a(f"v_add_u32 v{vt}, s{slr}, v{vd}\nv_and_b32 v{vt}, 15, v{vt}\nv_lshl_add_u32 v{vd}, v{vd}, 4, v{vt}")
    G.a(f"v_mul_u32_u24 v{vd}, {rowb}, v{vd}\nv_add_u32 v{vd}, s{scol}, v{vd}")


def xa_loads(G, b, va, q):
    nt = G.o.h_nt
    if G.o.noh: return
    G.a(f"buffer_load_dwordx4 v[{b+2}:{b+5}], v{va}, s[{sHH}:{sHH+3}], 0 offen offset:{1024*q} {nt}")
    if q:
        G.a(f"s_mov_b64 exec, 1\nbuffer_load_dwordx2 v[{b}:{b+1}], v{va}, s[{sHH}:{sHH+3}], 0 offen offset:{1024*q-8} {nt}\ns_mov_b64 exec, -1")


def xa_build(G, b, t, vdst, off, q, plain=False):
    w = lambda i: b + 2 + i
    bc = "" if q else " bound_ctrl:0"
    G.a(f"v_mov_b32_dpp v{b}, v{w(2)} wave_shr:1 row_mask:0xf bank_mask:0xf{bc}")
    G.a(f"v_mov_b32_dpp v{b+1}, v{w(3)} wave_shr:1 row_mask:0xf bank_mask:0xf{bc}")
    G.a(f"ds_write_b128 v{vdst}, v[{b+2}:{b+5}] offset:{off + 3*PLANE}")
    for i in range(4):
        G.a(f"v_alignbit_b32 v{t+i}, v{w(i-1)}, v{w(i-2)}, 16")
    G.a(f"ds_write_b128 v{vdst}, v[{t}:{t+3}] offset:{off}")
    for i in range(4):
        G.a(f"v_alignbit_b32 v{t+4+i}, v{w(i)}, v{w(i-1)}, 16")
    G.a(f"ds_write_b128 v{vdst}, v[{t+4}:{t+7}] offset:{off + 2*PLANE}")
    if plain:
        for i in range(4): G.a(f"v_mov_b32 v{t+8+i}, v{w(i-1)}")
    else:
        G.a(f"v_pk_mov_b32 v[{t+8}:{t+9}], v[{b}:{b+1}], v[{b+2}:{b+3}] op_sel:[1,0]")
        G.a(f"v_pk_mov_b32 v[{t+10}:{t+11}], v[{b+2}:{b+3}], v[{b+4}:{b+5}] op_sel:[1,0]")
    G.a(f"ds_write_b128 v{vdst}, v[{t+8}:{t+11}] offset:{off + PLANE}")


def transpose4(G, regs):
    G.a("s_nop 1")
    for j in (0, 1):
        for d in (0, 1):
            G.a(f"v_permlane32_swap_b32 v{regs[j]+d}, v{regs[j+2]+d}")
    G.a("s_nop 1")
    for j in (0, 2):
        for d in (0, 1):
            G.a(f"v_permlane16_swap_b32 v{regs[j]+d}, v{regs[j+1]+d}")


def u_src(G, vd, vt, slr, scol):
    G.a(f"v_lshrrev_b32 v{vd}, 1, v0\nv_sub_u32 v{vd}, 31, v{vd}")
    blk_addr(G, vd, vt, slr, RS_OUT, scol)
    G.a(f"v_and_b32 v{vt}, 1, v0\nv_lshl_add_u32 v{vd}, v{vt}, 4, v{vd}")


def u_loads(G, r, vsrc, qs):
    for k, q in enumerate(qs):
        G.a(f"s_mov_b32 s{sT1}, {(3-q)*32*16*RS_OUT}")
        G.a(f"buffer_load_dwordx4 v[{r+4*k}:{r+4*k+3}], v{vsrc}, s[{sXU}:{sXU+3}], s{sT1} offen {G.o.dma_fl}")


def u_write(G, r, vdst, vdst1, q):
    G.a(f"ds_write_b128 v{vdst}, v[{r}:{r+3}] offset:{1024*q}")
    G.a(f"ds_write2_b64 v{vdst1}, v[{r}:{r+1}], v[{r+2}:{r+3}] offset0:{128*q if q < 2 else 128*(q-2)} offset1:{(128*q if q < 2 else 128*(q-2))+1}")


def uc_setup(G, va, vb, vd, vt, sj, slr, scol, half):
    G.a(f"s_lshl_b32 s{sT0}, s{sj}, 4\ns_sub_u32 s{sT0}, {63 + 64*half}, s{sT0}\nv_lshrrev_b32 v{vd}, 3, v0\nv_sub_u32 v{va}, s{sT0}, v{vd}\nv_add_u32 v{vb}, -8, v{va}")
    blk_addr(G, va, vt, slr, RS_OUT, scol)
    blk_addr(G, vb, vt, slr, RS_OUT, scol)
    G.a(f"v_and_b32 v{vt}, 7, v0\nv_lshl_add_u32 v{va}, v{vt}, 4, v{va}\nv_lshl_add_u32 v{vb}, v{vt}, 4, v{vb}")
    G.a(f"s_lshl_b32 s{sT0}, s{sj}, 9\ns_add_u32 s{sT0}, s{sT0}, {U0 + 2048*(1-half)}\nv_lshl_add_u32 v{vd}, v{vd}, 5, s{sT0}")
    G.a(f"v_lshrrev_b32 v{vt}, 1, v{vt}\nv_mul_u32_u24 v{vt}, {U_SZ}, v{vt}\nv_add_u32 v{vd}, v{vd}, v{vt}\nv_and_b32 v{vt}, 1, v0\nv_lshl_add_u32 v{vd}, v{vt}, 4, v{vd}")
    G.a(f"v_add_u32 v{vd+1}, {UP1 - 8}, v{vd}")


def uc_loads(G, r, va, vb):
    for k, v in enumerate((va, vb)):
        G.a(f"buffer_load_dwordx4 v[{r+4*k}:{r+4*k+3}], v{v}, s[{sXU}:{sXU+3}], 0 offen {G.o.dma_fl}")


def uc_write(G, r, vd, k):
    G.a(f"ds_write_b128 v{vd}, v[{r}:{r+3}] offset:{256*k}")
    G.a(f"ds_write2_b64 v{vd+1}, v[{r}:{r+1}], v[{r+2}:{r+3}] offset0:{32*k} offset1:{32*k+1}")


def u_pad(G, vt, vz, subase):
    G.a(f"v_lshlrev_b32 v{vt}, 3, v0\nv_cmp_lt_u32 vcc, 14, v0\nv_add_u32 v{vt}, {subase}, v{vt}\nv_add_u32 v{vt+1}, 4096, v{vt}")
    G.a(f"v_cndmask_b32 v{vt}, v{vt}, v{vt+1}, vcc")


def u_pad_write(G, vt, vz):
    G.a(f"s_mov_b32 exec_hi, 0\nds_write_b64 v{vt}, v[{vz}:{vz+1}] offset:4096\ns_mov_b32 exec_hi, -1")


def pk(G, op, d, x, y, z=None, force=False):
    if G.o.nopk and not force:
        for i in (0, 1):
            G.a(f"v_{op}_f32 v{d+i}, v{x+i}, v{y+i}" + (f", v{z+i}" if z is not None else ""))
    else:
        G.a(f"v_pk_{op}_f32 v[{d}:{d+1}], v[{x}:{x+1}], v[{y}:{y+1}]" + (f", v[{z}:{z+1}]" if z is not None else ""))


def sq_prefetch(G, soff):
    G.a(f"s_add_u32 s{sK}, s{sQ}, s{soff}\ns_addc_u32 s{sK+1}, s{sQ+1}, 0")
    for i in range(16):
        G.a(f"s_load_dword s{sV}, s[{sK}:{sK+1}], {i*RS_IN}\ns_load_dword s{sV+1}, s[{sK}:{sK+1}], {i*RS_IN+64}")


def lds_count(G, vfl, vone, off):
    G.a(f"s_mov_b64 exec, 1\nds_add_u32 v{vfl}, v{vone} offset:{off}\ns_mov_b64 exec, -1")


def finish(G):
    if G.o.dspan:
        G.a("s_waitcnt vmcnt(0)")
        G.stamp(7, 7)
        G.srd(sK, pDBG, 256)
        D = G.lab("ds")
        G.a(f"s_waitcnt lgkmcnt(0)\ns_and_b32 s{sT0}, s2, 0x78\ns_cbranch_scc1 {D}")
        G.a(f"s_cmp_eq_u32 s{sWV}, 10\ns_cselect_b32 s{sT1}, 0, 32\ns_cselect_b32 s{sT0}, 1, 0\ns_cmp_eq_u32 s{sWV}, 9\ns_cselect_b32 s{sT0}, 1, s{sT0}\ns_cmp_eq_u32 s{sT0}, 1\ns_cbranch_scc0 {D}")
        G.a("s_not_b32 s90, s88")
        G.a("s_mov_b64 exec, 1")
        for i in range(8):
            G.a(f"v_mov_b32 v8, s{STAMP_REGS[i]}\nbuffer_atomic_umax v8, off, s[{sK}:{sK+3}], s{sT1} offset:{4*i} sc1")
        G.a(f"{D}:")
        G.a("s_endpgm")
        G.flush_cold()
        return
    if G.o.stamps:
        G.a("s_waitcnt vmcnt(0)")
        G.stamp(7, 7)
        G.a(f"s_add_u32 s{sT2}, s{pWS}, {64<<20}\ns_addc_u32 s{sT3}, s{pWS+1}, 0")
        G.srd(sK, sT2, 1 << 20)
        G.a(f"s_lshl_b32 s{sT0}, s2, 4\ns_add_u32 s{sT0}, s{sT0}, s{sWV}\ns_lshl_b32 s{sT0}, s{sT0}, 5")
        G.a("s_waitcnt lgkmcnt(0)")
        for i in range(8):
            G.a(f"v_mov_b32 v{8+i}, s{STAMP_REGS[i]}")
        G.a("s_mov_b64 exec, 1")
        G.a(f"buffer_store_dwordx4 v[8:11], off, s[{sK}:{sK+3}], s{sT0}")
        G.a(f"buffer_store_dwordx4 v[12:15], off, s[{sK}:{sK+3}], s{sT0} offset:16")
    G.a("s_endpgm")
    G.flush_cold()


class Stream:
    def __init__(self, G, slots, lead):
        self.G, self.slots, self.lead = G, slots, lead
        self.mf = []
        self.side = {}
        self.busy = {}
        self.avail = {}
        self.gate = {}
    def mfma(self, acc, A, B, zero):
        self.mf.append((acc, A, B, zero))
    def at(self, pos, fn, ds=0):
        self.side.setdefault(pos, []).append(fn)
        self.busy[pos] = self.busy.get(pos, 0) + ds
    def spread(self, pos, lines, step=1):
        for ln in lines:
            self.at(pos, lambda S_, ln=ln: S_.G.a(ln))
            pos += step
        return pos
    def emit(self, loadtext, pre=None):
        G = self.G
        n = len(self.mf)
        first, last, order = {}, {}, []
        for i, (acc, A, B, z) in enumerate(self.mf):
            for k in (A, B):
                if k not in first:
                    first[k] = i; order.append(k)
                last[k] = i
        free = [self.avail.get(r, 0) for r in self.slots]
        sched = {}
        cnt = [self.busy.get(i, 0) for i in range(n + 1)]
        slot_of = {}
        prev = 0
        for k in order:
            s = min(range(len(free)), key=lambda j: free[j])
            ops = loadtext(k, self.slots[s])
            lo = max(self.gate.get(k[0:2] + (k[2] >> 2,), 0), free[s], prev)
            slot_of[k] = self.slots[s]
            for op in ops:
                p = max(lo, first[k] - self.lead)
                hi = max(p, first[k] - 4)
                q = min(range(p, hi + 1), key=lambda x: (cnt[x], x))
                p = min(q, first[k])
                assert p >= lo, (k, p, lo)
                cnt[p] += 1
                sched.setdefault(p, []).append((k, op))
                prev = lo = p
            free[s] = last[k] + 1
        self.nds = 0
        self.done = 0
        ready = {}
        issued = []
        if pre:
            for k, op in sched.get(0, []):
                if k[1] == "A": G.a(op); self.nds += 1; ready[k] = self.nds
            sched[0] = [e for e in sched.get(0, []) if e[0][1] != "A"]
            self.nds += pre()
        for i in range(n + 1):
            for fn in self.side.get(i, []):
                fn(self)
            for k, op in sched.get(i, []):
                G.a(op); self.nds += 1; ready[k] = self.nds
            issued.append(self.nds)
            if i == n: break
            acc, A, B, z = self.mf[i]
            nd = max(ready[A], ready[B])
            if nd > self.done and G.o.wbatch and i >= G.o.wbatch:
                nd = max(nd, issued[i - G.o.wbatch])
            self.need(nd)
            a_, b_ = slot_of[A], slot_of[B]
            c = "0" if z else f"v[{acc}:{acc+3}]"
            G.a(f"v_mfma_f32_16x16x32_bf16 v[{acc}:{acc+3}], v[{a_}:{a_+3}], v[{b_}:{b_+3}], {c}")
        self.stats = (n, sum(cnt), max(cnt), sum(1 for c in cnt if c > 1))
    def ds(self, text):
        self.G.a(text); self.nds += 1
        return self.nds
    def need(self, idx):
        if idx > self.done:
            out = min(self.nds - idx, 15)
            self.G.a(f"s_waitcnt lgkmcnt({out})")
            self.done = self.nds - out


cA, cB, cAX, cBX, cY, cYX, cSW, cSR, cFL, cONE, c128, cT, cF, cL4 = 1, 2, 3, 4, 5, 6, 7, 8, 9, 10, 11, 12, 14, 15


def c_stream(G, ts, pre=None):
    o = G.o
    ACC = 16
    PK = 48
    ACX = 56
    slots = [72 + 4 * i for i in range(14)]
    S = Stream(G, slots, o.lead)
    acc = lambda t: ACC + 4 * t
    S.nst = 0
    seen = set()
    def add(ph, ch, pairs, ys, accf):
        for y in ys:
            for (x, b) in pairs:
                r = accf(x + b)
                S.mfma(r, (ph, "A", x, y, ch), (ph, "B", b, y, ch), (r, ch) not in seen)
                seen.add((r, ch))
    def loadtext(k, r):
        ph, typ, i, y, ch = k
        if typ == "A":
            return [f"ds_read_b128 v[{r}:{r+3}], v{cAX if ch else cA} offset:{512*i + 64*y}"]
        off = 512 * (7 - i) + 64 * y
        v = cBX if ch else cB
        return [f"ds_read_b128 v[{r}:{r+3}], v{v} offset:{off}"]
    p1 = [(x, b) for x in range(4) for b in range(4)]
    p1.sort(key=lambda p: (max(p), p[0] + p[1]))
    p1only = list(p1)
    p2 = [(4, 0), (5, 0), (4, 1), (6, 0), (5, 1), (4, 2), (7, 0), (6, 1), (5, 2), (4, 3)]
    p3 = [(x, b) for (b, x) in p2]
    def snake(pairs, major):
        out, flip = [], False
        for m in sorted(set(p[major] for p in pairs)):
            row = sorted((p for p in pairs if p[major] == m), key=lambda p: p[1 - major], reverse=flip)
            out += row; flip = not flip
        return out
    if o.pord in "AB":
        mj = 0 if o.pord == "A" else 1
        p1, p2, p3 = snake(p1, mj), snake(p2, mj), snake(p3, mj)
    tiles = [0, 3, 4, 7] if ts == 0 else [1, 2, 5, 6]
    px = [(x, b) for x in range(4, 8) for b in range(4) if x + b in tiles] + \
         [(x, b) for x in range(4) for b in range(4) if x + b in tiles] + \
         [(x, b) for x in range(4) for b in range(4, 8) if x + b in tiles]
    assert len(px) == 18
    use = []
    for (x, b) in px:
        if x + b not in use: use.append(x + b)
    accx = lambda t: ACX + 4 * use.index(t)
    if o.merge: p1 = p2 + p1
    beg, end = {}, {}
    for ph in o.order:
        if ph == "2" and o.merge: continue
        beg[ph] = len(S.mf)
        if ph == "a": add(1, 0, p1, range(o.ya), acc)
        if ph == "1": add(1, 0, p1, range(o.ya if "a" in o.order else 0, 8), acc)
        if ph == "x": add(2, 1, px, range(2), accx)
        if ph == "2": add(3, 0, p2, range(8), acc)
        if ph == "3" and not o.split3: add(4, 0, p3, range(8), acc)
        if ph == "3" and o.split3:
            add(4, 0, [p for p in p3 if sum(p) < 6], range(8), acc)
            e3a = len(S.mf)
            add(6, 0, [p for p in p3 if sum(p) >= 6], range(8), acc)
        if ph == "5": add(5, 0, p2 + p3, range(8), acc)
        end[ph] = len(S.mf)
    e1, ex, e3 = end["1"], end["x"], len(S.mf)
    S.mf[e1 - 16:e1] = sorted(S.mf[e1 - 16:e1], key=lambda m: m[0])

    def check(pos, off, expected):
        st = {}
        def rd(S_):
            st["i"] = S_.ds(f"ds_read_b32 v{cT}, v{cFL} offset:{off}")
        def ck(S_):
            S_.need(st["i"])
            if o.iso or o.x_nock or {F_X: 'X', C_U0: 'S', F_U2: 'U', C_H: 'H'}[off] in o.nock: return
            D, C = G.lab("ck"), G.lab("ckc")
            G.a(f"v_readfirstlane_b32 s{sT0}, v{cT}")
            G.a(f"s_cmp_ge_u32 s{sT0}, {expected}")
            G.a(f"s_cbranch_scc0 {C}")
            G.a(f"{D}:")
            def cold():
                G.a(f"{C}:")
                poll_lds(G, cFL, off, expected, cT)
                G.a(f"s_branch {D}")
            G.cold.append(cold)
        S.at(max(pos - 5, 0), rd, ds=1); S.at(max(pos, 0), ck)
    def count(pos, off):
        def f(S_):
            G.a("s_mov_b64 exec, 1")
            S_.ds(f"ds_add_u32 v{cFL}, v{cONE} offset:{off}")
            G.a("s_mov_b64 exec, -1")
        S.at(pos, f, ds=1)
    def ystore1(t, pk):
        A, B = G.lab("ys"), G.lab("yd")
        S.nst += 1
        G.a(f"s_mov_b32 s{sT1}, {t*TILE_STEP}")
        G.a(f"s_cbranch_vccnz {A}")
        G.a(f"buffer_store_dwordx2 v[{pk}:{pk+1}], v{cY}, s[{sXY}:{sXY+3}], s{sT1} offen")
        G.a(f"{B}:")
        def cold():
            G.a(f"{A}:")
            G.a(f"buffer_store_dwordx2 v[{pk}:{pk+1}], v{cY}, s[{sXY}:{sXY+3}], s{sT1} offen sc1")
            G.a(f"s_branch {B}")
        G.cold.append(cold)
    Ld = o.lead + 1
    check(beg["x"] - o.xlead, F_X, 2 if o.xsplit else 1)
    for h in (0, 1):
        S.gate[(2, "A", h)] = S.gate[(2, "B", h)] = beg["x"] - o.xlead
    if not o.h2early:
        check(beg["2"] - Ld, C_H, 4)
        S.gate[(3, "A", 1)] = beg["2"] - Ld
    if not o.u2early:
        check(beg["3"] - o.ulead, F_U2, 4)
        S.gate[(4, "B", 1)] = beg["3"] - o.ulead
    lastw = {t: max(i for i in range(e1) if S.mf[i][0] == acc(t)) for t in range(4)}
    reuse = beg["x"]
    p = 0
    for t in range(4):
        p = max(p, lastw[t] + 9)
        r = acc(t)
        p = S.spread(p, [f"v_cvt_pk_bf16_f32 v{PK+2*t}, v{r}, v{r+1}", f"v_cvt_pk_bf16_f32 v{PK+2*t+1}, v{r+2}, v{r+3}"])
    if o.y1dir:
        if o.merge: p = e3 - 30
        p += o.y1shift
        for t in range(4):
            S.at(p, lambda S_, t=t: ystore1(t, PK + 2 * t))
            p += o.y1step
        if not o.merge:
            def y1flag(S_):
                G.a(f"s_sub_u32 s{sX1}, s{sEV}, {L_Y2 - L_Y1}\ns_waitcnt vmcnt(0)")
                signal(G, cF, c128, sX1, L_Y1, 2, 8, 16)
            S.at(p + o.y1ack, y1flag)
    for t in range(0 if o.y1dir else 4):
        def yw(S_, t=t):
            S_.last_yw = S_.ds(f"ds_write_b64 v{cYX}, v[{PK+2*t}:{PK+2*t+1}] offset:{2048*t}")
        S.at(p, yw, ds=1)
        p += 2
    if not o.y1dir:
        S.at(p + 4, lambda S_: S_.need(S_.last_yw))
        count(p + 4, C_Y1)
    S.at(e1, lambda S_: G.stamp(3, mid=3))
    p = ex + 8
    if not o.konly and not o.e2dir: check(p, C_U0, 4)
    for i in range(4):
        def pw(S_, i=i):
            S_.last_pw = S_.ds(f"ds_write_b128 v{cSW}, v[{accx(tiles[i])}:{accx(tiles[i])+3}] offset:{4096*i}")
        S.at(p + i, pw, ds=1)
    S.at(p + 8, lambda S_: S_.need(S_.last_pw))
    count(p + 8, C_P)
    for i in range(4):
        S.slots.append(ACX + 4 * i); S.avail[ACX + 4 * i] = p + 9
    S.at(end.get("3", ex + 80), lambda S_: G.stamp(4, mid=4))
    S.at(ex, lambda S_: G.stamp(5, mid=5))
    n = e3
    P2 = ACC + 8
    def cvt(t):
        r = acc(t)
        return [f"v_cvt_pk_bf16_f32 v{P2+2*(t-4)}, v{r}, v{r+1}", f"v_cvt_pk_bf16_f32 v{P2+2*(t-4)+1}, v{r+2}, v{r+3}"]
    nl = 10 * o.stag
    S.mf[n - nl:] = sorted(S.mf[n - nl:], key=lambda m: m[0])
    p, late = 0, []
    for t in (4, 5, 6, 7):
        lw = max(i for i in range(n) if S.mf[i][0] == acc(t))
        p = max(p, lw + 9)
        if p + 2 <= n:
            p = S.spread(p, cvt(t))
            S.at(p, lambda S_, t=t: ystore1(t, P2 + 2 * (t - 4)))
        else:
            late.append((t, n - 1 - lw))
    def tail(S_):
        G.stamp(6, mid=6, tl=3)
        states = 0
        for t, d in late:
            if d + states < 8:
                G.a(f"s_nop {8 - d - states - 1}"); states = 8 - d
            G.a("\n".join(cvt(t))); ystore1(t, P2 + 2 * (t - 4))
            states += 5
    S.at(n, tail)
    if o.ydata and o.ygo > 0: count(n - o.ygo, C_Y2)
    S.emit(loadtext, pre)
    if o.ydata and not o.ygo: lds_count(G, cFL, cONE, C_Y2)
    G.stamp(-1, tl=4)
    G.a("s_waitcnt vmcnt(0)")
    G.stamp(-1, tl=5)
    if o.ydata and o.ygo < 0: lds_count(G, cFL, cONE, C_Y2)
    signal(G, cF, c128, sEV, L_Y2, 2, 12, 16)
    finish(G)
    return S.stats


def gen(o):
    G = Gen(o)
    a = G.a
    nt = o.ld_nt
    K = NAME + "_kernel"
    assert o.y1dir or not o.qhold
    GO2 = 8 if o.uxearly else 9
    GO3 = GO2 + (0 if o.h2early else 4)
    a(f"{K}:")
    a("s_cmp_ge_u32 s2, 256\ns_cbranch_scc1 L_exit")
    if o.stamps or o.dspan:
        a("s_memtime s[88:89]" if o.cyc else "s_memrealtime s[88:89]")
    a("s_load_dwordx16 s[16:31], s[0:1], 0")
    a("s_load_dwordx8 s[32:39], s[0:1], 64")
    a("s_load_dwordx4 s[40:43], s[0:1], 96")
    a("s_load_dwordx2 s[44:45], s[0:1], 112")
    if o.pfentry:
        a(f"s_getpc_b64 s[{sT0}:{sT1}]")
        a("L_pc:")
        a(f"s_bfe_u32 s{sT2}, s2, {(3<<16)|3}\ns_mul_i32 s{sT2}, s{sT2}, 24\nv_cmp_gt_u32 vcc, 16, v0\nv_add_u32 v2, s{sT2}, v0\ns_nop 0")
        a(f"v_cndmask_b32 v2, v2, v0, vcc\nv_lshlrev_b32 v2, 7, v2\nv_min_u32 v2, L_exit-L_pc, v2\nv_cmp_gt_u32 vcc, 40, v0\ns_and_saveexec_b64 s[{sT2}:{sT3}], vcc\ns_cbranch_execz L_pd")
        a(f"global_load_dword v17, v2, s[{sT0}:{sT1}]")
        a(f"L_pd:\ns_mov_b64 exec, s[{sT2}:{sT3}]")
    a("v_lshrrev_b32 v1, 6, v0")
    a(f"s_and_b32 s{sG}, s2, 7")
    a(f"v_readfirstlane_b32 s{sWV}, v1")
    a("v_and_b32 v0, 63, v0")
    a(f"s_lshr_b32 s{sR}, s2, 3\ns_lshr_b32 s{sH}, s{sG}, 2\ns_and_b32 s{sGQ}, s{sG}, 3")
    a(f"s_cmp_eq_u32 s{sWV}, {W_S}\ns_cbranch_scc1 L_Si")
    if o.cfirst: a(f"s_sub_u32 s46, s{sWV}, 6\ns_cmp_lt_u32 s46, 4\ns_cbranch_scc1 L_Ci")
    else: a(f"s_cmp_ge_u32 s{sWV}, {W_C}\ns_cbranch_scc1 L_Ci")

    vIN, vK3, vWo, vDo, vG, vL = 1, 2, 3, 4, 5, 6
    vFL, vONE, vX, vO1, vO2, vT, vF, vL4, v128, vRD = 7, 8, 9, 10, 11, 12, 14, 15, 124, 126
    WR, DR, KR, VR, QR = 16, 24, 26, 40, 48
    WF, KF, KS, PKU = 56, 72, 100, 116
    if o.cfirst: a(f"s_cmp_gt_u32 s{sWV}, 9\ns_cselect_b32 s{sT0}, 4, 0\ns_sub_u32 s{sE}, s{sWV}, s{sT0}")
    a(f"s_sub_u32 s{sE}, s{sE if o.cfirst else sWV}, 2\ns_cselect_b32 s{sE}, 8, s{sE}\ns_and_b32 s{sT0}, s{sE}, 4\ns_cselect_b64 vcc, -1, 0")
    a(f"s_lshl_b32 s{sT1}, s{sR}, 1\ns_and_b32 s{sT2}, s{sE}, 4\ns_lshl_b32 s{sT2}, s{sT2}, 4\ns_add_u32 s{sT1}, s{sT1}, s{sT2}")
    a(f"s_bfe_u32 s{sT2}, s{sE}, {(1<<16)|1}\ns_add_u32 s{sT1}, s{sT1}, s{sT2}")
    a(f"s_lshl_b32 s{sT0}, s{sGQ}, 1\ns_and_b32 s{sT3}, s{sE}, 1\ns_add_u32 s{sT0}, s{sT0}, s{sT3}")
    a(f"s_lshl_b32 s{sT2}, s{sGQ}, 5\ns_add_u32 s{sT2}, s{sT2}, s{sR}")
    a(f"v_lshrrev_b32 v{vK3}, 3, v0\nv_mul_u32_u24 v{vK3}, {RS_IN}, v{vK3}\nv_and_b32 v{vWo}, 7, v0\nv_lshl_add_u32 v{vK3}, v{vWo}, 4, v{vK3}")
    a(f"s_cmp_eq_u32 s{sE}, 8")
    a(f"s_cselect_b32 s46, 8, s{sT0}\ns_cselect_b32 s47, s{sT2}, s{sT1}")
    a(f"s_mul_i32 s{sT0}, s47, {16*RS_IN}\ns_lshl_b32 s{sT1}, s46, 7\ns_add_u32 s{sSIG}, s{sT0}, s{sT1}")
    a(f"v_add_u32 v{vIN}, s{sSIG}, v{vK3}")
    a(f"s_lshl_b32 s{sT2}, s46, 9")
    a(f"v_lshl_add_u32 v{vWo}, v0, 4, s{sT2}\nv_lshl_add_u32 v{vDo}, v0, 4, s{sT1}")
    a(f"v_add_u32 v{vK3}, {(-3*RS_IN) & 0xffffffff}, v{vIN}")
    G.srd(sK, None, TENS); G.srd(sV, None, TENS); G.srd(sW, None, 4608)
    a(f"s_mul_i32 s{sSTG}, s{sE}, {STG_SZ}\ns_add_u32 s{sSTG}, s{sSTG}, {U0}\ns_cmp_eq_u32 s{sE}, 8\ns_cselect_b32 s{sSTG}, {STGX}, s{sSTG}\ns_add_u32 s{sT0}, s{sSTG}, 1024")
    a(f"s_cmp_eq_u32 s{sH}, 0")
    a("s_waitcnt lgkmcnt(0)")
    G.stamp(-1, 1)
    a(f"s_cselect_b64 s[{sK}:{sK+1}], s[18:19], s[30:31]")
    a(f"s_cbranch_vccnz L_E2i")
    a(f"s_mov_b32 m0, s{sSTG}\ns_mov_b32 s{sT1}, {5*RS_IN}")
    a(f"buffer_load_dwordx4 v{vK3}, s[{sK}:{sK+3}], 0 offen {o.k_nt} lds")
    a(f"s_mov_b32 m0, s{sT0}\ns_cselect_b64 s[{sV}:{sV+1}], s[20:21], s[32:33]")
    a(f"buffer_load_dwordx4 v{vIN}, s[{sK}:{sK+3}], s{sT1} offen {o.k_nt} lds")
    a(f"s_cselect_b64 s[{sW}:{sW+1}], s[22:23], s[34:35]")
    a(f"s_cselect_b64 s[{sD}:{sD+1}], s[26:27], s[38:39]")
    a(f"s_cselect_b64 s[{sQ}:{sQ+1}], s[16:17], s[28:29]")
    a(f"s_cselect_b64 s[{sHH}:{sHH+1}], s[24:25], s[36:37]")
    if o.barpos == 2: a("s_barrier")
    a(f"s_add_u32 s{sT0}, s{sSTG}, 2048\ns_mov_b32 m0, s{sT0}\ns_mov_b32 s{sT1}, {13*RS_IN}\ns_mov_b64 exec, 0xffffff\ns_add_u32 s{sT0}, s{sSTG}, 4480")
    a(f"buffer_load_dwordx4 v{vIN}, s[{sK}:{sK+3}], s{sT1} offen {o.k_nt} lds")
    a(f"s_mov_b32 m0, s{sT0}\ns_mov_b32 exec_lo, -1\ns_add_u32 s{sT0}, s{sSTG}, 4992")
    a(f"buffer_load_dwordx4 v{vWo}, s[{sW}:{sW+3}], 0 offen lds")
    G.srd(sD, None, 1152)
    a(f"s_mov_b32 m0, s{sT0}\ns_mov_b32 exec_lo, 0xff\ns_add_u32 s{sT0}, s{sSTG}, 2432")
    a(f"buffer_load_dwordx4 v{vDo}, s[{sD}:{sD+3}], 0 offen lds")
    a(f"s_mov_b32 m0, s{sT0}\ns_mov_b64 exec, -1\ns_add_u32 s{sT0}, s{sSTG}, {2432+1024}")
    a(f"buffer_load_dwordx4 v{vIN}, s[{sV}:{sV+3}], 0 offen {nt} lds")
    a(f"s_mov_b32 m0, s{sT0}\ns_mov_b32 s{sT1}, {8*RS_IN}")
    a(f"buffer_load_dwordx4 v{vIN}, s[{sV}:{sV+3}], s{sT1} offen {nt} lds")
    G.stamp(-1, 2)
    if o.barpos != 2: a("s_barrier")
    a("s_branch L_Em")
    a("L_E2i:")
    a(f"s_cselect_b64 s[{sV}:{sV+1}], s[20:21], s[32:33]")
    a(f"s_cselect_b64 s[{sW}:{sW+1}], s[22:23], s[34:35]")
    a(f"s_cselect_b64 s[{sD}:{sD+1}], s[26:27], s[38:39]")
    a(f"s_cselect_b64 s[{sQ}:{sQ+1}], s[16:17], s[28:29]")
    a(f"s_cselect_b64 s[{sHH}:{sHH+1}], s[24:25], s[36:37]")
    a("s_barrier\ns_branch L_Em")

    cHA, cHB, cHB0, cPF, cZ, cU = 48, 49, 50, 51, 56, 60
    a("L_Ci:")
    if o.ebar2: a("s_barrier")
    if not o.cfirst: a(f"s_sub_u32 s46, s{sWV}, {W_C}")
    chan_of(G, 46, sT0)
    a(f"s_lshl_b32 s{sT0}, s{sT0}, 12")
    a(f"v_lshl_add_u32 v{cHA}, v0, 4, s{sT0}")
    inbox_of(G, 47, sSIG)
    G.srd(sHH, None, TENS)
    if o.prefill:
        G.srd(sOUT, None, OUTB)
        a(f"s_lshl_b32 s{sT0}, s46, {5 if o.u2early else 4}\nv_lshrrev_b32 v{cPF}, {1 if o.u2early else 2}, v0\nv_add_u32 v{cPF}, s{sT0}, v{cPF}")
        blk_addr(G, cPF, cHB, sSIG, RS_OUT, 47)
    a(f"s_cmp_eq_u32 s{sH}, 0")
    a("s_waitcnt lgkmcnt(0)" + ("" if o.ebar2 else "\ns_barrier"))
    G.stamp(-1, 1)
    a(f"s_cselect_b64 s[{sHH}:{sHH+1}], s[24:25], s[36:37]")
    xa_loads(G, 64, cHA, 0)
    xa_loads(G, 72, cHA, 1)
    if o.h2early:
        xa_loads(G, 112, cHA, 2)
        xa_loads(G, 120, cHA, 3)
    if o.prefill:
        a(f"s_mov_b64 s[{sOUT}:{sOUT+1}], s[{pOUT}:{pOUT+1}]")
        a(f"buffer_load_dword v{cPF}, v{cPF}, s[{sOUT}:{sOUT+3}], 0 offen {o.pf_nt}")
    G.stamp(-1, 2)
    a("s_branch L_Cm")

    sFL, sONE, s128, sT_, sF_, sL4, sZ, sHA, sHB, sHB0, sU, sU1, sP = 1, 2, 3, 4, 6, 7, 8, 12, 13, 14, 15, 16, 17
    a("L_Si:")
    if o.prefetch_code and not o.pfentry:
        a(f"s_getpc_b64 s[{sT0}:{sT1}]")
        a("L_pc:")
        a(f"s_and_b32 s{sT2}, s{sR}, 7\ns_mul_i32 s{sT2}, s{sT2}, 3072\nv_min_u32 v{sP}, 23, v0\nv_lshl_add_u32 v{sP}, v{sP}, 7, s{sT2}\nv_min_u32 v{sP}, L_exit-L_pc, v{sP}")
        a(f"global_load_dword v{sP}, v{sP}, s[{sT0}:{sT1}]")
    for i in range(4): a(f"v_mov_b32 v{sZ+i}, 0")
    a(f"v_lshlrev_b32 v{sL4}, 2, v0\nv_min_u32 v{sT_}, 60, v{sL4}\nv_add_u32 v{sT_}, {FL0}, v{sT_}\nds_write_b32 v{sT_}, v{sZ}")
    a(f"v_lshlrev_b32 v{s128}, 7, v0")
    a("s_waitcnt lgkmcnt(0)\ns_barrier")
    G.stamp(-1, 1)
    a(f"s_cmp_eq_u32 s{sH}, 0")
    a(f"s_cselect_b64 s[{sHH}:{sHH+1}], s[24:25], s[36:37]")
    a(f"s_cselect_b64 s[{sQ}:{sQ+1}], s[16:17], s[28:29]")
    ctl_srd(G)
    a(f"s_load_dwordx2 s[{sX1+1}:{sX1+2}], s[{sCT}:{sCT+1}], 0")
    a(f"buffer_load_dword v{sHB0}, v{s128}, s[{sCT}:{sCT+3}], s{sGB} offen")
    if o.udata: a(f"v_and_b32 v23, 0x780, v{s128}\nv_add_u32 v23, {L_S}, v23\nbuffer_load_dword v23, v23, s[{sCT}:{sCT+3}], s{sGB} offen")
    if o.pfux:
        a(f"s_add_u32 s{sK}, s{pWS}, {XU_OFF}\ns_addc_u32 s{sK+1}, s{pWS+1}, 0")
        G.srd(sK, None, 3 << 20)
        a(f"s_lshl_b32 s{sT0}, s{sGQ}, 5\ns_add_u32 s{sT0}, s{sT0}, s{sR}\ns_lshl_b32 s{sT0}, s{sT0}, 12\ns_lshl_b32 s{sT1}, s{sH}, {HSH}\ns_add_u32 s{sT0}, s{sT0}, s{sT1}")
        a(f"v_lshlrev_b32 v22, 6, v0\nbuffer_load_dword v22, v22, s[{sK}:{sK+3}], s{sT0} offen")
    G.stamp(-1, 2)
    if o.iso:
        a(f"v_mov_b32 v{sFL}, {FL0}\nv_mov_b32 v{sT_}, 2\nv_mov_b32 v{sT_+1}, 2\nds_write_b64 v{sFL}, v[{sT_}:{sT_+1}] offset:{F_N}\ns_waitcnt lgkmcnt(0)\ns_endpgm")
    a(f"v_mov_b32 v{sFL}, {FL0}\nv_mov_b32 v{sONE}, 1")
    a("s_waitcnt lgkmcnt(0)")
    a(f"s_and_b32 s{sN}, s{sX2}, 0xfffffff0\ns_add_u32 s{sN}, s{sN}, 0x9e3779b0\nv_mov_b32 v{sT_}, s{sN}")
    a(f"s_add_u32 s{sTAG}, s{sX3}, 1\ns_and_b32 s{sTAG}, s{sTAG}, 0xffff\ns_add_u32 s{sT0}, s{sTAG}, 0x10000\nv_mov_b32 v{sT_+1}, s{sT0}")
    a(f"ds_write_b64 v{sFL}, v[{sT_}:{sT_+1}] offset:{F_N}")
    G.stamp(1, -1)
    a(f"v_lshlrev_b32 v{sHA}, 4, v0")
    u_pad(G, 20, sZ, U0 + 4 * U_SZ)
    a(f"v_add_u32 v{sU1}, {XA0 + 4*XA_SZ}, v{sHA}")
    for p in range(4):
        a(f"ds_write_b128 v{sU1}, v[{sZ}:{sZ+3}] offset:{p*PLANE}")
    G.srd(sHH, None, TENS)
    misc_srd(G)
    a(f"s_add_u32 s{sK}, s{pWS}, {XU_OFF}\ns_addc_u32 s{sK+1}, s{pWS+1}, 0")
    G.srd(sK, None, 3 << 20)
    G.srd(sOUT, pOUT, OUTB)
    a(f"s_getreg_b32 s{sF}, hwreg(HW_REG_XCC_ID, 0, 4)\ns_add_u32 s{sF}, s{sF}, s{sN}\ns_add_u32 s{sF}, s{sF}, 1\nv_mov_b32 v{sF_}, s{sF}")
    xbox_of(G, sX3, sX2, sLR)
    a(f"s_add_u32 s{sT0}, s{sX2}, 512\ns_lshl_b32 s{sT0}, s{sT0}, 12")
    a(f"v_add_u32 v{sHA}, s{sT0}, v{sHA}")
    for q in range(4):
        xa_loads(G, 32 + 8 * q, sHA, q)
    if o.w1only: finish(G)
    a(f"v_lshrrev_b32 v{sHB}, 2, v0\nv_sub_u32 v{sHB}, 15, v{sHB}")
    blk_addr(G, sHB, sT_, sLR, 256, sX3)
    a(f"v_and_b32 v{sT_}, 3, v0\nv_lshl_add_u32 v{sHB}, v{sT_}, 4, v{sHB}")
    a(f"v_lshlrev_b32 v18, 3, v0\nv_add_u32 v18, {U0 + 4*U_SZ}, v18\ns_mov_b32 s47, 0x07060302\ns_setprio {o.sprio}")
    for q in range(4):
        a(f"s_waitcnt vmcnt({6-2*q})")
        xa_build(G, 32 + 8 * q, 96 + 12 * (q & 1), sU1, 384 + 1024 * q, q)
    G.stamp(-1, 3)
    poll_lds(G, sFL, C_GO, 4, sT_)
    G.stamp(2, 4, 1)
    def after():
        lds_count(G, sFL, sONE, C_GO)
        u_pad_write(G, 20, sZ)
        return 0
    if "s" in o.x_skip:
        lds_count(G, sFL, sONE, C_GO); a("s_endpgm")
    nS = 4 if o.xsplit else 8
    tagged_loads(G, nS, 96, sHB, sK, lambda k: ((7 - k) * 16 * 4096, 0), sT_, after)
    for k in range(nS):
        a(f"v_perm_b32 v{64+2*k}, v{97+4*k}, v{96+4*k}, s47\nv_perm_b32 v{65+2*k}, v{99+4*k}, v{98+4*k}, s47")
        a(f"ds_write_b64 v18, v[{64+2*k}:{65+2*k}] offset:{512*k}\nds_write_b64 v18, v[{64+2*k}:{65+2*k}] offset:{512*k + UP1 - 8}")
    a("s_waitcnt lgkmcnt(0)")
    lds_count(G, sFL, sONE, F_X)
    G.stamp(3, 6, 3)
    D = G.lab("epo")
    a(f"s_or_b32 s{sT0}, s{sGQ}, s{sR}\ns_cbranch_scc1 {D}")
    if o.xsplit: poll_lds(G, sFL, F_X, 2, sT_)
    a(f"s_mov_b64 exec, 1\nv_mov_b32 v{sT_}, s{sN}\nv_mov_b32 v{sT_+1}, s{sTAG}\nbuffer_store_dwordx2 v[{sT_}:{sT_+1}], off, s[{sCT}:{sCT+3}], 0\ns_mov_b64 exec, -1")
    a(f"{D}:")
    if o.sred:
        a(f"s_add_u32 s{sWMY}, s{pWS}, {XY_OFF}\ns_addc_u32 s{sWMY+1}, s{pWS+1}, 0")
        G.srd(sWMY, None, 3 << 20)
        a(f"s_lshl_b32 s{sT0}, s{sGQ}, 5\ns_add_u32 s{sT0}, s{sT0}, s{sR}\ns_lshr_b32 s{sT0}, s{sT0}, 1\ns_lshl_b32 s{sX4}, s{sH}, {HSH}")
        a(f"v_lshrrev_b32 v{sHA}, 3, v0\nv_add_u32 v{sT_}, s{sT0}, v{sHA}\nv_and_b32 v{sT_}, 7, v{sT_}\ns_and_b32 s{sT0}, s{sT0}, 56\nv_or_b32 v{sT_}, s{sT0}, v{sT_}")
        a(f"v_lshl_add_u32 v{sHA}, v{sHA}, 6, v{sT_}\nv_lshlrev_b32 v{sHA}, 7, v{sHA}\nv_and_b32 v{sT_}, 7, v0\nv_lshl_add_u32 v{sHA}, v{sT_}, 4, v{sHA}\nv_add_u32 v{sHA}, s{sX4}, v{sHA}")
        a(f"v_lshlrev_b32 v{sHB}, 4, v0\nv_add_u32 v{sHB}, {SCR0}, v{sHB}\nv_mov_b32 v19, s{sTAG}\ns_mov_b32 s47, 0xffff0000\nv_mov_b32 v21, 4")
        a(f"s_and_b32 s{sT0}, s{sR}, 1\ns_lshl_b32 s{sX1}, s{sT0}, 16\ns_sub_u32 s{sX2}, {3<<16}, s{sX1}\ns_add_u32 s{sX3}, s{sX1}, {4<<16}\ns_add_u32 s{sX4}, s{sX2}, {4<<16}")
        so = [sX1, sX2, sX3, sX4]
        if o.pfyx:
            for i in range(4): a(f"buffer_load_dword v20, v{sHA}, s[{sWMY}:{sWMY+3}], s{so[i]} offen")
        poll_lds(G, sFL, C_P, 4, sT_, sleep=2)
        for i in range(12):
            a(f"ds_read_b128 v[{32+4*i}:{35+4*i}], v{sHB} offset:{1024*i}")
        for i in range(4):
            if i == 1:
                for k in range(12, 16):
                    a(f"ds_read_b128 v[{32+4*k}:{35+4*k}], v{sHB} offset:{1024*k}")
            a(f"s_waitcnt lgkmcnt({[8, 8, 4, 0][i]})")
            r = 32 + 16 * i
            for d in (0, 2): pk(G, "add", r + d, r + d, r + 4 + d)
            for d in (0, 2): pk(G, "add", r + 8 + d, r + 8 + d, r + 12 + d)
            for d in (0, 2): pk(G, "add", r + d, r + d, r + 8 + d)
            a(f"v_cvt_pk_bf16_f32 v{r+4}, v{r}, v{r+1}\nv_cvt_pk_bf16_f32 v{r+5}, v{r+2}, v{r+3}")
            for d in (0, 1):
                a(f"v_lshl_or_b32 v{r+2*d}, v{r+4+d}, 16, v19\nv_and_or_b32 v{r+2*d+1}, v{r+4+d}, s47, v19")
        G.stamp(4, mid=4, tl=4)
        poll_lds(G, sFL, F_U2, 4, sT_, sleep=1)
        for i in range(4):
            a(f"buffer_store_dwordx4 v[{32+16*i}:{35+16*i}], v{sHA}, s[{sWMY}:{sWMY+3}], s{so[i]} offen sc1")
        lds_count(G, sFL, sONE, F_U2)
        G.stamp(5, mid=5, tl=5)
        a("s_waitcnt vmcnt(0)")
        lds_count(G, sFL, 21, C_YX)
    if o.sqs:
        poll_lds(G, sFL, C_U1, 1, sT_, sleep=3)
        for e in range(o.sqs):
            a(f"s_lshl_b32 s{sT0}, s{sR}, 1\ns_add_u32 s{sT0}, s{sT0}, {e >> 1}\ns_mul_i32 s{sT0}, s{sT0}, {16*RS_IN}\ns_lshl_b32 s{sT1}, s{sGQ}, 8\ns_add_u32 s{sT0}, s{sT0}, s{sT1}\ns_add_u32 s{sT0}, s{sT0}, {128*(e & 1)}")
            sq_prefetch(G, sT0)
        a("s_waitcnt lgkmcnt(0)")
    finish(G)

    a("L_Em:")
    if o.w1only:
        a("s_waitcnt vmcnt(2)"); G.stamp(1, 4); a("s_waitcnt vmcnt(0)"); finish(G)
    if o.iso: a("s_waitcnt vmcnt(0)\ns_endpgm")
    a(f"s_setprio 1\ns_cmp_eq_u32 s{sE}, 8\ns_cbranch_scc0 L_Eh\ns_setprio 3")
    a("L_Eh:")
    G.stamp(-1, 3)
    vB1, vB2, vB3, vB4 = 42, 43, 44, 45
    vA1, vA2, vA3, vA4, vA5 = vK3, vWo, vDo, 125, 127
    QF, DF, YR, YF = KF, WF, 16, 24
    LX, LP, L2, LW, LZ = G.lab("ex"), G.lab("ep"), G.lab("e2"), G.lab("ew"), G.lab("ez")
    a(f"v_and_b32 v{vG}, 15, v0\nv_lshrrev_b32 v{vL}, 4, v0")
    a(f"v_mul_u32_u24 v{vIN}, {4*RS_IN}, v{vL}\nv_lshl_add_u32 v{vIN}, v{vG}, 3, v{vIN}\nv_add_u32 v{vIN}, s{sSIG}, v{vIN}")
    E2a = G.lab("e2a")
    a(f"s_cbranch_vccz {E2a}")
    a(f"s_sub_u32 s{sSTG}, s{sE}, 4\ns_mul_i32 s{sSTG}, s{sSTG}, {2432 if o.konly else 4480}\ns_add_u32 s{sSTG}, s{sSTG}, {YB0 if o.konly else SCR0}")
    G.srd(sD, None, 1152)
    a(f"s_lshl_b32 s{sT0}, s46, 9\nv_lshl_add_u32 v{vWo}, v{vG}, 5, s{sT0}\ns_lshl_b32 s{sT0}, s46, 7\nv_lshl_add_u32 v{vDo}, v{vG}, 3, s{sT0}")
    a(f"buffer_load_dwordx4 v[{WR}:{WR+3}], v{vWo}, s[{sW}:{sW+3}], 0 offen\nbuffer_load_dwordx4 v[{WR+4}:{WR+7}], v{vWo}, s[{sW}:{sW+3}], 0 offen offset:16")
    a(f"buffer_load_dwordx2 v[{DR}:{DR+1}], v{vDo}, s[{sD}:{sD+3}], 0 offen")
    a(f"{E2a}:")
    a(f"v_lshlrev_b32 v{vRD}, 9, v{vL}\nv_lshl_add_u32 v{vRD}, v{vG}, 3, v{vRD}\nv_add_u32 v{vRD}, s{sSTG}, v{vRD}")
    a(f"v_lshl_add_u32 v{vWo}, v{vG}, 5, s{sSTG}\nv_lshl_add_u32 v{vDo}, v{vG}, 3, s{sSTG}")
    G.srd(sQ, None, TENS); G.srd(sHH, None, TENS)
    G.srd(sOUT, pOUT, OUTB)
    ctl_srd(G)
    misc_srd(G)
    a(f"s_mov_b32 s{sLC}, s46\ns_lshl_b32 s{sROW0}, s47, 4")
    a(f"s_lshl_b32 s{sT1}, s{sLC}, 7\ns_mul_i32 s{sCOL}, s{sH}, 1152\ns_add_u32 s{sCOL}, s{sCOL}, s{sT1}")
    a(f"s_mul_i32 s{sT0}, s{sROW0}, {RS_OUT}\ns_add_u32 s{sT0}, s{sT0}, s{sCOL}")
    a(f"v_mul_u32_u24 v{vO1}, {4*RS_OUT}, v{vL}\nv_lshl_add_u32 v{vO1}, v{vG}, 3, v{vO1}\nv_add_u32 v{vO1}, s{sT0}, v{vO1}")
    a(f"v_add_u32 v{vO2}, {2*RS_OUT}, v{vO1}")
    a(f"s_lshl_b32 s{sT1}, s47, 12\ns_lshl_b32 s{sT2}, s{sH}, {HSH}\ns_add_u32 s{sT1}, s{sT1}, s{sT2}\ns_mov_b32 s{sT2}, {RS_OUT}")
    a(f"s_cmp_eq_u32 s{sE}, 8\ns_cselect_b32 s{sT0}, s{sT1}, s{sT0}\ns_cselect_b32 s{sT1}, 256, s{sT2}\ns_cselect_b32 s{sT2}, 6, 5")
    a(f"v_and_b32 v{vX}, 12, v{vG}\nv_add3_u32 v{vX}, v{vX}, v{vL}, s47\nv_and_b32 v{vX}, 15, v{vX}\nv_mul_u32_u24 v{vX}, s{sT1}, v{vX}")
    a(f"v_and_b32 v{vT}, 3, v{vG}\nv_lshlrev_b32 v{vT}, s{sT2}, v{vT}\nv_add3_u32 v{vX}, v{vX}, v{vT}, s{sT0}")
    a(f"v_mov_b32 v{vFL}, {FL0}\nv_mov_b32 v{vONE}, 1\nv_lshlrev_b32 v{vL4}, 3, v0\nv_lshlrev_b32 v{v128}, 9, v0")
    a(f"s_and_b32 s{sX3}, s{sE}, 3\ns_lshl_b32 s{sEV}, s{sR}, 2\ns_add_u32 s{sEV}, s{sEV}, s{sX3}\ns_lshl_b32 s{sEV}, s{sEV}, 2\ns_add_u32 s{sEV}, s{sEV}, s{sGB}")
    a(f"s_mov_b32 s47, 0xffff0000")
    if o.k2early: a(f"s_cbranch_vccnz {L2}")
    get_nonce(G, vFL, vT, vF)
    if not o.k2early: a(f"s_cbranch_vccnz {L2}")

    def unpack_w():
        for c in range(4):
            for j in range(4):
                src = WR + 2 * c + (j >> 1)
                a(f"v_lshlrev_b32 v{WF+4*j+c}, 16, v{src}" if j % 2 == 0 else f"v_and_b32 v{WF+4*j+c}, s47, v{src}")
    def first_phase(packed, wait_v, part=3):
        for i in range(7 if part & 1 else 0):
            for d in range(2):
                a(f"v_lshlrev_b32 v{KF+4*i+2*d}, 16, v{KR+2*i+d}")
                a(f"v_and_b32 v{KF+4*i+2*d+1}, s47, v{KR+2*i+d}")
        for j in ((3, 2, 1, 0) if part & 1 else ()):
            if j == 0: wait_v(0)
            for r in range(4):
                for d in range(2):
                    ks, w, k = KS + 4 * r + 2 * d, WF + 4 * j + 2 * d, KF + 4 * (3 + r - j) + 2 * d
                    if j == 3: pk(G, "mul", ks, k, w, force=packed)
                    else: pk(G, "fma", ks, k, w, ks, force=packed)
        if not part & 2: return
        wait_v(1)
        for r in range(4):
            for d in range(2):
                a(f"v_lshlrev_b32 v{KF+4*r+2*d}, 16, v{VR+2*r+d}")
                a(f"v_and_b32 v{KF+4*r+2*d+1}, s47, v{VR+2*r+d}")
        for r in range(4):
            for d in range(2):
                pk(G, "mul", KS + 4 * r + 2 * d, KS + 4 * r + 2 * d, KF + 4 * r + 2 * d, force=packed)
        regs = [PKU + 2 * (3 - j) for j in range(4)]
        for c in range(4):
            a(f"v_cvt_pk_bf16_f32 v{regs[c]}, v{KS+12+c}, v{KS+8+c}")
            a(f"v_cvt_pk_bf16_f32 v{regs[c]+1}, v{KS+4+c}, v{KS+c}")
        transpose4(G, regs)
    def skip_term(packed=True, part=3):
        for d in range(2 if part & 1 else 0):
            a(f"v_lshlrev_b32 v{DF+2*d}, 16, v{DR+d}\nv_and_b32 v{DF+2*d+1}, s47, v{DR+d}")
        for r in range(4 if part & 2 else 0):
            for d in range(2):
                pk(G, "mul", KS + 4 * r + 2 * d, KS + 4 * r + 2 * d, DF + 2 * d, force=packed)
    def qloads():
        for i in range(4):
            a(f"buffer_load_dwordx2 v[{QR+2*i}:{QR+2*i+1}], v{vIN}, s[{sQ}:{sQ+3}], 0 offen offset:{i*RS_IN} {nt}")
    def gate(nyoung):
        a(f"s_setprio {o.eprio}\ns_waitcnt vmcnt({nyoung})")
        G.stamp(1, tl=1)
        for r in range(4):
            for d in range(2):
                a(f"v_lshlrev_b32 v{QF+4*r+2*d}, 16, v{QR+2*r+d}\nv_and_b32 v{QF+4*r+2*d+1}, s47, v{QR+2*r+d}")
        for r in range(4):
            for d in range(2):
                pk(G, "mul", KS + 4 * r + 2 * d, KS + 4 * r + 2 * d, QF + 4 * r + 2 * d)
        G.stamp(4)
    def mode_stores(lines):
        A, B = G.lab("ms"), G.lab("md")
        a(f"s_cmp_eq_u32 s{sM}, 0\ns_cbranch_scc0 {A}")
        a("\n".join(lines))
        a(f"{B}:")
        def cold():
            a(f"{A}:")
            a("\n".join(l + " sc1" for l in lines))
            a(f"s_branch {B}")
        G.cold.append(cold)
    ustores = [f"buffer_store_dwordx4 v[{PKU}:{PKU+3}], v{vX}, s[{sXU}:{sXU+3}], 0 offen",
               f"buffer_store_dwordx4 v[{PKU+4}:{PKU+7}], v{vX}, s[{sXU}:{sXU+3}], 0 offen offset:16"]
    def last_phase(packed, line, cnt, mid_label=None):
        held = []
        a(f"s_lshl_b32 s{sT0}, s{sX3}, 9\ns_add_u32 s{sX2}, s{sT0}, s{sGB}\ns_add_u32 s{sX2}, s{sX2}, {line}")
        LG = G.lab("yg")
        if (packed or o.y1data) and o.ydata:
            L, F, C = G.lab("yl"), G.lab("yf"), G.lab("yc")
            a(f"s_cmp_eq_u32 s{sM}, 0\ns_cbranch_scc0 {F}")
            if packed: poll_lds(G, vFL, C_Y2, 4, vT, sleep=1)
            G.stamp(-1, tl=2)
            a(f"s_mov_b32 s{sCNT}, 0")
            a(f"{L}:")
            a(f"buffer_load_dwordx4 v[{YR}:{YR+3}], v{vX}, s[{sXY}:{sXY+3}], 0 offen sc1")
            a(f"buffer_load_dwordx4 v[{YR+4}:{YR+7}], v{vX}, s[{sXY}:{sXY+3}], 0 offen offset:16 sc1")
            a(f"s_add_u32 s{sCNT}, s{sCNT}, 1\ns_waitcnt vmcnt(1)")
            for g in range(4):
                if g == 2: a("s_waitcnt vmcnt(0)")
                a(f"v_xor_b32 v{YF+g}, v{YR+2*g}, v{PKU+2*g}\nv_bitop3_b32 v{YF+g}, v{YF+g}, v{YR+2*g+1}, v{PKU+2*g+1} bitop3:0xf6")
            a(f"v_min3_u32 v{YF}, v{YF}, v{YF+1}, v{YF+2}\nv_min_u32 v{YF}, v{YF}, v{YF+3}\nv_cmp_eq_u32 vcc, 0, v{YF}")
            a(f"s_cbranch_vccz {LG}")
            if o.ysleep: a(f"s_sleep {o.ysleep}")
            a(f"s_cmp_lt_u32 s{sCNT}, 6\ns_cbranch_scc1 {L}")
            a(f"{F}:")
        poll_line(G, vL4, sX2, 2, vT, (f"s{sDGO}", cnt), 128, sleep=(o.sleep if packed else 2))
        G.stamp(5)
        a(f"buffer_load_dwordx4 v[{YR}:{YR+3}], v{vX}, s[{sXY}:{sXY+3}], 0 offen sc1")
        a(f"buffer_load_dwordx4 v[{YR+4}:{YR+7}], v{vX}, s[{sXY}:{sXY+3}], 0 offen offset:16 sc1")
        a("s_waitcnt vmcnt(0)")
        if packed and o.dry: a("s_mov_b64 vcc, 0")
        a(f"{LG}:")
        if packed and o.defer: lds_count(G, vFL, vONE, C_R)
        G.stamp(6, tl=3)
        if packed and o.share3:
            a(f"s_branch {LZ}1")
            G.flush_cold()
            return
        if not packed: a(f"{LZ}1:")
        if packed and o.dry: a(f"{LZ}d:")
        if o.tl: a(f"s_mul_i32 s{STAMP_REGS[5]}, s{sCNT}, 100\ns_add_u32 s{STAMP_REGS[5]}, s{STAMP_REGS[5]}, s88")
        transpose4(G, [YR + 2 * j for j in range(4)])
        if mid_label: a(f"{mid_label}:")
        for c in range(4):
            for d in range(2):
                a(f"v_lshlrev_b32 v{YF+8*d+c}, 16, v{YR+2*c+d}\nv_and_b32 v{YF+8*d+4+c}, s47, v{YR+2*c+d}")
        for r in range(4):
            for d in range(2):
                ks, q, y = KS + 4 * r + 2 * d, QF + 4 * r + 2 * d, YF + 4 * r + 2 * d
                pk(G, "fma", y, q, y, ks, force=packed)
            for d in range(2):
                y = YF + 4 * r + 2 * d
                a(f"v_cvt_pk_bf16_f32 v{YR+2*r+d}, v{y}, v{y+1}")
            st = f"buffer_store_dwordx2 v[{YR+2*r}:{YR+2*r+1}], v{vO1 if r < 2 else vO2}, s[{sOUT}:{sOUT+3}], 0 offen offset:{(r&1)*RS_OUT} {o.out_flag}"
            if packed and o.dry: held.append(st)
            elif packed or not o.defer: a(st)
            else: held.append(st)
        G.stamp(-1, tl=4)
        if packed and o.dry:
            a(f"s_cbranch_vccnz {LZ}r")
            a("\n".join(held)); held = []
        if held:
            poll_lds(G, vFL, C_R, 4, vT, sleep=1)
            a("\n".join(held))
        finish(G)

    a("s_waitcnt vmcnt(2)")
    G.stamp(-1, 4)
    a(f"ds_read_b128 v[{WR}:{WR+3}], v{vWo} offset:4480\nds_read_b128 v[{WR+4}:{WR+7}], v{vWo} offset:4496")
    for i in range(7):
        a(f"ds_read_b64 v[{KR+2*i}:{KR+2*i+1}], v{vRD} offset:{128*i}")
    a(f"ds_read_b64 v[{DR}:{DR+1}], v{vDo} offset:4992")
    a("s_waitcnt lgkmcnt(8)")
    unpack_w()
    a("s_waitcnt lgkmcnt(0)")
    def wait_v(k):
        if k == 0:
            a("s_waitcnt vmcnt(0)")
            G.stamp(-1, 5)
            for i in range(4):
                a(f"ds_read_b64 v[{VR+2*i}:{VR+2*i+1}], v{vRD} offset:{2432 + 128*i}")
        else:
            a("s_waitcnt lgkmcnt(0)")
    first_phase(True, wait_v)
    a(f"s_cmp_eq_u32 s{sE}, 8\ns_cbranch_scc1 {LX}")
    a("\n".join(ustores))
    skip_term()
    a(f"{LP}:")
    a("s_waitcnt vmcnt(0)")
    signal(G, vF, v128, sEV, L_U1, 2, 4, YR)
    if o.uxlate == 1 or o.cgate: lds_count(G, vFL, vONE, C_R)
    G.stamp(3, 6)
    chan_of(G, sE, sT0)
    a(f"s_lshl_b32 s{sT0}, s{sT0}, 12\nv_lshl_add_u32 v{vA3}, v0, 4, s{sT0}")
    a(f"s_mul_i32 s{sT0}, s{sE}, {XA_SZ}\nv_lshl_add_u32 v{vRD}, v0, 4, s{sT0}")
    inbox_of(G, sX1, sX2)
    for k in range(2):
        a(f"v_lshrrev_b32 v{vA1 if k == 0 else vA2}, 3, v0" + (f"\nv_add_u32 v{vA2}, 8, v{vA2}" if k else ""))
        blk_addr(G, vA1 if k == 0 else vA2, vT, sX2, RS_OUT, sX1)
    a(f"v_and_b32 v{vT}, 7, v0\nv_lshl_add_u32 v{vA1}, v{vT}, 4, v{vA1}\nv_lshl_add_u32 v{vA2}, v{vT}, 4, v{vA2}")
    a(f"s_lshl_b32 s{sT0}, s{sE}, 4\ns_add_u32 s{sT0}, s{sT0}, 64\nv_lshrrev_b32 v{vB4}, 2, v0\nv_add_u32 v{vB4}, s{sT0}, v{vB4}")
    blk_addr(G, vB4, vT, sX2, RS_OUT, sX1)
    if o.coop2:
        uc_setup(G, vA4, vA5, 40, vT, sE, sX2, sX1, 1)
    else:
        a(f"s_lshl_b32 s{sT0}, s{sE}, 5\ns_add_u32 s{sX1}, s{sX1}, s{sT0}")
        u_src(G, vA4, vT, sX2, sX1)
        a(f"s_mul_i32 s{sT0}, s{sE}, {U_SZ}\ns_add_u32 s{sT0}, s{sT0}, {U0}\nv_lshl_add_u32 v{vL}, v0, 4, s{sT0}\nv_add_u32 v{vA5}, {UP1 - 8}, v{vL}")
    a(f"s_lshl_b32 s{sT0}, s{sE}, 11\ns_add_u32 s{sT0}, s{sT0}, {YB0}\nv_lshl_add_u32 v{vG}, v0, 4, s{sT0}\ns_mul_i32 s{sX1}, s{sE}, {TILE_STEP}")
    a(f"s_add_u32 s{sWMY}, s{pWS}, {XY_OFF}\ns_addc_u32 s{sWMY+1}, s{pWS+1}, 0")
    G.srd(sWMY, None, 3 << 20)
    a(f"s_lshl_b32 s{sT0}, s{sGQ}, 5\ns_add_u32 s{sT0}, s{sT0}, s{sR}\ns_lshr_b32 s{sT0}, s{sT0}, 1\ns_lshl_b32 s{sX4}, s{sH}, {HSH}")
    a(f"v_lshrrev_b32 v{vB1}, 3, v0\nv_add_u32 v{vT}, s{sT0}, v{vB1}\nv_and_b32 v{vT}, 7, v{vT}\ns_and_b32 s{sT0}, s{sT0}, 56\nv_or_b32 v{vT}, s{sT0}, v{vT}")
    a(f"v_lshl_add_u32 v{vB1}, v{vB1}, 6, v{vT}\nv_lshlrev_b32 v{vB1}, 7, v{vB1}\nv_and_b32 v{vT}, 7, v0\nv_lshl_add_u32 v{vB1}, v{vT}, 4, v{vB1}\nv_add_u32 v{vB1}, s{sX4}, v{vB1}")
    a(f"s_lshl_b32 s{sT0}, s{sX3}, 12\ns_add_u32 s{sT0}, s{sT0}, {SCR0}\nv_lshl_add_u32 v{vB2}, v0, 4, s{sT0}\nv_mov_b32 v{vB3}, s{sTAG}")
    a(f"s_mov_b32 s{sT0}, 0x7430\ns_mov_b32 s{sT1}, 0x6521\ns_and_b32 s{sT2}, s{sR}, 1\ns_cselect_b32 s{sT0}, s{sT1}, s{sT0}")
    a(f"s_lshl_b32 s{sT1}, s{sX3}, 2\ns_lshr_b32 s{sT0}, s{sT0}, s{sT1}\ns_and_b32 s{sT0}, s{sT0}, 7\ns_lshl_b32 s{sX4}, s{sT0}, 16")
    def scalar_prefill(first, n):
        inbox_of(G, sT0, sT1)
        if isinstance(first, int): a(f"s_add_u32 s{sT0}, s{sT0}, {first*16*RS_OUT}")
        else: a(f"s_mul_i32 s{sT2}, {first}, {16*RS_OUT}\ns_add_u32 s{sT0}, s{sT0}, s{sT2}")
        a(f"s_add_u32 s{sK}, s{pOUT}, s{sT0}\ns_addc_u32 s{sK+1}, s{pOUT+1}, 0\ns_add_u32 s{sK+2}, s{sK}, 64\ns_addc_u32 s{sK+3}, s{sK+1}, 0\ns_mov_b32 s{sT3}, 0")
        L = G.lab("sp")
        a(f"{L}:")
        for i in range(2):
            a(f"s_add_u32 s{sT2}, s{sT1}, s{sT3}\ns_and_b32 s{sT2}, s{sT2}, 15\ns_lshl4_add_u32 s{sT2}, s{sT3}, s{sT2}\ns_mul_i32 s{sV+2+i}, s{sT2}, {RS_OUT}\ns_add_u32 s{sT3}, s{sT3}, 1")
            a(f"s_load_dword s{sV}, s[{sK}:{sK+1}], s{sV+2+i}\ns_load_dword s{sV+1}, s[{sK+2}:{sK+3}], s{sV+2+i}")
        a(f"s_cmp_lt_u32 s{sT3}, {n}\ns_cbranch_scc1 {L}")
    if o.spf2 == 1:
        a(f"s_lshl_b32 s{sLR}, s{sE}, 4\ns_add_u32 s{sLR}, s{sLR}, 64")
        scalar_prefill(f"s{sLR}", 16)
    def hook(L):
        R = G.lab("rp")
        a(f"s_cmp_gt_u32 s{sX2}, s{sM}\ns_cbranch_scc1 {R}")
        def cold():
            a(f"{R}:")
            to_mode1(G, vF)
            a("\n".join(l + " sc1" for l in ustores))
            a(f"s_branch {LP}")
        G.cold.append(cold)
    poll_lds(G, vFL, C_GO, (9 if o.word == 0 else 5) + (1 if o.xsplit else 0), vT, pair=sX2, hook=hook)
    if 0 < o.hgate < 5: poll_lds(G, vFL, C_U0, o.hgate, vT)
    if o.hgate >= 5: poll_lds(G, vFL, C_GO, 9 + o.hgate - 4, vT)
    if o.pfirst: a(f"buffer_load_dword v{vB4}, v{vB4}, s[{sOUT}:{sOUT+3}], 0 offen {o.pf_nt}")
    if not o.h2early:
        xa_loads(G, KR, vA3, 2)
        xa_loads(G, KR + 8, vA3, 3)
    if o.word:
        lds_count(G, vFL, vONE, C_GO)
        poll_lds(G, vFL, C_GO, 13, vT)
    if not o.pfirst and not o.spf2: a(f"buffer_load_dword v{vB4}, v{vB4}, s[{sOUT}:{sOUT+3}], 0 offen {o.pf_nt}")
    if o.udata:
        a(f"s_lshl_b32 s{sT0}, s{sE}, 9\ns_add_u32 s{sT0}, s{sT0}, s{sGB}\ns_add_u32 s{sT0}, s{sT0}, {L_S}")
        a(f"buffer_load_dwordx2 v[46:47], v{vL4}, s[{sCT}:{sCT+3}], s{sT0} offen sc1")
    assert not (o.udata and (o.pfyx or o.defer or o.h2early))
    if o.pfyx and not o.sred: a(f"buffer_load_dword v46, v{vB1}, s[{sWMY}:{sWMY+3}], s{sX4} offen")
    if o.q1w2: qloads()
    if o.qw2:
        lds_count(G, vFL, vONE, C_GO)
        poll_lds(G, vFL, C_GO, 13, vT)
        qloads()
    if "1" in o.x_skip: a("s_endpgm")
    G.stamp(-1, mid=1)
    a(f"s_setprio {o.hiprio}\ns_add_u32 s{sEV}, s{sEV}, {L_Y1}\ns_lshl_b32 s{sT0}, s{sE}, 9\ns_add_u32 s{sX2}, s{sT0}, s{sGB}\ns_add_u32 s{sX2}, s{sX2}, {L_U2}")
    if not o.h2early:
        ny = (0 if o.pfirst or o.spf2 else 1) + (1 if o.pfyx or o.udata else 0) + (4 if o.q1w2 or o.qw2 else 0)
        a(f"s_waitcnt vmcnt({2+ny})")
        xa_build(G, KR, WF, vRD, XA0 + 384 + 2048, 2, plain=True)
        a(f"s_waitcnt vmcnt({ny})")
        xa_build(G, KR + 8, KF, vRD, XA0 + 384 + 3072, 3, plain=True)
        a("s_waitcnt lgkmcnt(0)")
        lds_count(G, vFL, vONE, C_H)
    if not o.seq2: G.stamp(-1, mid=2)
    if o.udata:
        a(f"s_waitcnt vmcnt(0)\nv_xor_b32 v46, s{sF}, v46\nv_bitop3_b32 v46, v46, v47, s{sF} bitop3:0xf6\nv_cmp_ne_u32 vcc, 0, v46")
        a(f"s_cmp_eq_u64 vcc, 0\ns_cselect_b32 s{sLR}, 1, 0\ns_cmp_eq_u32 s{sM}, 0\ns_cselect_b32 s{sLR}, s{sLR}, 0")
    YX = KF
    yxstore = f"buffer_store_dwordx4 v[{YX}:{YX+3}], v{vB1}, s[{sWMY}:{sWMY+3}], s{sX4} offen sc1"
    def reduce():
        poll_lds(G, vFL, C_P, 4, vT, sleep=2)
        r = WF
        for i in range(4):
            a(f"ds_read_b128 v[{r+4*i}:{r+4*i+3}], v{vB2} offset:{1024*i}")
        a("s_waitcnt lgkmcnt(2)")
        for d in (0, 2): pk(G, "add", r + d, r + d, r + 4 + d)
        a("s_waitcnt lgkmcnt(0)")
        for d in (0, 2): pk(G, "add", r + 8 + d, r + 8 + d, r + 12 + d)
        for d in (0, 2): pk(G, "add", r + d, r + d, r + 8 + d)
        a(f"v_cvt_pk_bf16_f32 v{r+4}, v{r}, v{r+1}\nv_cvt_pk_bf16_f32 v{r+5}, v{r+2}, v{r+3}")
        for d in (0, 1):
            a(f"v_lshl_or_b32 v{YX+2*d}, v{r+4+d}, 16, v{vB3}\nv_and_or_b32 v{YX+2*d+1}, v{r+4+d}, s47, v{vB3}")
        G.stamp(-1, mid=3)
    def carry():
        if o.y1dir: return
        poll_lds(G, vFL, C_Y1, 4, vT, sleep=2)
        a(f"ds_read_b128 v[{YR}:{YR+3}], v{vG}\nds_read_b128 v[{YR+4}:{YR+7}], v{vG} offset:1024\ns_waitcnt lgkmcnt(0)")
        mode_stores([f"buffer_store_dwordx4 v[{YR}:{YR+3}], v{vA1}, s[{sXY}:{sXY+3}], s{sX1} offen",
                     f"buffer_store_dwordx4 v[{YR+4}:{YR+7}], v{vA2}, s[{sXY}:{sXY+3}], s{sX1} offen"])
        if o.seq2: G.stamp(-1, mid=2)
        a("s_waitcnt vmcnt(0)")
        signal(G, vF, v128, sEV, L_Y1, 2, 8, YR)
    def u2duty():
        LU = G.lab("ug")
        if o.ugate: poll_lds(G, vFL, C_U1, 4, vT, sleep=1)
        if o.udata:
            L, F = G.lab("ul"), G.lab("uf")
            a(f"s_cmp_eq_u32 s{sLR}, 0\ns_cbranch_scc1 {F}")
            poll_lds(G, vFL, C_R, 4, vT, sleep=1)
            a(f"s_mov_b32 s{sCNT}, 0")
            a(f"{L}:")
            uc_loads(G, 28, vA4, vA5)
            a(f"s_add_u32 s{sCNT}, s{sCNT}, 1\ns_waitcnt vmcnt(1)")
            a(f"v_bitop3_b32 v{vT}, v28, v29, v30 bitop3:0x80\nv_and_b32 v{vT}, v{vT}, v31\ns_waitcnt vmcnt(0)")
            a(f"v_bitop3_b32 v{vT+1}, v32, v33, v34 bitop3:0x80\nv_and_b32 v{vT+1}, v{vT+1}, v35\nv_max_u32 v{vT}, v{vT}, v{vT+1}\nv_cmp_eq_u32 vcc, -1, v{vT}")
            a(f"s_cbranch_vccz {LU}")
            a(f"s_sleep 1\ns_cmp_lt_u32 s{sCNT}, {o.utry}\ns_cbranch_scc1 {L}")
            a(f"{F}:")
        poll_line(G, vL4, sX2, 2, vT, (f"s{sDGO}", 16), 128, sleep=o.usleep)
        if o.coop2: uc_loads(G, 28, vA4, vA5)
        else: u_loads(G, KR + 2, vA4, (1, 0))
        a(f"{LU}:")
        G.stamp(-1, mid=4)
        a(f"s_waitcnt vmcnt(1)")
        if o.coop2: uc_write(G, 28, 40, 0)
        else: u_write(G, KR + 2, vL, vA5, 1)
        a(f"s_waitcnt vmcnt(0)")
        if o.coop2: uc_write(G, 32, 40, 1)
        else: u_write(G, KR + 6, vL, vA5, 0)
        if not o.qw2 and not o.redlate and not o.yxearly and not o.sred: a(yxstore)
        a("s_waitcnt lgkmcnt(0)")
        lds_count(G, vFL, vONE, F_U2)
        G.stamp(-1, mid=5, tl=2)
    def yxdone():
        a("s_waitcnt vmcnt(0)")
        lds_count(G, vFL, vONE, C_YX)
    if o.sred:
        u2duty()
        poll_lds(G, vFL, F_U2, 5, vT, sleep=1)
        qloads()
    elif o.seq2:
        reduce(); carry(); u2duty(); qloads()
        a("s_waitcnt vmcnt(4)")
        lds_count(G, vFL, vONE, C_YX)
    elif o.qw2 and o.redlate: u2duty(); reduce(); a(yxstore); yxdone(); carry()
    elif o.qw2: reduce(); a(yxstore); yxdone(); u2duty(); carry()
    elif o.redlate:
        u2duty(); reduce(); a(yxstore)
        if o.qhold: lds_count(G, vFL, vONE, C_Y1)
        if not o.q1w2: qloads()
        a(f"s_waitcnt vmcnt({0 if o.q1w2 else 4})")
        lds_count(G, vFL, vONE, C_YX)
        carry()
    elif o.yxearly:
        reduce(); a(yxstore); u2duty()
        if not o.q1w2: qloads()
        carry()
    else:
        reduce(); u2duty()
        if not o.q1w2: qloads()
        a(f"s_waitcnt vmcnt({0 if o.q1w2 else 4})")
        lds_count(G, vFL, vONE, C_YX)
        carry()
    gate(0)
    G.stamp(-1, mid=6)
    last_phase(False, L_Y2 if o.merge else L_Y1, 12 if o.merge else 8, f"{LZ}2")

    a(f"{L2}:")
    a(f"v_lshrrev_b32 v{vA2}, 3, v0\nv_mul_u32_u24 v{vA2}, {RS_IN}, v{vA2}\nv_and_b32 v{vT}, 7, v0\nv_lshl_add_u32 v{vA2}, v{vT}, 4, v{vA2}\nv_add_u32 v{vA2}, s{sSIG}, v{vA2}")
    a(f"v_add_u32 v{vA1}, {(-3*RS_IN) & 0xffffffff}, v{vA2}")
    if o.udata:
        for k in range(4): a(f"v_mov_b32 v{PKU+k}, -1")
        a(f"buffer_store_dwordx4 v[{PKU}:{PKU+3}], v{vX}, s[{sXU}:{sXU+3}], 0 offen\nbuffer_store_dwordx4 v[{PKU}:{PKU+3}], v{vX}, s[{sXU}:{sXU+3}], 0 offen offset:16")
        a(f"s_add_u32 s{sX1}, s{sEV}, {L_S}\ns_waitcnt vmcnt(0)\ns_mov_b64 exec, 15")
        a(f"buffer_store_dword v{vF}, v{v128}, s[{sCT}:{sCT+3}], s{sX1} offen\ns_mov_b64 exec, -1")
    a(f"s_add_u32 s{sEV}, s{sEV}, {L_U2}")
    if o.e2dir:
        a(f"v_add_u32 v{vA1}, {(-3*RS_IN) & 0xffffffff}, v{vIN}\ns_waitcnt vmcnt(0)")
        unpack_w()
        poll_lds(G, vFL, C_GO, o.e2lvl, vT, pair=sX2)
        adopt_mode(G, sX2, vF)
        for i in range(3):
            a(f"buffer_load_dwordx2 v[{KR+2*i}:{KR+2*i+1}], v{vA1}, s[{sK}:{sK+3}], 0 offen offset:{i*RS_IN} {o.k_nt}")
        for i in range(4):
            a(f"buffer_load_dwordx2 v[{KR+6+2*i}:{KR+7+2*i}], v{vIN}, s[{sK}:{sK+3}], 0 offen offset:{i*RS_IN} {o.k_nt}")
        for i in range(4):
            a(f"buffer_load_dwordx2 v[{VR+2*i}:{VR+2*i+1}], v{vIN}, s[{sV}:{sV+3}], 0 offen offset:{i*RS_IN} {nt}")
        lds_count(G, vFL, vONE, C_GO)
        G.stamp(-1, mid=1)
        a(f"s_setprio {o.hiprio}\ns_waitcnt vmcnt(4)")
        G.stamp(-1, mid=3)
        first_phase(False, lambda k: a("s_waitcnt vmcnt(0)") if k else None)
    elif o.k2early:
        a(f"s_mov_b32 m0, s{sSTG}\ns_add_u32 s{sT0}, s{sSTG}, 1024\ns_mov_b32 s{sT1}, {5*RS_IN}")
        a(f"buffer_load_dwordx4 v{vA1}, s[{sK}:{sK+3}], 0 offen {o.k_nt} lds")
        a(f"s_mov_b32 m0, s{sT0}\ns_add_u32 s{sT0}, s{sSTG}, 2048")
        a(f"buffer_load_dwordx4 v{vA2}, s[{sK}:{sK+3}], s{sT1} offen {o.k_nt} lds")
        a(f"s_mov_b32 m0, s{sT0}\ns_mov_b32 s{sT1}, {13*RS_IN}\ns_mov_b64 exec, 0xffffff")
        a(f"buffer_load_dwordx4 v{vA2}, s[{sK}:{sK+3}], s{sT1} offen {o.k_nt} lds")
        a("s_mov_b64 exec, -1\ns_setprio 0\ns_waitcnt vmcnt(3)")
        unpack_w()
        a("s_waitcnt vmcnt(0)")
        for i in range(7):
            a(f"ds_read_b64 v[{KR+2*i}:{KR+2*i+1}], v{vRD} offset:{128*i}")
        a("s_waitcnt lgkmcnt(0)")
        lds_count(G, vFL, vONE, C_U0)
        first_phase(False, lambda k: None, part=1)
        skip_term(False, 1)
        if o.dry: a(f"s_mov_b64 vcc, -1\ns_branch {LZ}d\n{LZ}r:")
        get_nonce(G, vFL, vT, vF)
        G.stamp(-1, mid=2)
        poll_lds(G, vFL, C_GO, 9 if o.word == 2 else o.e2lvl + (1 if o.xsplit else 0), vT, pair=sX2)
        adopt_mode(G, sX2, vF)
        for i in range(4):
            a(f"buffer_load_dwordx2 v[{VR+2*i}:{VR+2*i+1}], v{vIN}, s[{sV}:{sV+3}], 0 offen offset:{i*RS_IN} {nt}")
        lds_count(G, vFL, vONE, C_GO)
        G.stamp(-1, mid=1)
        if o.qw2 and o.q2now:
            poll_lds(G, vFL, C_GO, 13, vT)
            qloads()
        a(f"s_setprio {o.hiprio}\ns_waitcnt vmcnt({4 if o.qw2 and o.q2now else 0})")
        if o.qw2 and not o.q2now: qloads()
        G.stamp(-1, mid=3)
        first_phase(False, lambda k: None, part=2)
    else:
        a("s_waitcnt vmcnt(0)")
        unpack_w()
        if o.konly: poll_lds(G, vFL, C_U1, 1, vT, sleep=2)
        if "2" in o.x_skip:
            poll_lds(G, vFL, C_GO, 5, vT); lds_count(G, vFL, vONE, C_GO); a("s_endpgm")
        poll_lds(G, vFL, C_GO, 9 if o.word == 2 else o.e2lvl + (1 if o.xsplit else 0), vT, pair=sX2)
        adopt_mode(G, sX2, vF)
        a(f"s_mov_b32 m0, s{sSTG}\ns_add_u32 s{sT0}, s{sSTG}, 1024\ns_mov_b32 s{sT1}, {5*RS_IN}")
        a(f"buffer_load_dwordx4 v{vA1}, s[{sK}:{sK+3}], 0 offen {o.k_nt} lds")
        a(f"s_mov_b32 m0, s{sT0}\ns_add_u32 s{sT0}, s{sSTG}, 2048")
        a(f"buffer_load_dwordx4 v{vA2}, s[{sK}:{sK+3}], s{sT1} offen {o.k_nt} lds")
        a(f"s_mov_b32 m0, s{sT0}\ns_mov_b32 s{sT1}, {13*RS_IN}\ns_mov_b64 exec, 0xffffff\ns_add_u32 s{sT0}, s{sSTG}, 2432")
        a(f"buffer_load_dwordx4 v{vA2}, s[{sK}:{sK+3}], s{sT1} offen {o.k_nt} lds")
        if o.konly:
            a("s_mov_b64 exec, -1")
            for i in range(4):
                a(f"buffer_load_dwordx2 v[{VR+2*i}:{VR+2*i+1}], v{vIN}, s[{sV}:{sV+3}], 0 offen offset:{i*RS_IN} {nt}")
        else:
            a(f"s_mov_b32 m0, s{sT0}\ns_mov_b64 exec, -1\ns_add_u32 s{sT0}, s{sSTG}, {2432+1024}")
            a(f"buffer_load_dwordx4 v{vA2}, s[{sV}:{sV+3}], 0 offen {nt} lds")
            a(f"s_mov_b32 m0, s{sT0}\ns_mov_b32 s{sT1}, {8*RS_IN}")
            a(f"buffer_load_dwordx4 v{vA2}, s[{sV}:{sV+3}], s{sT1} offen {nt} lds")
        lds_count(G, vFL, vONE, C_GO)
        G.stamp(-1, mid=1)
        a(f"s_setprio {o.hiprio}\ns_waitcnt vmcnt({4 if o.konly else 2})")
        if o.hgate >= 5: lds_count(G, vFL, vONE, C_GO)
        G.stamp(-1, mid=3)
        for i in range(7):
            a(f"ds_read_b64 v[{KR+2*i}:{KR+2*i+1}], v{vRD} offset:{128*i}")
        a("s_waitcnt lgkmcnt(0)")
        def wait_v2(k):
            if o.konly:
                if k: a("s_waitcnt vmcnt(0)")
                return
            wait_v(k)
            if k == 0 and o.qw2: qloads()
            if k: lds_count(G, vFL, vONE, C_U0)
        first_phase(False, wait_v2)
    G.stamp(2, mid=4)
    mode_stores(ustores)
    if o.udata: lds_count(G, vFL, vONE, C_R)
    skip_term(False, 2 if o.k2early else 3)
    a("s_waitcnt vmcnt(0)")
    signal(G, vF, v128, sEV, L_U2, 2, 16, YR)
    G.stamp(3, mid=5)
    lds_count(G, vFL, vONE, C_U1)
    if o.sq2: sq_prefetch(G, sSIG)
    if not o.qw2:
        poll_lds(G, vFL, C_Y1 if o.qhold else F_U2, 5 if o.yxearly or o.sred else 4, vT, sleep=2)
        qloads()
    gate(0)
    G.stamp(-1, mid=6)
    last_phase(True, L_Y2, 12)
    a(f"{LX}:")
    a(f"s_add_u32 s{sXU}, s{pWS}, {XU_OFF}\ns_addc_u32 s{sXU+1}, s{pWS+1}, 0\ns_add_u32 s{sXY}, s{pWS}, {XY_OFF}\ns_addc_u32 s{sXY+1}, s{pWS+1}, 0")
    a(f"v_and_b32 v{vT}, 4095, v{vX}\nv_lshrrev_b32 v{vT}, 1, v{vT}\nv_add_u32 v{vT}, s{sSTG}, v{vT}")
    a(f"ds_write_b128 v{vT}, v[{PKU}:{PKU+3}]\nds_write_b128 v{vT}, v[{PKU+4}:{PKU+7}] offset:16")
    a(f"v_lshl_add_u32 v{vT}, v0, 3, s{sSTG}")
    for k in range(4):
        a(f"ds_read_b64 v[{KF+2*k}:{KF+2*k+1}], v{vT} offset:{512*k}")
    a(f"v_and_b32 v{vG}, 0xfffff000, v{vX}\nv_lshl_add_u32 v{vG}, v0, 4, v{vG}\nv_mov_b32 v{vK3}, s{sTAG}")
    for k in range(4):
        a(f"s_waitcnt lgkmcnt({3-k})")
        for d in (0, 1):
            a(f"v_lshl_or_b32 v{QR-8+4*k+2*d}, v{KF+2*k+d}, 16, v{vK3}\nv_and_or_b32 v{QR-8+4*k+2*d+1}, v{KF+2*k+d}, s47, v{vK3}")
        if not o.uxlate: a(f"buffer_store_dwordx4 v[{QR-8+4*k}:{QR-8+4*k+3}], v{vG}, s[{sXU}:{sXU+3}], 0 offen offset:{1024*k} sc1")
    if o.uxlate:
        poll_lds(G, vFL, C_GO if o.uxlate == 2 else C_R, 4, vT, sleep=1)
        for k in range(4):
            a(f"buffer_store_dwordx4 v[{QR-8+4*k}:{QR-8+4*k+3}], v{vG}, s[{sXU}:{sXU+3}], 0 offen offset:{1024*k} sc1")
    if o.konly: lds_count(G, vFL, vONE, C_U1)
    G.stamp(3, 6)
    skip_term()
    a(f"s_lshr_b32 s{sT0}, s{sROW0}, 5\ns_lshl_b32 s{sT1}, s{sT0}, 13\ns_lshl_b32 s{sT2}, s{sH}, {HSH}\ns_add_u32 s{sT1}, s{sT1}, s{sT2}")
    a(f"s_bfe_u32 s{sT2}, s{sROW0}, {(1<<16)|4}\ns_lshl_b32 s{sT2}, s{sT2}, 6\ns_add_u32 s{sT1}, s{sT1}, s{sT2}")
    a(f"v_lshrrev_b32 v{vX}, 2, v0")
    a(f"v_add_u32 v{vT}, s{sT0}, v{vX}\nv_and_b32 v{vT}, 7, v{vT}\nv_and_b32 v{vX}, 8, v{vX}\nv_or_b32 v{vX}, v{vX}, v{vT}\nv_lshl_add_u32 v{vX}, v{vX}, 7, s{sT1}")
    a(f"v_and_b32 v{vT}, 3, v0\nv_lshl_add_u32 v{vX}, v{vT}, 4, v{vX}")
    a(f"v_lshlrev_b32 v{vA1}, 3, v0\nv_add_u32 v{vA1}, {XT0}, v{vA1}")
    a(f"v_and_b32 v{vA2}, 15, v0\nv_lshlrev_b32 v{vA2}, 7, v{vA2}\nv_lshrrev_b32 v{vT}, 4, v0\nv_lshl_add_u32 v{vA2}, v{vT}, 3, v{vA2}\nv_add_u32 v{vA2}, {XT0}, v{vA2}")
    if o.xsplit:
        xbox_of(G, sX1, sT0, sX2)
        a(f"v_lshrrev_b32 v{vG}, 2, v0\nv_sub_u32 v{vG}, 15, v{vG}")
        blk_addr(G, vG, vT, sX2, 256, sX1)
        a(f"v_and_b32 v{vT}, 3, v0\nv_lshl_add_u32 v{vG}, v{vT}, 4, v{vG}\nv_lshlrev_b32 v{vRD}, 3, v0\nv_add_u32 v{vRD}, {U0 + 4*U_SZ}, v{vRD}\ns_mov_b32 s{sX1}, 0x07060302")
        poll_lds(G, vFL, C_GO, 4, vT)
        tagged_loads(G, 4, 24, vG, sXU, lambda k: ((3 - k) * 16 * 4096, 0), vT, after=lambda: (lds_count(G, vFL, vONE, C_GO), 0)[1])
        for k in range(4):
            a(f"v_perm_b32 v{KF+2*k}, v{25+4*k}, v{24+4*k}, s{sX1}\nv_perm_b32 v{KF+2*k+1}, v{27+4*k}, v{26+4*k}, s{sX1}")
            a(f"ds_write_b64 v{vRD}, v[{KF+2*k}:{KF+2*k+1}] offset:{512*(k+4)}\nds_write_b64 v{vRD}, v[{KF+2*k}:{KF+2*k+1}] offset:{512*(k+4) + UP1 - 8}")
        a("s_waitcnt lgkmcnt(0)")
        lds_count(G, vFL, vONE, F_X)
    if o.spf2 == 2: scalar_prefill(64, 64)
    if o.sqx:
        poll_lds(G, vFL, C_U1, 1, vT, sleep=3)
        sq_prefetch(G, sSIG)
    if "x" in o.x_skip: a("s_endpgm")
    if o.qw2: poll_lds(G, vFL, C_GO, 13, vT, sleep=3)
    else: poll_lds(G, vFL, C_Y1 if o.qhold else F_U2, 5 if o.sred else 4, vT, sleep=3)
    if not o.yxearly:
        qloads()
        poll_lds(G, vFL, C_YX, 4, vT, sleep=2)
    G.stamp(5, mid=3, tl=2)
    tagged_loads(G, 4, 24, vX, sXY, lambda k: (0, 2048 * k) if k < 2 else (4096, 2048 * (k - 2)), vT, after=(lambda: (lds_count(G, vFL, vONE, F_U2), qloads(), 4)[2]) if o.yxearly else None)
    a(f"s_mov_b32 s{sT0}, 0x07060302")
    G.stamp(-1, mid=4, tl=3)
    for k in range(4):
        a(f"v_perm_b32 v{YR+2*k}, v{25+4*k}, v{24+4*k}, s{sT0}\nv_perm_b32 v{YR+2*k+1}, v{27+4*k}, v{26+4*k}, s{sT0}")
        a(f"ds_write_b64 v{vA1}, v[{YR+2*k}:{YR+2*k+1}] offset:{512*k}")
    for c in range(4):
        a(f"ds_read_b64 v[{YR+2*c}:{YR+2*c+1}], v{vA2} offset:{32*c}")
    gate(0)
    a(f"s_waitcnt lgkmcnt(0)\ns_branch {LZ}2")
    G.flush_cold()

    a("L_Cm:")
    if o.w1only:
        a("s_waitcnt vmcnt(1)"); G.stamp(1, 4); a("s_waitcnt vmcnt(0)"); finish(G)
    a(f"s_setprio {o.cprio}")
    G.stamp(1, 3)
    ctl_srd(G)
    misc_srd(G)
    a(f"s_mov_b32 s{sJ}, s46\ns_mov_b32 s{sCOL}, s47")
    a(f"s_mul_i32 s{sX2}, s{sJ}, {XA_SZ}\ns_mul_i32 s{sX3}, s{sJ}, {U_SZ}\ns_add_u32 s{sX3}, s{sX3}, {U0}")
    for i in range(4): a(f"v_mov_b32 v{cZ+i}, 0")
    a(f"v_lshl_add_u32 v{cHA}, v0, 4, s{sX2}")
    for p in range(4):
        a(f"ds_write_b128 v{cHA}, v[{cZ}:{cZ+3}] offset:{XA0 + p*PLANE}")
    a(f"v_lshl_add_u32 v{cHB}, v0, 4, s{sX3}\nv_add_u32 v{cHB0}, {UP1 - 8 + 2048}, v{cHB}")
    u_pad(G, 62, cZ, f"s{sX3}")
    a(f"v_and_b32 v{cT}, 3, v0\nv_mul_u32_u24 v{cA}, {PLANE}, v{cT}")
    a(f"v_bfe_u32 v{cB}, v0, 2, 2\nv_lshl_add_u32 v{cA}, v{cB}, 7, v{cA}")
    a(f"v_lshrrev_b32 v{cB}, 4, v0\nv_lshl_add_u32 v{cA}, v{cB}, 4, v{cA}")
    a(f"s_lshl_b32 s{sT0}, s{sJ}, 7")
    a(f"s_add_u32 s{sT1}, s{sT0}, {XA0 + 4*XA_SZ}\nv_add_u32 v{cAX}, s{sT1}, v{cA}\nv_add_u32 v{cA}, s{sX2}, v{cA}")
    a(f"v_lshlrev_b32 v{cB}, 4, v{cB}\nv_and_b32 v{cBX}, 15, v0\nv_lshlrev_b32 v{cBX}, 3, v{cBX}\nv_sub_u32 v{cB}, v{cB}, v{cBX}\nv_add_u32 v{cB}, 120, v{cB}")
    a(f"v_and_b32 v{cBX}, 1, v0\nv_xor_b32 v{cBX}, 1, v{cBX}\nv_mul_u32_u24 v{cBX}, {UP1 - 8}, v{cBX}\nv_add_u32 v{cB}, v{cB}, v{cBX}")
    a(f"s_add_u32 s{sT1}, s{sT0}, {U0 + 4*U_SZ}\nv_add_u32 v{cBX}, s{sT1}, v{cB}\nv_add_u32 v{cB}, s{sX3}, v{cB}")
    a(f"s_and_b32 s{sTS}, s{sR}, 1\ns_lshl_b32 s{sT2}, s{sJ}, 5\ns_add_u32 s{sCOL}, s{sCOL}, s{sT2}")
    a(f"v_lshrrev_b32 v{cY}, 2, v0")
    blk_addr(G, cY, cU, sSIG, RS_OUT, sCOL)
    a(f"v_lshl_add_u32 v{cY}, v{cT}, 3, v{cY}")
    a(f"v_lshrrev_b32 v{cYX}, 2, v0\nv_lshlrev_b32 v{cYX}, 7, v{cYX}\nv_lshl_add_u32 v{cYX}, v{cT}, 3, v{cYX}\ns_lshl_b32 s{sT2}, s{sJ}, 5\ns_add_u32 s{sT2}, s{sT2}, {YB0}\nv_add_u32 v{cYX}, s{sT2}, v{cYX}")
    a(f"s_lshl_b32 s{sT0}, s{sJ}, 10\ns_add_u32 s{sT0}, s{sT0}, {SCR0}\nv_lshl_add_u32 v{cSW}, v0, 4, s{sT0}")
    a(f"v_mov_b32 v{cFL}, {FL0}\nv_mov_b32 v{cONE}, 1\nv_lshlrev_b32 v{cL4}, 3, v0\nv_lshlrev_b32 v{c128}, 9, v0")
    a(f"s_lshl_b32 s{sEV}, s{sR}, 2\ns_add_u32 s{sEV}, s{sEV}, s{sJ}\ns_lshl_b32 s{sEV}, s{sEV}, 2\ns_add_u32 s{sEV}, s{sEV}, s{sGB}\ns_add_u32 s{sEV}, s{sEV}, {L_Y2}")
    if o.coop1: uc_setup(G, cU, cU + 1, 52, cT, sJ, sSIG, 47, 0)
    else: u_src(G, cU, cT, sSIG, sCOL)
    a(f"s_lshl_b32 s{sX4}, s{sJ}, 9\ns_add_u32 s{sX4}, s{sX4}, s{sGB}\ns_add_u32 s{sX4}, s{sX4}, {L_U1}")
    npf = 1 if o.prefill else 0
    if o.h2early: npf += 4
    a(f"s_waitcnt vmcnt({2+npf})")
    G.stamp(-1, 4)
    xa_build(G, 64, 80, cHA, XA0 + 384, 0)
    a(f"s_waitcnt vmcnt({npf})")
    xa_build(G, 72, 16, cHA, XA0 + 384 + 1024, 1)
    if o.h2early:
        a(f"s_waitcnt vmcnt({npf-2})")
        xa_build(G, 112, 80, cHA, XA0 + 384 + 2048, 2)
        a(f"s_waitcnt vmcnt({npf-4})")
        xa_build(G, 120, 16, cHA, XA0 + 384 + 3072, 3)
    get_nonce(G, cFL, cT, cF)
    G.stamp(-1, -1)
    def detect(R):
        SW, NX = G.lab("dsw"), G.lab("dnx")
        a("s_mov_b64 exec, -1")
        a(f"ds_read_b32 v{cT}, v{cFL} offset:{F_M}\ns_waitcnt lgkmcnt(0)\nv_readfirstlane_b32 s{sT0}, v{cT}")
        a(f"s_cmp_eq_u32 s{sT0}, 0\ns_cbranch_scc0 {SW}")
        a(f"s_cmp_eq_u32 s{sJ}, 0\ns_cbranch_scc0 {NX}")
        a(f"s_sub_u32 s{sT2}, s{sF}, s{sN}\ns_sub_u32 s{sT2}, s{sT2}, 1\ns_mul_i32 s{sT3}, s{sT2}, s{sT2}\ns_lshl_b32 s{sT3}, s{sT3}, 16")
        a(f"s_lshl_b32 s{sT2}, s{sT2}, 8\ns_add_u32 s{sT2}, s{sT2}, s{sT3}\ns_add_u32 s{sT2}, s{sT2}, 1\ns_lshl_b32 s{sT3}, s{sT2}, 5")
        a(f"s_cmp_eq_u32 s{sCNT}, 64\ns_cselect_b32 s{sT2}, s{sT2}, 0")
        a(f"s_mov_b64 exec, 1\nv_mov_b32 v{cT}, s{sT2}")
        a(f"buffer_atomic_add v{cT}, off, s[{sDG}:{sDG+3}], s{sDGO} sc0 sc1")
        a("s_waitcnt vmcnt(0)")
        a(f"v_readfirstlane_b32 s{sT0}, v{cT}\ns_mov_b64 exec, -1\ns_add_u32 s{sT0}, s{sT0}, s{sT2}")
        if not o.force_mode1:
            a(f"s_cmp_eq_u32 s{sT0}, s{sT3}\ns_cbranch_scc1 {NX}")
        a(f"s_and_b32 s{sT0}, s{sT0}, 0xff\ns_cmp_ge_u32 s{sT0}, 32\ns_cbranch_scc0 {NX}")
        a(f"ds_write_b32 v{cFL}, v{cONE} offset:{F_M}")
        a(f"{SW}:")
        to_mode1(G, cF)
        a(f"s_add_u32 s{sX4}, s{sX4}, {UOFF}\ns_mov_b32 s{sLR}, s{sN}")
        a(f"{NX}:")
    if o.force_mode1:
        a(f"s_add_u32 s{sF}, s{sF}, 0")
    if o.cgate: poll_lds(G, cFL, C_R, 4, cT, sleep=1)
    if not o.iso:
        if o.force_mode1:
            a(f"s_xor_b32 s{sLR}, s{sF}, 0x40000000")
        poll_line(G, cL4, sX4, 2, 80, (f"s{sDGO}", 4), 128, sleep=o.csleep, detect=detect, scmp=(sLR if o.force_mode1 else sF))
    G.stamp(-1, 5)
    if o.coop1: uc_loads(G, 64, cU, cU + 1)
    else: u_loads(G, 64, cU, (3, 2))
    lds_count(G, cFL, cONE, C_GO)
    u_pad_write(G, 62, cZ)
    a(f"s_cmp_lg_u32 s{sM}, 0\ns_cselect_b64 vcc, -1, 0")
    def pre():
        if o.coop1:
            a("s_waitcnt vmcnt(1)")
            uc_write(G, 64, 52, 0)
            a("s_waitcnt vmcnt(0)")
            uc_write(G, 68, 52, 1)
            a("s_waitcnt lgkmcnt(0)")
            lds_count(G, cFL, cONE, F_YX)
            poll_lds(G, cFL, F_YX, 4, cT, sleep=0)
            G.stamp(2, 6, 2, 2)
            return 0
        a("s_waitcnt vmcnt(1)")
        u_write(G, 64, cHB, cHB0, 3)
        a("s_waitcnt vmcnt(0)")
        u_write(G, 68, cHB, cHB0, 2)
        G.stamp(2, 6, 2, 2)
        return 4
    if not o.apre: pre()
    a(f"s_cmp_eq_u32 s{sTS}, 0")
    a("s_cbranch_scc0 L_C1")
    st0 = c_stream(G, 0, pre if o.apre else None)
    a("L_C1:")
    st1 = c_stream(G, 1, pre if o.apre else None)
    a("L_exit:")
    a("s_endpgm")

    head = open("cdna_kernels/" + NAME + ".s.ref").read().split("\n")
    hdr = [l for l in head if l.startswith("; Kernarg") or l.startswith(";   offset")]
    hdr += DOC.strip("\n").split("\n")
    out = hdr + [f"; @launch grid=(256,1,1) block=(896,1,1) lds={LDS_SZ}",
                 '.amdgcn_target "amdgcn-amd-amdhsa--gfx950"', ".text", f".globl {K}", ".p2align 8", f".type {K},@function"]
    out += G.L
    out += ['.section .rodata,"a"', ".p2align 6", f".amdhsa_kernel {K}",
            "  .amdhsa_next_free_vgpr 128", "  .amdhsa_next_free_sgpr 102", "  .amdhsa_accum_offset 128",
            "  .amdhsa_group_segment_fixed_size 0", "  .amdhsa_kernarg_size 120", "  .amdhsa_user_sgpr_count 2",
            "  .amdhsa_user_sgpr_kernarg_segment_ptr 1", "  .amdhsa_system_sgpr_workgroup_id_x 1",
            "  .amdhsa_float_denorm_mode_32 3", ".end_amdhsa_kernel", ""]
    print("stream stats (mfma, ds, max/gap, gaps>1):", st0, st1, file=sys.stderr)
    return "\n".join(out)


if __name__ == "__main__":
    ap = argparse.ArgumentParser()
    ap.add_argument("-o", default="cdna_kernels/" + NAME + ".s")
    ap.add_argument("opts", nargs="*")
    args = ap.parse_args()
    o = Opt()
    for kv in args.opts:
        k, v = kv.split("=", 1)
        cur = getattr(o, k)
        setattr(o, k, (v not in ("0", "False", "")) if isinstance(cur, bool) else type(cur)(v))
    open(args.o, "w").write(gen(o))
```
